```python
import torch

def _softmax(x, axis=-1):
    return torch.softmax(x, dim=axis)
def _gelu(x):
    return torch.nn.functional.gelu(x, approximate="tanh")
def _silu(x):
    return torch.nn.functional.silu(x)
def _sigmoid(x):
    return torch.sigmoid(x)
def _layernorm(x, axis=-1, eps=1e-5):
    m = x.mean(dim=axis, keepdim=True)
    v = x.var(dim=axis, keepdim=True, unbiased=False)
    return (x - m) / torch.sqrt(v + eps)
def _scatter_add(tgt, idx, src, axis=0):
    return tgt.clone().index_add_(axis, idx, src)
def _segment_sum(src, seg, n):
    out = torch.zeros((n,) + src.shape[1:], dtype=src.dtype)
    return out.index_add_(0, seg, src)
def _pad(x, pw):
    flat = tuple(v for pair in reversed(pw) for v in pair)
    return torch.nn.functional.pad(x, flat)

kernel_name = 'interleave_layers__sliding_local_dilated__ssm_conv_h3__prompt'

def setup_inputs():

    _w = (lambda a: (lambda t: t.to(torch.bfloat16) if t.is_floating_point() else t)(torch.as_tensor(a)))
    def _A_setup():
        B, S, D = 1, 2048, 512
        return {
            "x": _w((lambda *s: torch.randn(*s, dtype=torch.bfloat16) * 0.05)(B, S, D)),
            "wqkv": _w((lambda *s: torch.randn(*s, dtype=torch.bfloat16) * 0.05)(D, 3 * D)),
            "wo": _w((lambda *s: torch.randn(*s, dtype=torch.bfloat16) * 0.05)(D, D)),
        }
    _A_in = _A_setup()

    def _B_setup():
        B, S, D = 1, 2048, 512
        ks = 4
        return {
            "q": _w((lambda *s: torch.randn(*s, dtype=torch.bfloat16) * 0.05)(B, S, D)),
            "k": _w((lambda *s: torch.randn(*s, dtype=torch.bfloat16) * 0.4)(B, S, D)),
            "v": _w((lambda *s: torch.randn(*s, dtype=torch.bfloat16) * 0.4)(B, S, D)),
            "shift_k": _w((lambda *s: torch.randn(*s, dtype=torch.bfloat16) * 0.4)(D, ks) * 0.5),
            "ssm_k": _w((lambda *s: torch.randn(*s, dtype=torch.bfloat16) * 0.8)(D, S) * (1.0 / S ** 0.5)),
            "ssm_D": _w((lambda *s: torch.randn(*s, dtype=torch.bfloat16) * 0.4)(D)),
        }
    _B_in = _B_setup()

    return {
        "A_x": _A_in["x"],
        "A_wqkv": _A_in["wqkv"],
        "A_wo": _A_in["wo"],
        "B_q": _B_in["q"],
        "B_k": _B_in["k"],
        "B_v": _B_in["v"],
        "B_shift_k": _B_in["shift_k"],
        "B_ssm_k": _B_in["ssm_k"],
        "B_ssm_D": _B_in["ssm_D"],
    }

def reference(A_x, A_wqkv, A_wo, B_q, B_k, B_v, B_shift_k, B_ssm_k, B_ssm_D):
    def _A_ref(x, wqkv, wo):
        B, S, D = x.shape
        H = 32; Dh = D // H
        W, dil = 8, 2
        qkv = (lambda x, *d: x.permute(*d))((x @ wqkv).reshape(B, S, 3, H, Dh), 2, 0, 3, 1, 4)
        q, k, v = qkv[0], qkv[1], qkv[2]
        scale = Dh ** -0.5
        pos = torch.arange(S)
        off = torch.arange(W) * dil
        idx = pos[:, None] - off[None, :]
        mask = idx >= 0
        idx_c = torch.where(mask, idx, 0).reshape(-1)
        kg = k[:, :, idx_c, :].reshape(B, H, S, W, Dh)
        vg = v[:, :, idx_c, :].reshape(B, H, S, W, Dh)
        logits = torch.einsum("bhsd,bhswd->bhsw", q, kg) * scale
        logits = torch.where(mask[None, None, :, :], logits, -1e9)
        attn = _softmax(logits, axis=-1)
        o = torch.einsum("bhsw,bhswd->bhsd", attn, vg)
        return (lambda x, *d: x.permute(*d))(o, 0, 2, 1, 3).reshape(B, S, D) @ wo

    def _B_ref(q, k, v, shift_k, ssm_k, ssm_D):
        B, S, D = q.shape
        ks = shift_k.shape[-1]
        k_pad = _pad(k, ((0, 0), (ks - 1, 0), (0, 0)))
        k_shift = torch.zeros_like(k)
        for t in range(ks):
            k_shift = k_shift + k_pad[:, t:t + S, :] * shift_k[:, ks - 1 - t][None, None, :]
        kv = k_shift * v
        L = 2 * S
        kv_pad = _pad(kv, ((0, 0), (0, S), (0, 0)))
        kf_pad = _pad(ssm_k, ((0, 0), (0, S)))
        kv_f = (lambda x, axes=(-2,-1): torch.fft.rfft2(x.float(), dim=axes))(kv_pad[:, None, :, :], axes=(1, 2))
        kf_f = (lambda x, axes=(-2,-1): torch.fft.rfft2(x.float(), dim=axes))(kf_pad[:, None, :], axes=(1, 2))
        kf_f = (lambda x, *d: x.permute(*d))(kf_f, 1, 2, 0)
        y_f = kv_f * kf_f[None, :, :, :]
        y = (lambda x, s, axes=(-2,-1): torch.fft.irfft2(x, s=s, dim=axes).to(torch.bfloat16))(y_f, (1, L), axes=(1, 2))[:, 0, :S, :]
        y = y + kv * ssm_D[None, None, :]
        return q * y

    x = A_x
    x = x + _A_ref(_layernorm(x, axis=-1), A_wqkv, A_wo)
    x = x + _B_ref(_layernorm(x, axis=-1), B_k, B_v, B_shift_k, B_ssm_k, B_ssm_D)
    x = x + _A_ref(_layernorm(x, axis=-1), A_wqkv, A_wo)
    x = x + _B_ref(_layernorm(x, axis=-1), B_k, B_v, B_shift_k, B_ssm_k, B_ssm_D)
    return x
```

```python
import re

_REG = re.compile(r"^(-|abs\()?(v|a|s)(\d+|\[(\d+):(\d+)\])\)?$")

def regs_of(tok):
    tok = tok.strip()
    if tok in ("vcc",):
        return {("s", 106), ("s", 107)}
    if tok in ("vcc_lo",): return {("s", 106)}
    if tok in ("vcc_hi",): return {("s", 107)}
    if tok == "exec": return {("s", 126), ("s", 127)}
    if tok == "m0": return {("s", 124)}
    m = _REG.match(tok)
    if not m:
        return set()
    k = m.group(2)
    if m.group(4) is not None:
        lo, hi = int(m.group(4)), int(m.group(5))
    else:
        lo = hi = int(m.group(3))
    return {(k, i) for i in range(lo, hi + 1)}

TRANS = ("v_exp_f32", "v_log_f32", "v_rcp_f32", "v_rsq_f32", "v_sqrt_f32", "v_sin_f32", "v_cos_f32")

class Ins:
    __slots__ = ("mn", "ops", "dst", "src", "cls", "passes", "srcC", "srcAB", "pos", "mods", "text")

def parse(line):
    s = line.split(";")[0].strip()
    if not s:
        return None
    parts = s.split(None, 1)
    mn = parts[0]
    rest = parts[1] if len(parts) > 1 else ""
    ops = [o.strip() for o in re.split(r",(?![^\(]*\))", rest)] if rest else []
    mods = ""
    if ops:
        last = ops[-1].split(None, 1)
        if len(last) > 1:
            ops[-1] = last[0]; mods = last[1]
    i = Ins(); i.mn = mn; i.ops = ops; i.mods = mods; i.text = s
    i.dst = set(); i.src = set(); i.srcC = set(); i.srcAB = set(); i.passes = 0
    R = [regs_of(o) for o in ops]
    if mn.startswith("v_mfma"):
        i.cls = "mfma"
        i.passes = 8 if "32x32" in mn else 4
        i.dst = R[0]; i.srcAB = R[1] | R[2]; i.srcC = R[3] if len(R) > 3 else set()
        i.src = i.srcAB | i.srcC
    elif mn.startswith("v_"):
        i.cls = "valu"
        if mn.startswith("v_permlane") and "swap" in mn:
            i.dst = R[0] | R[1]; i.src = R[0] | R[1]
        elif mn.startswith(("v_add_co", "v_sub_co", "v_addc_co", "v_subb_co")):
            i.dst = R[0] | R[1]; i.src = set().union(*R[2:])
        else:
            i.dst = R[0]; i.src = set().union(*R[1:]) if len(R) > 1 else set()
            if mn.startswith(("v_fmac", "v_dot2c", "v_pk_fmac")) or "dpp" in mn:
                i.src |= R[0]
            if mn.startswith("v_cndmask") and len(ops) == 3:
                i.src |= regs_of("vcc")
    elif mn.startswith("ds_"):
        i.cls = "ds"
        if mn.startswith(("ds_read", "ds_bpermute", "ds_permute", "ds_swizzle")):
            i.dst = R[0]; i.src = set().union(*R[1:])
        else:
            i.src = set().union(*R)
    elif mn.startswith(("buffer_", "global_")):
        i.cls = "vmem"
        if "load" in mn and "lds" not in mods.split():
            i.dst = R[0]; i.src = set().union(*R[1:])
        else:
            i.src = set().union(*R) if R else set()
            if "lds" in mods.split():
                i.src |= regs_of("m0")
    elif mn.startswith("s_"):
        i.cls = "salu"
        if mn.startswith(("s_cmp", "s_waitcnt", "s_barrier", "s_nop", "s_branch", "s_cbranch", "s_endpgm", "s_sleep", "s_setprio", "s_setpc", "s_bitcmp")):
            i.src = set().union(*R) if R else set()
        else:
            i.dst = R[0] if R else set(); i.src = set().union(*R[1:]) if len(R) > 1 else set()
            if "saveexec" in mn:
                i.dst |= regs_of("exec")
    else:
        raise ValueError("unknown instr " + s)
    return i

def vonly(s):
    return {r for r in s if r[0] in "va"}
def sonly(s):
    return {r for r in s if r[0] == "s"}

def required(p, c):
    n = 0
    if p.cls == "valu":
        pv = vonly(p.dst); ps = sonly(p.dst)
        if c.cls == "mfma" and pv & c.src: n = max(n, 2)
        if re.sub(r"_e(32|64)$", "", p.mn) in TRANS and c.cls in ("valu", "mfma") and pv & (c.src | c.dst): n = max(n, 1)
        if c.cls == "valu" and (c.mn.startswith("v_permlane") or "dpp" in c.mn or "row_" in c.mods) and pv & c.src: n = max(n, 2)
        if c.cls == "valu" and c.mn.startswith(("v_readfirstlane", "v_readlane")) and pv & c.src: n = max(n, 1)
        if ps:
            if c.cls == "valu" and ps & c.src:
                n = max(n, 4 if c.mn.startswith(("v_readlane", "v_writelane")) else 2)
            if c.cls == "vmem" and ps & c.src: n = max(n, 5)
            if c.cls == "salu" and ps & c.src: n = max(n, 1)
        if p.mn.startswith("v_dot"):
            if c.cls == "valu" and c.mn == p.mn and pv & c.src and pv == vonly(c.dst) :
                pass
            elif pv & (c.src | c.dst): n = max(n, 3)
    if p.cls == "mfma":
        big = {4: 8, 8: 12}[p.passes]
        if c.cls == "mfma":
            if p.dst & c.srcAB: n = max(n, big)
            if p.dst & c.srcC:
                if not (p.dst == c.srcC and p.passes == c.passes): n = max(n, big - 2)
            elif p.dst & c.dst: n = max(n, big)
        else:
            if p.dst & (c.src | c.dst): n = max(n, big)
            if c.cls == "valu" and p.srcC & c.dst: n = max(n, {4: 3, 8: 7}[p.passes])
    if p.cls == "salu":
        if ("s", 124) in p.dst and c.cls == "vmem" and ("s", 124) in c.src: n = max(n, 1)
    if p.cls == "vmem" and "store" in p.mn and ("x4" in p.mn or "x3" in p.mn):
        data = regs_of(p.ops[0])
        if c.cls in ("valu", "mfma") and data & c.dst: n = max(n, 2)
        elif data & c.dst: n = max(n, 1)
    return n

class Asm:
    def __init__(self):
        self.lines = []
        self.nlabel = 0
        self.hist = []
        self.pos = 0
        self.npad = 0
    def _emit(self, l):
        ins = parse(l)
        if ins is None:
            self.lines.append("    " + l); return
        need = 0
        for p, pos in self.hist:
            r = required(p, ins)
            if r:
                have = self.pos - pos - 1
                need = max(need, r - have)
        while need > 0:
            k = min(need, 16)
            self.lines.append(f"    s_nop {k-1}")
            self.pos += k; need -= k; self.npad += k
        self.lines.append("    " + l)
        if ins.mn == "s_nop":
            self.pos += int(ins.ops[0], 0) + 1
        else:
            self.hist.append((ins, self.pos))
            self.pos += 1
        self.hist = [(p, pos) for p, pos in self.hist if self.pos - pos <= 24]
    def __call__(self, s):
        for l in s.strip("\n").split("\n"):
            l = l.strip()
            if l: self._emit(l)
    def raw(self, s):
        self.lines.append(s)
    def label(self, name, pad=0):
        self.lines.append(name + ":")
        if pad:
            self(f"s_nop {pad-1}")
    def flush(self):
        need = 0
        for p, pos in self.hist:
            if p.cls == "mfma": r = {4: 8, 8: 12}[p.passes]
            elif p.cls == "valu": r = 5 if sonly(p.dst) else 3
            else: r = 2
            need = max(need, r - (self.pos - pos - 1))
        if need > 0:
            self(f"s_nop {need-1}")
    def newlabel(self, base="L"):
        self.nlabel += 1
        return f"{base}_{self.nlabel}"
    def comment(self, s):
        self.lines.append("    ; " + s)
    def text(self):
        return "\n".join(self.lines) + "\n"

class Cnt:
    def __init__(self, a, name, maxv):
        self.a = a; self.name = name; self.q = []; self.maxv = maxv
    def issue(self, tag, n=1):
        self.q += [tag] * n
    def wait(self, *tags):
        idx = -1
        for i, t in enumerate(self.q):
            if t in tags: idx = i
        if idx < 0: return
        n = len(self.q) - 1 - idx
        assert n <= self.maxv, (self.name, n)
        self.a(f"s_waitcnt {self.name}({n})")
        self.q = self.q[idx + 1:]
    def drain(self):
        self.a(f"s_waitcnt {self.name}(0)")
        self.q = []
    def reset(self):
        self.q = []

def kernel_header(name):
    return f""".globl {name}
.p2align 8
.type {name},@function
{name}:"""

def kernel_desc(name, vgpr=256, sgpr=102, accum=256):
    return f""".p2align 6
.amdhsa_kernel {name}
  .amdhsa_next_free_vgpr {vgpr}
  .amdhsa_next_free_sgpr {sgpr}
  .amdhsa_accum_offset {accum}
  .amdhsa_group_segment_fixed_size 0
  .amdhsa_kernarg_size 96
  .amdhsa_user_sgpr_count 2
  .amdhsa_user_sgpr_kernarg_segment_ptr 1
  .amdhsa_system_sgpr_workgroup_id_x 1
.end_amdhsa_kernel"""

def srd(a, d, base, nbytes, off=0):
    if off:
        a(f"s_add_u32 s{d}, s{base}, {off}")
        a(f"s_addc_u32 s{d+1}, s{base+1}, 0")
        a(f"s_and_b32 s{d+1}, s{d+1}, 0xffff")
    else:
        a(f"s_mov_b32 s{d}, s{base}")
        a(f"s_and_b32 s{d+1}, s{base+1}, 0xffff")
    a(f"s_mov_b32 s{d+2}, {nbytes}")
    a(f"s_mov_b32 s{d+3}, 0x00020000")
```

```python
import sys, os
sys.path.insert(0, os.path.dirname(os.path.abspath(__file__)))
from asmlib import *

NAME = "interleave_layers__sliding_local_dilated__ssm_conv_h3__prompt_kernel"
STAGE = int(os.environ.get("STAGE", "9"))
PROF = int(os.environ.get("PROF", "0"))

KVT_OFF = 0
YT_OFF = 2 << 20
O1_OFF = 4 << 20
X2_OFF = 6 << 20
O3_OFF = 8 << 20
MB_OFF = 16 << 20
MB_SZ = 16384
MB_S1, MB_S2, MB_S3, MB_S5, MB_S6 = 0, 128, 256, 384, 512
MB_ST0, MB_ST1 = 1024, 5120
PROF_OFF = 24 << 20

XIMG = 0
WRING = 81920
NSLOT = 6
Y1T = 155648
WOIMG = 0
UR = 65536
URP = 4608
HC = 74752
HCP = 4160
ACCX = 74752
YTT = 74752
MISC = 91392
ST_OWN = MISC
ST_H = MISC + 512
ABW = MISC + 1024
PS = HC + 8192
OIMG = 98304

sB, sW, sG, sJ, sKK0, sPH = 2, 3, 4, 5, 6, 7
SX, SWQ, SWO, SK_, SV_, SSK, SH, SOUT, SDBG, SWS, SX2 = 8, 12, 16, 20, 24, 28, 32, 36, 40, 44, 48
sSD = 52
sPAR, sMC0, sMC1 = 54, 56, 58
sL = 60
sT0, sT1, sT2, sT3 = 61, 62, 63, 64
sW1K, sW16K, sW5K = 65, 66, 67
sMB = 68
sOOFF, sSIG, sSTAT = 69, 70, 71
sEX = 72
sD = 74
sT4, sT5 = 75, 76
sPT = 90

def S4(n): return f"s[{n}:{n+3}]"
def V(n, k=1): return f"v{n}" if k == 1 else f"v[{n}:{n+k-1}]"
def A(n, k=1): return f"a{n}" if k == 1 else f"a[{n}:{n+k-1}]"

vTID, vLANE, vL15, vQ = 0, 1, 2, 3
vA0, vA1, vS0, vS1, vSH, vTR, vXD, vXDH, vWD = 4, 5, 6, 7, 8, 9, 10, 11, 12
vT0, vT1, vT2 = 13, 14, 15
vQT = 16
vKT = 32
vVV = 52
vCS = 224
vXA = 84
vSO = 124
vSHF = 132
vONE = 136
vST = 140
vX2 = 240
vYY = 248

a = Asm()
vm = Cnt(a, "vmcnt", 63)
lg = Cnt(a, "lgkmcnt", 15)
prof_idx = [0]

def prof(tag):
    if not PROF: return
    i = prof_idx[0]; prof_idx[0] += 1
    a(f"s_memtime s[{sPT}:{sPT+1}]")
    a("s_waitcnt lgkmcnt(0)")
    lg.reset()
    a(f"v_mov_b32 v{vT0}, s{sPT}")
    a(f"s_lshl_b32 s{sPT+2}, s{sL}, 9")
    a(f"s_lshl_b32 s{sPT+3}, s{sPH}, 8")
    a(f"s_add_u32 s{sPT+2}, s{sPT+2}, s{sPT+3}")
    a(f"s_add_u32 s{sPT+2}, s{sPT+2}, {PROF_OFF + 4*i}")
    a(f"v_mov_b32 v{vT1}, 0")
    a(f"v_cmp_eq_u32 vcc, 0, v{vTID}")
    a(f"s_and_saveexec_b64 s[{sPT+4}:{sPT+5}], vcc")
    a(f"buffer_store_dword v{vT0}, v{vT1}, {S4(SWS)}, s{sPT+2} offen")
    a(f"s_mov_b64 exec, s[{sPT+4}:{sPT+5}]")
    vm.issue("prof")

def poll(n, mboff, name):
    L = a.newlabel("L_poll_" + name)
    a(f"v_lshlrev_b32 v{vT1}, 2, v{vLANE}")
    if n < 64:
        a(f"s_mov_b64 exec, {(1 << n) - 1}" if n <= 6 else f"s_mov_b32 exec_lo, {hex((1 << min(n,32)) - 1)}")
        if n > 6: a(f"s_mov_b32 exec_hi, {hex((1 << (n-32)) - 1) if n > 32 else 0}")
    a(f"s_add_u32 s{sT0}, s{sMB}, {mboff}")
    a.flush()
    a.label(L)
    a(f"buffer_load_dword v{vT0}, v{vT1}, {S4(SWS)}, s{sT0} offen sc1")
    a("s_waitcnt vmcnt(0)")
    a(f"v_cmp_ne_u32 vcc, 1, v{vT0}")
    a(f"s_cbranch_vccnz {L}")
    if n < 64:
        a("s_mov_b64 exec, -1")
    vm.reset()

def signal(n, addr_code):
    L = a.newlabel("L_sig")
    a(f"s_cmp_lg_u32 s{sW}, 0")
    a(f"s_cbranch_scc1 {L}")
    a(addr_code)
    a(f"v_mov_b32 v{vT0}, 1")
    a(f"s_mov_b32 exec_lo, {hex((1 << min(n,32)) - 1)}")
    a(f"s_mov_b32 exec_hi, {hex((1 << (n-32)) - 1) if n > 32 else 0}")
    a(f"buffer_store_dword v{vT0}, v{vT1}, {S4(SWS)}, 0 offen sc1")
    a("s_mov_b64 exec, -1")
    a.flush()
    a.label(L)

def allreduce(op, regs, tmps):
    for sw in ("v_permlane16_swap_b32", "v_permlane32_swap_b32"):
        for r, t in zip(regs, tmps): a(f"v_mov_b32 v{t}, v{r}")
        for r, t in zip(regs, tmps): a(f"{sw} v{r}, v{t}")
        for r, t in zip(regs, tmps): a(f"{op} v{r}, v{r}, v{t}")

def ln_math(vS, vSS, vAo, vBo, t0, t1):
    a(f"v_mul_f32 v{t0}, 0x3b000000, v{vS}")
    a(f"v_mul_f32 v{t1}, 0x3b000000, v{vSS}")
    a(f"v_fma_f32 v{t1}, -v{t0}, v{t0}, v{t1}")
    a(f"v_max_f32 v{t1}, 0, v{t1}")
    a(f"v_cvt_pk_bf16_f32 v{t0}, v{t0}, v{t1}")
    a(f"v_and_b32 v{t1}, 0xffff0000, v{t0}")
    a(f"v_lshlrev_b32 v{t0}, 16, v{t0}")
    a(f"v_add_f32 v{t1}, 0x3727c5ac, v{t1}")
    a(f"v_cvt_pk_bf16_f32 v{t1}, v{t1}, v{t1}")
    a(f"v_lshlrev_b32 v{t1}, 16, v{t1}")
    a(f"v_sqrt_f32 v{t1}, v{t1}")
    a(f"v_cvt_pk_bf16_f32 v{t1}, v{t1}, v{t1}")
    a(f"v_lshlrev_b32 v{t1}, 16, v{t1}")
    a(f"v_rcp_f32 v{vAo}, v{t1}")
    a(f"v_mul_f32 v{vBo}, v{t0}, v{vAo}")
    a(f"v_sub_f32 v{vBo}, 0, v{vBo}")

def barrier():
    a("s_barrier")

a.raw("; @launch grid=(256,1,1) block=(256,1,1) lds=163840")
a.raw('.amdgcn_target "amdgcn-amd-amdhsa--gfx950"\n.text')
a.raw(kernel_header(NAME))
a(f"s_cmp_ge_u32 s{sB}, 256")
a("s_cbranch_scc1 L_end")
a("s_load_dwordx16 s[76:91], s[0:1], 0")
a("s_load_dwordx8 s[92:99], s[0:1], 64")
a(f"v_and_b32 v{vLANE}, 63, v{vTID}")
a(f"v_lshrrev_b32 v{vT0}, 6, v{vTID}")
a(f"v_and_b32 v{vL15}, 15, v{vTID}")
a(f"v_readfirstlane_b32 s{sW}, v{vT0}")
a(f"v_bfe_u32 v{vQ}, v{vTID}, 4, 2")
a(f"v_lshlrev_b32 v{vA0}, 4, v{vLANE}")
a(f"v_add_u32 v{vA1}, 40960, v{vA0}")
a(f"s_and_b32 s{sT0}, s{sB}, 7")
a(f"s_lshr_b32 s{sT1}, s{sB}, 6")
a(f"s_lshl_b32 s{sG}, s{sT0}, 2")
a(f"s_add_u32 s{sG}, s{sG}, s{sT1}")
a(f"s_lshr_b32 s{sJ}, s{sB}, 3")
a(f"s_and_b32 s{sJ}, s{sJ}, 7")
a(f"s_lshl_b32 s{sL}, s{sG}, 3")
a(f"s_add_u32 s{sL}, s{sL}, s{sJ}")
a(f"s_lshl_b32 s{sKK0}, s{sT1}, 2")
a(f"s_lshl_b32 s{sT2}, s{sJ}, 1")
a(f"s_add_u32 s{sKK0}, s{sKK0}, s{sT2}")
a(f"s_lshr_b32 s{sT2}, s{sT0}, 1")
a(f"s_add_u32 s{sKK0}, s{sKK0}, s{sT2}")
a(f"s_and_b32 s{sKK0}, s{sKK0}, 15")
a(f"s_mov_b32 s{sPH}, 0")
a(f"s_lshl_b32 s{sW1K}, s{sW}, 10")
a(f"s_lshl_b32 s{sW16K}, s{sW}, 14")
a(f"s_mul_i32 s{sW5K}, s{sW}, 5120")
a(f"s_lshl_b32 s{sMB}, s{sL}, 14")
a(f"s_add_u32 s{sMB}, s{sMB}, {MB_OFF}")
a("s_waitcnt lgkmcnt(0)")
P = lambda i: 76 + 2 * i
srd(a, SX, P(0), 2048 * 1024)
srd(a, SWQ, P(1), 512 * 3072)
srd(a, SWO, P(2), 512 * 1024)
srd(a, SK_, P(4), 2048 * 1024)
srd(a, SV_, P(5), 2048 * 1024)
srd(a, SSK, P(6), 4096)
srd(a, SH, P(7), 512 * 4096)
a(f"s_mov_b32 s{sSD}, s{P(8)}")
a(f"s_mov_b32 s{sSD+1}, s{P(8)+1}")
srd(a, SOUT, P(9), 2048 * 1024)
srd(a, SDBG, P(10), 256)
srd(a, SWS, P(11), 1 << 28)
srd(a, SX2, P(11), 2048 * 1024, off=X2_OFF)
a(f"s_lshl_b32 s{sT0}, s{sL}, 2")
a(f"s_load_dword s{sD}, s[{sSD}:{sSD+1}], s{sT0}")

yK, yV, ySK, yT, yO = 144, 164, 172, 188, 228
a(f"v_and_b32 v{vT0}, 7, v{vTID}")
a(f"v_lshrrev_b32 v{vT1}, 3, v{vTID}")
a(f"s_lshl_b32 s{sT0}, s{sG}, 16")
a(f"s_lshl_b32 s{sT1}, s{sJ}, 7")
a(f"s_add_u32 s{sT0}, s{sT0}, s{sT1}")
a(f"v_lshlrev_b32 v{vT2}, 11, v{vT1}")
a(f"v_lshl_add_u32 v{vT2}, v{vT0}, 4, v{vT2}")
a(f"v_add_u32 v{vT2}, s{sT0}, v{vT2}")
for i in range(5):
    a(f"v_add_u32 v{yT+i}, {(i-3)*1024}, v{vT2}")
for i in range(5):
    a(f"buffer_load_dwordx4 {V(yK+4*i,4)}, v{yT+i}, {S4(SK_)}, 0 offen"); vm.issue("y1")
for i in range(2):
    a(f"buffer_load_dwordx4 {V(yV+4*i,4)}, v{yT+3+i}, {S4(SV_)}, 0 offen"); vm.issue("y1")
a(f"s_lshl_b32 s{sT1}, s{sJ}, 9")
a(f"v_lshlrev_b32 v{yT+5}, 6, v{vT0}")
for i in range(4):
    a(f"buffer_load_dwordx4 {V(ySK+4*i,4)}, v{yT+5}, {S4(SSK)}, s{sT1} offen offset:{16*i}"); vm.issue("y1")
a(f"v_mov_b32 v{yO}, 0\nv_mov_b32 v{yO+1}, 0\nv_mov_b32 v{yO+2}, 0\nv_mov_b32 v{yO+3}, 0")
a(f"v_lshlrev_b32 v{yT+6}, 4, v{vTID}")
for i in range(3):
    a(f"s_add_u32 s{sT2}, s{sMB}, {4096*i}")
    a(f"buffer_store_dwordx4 {V(yO,4)}, v{yT+6}, {S4(SWS)}, s{sT2} offen sc1"); vm.issue("zero")

a(f"v_add_u32 v{vS0}, s{sW1K}, v{vA0}")
a(f"v_add_u32 v{vS0}, 1024, v{vS0}")
a(f"v_add_u32 v{vS1}, 40960, v{vS0}")
a(f"v_add_u32 v{vSH}, s{sW5K}, v{vA0}")
a(f"v_lshrrev_b32 v{vT0}, 5, v{vLANE}")
a(f"v_lshlrev_b32 v{vTR}, 10, v{vT0}")
a(f"v_and_b32 v{vT0}, 31, v{vLANE}")
a(f"v_lshl_add_u32 v{vTR}, v{vT0}, 3, v{vTR}")
a(f"s_lshl_b32 s{sT0}, s{sW}, 8")
a(f"v_add_u32 v{vTR}, s{sT0}, v{vTR}")
a(f"v_lshlrev_b32 v{vXD}, 10, v{vL15}")
a(f"v_lshl_add_u32 v{vXD}, v{vQ}, 4, v{vXD}")
a(f"s_lshl_b32 s{sT0}, s{sG}, 16")
a(f"v_add_u32 v{vXD}, s{sT0}, v{vXD}")
a(f"v_add_u32 v{vXDH}, {-16384 & 0xffffffff}, v{vXD}")
a(f"v_bfe_u32 v{vT0}, v{vLANE}, 1, 2")
a(f"v_bfe_u32 v{vT1}, v{vLANE}, 3, 1")
a(f"v_lshl_add_u32 v{vT0}, v{vT1}, 3, v{vT0}")
a(f"s_and_b32 s{sT0}, s{sW}, 1")
a(f"s_lshl_b32 s{sT0}, s{sT0}, 4")
a(f"s_lshr_b32 s{sT1}, s{sW}, 1")
a(f"s_lshl_b32 s{sT1}, s{sT1}, 2")
a(f"s_add_u32 s{sT0}, s{sT0}, s{sT1}")
a(f"v_add_u32 v{vT0}, s{sT0}, v{vT0}")
a(f"v_and_b32 v{vT1}, 1, v{vLANE}")
a(f"v_lshl_add_u32 v{vT1}, v{vQ}, 1, v{vT1}")
a(f"v_lshlrev_b32 v{vT1}, 4, v{vT1}")
a(f"s_lshl_b32 s{sT0}, s{sJ}, 7")
a(f"v_add_u32 v{vT1}, s{sT0}, v{vT1}")
vWOD = 238
a(f"v_lshl_add_u32 v{vWOD}, v{vT0}, 10, v{vT1}")
a(f"v_mul_u32_u24 v{vWD}, 3072, v{vT0}")
a(f"v_add_u32 v{vWD}, v{vWD}, v{vT1}")
a(f"v_and_b32 v{vT0}, 1, v{vLANE}")
a(f"v_cmp_eq_u32 s[{sPAR}:{sPAR+1}], 1, v{vT0}")
a(f"v_lshl_add_u32 v{vT1}, v{vQ}, 2, v{vT0}")
a(f"v_cmp_le_u32 s[{sMC0}:{sMC0+1}], v{vT1}, v{vL15}")
a(f"v_add_u32 v{vT1}, 2, v{vT1}")
a(f"v_cmp_le_u32 s[{sMC1}:{sMC1+1}], v{vT1}, v{vL15}")
for i in range(4):
    a(f"v_mov_b32 v{vONE+i}, 0x3f803f80")

def dma_x(s, srd_):
    sc = " sc1" if srd_ == SX2 else ""
    a(f"s_add_u32 s{sT0}, s{sKK0}, {s}")
    a(f"s_and_b32 s{sT0}, s{sT0}, 15")
    a(f"s_lshl_b32 s{sT1}, s{sT0}, 6")
    a(f"s_add_u32 s{sT1}, s{sT1}, s{sW16K}")
    a(f"s_add_u32 m0, s{sW1K}, {XIMG + (s*5+1)*1024}")
    a(f"buffer_load_dwordx4 v{vXD}, {S4(srd_)}, s{sT1} offen{sc} lds"); vm.issue(("x", s))
    if s % 4 == 0:
        a(f"s_add_u32 s{sT1}, s{sT0}, s{sW}")
        a(f"s_and_b32 s{sT1}, s{sT1}, 15")
        a(f"s_lshl_b32 s{sT1}, s{sT1}, 6")
        a(f"s_add_u32 m0, s{sW5K}, {XIMG + s*5*1024}")
        a(f"buffer_load_dwordx4 v{vXDH}, {S4(srd_)}, s{sT1} offen{sc} lds"); vm.issue(("h", s // 4))

def dma_w(s):
    a(f"s_mul_i32 s{sT1}, s{sT0}, 98304")
    for p in range(3):
        if p: a(f"s_add_u32 s{sT1}, s{sT1}, 1024")
        a(f"s_add_u32 m0, s{sW1K}, {WRING + (s % NSLOT)*12288 + p*4096}")
        a(f"buffer_load_dwordx4 v{vWD}, {S4(SWQ)}, s{sT1} offen lds"); vm.issue(("w", s))

DEPTH = NSLOT - 1
for s in range(DEPTH):
    dma_x(s, SX); dma_w(s)

vm.wait("y1", "zero")
R = yT
TP = yT + 10
VVv = yT + 18
K0, K1 = yT + 22, yT + 24
for m in range(4):
    for i in range(5):
        a(f"v_lshlrev_b32 v{R+2*i}, 16, v{yK+4*i+m}")
        a(f"v_and_b32 v{R+2*i+1}, 0xffff0000, v{yK+4*i+m}")
    for c in range(2):
        a(f"v_lshlrev_b32 v{TP+0+c}, 16, v{ySK+4*m+2*c}")
        a(f"v_and_b32 v{TP+2+c}, 0xffff0000, v{ySK+4*m+2*c}")
        a(f"v_lshlrev_b32 v{TP+4+c}, 16, v{ySK+4*m+2*c+1}")
        a(f"v_and_b32 v{TP+6+c}, 0xffff0000, v{ySK+4*m+2*c+1}")
    for i in range(2):
        a(f"v_lshlrev_b32 v{VVv+2*i}, 16, v{yV+4*i+m}")
        a(f"v_and_b32 v{VVv+2*i+1}, 0xffff0000, v{yV+4*i+m}")
    for (Kx, r0) in ((K0, 0), (K1, 1)):
        a(f"v_pk_mul_f32 {V(Kx,2)}, {V(R+2*r0,2)}, {V(TP+6,2)}")
        a(f"v_pk_fma_f32 {V(Kx,2)}, {V(R+2*(r0+1),2)}, {V(TP+4,2)}, {V(Kx,2)}")
        a(f"v_pk_fma_f32 {V(Kx,2)}, {V(R+2*(r0+2),2)}, {V(TP+2,2)}, {V(Kx,2)}")
        a(f"v_pk_fma_f32 {V(Kx,2)}, {V(R+2*(r0+3),2)}, {V(TP+0,2)}, {V(Kx,2)}")
    for Kx in (K0, K1):
        a(f"v_cvt_pk_bf16_f32 v{Kx+1}, v{Kx}, v{Kx+1}")
        a(f"v_lshlrev_b32 v{Kx}, 16, v{Kx+1}")
        a(f"v_and_b32 v{Kx+1}, 0xffff0000, v{Kx+1}")
    a(f"v_pk_mul_f32 {V(K0,2)}, {V(K0,2)}, {V(VVv,2)}")
    a(f"v_pk_mul_f32 {V(K1,2)}, {V(K1,2)}, {V(VVv+2,2)}")
    a(f"v_cvt_pk_bf16_f32 v{yO+2*m}, v{K1}, v{K0}")
    a(f"v_cvt_pk_bf16_f32 v{yO+2*m+1}, v{K1+1}, v{K0+1}")
a(f"v_and_b32 v{vT0}, 7, v{vTID}")
a(f"v_lshrrev_b32 v{vT1}, 3, v{vTID}")
a(f"v_sub_u32 v{vT1}, 31, v{vT1}")
a(f"v_lshlrev_b32 v{vT2}, 2, v{vT0}")
a(f"v_xor_b32 v{vT1}, v{vT1}, v{vT2}")
a(f"v_lshlrev_b32 v{vT1}, 2, v{vT1}")
a(f"v_lshl_add_u32 v{vT1}, v{vT0}, 10, v{vT1}")
a(f"v_add_u32 v{vT1}, {Y1T}, v{vT1}")
for i in range(8):
    a(f"ds_write_b32 v{vT1}, v{yO+i} offset:{128*i}")
a("s_waitcnt lgkmcnt(0)")
barrier()
a(f"v_mov_b32 v{vT0}, 1")
a(f"v_mov_b32 v{vT2}, s{sL}")
a(f"v_cmp_eq_u32 vcc, 0, v{vLANE}")
a(f"s_and_saveexec_b64 s[{sEX}:{sEX+1}], vcc")
a(f"buffer_store_byte v{vT0}, v{vT2}, {S4(SDBG)}, 0 offen sc1"); vm.issue("s0")
a(f"s_mov_b64 exec, s[{sEX}:{sEX+1}]")
a(f"v_lshrrev_b32 v{vT0}, 3, v{vTID}")
a(f"v_and_b32 v{vT1}, 7, v{vTID}")
a(f"v_lshrrev_b32 v{vT2}, 3, v{vT0}")
a(f"v_xor_b32 v{yT}, v{vT1}, v{vT2}")
a(f"v_lshlrev_b32 v{yT}, 4, v{yT}")
a(f"v_lshl_add_u32 v{yT}, v{vT0}, 7, v{yT}")
a(f"v_add_u32 v{yT}, {Y1T}, v{yT}")
a(f"v_xor_b32 v{yT+1}, 64, v{yT}")
a(f"ds_read_b128 {V(yK,4)}, v{yT}")
a(f"ds_read_b128 {V(yK+4,4)}, v{yT+1} offset:4096")
a(f"v_lshlrev_b32 v{yT+2}, 12, v{vT0}")
a(f"v_lshl_add_u32 v{yT+2}, v{vT1}, 4, v{yT+2}")
a(f"s_lshl_b32 s{sT0}, s{sJ}, 18")
a(f"s_lshl_b32 s{sT1}, s{sG}, 7")
a(f"s_sub_u32 s{sT0}, s{sT0}, s{sT1}")
a(f"s_add_u32 s{sT0}, s{sT0}, {KVT_OFF + 3968}")
a(f"s_add_u32 s{sT1}, s{sT0}, {32*4096}")
a("s_waitcnt lgkmcnt(0)")
a(f"buffer_store_dwordx4 {V(yK,4)}, v{yT+2}, {S4(SWS)}, s{sT0} offen sc1"); vm.issue("y1st")
a(f"buffer_store_dwordx4 {V(yK+4,4)}, v{yT+2}, {S4(SWS)}, s{sT1} offen sc1"); vm.issue("y1st")
prof("y1done")

def lds_reads_x(s, buf):
    base, off = (vA0, s*5*1024) if s < 8 else (vA1, (s-8)*5*1024)
    for t in range(5):
        a(f"ds_read_b128 {V(vXA+20*buf+4*t,4)}, v{base} offset:{XIMG + off + t*1024}"); lg.issue(("xa", s))
    base, off = (vS0, s*5120) if s < 8 else (vS1, (s-8)*5120)
    a(f"ds_read_b128 {V(vSO+4*buf,4)}, v{base} offset:{XIMG + off}"); lg.issue(("xa", s))
    if s % 4 == 3:
        a(f"ds_read_b128 {V(vSHF,4)}, v{vSH} offset:{XIMG + (s//4)*20480}"); lg.issue(("xa", s))

def mfmas(s, buf, with_cs):
    first = (s == 0)
    def C(r): return "0" if first else V(r, 4)
    wq, wk, wv = A(12*s, 4), A(12*s+4, 4), A(12*s+8, 4)
    xa = lambda t: V(vXA + 20*buf + 4*t, 4)
    seq = []
    for t in range(5):
        seq.append(f"v_mfma_f32_16x16x32_bf16 {V(vKT+4*t,4)}, {wk}, {xa(t)}, {C(vKT+4*t)}")
        seq.append(f"v_mfma_f32_16x16x32_bf16 {V(vVV+4*t,4)}, {xa(t)}, {wv}, {C(vVV+4*t)}")
        if t: seq.append(f"v_mfma_f32_16x16x32_bf16 {V(vQT+4*(t-1),4)}, {wq}, {xa(t)}, {C(vQT+4*(t-1))}")
    if with_cs:
        seq.append(f"v_mfma_f32_16x16x32_bf16 {V(vCS,4)}, {wq}, {V(vONE,4)}, {C(vCS)}")
        seq.append(f"v_mfma_f32_16x16x32_bf16 {V(vCS+4,4)}, {wk}, {V(vONE,4)}, {C(vCS+4)}")
        seq.append(f"v_mfma_f32_16x16x32_bf16 {V(vCS+8,4)}, {V(vONE,4)}, {wv}, {C(vCS+8)}")
    st = []
    for i in range(4):
        st.append(f"v_dot2c_f32_bf16 v{vST}, v{vSO+4*buf+i}, v{vONE}")
        st.append(f"v_dot2c_f32_bf16 v{vST+1}, v{vSO+4*buf+i}, v{vSO+4*buf+i}")
    if s % 4 == 3:
        for i in range(4):
            st.append(f"v_dot2c_f32_bf16 v{vST+2}, v{vSHF+i}, v{vONE}")
            st.append(f"v_dot2c_f32_bf16 v{vST+3}, v{vSHF+i}, v{vSHF+i}")
    k = 0
    for m in seq:
        a(m)
        for _ in range(2 if len(st) > 8 else 1):
            if k < len(st): a(st[k]); k += 1
    while k < len(st): a(st[k]); k += 1

def zero_stats():
    for i in range(4): a(f"v_mov_b32 v{vST+i}, 0")

a(f"v_add_u32 v236, {WRING}, v{vTR}")
a(f"v_add_u32 v237, {WRING + 36864}, v{vTR}")
zero_stats()
for s in range(16):
    vm.wait(("x", s), ("w", s), ("h", s // 4))
    barrier()
    if s + DEPTH < 16:
        dma_x(s + DEPTH, SX); dma_w(s + DEPTH)
    lds_reads_x(s, s & 1)
    for p in range(3):
        for h in range(2):
            off = (s % NSLOT) * 12288 + p * 4096 + h * 2048
            a(f"ds_read_b64_tr_b16 {A(12*s+4*p+2*h,2)}, v{236 if off < 36864 else 237} offset:{off % 36864}"); lg.issue(("xa", s))
    if s > 0:
        mfmas(s - 1, (s - 1) & 1, True)
    lg.drain()
mfmas(15, 1, True)
prof("p1gemm")

vm.drain()
barrier()
for s in range(16):
    a(f"s_add_u32 s{sT0}, s{sKK0}, {s}")
    a(f"s_and_b32 s{sT0}, s{sT0}, 15")
    a(f"s_lshl_b32 s{sT1}, s{sT0}, 15")
    a(f"s_add_u32 m0, s{sW1K}, {WOIMG + s*4096}")
    a(f"buffer_load_dwordx4 v{vWOD}, {S4(SWO)}, s{sT1} offen lds"); vm.issue("wo")
yH = 144
a(f"v_lshlrev_b32 v{vT0}, 4, v{vTID}")
a(f"s_lshl_b32 s{sT0}, s{sL}, 13")
for c in range(2):
    if c: a(f"s_add_u32 s{sT0}, s{sT0}, 4096")
    a(f"buffer_load_dwordx4 {V(yH+8*c,4)}, v{vT0}, {S4(SH)}, s{sT0} offen"); vm.issue("h")
    a(f"buffer_load_dword v{yH+8*c+4}, v{vT0}, {S4(SH)}, s{sT0} offen offset:16"); vm.issue("h")
LS0 = "L_s0_done"
a(f"s_cmp_lg_u32 s{sW}, 0")
a(f"s_cbranch_scc1 {LS0}")
a(f"v_lshlrev_b32 v{vT1}, 2, v{vLANE}")
a(f"s_mov_b32 s{sT0}, 0x01010101")
a.flush()
a.label("L_s0_poll")
a(f"buffer_load_dword v{vT0}, v{vT1}, {S4(SDBG)}, 0 offen sc1")
a("s_waitcnt vmcnt(0)")
a(f"v_cmp_ne_u32 vcc, s{sT0}, v{vT0}")
a("s_cbranch_vccz L_s0_ok")
a("s_sleep 8")
a("s_branch L_s0_poll")
a.label("L_s0_ok")
a(f"s_lshl_b32 s{sT0}, s{sJ}, 5")
a(f"v_add_u32 v{vT1}, s{sT0}, v{vLANE}")
a(f"v_lshlrev_b32 v{vT1}, 14, v{vT1}")
a(f"s_lshl_b32 s{sT0}, s{sG}, 2")
a(f"s_add_u32 s{sT0}, s{sT0}, {MB_OFF + MB_S1}")
a(f"v_add_u32 v{vT1}, s{sT0}, v{vT1}")
a(f"v_mov_b32 v{vT0}, 1")
a("s_mov_b32 exec_lo, -1\ns_mov_b32 exec_hi, 0")
a(f"buffer_store_dword v{vT0}, v{vT1}, {S4(SWS)}, 0 offen sc1")
a("s_mov_b64 exec, -1")
a.flush()
a.label(LS0)
a(f"s_mov_b32 s{sOOFF}, {O1_OFF}")
a(f"s_mov_b32 s{sSIG}, {MB_S2}")
a(f"s_mov_b32 s{sSTAT}, {MB_ST0}")

a.flush()
a.label("L_attn")
vm.reset(); lg.reset()
T = 84
allreduce("v_add_f32", [vST, vST+1, vST+2, vST+3], [T, T+1, T+2, T+3])
a(f"v_lshlrev_b32 v{vT0}, 3, v{vL15}")
a(f"s_lshl_b32 s{sT0}, s{sW}, 7")
a(f"v_add_u32 v{vT0}, s{sT0}, v{vT0}")
a(f"v_add_u32 v{vT0}, {MISC}, v{vT0}")
a(f"ds_write_b64 v{vT0}, {V(vST,2)}")
a(f"ds_write_b64 v{vT0}, {V(vST+2,2)} offset:512")
a("s_waitcnt lgkmcnt(0)")
barrier()
a(f"v_lshlrev_b32 v{vT0}, 3, v{vLANE}")
a(f"v_add_u32 v{vT0}, {MISC}, v{vT0}")
a(f"ds_read_b64 {V(T,2)}, v{vT0}")
a(f"v_lshlrev_b32 v{vT1}, 3, v{vL15}")
a(f"v_add_u32 v{vT1}, {MISC}, v{vT1}")
for i in range(4):
    a(f"ds_read_b64 {V(T+2+2*i,2)}, v{vT1} offset:{512 + 128*i}")
a("s_waitcnt lgkmcnt(0)")
a(f"v_pk_add_f32 {V(T+2,2)}, {V(T+2,2)}, {V(T+4,2)}")
a(f"v_pk_add_f32 {V(T+6,2)}, {V(T+6,2)}, {V(T+8,2)}")
a(f"v_pk_add_f32 {V(T+2,2)}, {V(T+2,2)}, {V(T+6,2)}")
ln_math(T, T+1, T+10, T+11, T+12, T+13)
ln_math(T+2, T+3, T+14, T+15, T+16, T+17)
a(f"s_mul_i32 s{sT0}, s{sW}, 640")
a(f"s_add_u32 s{sT0}, s{sT0}, {ABW}")
a(f"v_lshl_add_u32 v{vT0}, v{vLANE}, 2, s{sT0}")
a(f"v_lshl_add_u32 v{vT1}, v{vL15}, 2, s{sT0}")
a(f"v_lshl_add_u32 v{vT2}, v{vQ}, 4, s{sT0}")
a(f"ds_write2_b32 v{vT0}, v{T+10}, v{T+11} offset0:16 offset1:96")
a(f"ds_write2_b32 v{vT1}, v{T+14}, v{T+15} offset0:0 offset1:80")
a("s_waitcnt lgkmcnt(0)")
vAB = 84
vAV = 94
for t in range(5):
    a(f"ds_read2_b32 {V(vAB+2*t,2)}, v{vT1} offset0:{16*t} offset1:{80+16*t}")
for t in range(5):
    a(f"ds_read_b128 {V(vAV+8*t,4)}, v{vT2} offset:{64*t}")
    a(f"ds_read_b128 {V(vAV+8*t+4,4)}, v{vT2} offset:{320+64*t}")
a("s_waitcnt lgkmcnt(0)")
vQb, vKb, vVb, vU = 160, 168, 178, 188
def norm_qk(acc, cs, t, dst):
    ab = V(vAB + 2*t, 2)
    for h in range(2):
        a(f"v_pk_mul_f32 {V(vU+2*h,2)}, {V(cs+2*h,2)}, {ab} op_sel:[0,1] op_sel_hi:[1,1]")
        a(f"v_pk_fma_f32 {V(vU+2*h,2)}, {V(acc+2*h,2)}, {ab}, {V(vU+2*h,2)} op_sel:[0,0,0] op_sel_hi:[1,0,1]")
    for h in range(2):
        a(f"v_cvt_pk_bf16_f32 v{dst+h}, v{vU+2*h}, v{vU+2*h+1}")
for t in range(5):
    norm_qk(vKT + 4*t, vCS + 4, t, vKb + 2*t)
    if t: norm_qk(vQT + 4*(t-1), vCS, t, vQb + 2*(t-1))
    for h in range(2):
        a(f"v_pk_mul_f32 {V(vU+4+2*h,2)}, {V(vAV+8*t+4+2*h,2)}, {V(vCS+8,2)} op_sel:[0,0] op_sel_hi:[1,0]")
        a(f"v_pk_fma_f32 {V(vU+4+2*h,2)}, {V(vVV+4*t+2*h,2)}, {V(vAV+8*t+2*h,2)}, {V(vU+4+2*h,2)}")
    for h in range(2):
        a(f"v_cvt_pk_bf16_f32 v{vVb+2*t+h}, v{vU+4+2*h}, v{vU+4+2*h+1}")
vSc, vSp = 16, 32
for t in range(1, 5):
    a(f"v_mfma_f32_16x16x16_bf16 {V(vSc+4*(t-1),4)}, {V(vKb+2*t,2)}, {V(vQb+2*(t-1),2)}, 0")
    a(f"v_mfma_f32_16x16x16_bf16 {V(vSp+4*(t-1),4)}, {V(vKb+2*(t-1),2)}, {V(vQb+2*(t-1),2)}, 0")
a(f"s_cmp_lg_u32 s{sG}, 0")
a("s_cbranch_scc1 L_nomask")
a.flush()
for i in range(4):
    a(f"v_mov_b32 v{vSp+i}, 0xf149f2ca")
a.flush()
a.label("L_nomask")
PARM, MC = f"s[{sPAR}:{sPAR+1}]", [f"s[{sMC0}:{sMC0+1}]", f"s[{sMC1}:{sMC1+1}]"]
vLg = 48
vMx = 56
vTm = 60
vE = 64
for t in range(4):
    for i in range(2):
        a(f"v_cndmask_b32 v{vSc+4*t+2*i}, v{vSc+4*t+2*i}, v{vSc+4*t+2*i+1}, {PARM}")
        a(f"v_cndmask_b32 v{vSp+4*t+2*i}, v{vSp+4*t+2*i}, v{vSp+4*t+2*i+1}, {PARM}")
        a(f"v_cndmask_b32 v{vLg+2*t+i}, v{vSp+4*t+2*i}, v{vSc+4*t+2*i}, {MC[i]}")
    a(f"v_cvt_pk_bf16_f32 v{vLg+2*t+1}, v{vLg+2*t}, v{vLg+2*t+1}")
    a(f"v_lshlrev_b32 v{vLg+2*t}, 16, v{vLg+2*t+1}")
    a(f"v_and_b32 v{vLg+2*t+1}, 0xffff0000, v{vLg+2*t+1}")
    a(f"v_max_f32 v{vMx+t}, v{vLg+2*t}, v{vLg+2*t+1}")
allreduce("v_max_f32", [vMx+t for t in range(4)], [vTm+t for t in range(4)])
a(f"s_mov_b32 s{sT0}, 0x3eb8aa3b")
for t in range(4):
    for i in range(2):
        a(f"v_sub_f32 v{vLg+2*t+i}, v{vLg+2*t+i}, v{vMx+t}")
        a(f"v_mul_f32 v{vLg+2*t+i}, s{sT0}, v{vLg+2*t+i}")
        a(f"v_exp_f32 v{vLg+2*t+i}, v{vLg+2*t+i}")
for t in range(4):
    a(f"v_add_f32 v{vMx+t}, v{vLg+2*t}, v{vLg+2*t+1}")
allreduce("v_add_f32", [vMx+t for t in range(4)], [vTm+t for t in range(4)])
vPc, vPp = 16, 24
for t in range(4):
    a(f"v_rcp_f32 v{vMx+t}, v{vMx+t}")
for t in range(4):
    a(f"v_cndmask_b32 v{vTm}, v{vMx+t}, 0, {PARM}")
    a(f"v_cndmask_b32 v{vTm+1}, 0, v{vMx+t}, {PARM}")
    for i in range(2):
        a(f"v_mul_f32 v{vTm+2}, v{vLg+2*t+i}, v{vTm}")
        a(f"v_mul_f32 v{vTm+3}, v{vLg+2*t+i}, v{vTm+1}")
        a(f"v_cvt_pk_bf16_f32 v{vTm+2}, v{vTm+2}, v{vTm+3}")
        a(f"v_cndmask_b32 v{vPc+2*t+i}, 0, v{vTm+2}, {MC[i]}")
        a(f"v_cndmask_b32 v{vPp+2*t+i}, v{vTm+2}, 0, {MC[i]}")
vO = 32
for t in range(1, 5):
    a(f"v_mfma_f32_16x16x16_bf16 {V(vO+4*(t-1),4)}, {V(vVb+2*t,2)}, {V(vPc+2*(t-1),2)}, 0")
for t in range(1, 5):
    a(f"v_mfma_f32_16x16x16_bf16 {V(vO+4*(t-1),4)}, {V(vVb+2*(t-1),2)}, {V(vPp+2*(t-1),2)}, {V(vO+4*(t-1),4)}")
a(f"v_and_b32 v{vT0}, 1, v{vQ}")
a(f"v_lshl_add_u32 v{vT0}, v{vT0}, 4, v{vL15}")
a(f"v_lshlrev_b32 v{vT0}, 10, v{vT0}")
a(f"v_lshrrev_b32 v{vT1}, 1, v{vQ}")
a(f"v_lshl_add_u32 v{vT0}, v{vT1}, 4, v{vT0}")
a(f"s_lshl_b32 s{sT0}, s{sG}, 16")
a(f"s_lshl_b32 s{sT1}, s{sJ}, 7")
a(f"s_add_u32 s{sT0}, s{sT0}, s{sT1}")
a(f"s_lshl_b32 s{sT1}, s{sW}, 5")
a(f"s_add_u32 s{sT0}, s{sT0}, s{sT1}")
a(f"s_add_u32 s{sT0}, s{sT0}, s{sOOFF}")
a(f"s_add_u32 s{sT1}, s{sT0}, 32768")
vOP = 48
for t in range(4):
    a(f"v_cvt_pk_bf16_f32 v{vOP+2*t}, v{vO+4*t}, v{vO+4*t+1}")
    a(f"v_cvt_pk_bf16_f32 v{vOP+2*t+1}, v{vO+4*t+2}, v{vO+4*t+3}")
for tp in range(2):
    a(f"v_permlane16_swap_b32 v{vOP+4*tp}, v{vOP+4*tp+2}")
    a(f"v_permlane16_swap_b32 v{vOP+4*tp+1}, v{vOP+4*tp+3}")
a(f"buffer_store_dwordx4 {V(vOP,4)}, v{vT0}, {S4(SWS)}, s{sT0} offen sc1")
a(f"buffer_store_dwordx4 {V(vOP+4,4)}, v{vT0}, {S4(SWS)}, s{sT1} offen sc1")
vm.drain()
barrier()
signal(8, f"""s_lshl_b32 s{sT0}, s{sG}, 3
v_add_u32 v{vT1}, s{sT0}, v{vLANE}
v_lshlrev_b32 v{vT1}, 14, v{vT1}
s_lshl_b32 s{sT0}, s{sJ}, 2
s_add_u32 s{sT0}, s{sT0}, s{sSIG}
s_add_u32 s{sT0}, s{sT0}, {MB_OFF}
v_add_u32 v{vT1}, s{sT0}, v{vT1}""")
prof("attn")
if STAGE <= 1:
    a("s_branch L_end")

a(f"s_cmp_lg_u32 s{sPH}, 0")
a("s_cbranch_scc1 L_p2")
for s in range(16):
    for h in range(2):
        a(f"ds_read_b64_tr_b16 {A(192+4*s+2*h,2)}, v{vTR} offset:{WOIMG + s*4096 + h*2048}")
    if s % 4 == 3: a("s_waitcnt lgkmcnt(0)")
a(f"v_lshlrev_b32 v{vT0}, 4, v{vTID}")
a(f"v_add_u32 v{vT0}, {HC + 32}, v{vT0}")
a(f"v_cmp_eq_u32 vcc, 255, v{vTID}")
for c in range(2):
    b = yH + 8*c
    a(f"v_cndmask_b32 v{b+4}, v{b+4}, 0, vcc")
    a(f"ds_write_b128 v{vT0}, {V(b,4)} offset:{2*c*HCP}")
    for i in range(4):
        a(f"v_alignbit_b32 v{160+i}, v{b+i+1}, v{b+i}, 16")
    a(f"ds_write_b128 v{vT0}, {V(160,4)} offset:{(2*c+1)*HCP}")
a(f"v_mov_b32 v160, 0\nv_mov_b32 v161, 0\nv_mov_b32 v162, 0\nv_mov_b32 v163, 0")
a(f"v_lshlrev_b32 v{vT1}, 4, v{vLANE}")
a(f"s_mov_b32 exec_lo, -1\ns_mov_b32 exec_hi, 0")
a(f"v_add_u32 v{vT2}, {UR + 4096}, v{vT1}")
a(f"ds_write_b128 v{vT2}, {V(160,4)}")
a(f"ds_write_b128 v{vT2}, {V(160,4)} offset:{URP}")
a(f"s_mov_b64 exec, 3")
a(f"v_add_u32 v{vT2}, {HC}, v{vT1}")
a(f"ds_write_b128 v{vT2}, {V(160,4)}")
a(f"ds_write_b128 v{vT2}, {V(160,4)} offset:{2*HCP}")
a(f"s_mov_b64 exec, 1")
a(f"ds_write_b128 v{vT2}, {V(160,4)} offset:{HCP}")
a(f"ds_write_b128 v{vT2}, {V(160,4)} offset:{3*HCP}")
a("s_mov_b64 exec, -1")
a(f"v_cmp_eq_u32 vcc, 0, v{vTID}")
a(f"s_and_saveexec_b64 s[{sEX}:{sEX+1}], vcc")
a(f"v_mov_b32 v{vT2}, {HC}")
for c in range(2):
    a(f"v_lshlrev_b32 v163, 16, v{yH+8*c}")
    a(f"ds_write_b128 v{vT2}, {V(160,4)} offset:{(2*c+1)*HCP + 16}")
    a("s_waitcnt lgkmcnt(0)")
a(f"s_mov_b64 exec, s[{sEX}:{sEX+1}]")
poll(32, MB_S1, "s1")
a(f"s_lshl_b32 s{sT0}, s{sL}, 13")
a(f"s_lshl_b32 s{sT1}, s{sW}, 11")
a(f"s_add_u32 s{sT0}, s{sT0}, s{sT1}")
a(f"s_add_u32 s{sT0}, s{sT0}, {KVT_OFF}")
a(f"s_lshr_b32 s{sT2}, s{sW}, 1")
a(f"s_mul_i32 s{sT2}, s{sT2}, {URP - 4096}")
a(f"s_add_u32 s{sT2}, s{sT2}, s{sT1}")
a(f"s_add_u32 m0, s{sT2}, {UR}")
a(f"buffer_load_dwordx4 v{vA0}, {S4(SWS)}, s{sT0} offen sc1 lds")
a(f"buffer_load_dwordx4 v{vA0}, {S4(SWS)}, s{sT0} offen offset:1024 sc1 lds")
yF, yG, yAcc = 16, 48, 84
yFA, yGA = 116, 120
a(f"v_add_u32 v{vT0}, 1, v{vL15}")
a(f"v_and_b32 v{vT0}, 30, v{vT0}")
a(f"v_lshlrev_b32 v{vT0}, 1, v{vT0}")
a(f"v_lshlrev_b32 v{vT1}, 4, v{vQ}")
a(f"v_sub_u32 v{vT0}, v{vT0}, v{vT1}")
a(f"v_mov_b32 v{vT1}, {HCP}")
a(f"v_cndmask_b32 v{vT1}, v{vT1}, 0, {PARM}")
a(f"v_add_u32 v{vT0}, v{vT0}, v{vT1}")
a(f"s_lshr_b32 s{sT0}, s{sW}, 1")
a(f"s_mul_i32 s{sT1}, s{sT0}, {2*HCP}")
a(f"s_and_b32 s{sT2}, s{sW}, 1")
a(f"s_lshl_b32 s{sT2}, s{sT2}, 8")
a(f"s_sub_u32 s{sT1}, s{sT1}, s{sT2}")
for ap in range(4):
    a(f"s_add_u32 s{sT3}, s{sT1}, {HC + 4080 - 512*(2*ap+1) - 192}")
    a(f"v_add_u32 v{yFA+ap}, s{sT3}, v{vT0}")
a(f"v_lshlrev_b32 v{vT0}, 5, v{vL15}")
a(f"v_lshl_add_u32 v{vT0}, v{vQ}, 4, v{vT0}")
a(f"s_mul_i32 s{sT1}, s{sT0}, {URP}")
a(f"s_sub_u32 s{sT1}, s{sT1}, s{sT2}")
a(f"s_add_u32 s{sT1}, s{sT1}, {UR + 8144 - 512*14 - 192}")
a(f"v_sub_u32 v{yGA}, s{sT1}, v{vT0}")
a("s_waitcnt vmcnt(0) lgkmcnt(0)")
barrier()
prof("y2start")
for rr in range(4):
    for aa in range(8):
        ap, hi = aa // 2, aa % 2
        off = ((1 - hi) * 512 + (3 - rr) * 64) // 4
        a(f"ds_read2_b32 {V(yF+4*aa,2)}, v{yFA+ap} offset0:{off} offset1:{off+1}")
        a(f"ds_read2_b32 {V(yF+4*aa+2,2)}, v{yFA+ap} offset0:{off+2} offset1:{off+3}")
        if aa % 4 == 3: a("s_waitcnt lgkmcnt(0)") if False else None
    a("s_waitcnt lgkmcnt(0)")
    for bb in range(8):
        b = 7 + bb
        a(f"ds_read_b128 {V(yG+4*bb,4)}, v{yGA} offset:{(14-b)*512 + (3-rr)*64}")
    started = set()
    for bb in range(8):
        a(f"s_waitcnt lgkmcnt({7-bb})")
        b = 7 + bb
        for aa in range(8):
            c = b - aa
            if 0 <= c <= 7:
                first = (rr == 0 and c not in started); started.add(c)
                a(f"v_mfma_f32_16x16x32_bf16 {V(yAcc+4*c,4)}, {V(yF+4*aa,4)}, {V(yG+4*bb,4)}, {'0' if first else V(yAcc+4*c,4)}")
barrier()
a(f"s_lshl_b32 s{sT0}, s{sW}, 12")
a(f"s_add_u32 s{sT0}, s{sT0}, {ACCX}")
a(f"v_add_u32 v{vT0}, s{sT0}, v{vA0}")
a(f"s_xor_b32 s{sT1}, s{sW}, 1")
a(f"s_lshl_b32 s{sT1}, s{sT1}, 12")
a(f"s_add_u32 s{sT1}, s{sT1}, {ACCX}")
a(f"v_add_u32 v{vT1}, s{sT1}, v{vA0}")
a(f"s_and_b32 s{sT2}, s{sW}, 1")
a(f"s_cmp_eq_u32 s{sT2}, 0")
a("s_cbranch_scc1 L_y2_even")
a.flush()
for i in range(4):
    a(f"ds_write_b128 v{vT0}, {V(yAcc+8*i,4)} offset:{1024*i}")
    for r in range(4): a(f"v_mov_b32 v{yF+4*i+r}, v{yAcc+8*i+4+r}")
a("s_branch L_y2_x")
a.label("L_y2_even")
a.flush()
for i in range(4):
    a(f"ds_write_b128 v{vT0}, {V(yAcc+8*i+4,4)} offset:{1024*i}")
    for r in range(4): a(f"v_mov_b32 v{yF+4*i+r}, v{yAcc+8*i+r}")
a.label("L_y2_x")
a("s_waitcnt lgkmcnt(0)")
barrier()
for i in range(4):
    a(f"ds_read_b128 {V(yG+4*i,4)}, v{vT1} offset:{1024*i}")
a(f"v_lshlrev_b32 v{vT0}, 5, v{vL15}")
a(f"v_lshl_add_u32 v{vT0}, v{vQ}, 3, v{vT0}")
a(f"s_lshr_b32 s{sT0}, s{sW}, 1")
a(f"s_mul_i32 s{sT1}, s{sT0}, {URP}")
a(f"s_lshl_b32 s{sT3}, s{sT2}, 9")
a(f"s_sub_u32 s{sT1}, s{sT1}, s{sT3}")
a(f"s_add_u32 s{sT1}, s{sT1}, {UR + 4088 - 3*1024}")
a(f"v_sub_u32 v{vT1}, s{sT1}, v{vT0}")
for i in range(4):
    a(f"ds_read_b64 {V(64+2*i,2)}, v{vT1} offset:{(3-i)*1024}")
a(f"s_lshl_b32 s{sT1}, s{sD}, 16")
a(f"s_and_b32 s{sT3}, s{sD}, 0xffff0000")
a(f"s_cmp_eq_u32 s{sT0}, 0")
a(f"s_cselect_b32 s{sT1}, s{sT1}, s{sT3}")
a(f"s_lshl_b32 s{sT3}, s{sL}, 1")
a(f"s_add_u32 s{sT3}, s{sT3}, s{sT0}")
a(f"s_lshl_b32 s{sT3}, s{sT3}, 12")
a(f"s_lshl_b32 s{sT4}, s{sT2}, 9")
a(f"s_add_u32 s{sT3}, s{sT3}, s{sT4}")
a(f"s_add_u32 s{sT3}, s{sT3}, {YT_OFF}")
a("s_waitcnt lgkmcnt(0)")
for i in range(4):
    y = yF + 4*i
    a(f"v_pk_add_f32 {V(y,2)}, {V(y,2)}, {V(yG+4*i,2)}")
    a(f"v_pk_add_f32 {V(y+2,2)}, {V(y+2,2)}, {V(yG+4*i+2,2)}")
    a(f"v_cvt_pk_bf16_f32 v{y}, v{y}, v{y+1}")
    a(f"v_cvt_pk_bf16_f32 v{y+2}, v{y+2}, v{y+3}")
    a(f"v_and_b32 v{y+1}, 0xffff0000, v{y}")
    a(f"v_lshlrev_b32 v{y}, 16, v{y}")
    a(f"v_and_b32 v{y+3}, 0xffff0000, v{y+2}")
    a(f"v_lshlrev_b32 v{y+2}, 16, v{y+2}")
    k0 = 64 + 2*i; u = 72
    a(f"v_and_b32 v{u}, 0xffff0000, v{k0+1}")
    a(f"v_lshlrev_b32 v{u+1}, 16, v{k0+1}")
    a(f"v_and_b32 v{u+2}, 0xffff0000, v{k0}")
    a(f"v_lshlrev_b32 v{u+3}, 16, v{k0}")
    for r in range(4): a(f"v_mul_f32 v{u+r}, s{sT1}, v{u+r}")
    a(f"v_cvt_pk_bf16_f32 v{u}, v{u}, v{u+1}")
    a(f"v_cvt_pk_bf16_f32 v{u+2}, v{u+2}, v{u+3}")
    a(f"v_and_b32 v{u+1}, 0xffff0000, v{u}")
    a(f"v_lshlrev_b32 v{u}, 16, v{u}")
    a(f"v_and_b32 v{u+3}, 0xffff0000, v{u+2}")
    a(f"v_lshlrev_b32 v{u+2}, 16, v{u+2}")
    a(f"v_pk_add_f32 {V(y,2)}, {V(y,2)}, {V(u,2)}")
    a(f"v_pk_add_f32 {V(y+2,2)}, {V(y+2,2)}, {V(u+2,2)}")
    a(f"v_cvt_pk_bf16_f32 v{y}, v{y}, v{y+1}")
    a(f"v_cvt_pk_bf16_f32 v{y+1}, v{y+2}, v{y+3}")
    a(f"buffer_store_dwordx2 {V(y,2)}, v{vT0}, {S4(SWS)}, s{sT3} offen offset:{1024*i} sc1")
vm.drain()
barrier()
signal(32, f"""s_lshr_b32 s{sT0}, s{sL}, 5
v_lshl_add_u32 v{vT1}, v{vLANE}, 3, s{sT0}
v_lshlrev_b32 v{vT1}, 14, v{vT1}
s_and_b32 s{sT0}, s{sL}, 31
s_lshl_b32 s{sT0}, s{sT0}, 2
s_add_u32 s{sT0}, s{sT0}, {MB_OFF + MB_S3}
v_add_u32 v{vT1}, s{sT0}, v{vT1}""")
prof("y2")
if STAGE <= 2:
    a("s_branch L_end")

a.flush()
a.label("L_p2")
vm.reset(); lg.reset()
vRA = 120
a(f"v_lshlrev_b32 v{vRA}, 10, v{vL15}")
a(f"v_lshl_add_u32 v{vRA}, v{vQ}, 3, v{vRA}")
a(f"s_lshl_b32 s{sT4}, s{sG}, 16")
a(f"s_lshl_b32 s{sT1}, s{sJ}, 7")
a(f"s_add_u32 s{sT4}, s{sT4}, s{sT1}")
a(f"s_lshl_b32 s{sT1}, s{sW}, 5")
a(f"s_add_u32 s{sT4}, s{sT4}, s{sT1}")
a(f"s_cmp_lg_u32 s{sPH}, 0")
a("s_cbranch_scc1 L_p2_nores")
for t in range(4):
    a(f"s_add_u32 s{sT1}, s{sT4}, {16384*t}")
    a(f"buffer_load_dwordx2 {V(vX2+2*t,2)}, v{vRA}, {S4(SX)}, s{sT1} offen")
a.label("L_p2_nores")
a(f"s_add_u32 s{sT5}, s{sSIG}, 0")
L = "L_poll_o"
a(f"v_lshlrev_b32 v{vT1}, 2, v{vLANE}")
a("s_mov_b64 exec, 0xff" if False else "s_mov_b32 exec_lo, 0xff\ns_mov_b32 exec_hi, 0")
a(f"s_add_u32 s{sT0}, s{sMB}, s{sSIG}")
a.flush()
a.label(L)
a(f"buffer_load_dword v{vT0}, v{vT1}, {S4(SWS)}, s{sT0} offen sc1")
a("s_waitcnt vmcnt(0)")
a(f"v_cmp_ne_u32 vcc, 1, v{vT0}")
a(f"s_cbranch_vccnz {L}")
a("s_mov_b64 exec, -1")
prof("p2_owait")
vm.reset()
a(f"v_add_u32 v{vT2}, s{sW16K}, v{vXD}")
for s in range(16):
    a(f"s_add_u32 s{sT0}, s{sKK0}, {s}")
    a(f"s_and_b32 s{sT0}, s{sT0}, 15")
    a(f"s_lshl_b32 s{sT1}, s{sT0}, 6")
    a(f"s_add_u32 s{sT1}, s{sT1}, s{sOOFF}")
    a(f"s_add_u32 m0, s{sW1K}, {OIMG + s*4096}")
    a(f"buffer_load_dwordx4 v{vT2}, {S4(SWS)}, s{sT1} offen sc1 lds"); vm.issue(("o", s // 4))
vOB = 121
a(f"v_add_u32 v{vOB}, {OIMG}, v{vA0}")
vPA = 16
vOF = 32
def p2_reads(s):
    for t in range(4):
        a(f"ds_read_b128 {V(vOF+16*(s&1)+4*t,4)}, v{vOB} offset:{s*4096 + t*1024}"); lg.issue(("of", s))
for s in range(16):
    if s % 4 == 0:
        vm.wait(("o", s // 4))
        barrier()
        p2_reads(s)
    if s % 4 != 3:
        p2_reads(s + 1)
    lg.wait(("of", s))
    for t in range(4):
        a(f"v_mfma_f32_16x16x32_bf16 {V(vPA+4*t,4)}, {A(192+4*s,4)}, {V(vOF+16*(s&1)+4*t,4)}, {'0' if s == 0 else V(vPA+4*t,4)}")
prof("p2_gemm")
a(f"s_cmp_lg_u32 s{sPH}, 0")
a("s_cbranch_scc1 L_p2_noy")
poll(32, MB_S3, "s3")
a(f"v_lshrrev_b32 v{vT0}, 3, v{vLANE}")
a(f"v_lshlrev_b32 v{vT0}, 12, v{vT0}")
a(f"v_and_b32 v{vT1}, 7, v{vLANE}")
a(f"v_lshl_add_u32 v{vT0}, v{vT1}, 4, v{vT0}")
a(f"s_lshl_b32 s{sT0}, s{sJ}, 18")
a(f"s_lshl_b32 s{sT1}, s{sG}, 7")
a(f"s_add_u32 s{sT0}, s{sT0}, s{sT1}")
a(f"s_lshl_b32 s{sT1}, s{sW}, 16")
a(f"s_add_u32 s{sT0}, s{sT0}, s{sT1}")
a(f"s_add_u32 s{sT0}, s{sT0}, {YT_OFF}")
a(f"s_lshl_b32 s{sT1}, s{sW}, 11")
a(f"s_add_u32 m0, s{sT1}, {YTT}")
a(f"buffer_load_dwordx4 v{vT0}, {S4(SWS)}, s{sT0} offen sc1 lds")
a(f"s_add_u32 s{sT0}, s{sT0}, 32768")
a(f"s_add_u32 m0, s{sT1}, {YTT + 1024}")
a(f"buffer_load_dwordx4 v{vT0}, {S4(SWS)}, s{sT0} offen sc1 lds")
a.flush()
a.label("L_p2_noy")
vX1 = 64
vSt = 72
vW = 84
for t in range(4):
    c = vPA + 4*t
    a(f"v_cvt_pk_bf16_f32 v{c}, v{c}, v{c+1}")
    a(f"v_cvt_pk_bf16_f32 v{c+2}, v{c+2}, v{c+3}")
    a(f"v_and_b32 v{c+1}, 0xffff0000, v{c}")
    a(f"v_lshlrev_b32 v{c}, 16, v{c}")
    a(f"v_and_b32 v{c+3}, 0xffff0000, v{c+2}")
    a(f"v_lshlrev_b32 v{c+2}, 16, v{c+2}")
    a(f"v_lshlrev_b32 v{vW}, 16, v{vX2+2*t}")
    a(f"v_and_b32 v{vW+1}, 0xffff0000, v{vX2+2*t}")
    a(f"v_lshlrev_b32 v{vW+2}, 16, v{vX2+2*t+1}")
    a(f"v_and_b32 v{vW+3}, 0xffff0000, v{vX2+2*t+1}")
    a(f"v_pk_add_f32 {V(c,2)}, {V(c,2)}, {V(vW,2)}")
    a(f"v_pk_add_f32 {V(c+2,2)}, {V(c+2,2)}, {V(vW+2,2)}")
    a(f"v_cvt_pk_bf16_f32 v{vX1+2*t}, v{c}, v{c+1}")
    a(f"v_cvt_pk_bf16_f32 v{vX1+2*t+1}, v{c+2}, v{c+3}")
    a(f"v_mov_b32 v{vSt+2*t}, 0")
    a(f"v_mov_b32 v{vSt+2*t+1}, 0")
    for h in range(2):
        a(f"v_dot2c_f32_bf16 v{vSt+2*t}, v{vX1+2*t+h}, v{vONE}")
        a(f"v_dot2c_f32_bf16 v{vSt+2*t+1}, v{vX1+2*t+h}, v{vX1+2*t+h}")
a(f"v_lshlrev_b32 v{vT0}, 9, v{vQ}")
a(f"v_lshl_add_u32 v{vT0}, v{vL15}, 3, v{vT0}")
a(f"s_lshl_b32 s{sT0}, s{sW}, 11")
a(f"s_add_u32 s{sT0}, s{sT0}, {PS}")
a(f"v_add_u32 v{vT0}, s{sT0}, v{vT0}")
for t in range(4):
    a(f"ds_write_b64 v{vT0}, {V(vSt+2*t,2)} offset:{128*t}")
a("s_waitcnt vmcnt(0) lgkmcnt(0)")
barrier()
a(f"v_lshlrev_b32 v{vT0}, 3, v{vLANE}")
a(f"v_add_u32 v{vT1}, {PS}, v{vT0}")
for half in range(2):
    for i in range(8):
        a(f"ds_read_b64 {V(vW+2*i+16*half,2)}, v{vT1} offset:{512*(8*half+i)}")
    a("s_waitcnt lgkmcnt(0)") if half == 0 else None
a("s_waitcnt lgkmcnt(0)")
n = 16
while n > 1:
    n //= 2
    for i in range(n):
        a(f"v_pk_add_f32 {V(vW+2*i,2)}, {V(vW+2*i,2)}, {V(vW+2*(i+n),2)}")
a(f"v_or_b32 v{vW+1}, 0x80000000, v{vW+1}")
a(f"s_lshl_b32 s{sT0}, s{sG}, 3")
a(f"s_lshl_b32 s{sT1}, s{sW}, 1")
a(f"s_add_u32 s{sT0}, s{sT0}, s{sT1}")
a(f"s_lshl_b32 s{sT0}, s{sT0}, 14")
a(f"s_lshl_b32 s{sT1}, s{sJ}, 9")
a(f"s_add_u32 s{sT0}, s{sT0}, s{sT1}")
a(f"s_add_u32 s{sT0}, s{sT0}, s{sSTAT}")
a(f"s_add_u32 s{sT0}, s{sT0}, {MB_OFF}")
a(f"s_add_u32 s{sT1}, s{sT0}, {MB_SZ}")
a(f"buffer_store_dwordx2 {V(vW,2)}, v{vT0}, {S4(SWS)}, s{sT0} offen sc1")
a(f"buffer_store_dwordx2 {V(vW,2)}, v{vT0}, {S4(SWS)}, s{sT1} offen sc1")
a(f"s_cmp_lg_u32 s{sPH}, 0")
a("s_cbranch_scc1 L_p2_noy2")
a(f"v_lshrrev_b32 v{vT1}, 2, v{vLANE}")
a(f"v_lshlrev_b32 v{vT1}, 7, v{vT1}")
a(f"v_and_b32 v{vT2}, 3, v{vLANE}")
a(f"v_lshl_add_u32 v{vT1}, v{vT2}, 3, v{vT1}")
a(f"s_lshl_b32 s{sT0}, s{sW}, 11")
a(f"s_add_u32 s{sT0}, s{sT0}, {YTT}")
a(f"v_add_u32 v{vT1}, s{sT0}, v{vT1}")
for t in range(4):
    a(f"ds_read_b64_tr_b16 {V(vYY+2*t,2)}, v{vT1} offset:{32*t}")
a("s_waitcnt lgkmcnt(0)")
a.flush()
a.label("L_p2_noy2")
a(f"s_add_u32 s{sT0}, s{sMB}, s{sSTAT}")
a.flush()
a.label("L_poll_st")
for i in range(8):
    a(f"buffer_load_dwordx2 {V(vW+2*i,2)}, v{vT0}, {S4(SWS)}, s{sT0} offen offset:{512*i} sc1")
a("s_waitcnt vmcnt(0)")
a(f"v_and_b32 v{vT1}, v{vW+1}, v{vW+3}")
for i in range(2, 8):
    a(f"v_and_b32 v{vT1}, v{vT1}, v{vW+2*i+1}")
a(f"v_cmp_le_i32 vcc, 0, v{vT1}")
a("s_cbranch_vccnz L_poll_st")
prof("p2_stats")
n = 8
while n > 1:
    n //= 2
    for i in range(n):
        a(f"v_pk_add_f32 {V(vW+2*i,2)}, {V(vW+2*i,2)}, {V(vW+2*(i+n),2)}")
a(f"v_sub_f32 v{vW+1}, 0, v{vW+1}")
ln_math(vW, vW+1, vW+2, vW+3, vW+4, vW+5)
a(f"s_mul_i32 s{sT0}, s{sW}, 640")
a(f"s_add_u32 s{sT0}, s{sT0}, {ABW}")
a(f"v_lshl_add_u32 v{vT1}, v{vLANE}, 3, s{sT0}")
a(f"v_lshl_add_u32 v{vT2}, v{vL15}, 3, s{sT0}")
a(f"ds_write_b64 v{vT1}, {V(vW+2,2)}")
a("s_waitcnt lgkmcnt(0)")
for t in range(4):
    a(f"ds_read_b64 {V(vW+8+2*t,2)}, v{vT2} offset:{128*t}")
a("s_waitcnt lgkmcnt(0)")
for t in range(4):
    ab = V(vW+8+2*t, 2)
    x, y, u = 100, 104, 108
    a(f"v_lshlrev_b32 v{x}, 16, v{vX1+2*t}")
    a(f"v_and_b32 v{x+1}, 0xffff0000, v{vX1+2*t}")
    a(f"v_lshlrev_b32 v{x+2}, 16, v{vX1+2*t+1}")
    a(f"v_and_b32 v{x+3}, 0xffff0000, v{vX1+2*t+1}")
    a(f"v_lshlrev_b32 v{y}, 16, v{vYY+2*t}")
    a(f"v_and_b32 v{y+1}, 0xffff0000, v{vYY+2*t}")
    a(f"v_lshlrev_b32 v{y+2}, 16, v{vYY+2*t+1}")
    a(f"v_and_b32 v{y+3}, 0xffff0000, v{vYY+2*t+1}")
    for h in range(2):
        a(f"v_pk_fma_f32 {V(u+2*h,2)}, {V(x+2*h,2)}, {ab}, {ab} op_sel:[0,0,1] op_sel_hi:[1,0,1]")
        a(f"v_pk_fma_f32 {V(u+2*h,2)}, {V(u+2*h,2)}, {V(y+2*h,2)}, {V(x+2*h,2)}")
    a(f"v_cvt_pk_bf16_f32 v{vX2+2*t}, v{u}, v{u+1}")
    a(f"v_cvt_pk_bf16_f32 v{vX2+2*t+1}, v{u+2}, v{u+3}")
for i in range(8): a(f"v_mov_b32 v{vW+i}, v{vX2+i}")
for tp in range(2):
    a(f"v_permlane16_swap_b32 v{vW+4*tp}, v{vW+4*tp+2}")
    a(f"v_permlane16_swap_b32 v{vW+4*tp+1}, v{vW+4*tp+3}")
a(f"v_and_b32 v{vT0}, 1, v{vQ}")
a(f"v_lshl_add_u32 v{vT0}, v{vT0}, 4, v{vL15}")
a(f"v_lshlrev_b32 v{vT0}, 10, v{vT0}")
a(f"v_lshrrev_b32 v{vT1}, 1, v{vQ}")
a(f"v_lshl_add_u32 v{vT0}, v{vT1}, 4, v{vT0}")
a(f"s_add_u32 s{sT1}, s{sT4}, 32768")
a(f"s_cmp_lg_u32 s{sPH}, 0")
a("s_cbranch_scc1 L_final")
a(f"buffer_store_dwordx4 {V(vW,4)}, v{vT0}, {S4(SX2)}, s{sT4} offen sc1")
a(f"buffer_store_dwordx4 {V(vW+4,4)}, v{vT0}, {S4(SX2)}, s{sT1} offen sc1")
vm.drain()
barrier()
signal(16, f"""s_lshl_b32 s{sT0}, s{sG}, 3
v_add_u32 v{vT1}, s{sT0}, v{vLANE}
v_lshlrev_b32 v{vT1}, 14, v{vT1}
v_and_b32 v{vT2}, 8, v{vLANE}
v_lshl_add_u32 v{vT1}, v{vT2}, 2, v{vT1}
s_lshl_b32 s{sT0}, s{sJ}, 2
s_add_u32 s{sT0}, s{sT0}, {MB_OFF + MB_S5}
v_add_u32 v{vT1}, s{sT0}, v{vT1}""")
prof("p2_done")
if STAGE <= 3:
    a("s_branch L_end")

a(f"s_mov_b32 s{sPH}, 1")
a(f"s_mov_b32 s{sOOFF}, {O3_OFF}")
a(f"s_mov_b32 s{sSIG}, {MB_S6}")
a(f"s_mov_b32 s{sSTAT}, {MB_ST1}")
zero_stats()
a(f"v_lshlrev_b32 v{vT1}, 2, v{vLANE}")
a(f"s_mov_b32 s{sT1}, 0xffff")
a(f"s_cmp_eq_u32 s{sG}, 0")
a(f"s_cselect_b32 exec_lo, 0xff, s{sT1}")
a("s_mov_b32 exec_hi, 0")
a(f"s_add_u32 s{sT0}, s{sMB}, {MB_S5}")
a.flush()
a.label("L_poll_x2")
a(f"buffer_load_dword v{vT0}, v{vT1}, {S4(SWS)}, s{sT0} offen sc1")
a("s_waitcnt vmcnt(0)")
a(f"v_cmp_ne_u32 vcc, 1, v{vT0}")
a("s_cbranch_vccnz L_poll_x2")
a("s_mov_b64 exec, -1")
prof("p3_wait")
vm.reset(); lg.reset()
for s in range(16):
    dma_x(s, SX2)
for s in range(16):
    if s % 4 == 0:
        vm.wait(("x", s + 3), ("h", s // 4))
        barrier()
        lds_reads_x(s, s & 1)
    if s % 4 != 3:
        lds_reads_x(s + 1, (s + 1) & 1)
    lg.wait(("xa", s))
    mfmas(s, s & 1, False)
prof("p3_gemm")
a.flush()
a("s_branch L_attn")

a.label("L_final")
a(f"buffer_store_dwordx4 {V(vW,4)}, v{vT0}, {S4(SOUT)}, s{sT4} offen")
a(f"buffer_store_dwordx4 {V(vW+4,4)}, v{vT0}, {S4(SOUT)}, s{sT1} offen")
prof("final")
a.label("L_end")
a("s_endpgm")
a.raw('.section .rodata,"a"')
a.raw(kernel_desc(NAME, 512, 102, 256))
out = sys.argv[1] if len(sys.argv) > 1 else "interleave_layers__sliding_local_dilated__ssm_conv_h3__prompt.s"
open(out, "w").write(a.text())
print("wrote", out, "lines", len(a.lines), "pad states", a.npad)
```

```python
import sys, os
sys.path.insert(0, os.path.dirname(os.path.abspath(__file__)))
from asmlib import *

NAME = "interleave_layers__sliding_local_dilated__ssm_conv_h3__prompt_kernel"
STAGE = int(os.environ.get("STAGE", "9"))
PROF = int(os.environ.get("PROF", "0"))

KVT_OFF = 0
YT_OFF = 2 << 20
O1_OFF = 4 << 20
X2_OFF = KVT_OFF
O3_OFF = O1_OFF
MB_OFF = 16 << 20
MB_SZ = 32768
MB_SH = 15
MB_S1, MB_S2, MB_S3, MB_S5, MB_S6 = 0, 4096, 5120, 9216, 4096
MB_ST0, MB_ST1 = 12288, 12288
PROF_OFF = 32 << 20

XIMG = 0
WRING = 81920
NSLOT = 6
Y1T = 155648
WOIMG = 0
UR = 65536
URP = 4608
HC = 74752
HCP = 4160
ACCX = 74752
YTT = 74752
MISC = 91392
ST_OWN = MISC
ST_H = MISC + 512
ABW = MISC + 1024
PS = HC + 8192
OIMG = 98304

sB, sW, sG, sJ, sKK0, sPH = 2, 3, 4, 5, 6, 7
SX, SWQ, SWO, SK_, SV_, SSK, SH, SOUT, SDBG, SWS, SX2 = 8, 12, 16, 20, 24, 28, 32, 36, 40, 44, 48
sSD = 52
sPAR, sMC0, sMC1 = 54, 56, 58
sL = 60
sT0, sT1, sT2, sT3 = 61, 62, 63, 64
sW1K, sW16K, sW5K = 65, 66, 67
sMB = 68
sOOFF, sSIG, sSTAT = 69, 70, 71
sEX = 72
sD = 74
sT4, sT5 = 75, 76
sN = 78
sPT = 90

def S4(n): return f"s[{n}:{n+3}]"
def V(n, k=1): return f"v{n}" if k == 1 else f"v[{n}:{n+k-1}]"
def A(n, k=1): return f"a{n}" if k == 1 else f"a[{n}:{n+k-1}]"

vTID, vLANE, vL15, vQ = 0, 1, 2, 3
vA0, vA1, vS0, vS1, vSH, vTR, vXD, vXDH, vWD = 4, 5, 6, 7, 8, 9, 10, 11, 12
vT0, vT1, vT2 = 13, 14, 15
vQT = 16
vKT = 32
vVV = 52
vCS = 224
vXA = 84
vSO = 124
vSHF = 132
vONE = 136
vST = 196
vXD2, vXDH2 = 236, 237
vFR = 239
vP0 = 222
vNL = 220
vX2 = 240
vYY = 248

a = Asm()
vm = Cnt(a, "vmcnt", 63)
lg = Cnt(a, "lgkmcnt", 15)
prof_idx = [0]

def prof(tag):
    if not PROF: return
    i = prof_idx[0]; prof_idx[0] += 1
    a(f"s_memtime s[{sPT}:{sPT+1}]")
    a("s_waitcnt lgkmcnt(0)")
    lg.reset()
    a(f"v_mov_b32 v218, s{sPT}")
    a(f"s_lshl_b32 s{sPT+2}, s{sL}, 9")
    a(f"s_lshl_b32 s{sPT+3}, s{sPH}, 8")
    a(f"s_add_u32 s{sPT+2}, s{sPT+2}, s{sPT+3}")
    a(f"s_add_u32 s{sPT+2}, s{sPT+2}, {PROF_OFF + 4*i}")
    a(f"v_mov_b32 v219, 0")
    a(f"v_cmp_eq_u32 s[{sPT+6}:{sPT+7}], 0, v{vTID}")
    a(f"s_and_saveexec_b64 s[{sPT+4}:{sPT+5}], s[{sPT+6}:{sPT+7}]")
    a(f"buffer_store_dword v218, v219, {S4(SWS)}, s{sPT+2} offen")
    a(f"s_mov_b64 exec, s[{sPT+4}:{sPT+5}]")
    vm.issue("prof")

def set_exec(n):
    a(f"s_mov_b32 exec_lo, {hex((1 << min(n,32)) - 1)}")
    a(f"s_mov_b32 exec_hi, {hex((1 << (n-32)) - 1) if n > 32 else 0}")

def poll(n, mboff, name, exec_set=False):
    L = a.newlabel("L_poll_" + name)
    a(f"v_lshlrev_b32 v{vT2}, 7, v{vLANE}")
    if not exec_set: set_exec(n)
    a(f"s_add_u32 s{sT0}, s{sMB}, {mboff}")
    a.flush()
    a.label(L)
    a(f"buffer_load_dwordx2 {V(vP0,2)}, v{vT2}, {S4(SWS)}, s{sT0} offen sc1")
    a("s_waitcnt vmcnt(0)")
    a(f"v_cmp_ne_u64 vcc, s[{sN}:{sN+1}], {V(vP0,2)}")
    a(f"s_cbranch_vccnz {L}")
    a("s_mov_b64 exec, -1")
    vm.reset()

def signal(n, addr_code):
    L = a.newlabel("L_sig")
    a(f"s_cmp_lg_u32 s{sW}, 0")
    a(f"s_cbranch_scc1 {L}")
    a(addr_code)
    a(f"v_mov_b32 v{vP0}, s{sN}")
    a(f"v_mov_b32 v{vP0+1}, s{sN+1}")
    set_exec(n)
    a(f"buffer_store_dwordx2 {V(vP0,2)}, v{vT1}, {S4(SWS)}, 0 offen sc1")
    a("s_mov_b64 exec, -1")
    a.flush()
    a.label(L)

def allreduce(op, regs, tmps):
    for sw in ("v_permlane16_swap_b32", "v_permlane32_swap_b32"):
        for r, t in zip(regs, tmps): a(f"v_mov_b32 v{t}, v{r}")
        for r, t in zip(regs, tmps): a(f"{sw} v{r}, v{t}")
        for r, t in zip(regs, tmps): a(f"{op} v{r}, v{r}, v{t}")

def ln_math(vS, vSS, vAo, vBo, t0, t1):
    a(f"v_mul_f32 v{t0}, 0x3b000000, v{vS}")
    a(f"v_mul_f32 v{t1}, 0x3b000000, v{vSS}")
    a(f"v_fma_f32 v{t1}, -v{t0}, v{t0}, v{t1}")
    a(f"v_max_f32 v{t1}, 0, v{t1}")
    a(f"v_cvt_pk_bf16_f32 v{t0}, v{t0}, v{t1}")
    a(f"v_and_b32 v{t1}, 0xffff0000, v{t0}")
    a(f"v_lshlrev_b32 v{t0}, 16, v{t0}")
    a(f"v_add_f32 v{t1}, 0x3727c5ac, v{t1}")
    a(f"v_cvt_pk_bf16_f32 v{t1}, v{t1}, v{t1}")
    a(f"v_lshlrev_b32 v{t1}, 16, v{t1}")
    a(f"v_sqrt_f32 v{t1}, v{t1}")
    a(f"v_cvt_pk_bf16_f32 v{t1}, v{t1}, v{t1}")
    a(f"v_lshlrev_b32 v{t1}, 16, v{t1}")
    a(f"v_rcp_f32 v{vAo}, v{t1}")
    a(f"v_mul_f32 v{vBo}, v{t0}, v{vAo}")
    a(f"v_sub_f32 v{vBo}, 0, v{vBo}")

def barrier():
    a("s_barrier")

OT = PS
def tile_to_lds(src, tmp):
    a(f"v_lshrrev_b32 v{vT0}, 1, v{vQ}")
    a(f"s_lshl_b32 s{sT0}, s{sW}, 1")
    a(f"v_add_u32 v{vT0}, s{sT0}, v{vT0}")
    a(f"v_and_b32 v{vT1}, 7, v{vL15}")
    a(f"v_xor_b32 v{vT0}, v{vT0}, v{vT1}")
    a(f"v_lshlrev_b32 v{vT0}, 4, v{vT0}")
    a(f"v_lshl_add_u32 v{vT0}, v{vL15}, 7, v{vT0}")
    a(f"v_and_b32 v{vT1}, 1, v{vQ}")
    a(f"v_lshl_add_u32 v{vT0}, v{vT1}, 3, v{vT0}")
    a(f"v_add_u32 v{vT0}, {OT}, v{vT0}")
    for t in range(4):
        a(f"ds_write_b64 v{vT0}, {V(src+2*t,2)} offset:{2048*t}")
    a(f"v_lshlrev_b32 v{vT1}, 4, v{vTID}")
    a(f"v_add_u32 v{vT1}, {OT}, v{vT1}")
    a(f"v_lshrrev_b32 v{vT2}, 3, v{vTID}")
    a(f"v_xor_b32 v{vT0}, v{vTID}, v{vT2}")
    a(f"v_and_b32 v{vT0}, 7, v{vT0}")
    a(f"v_lshlrev_b32 v{vT0}, 4, v{vT0}")
    a(f"v_lshl_add_u32 v{vT0}, v{vT2}, 10, v{vT0}")
    a("s_waitcnt lgkmcnt(0)")
    barrier()
    a(f"ds_read_b128 {V(tmp,4)}, v{vT1}")
    a(f"ds_read_b128 {V(tmp+4,4)}, v{vT1} offset:4096")
    a("s_waitcnt lgkmcnt(0)")

a.raw("; @launch grid=(256,1,1) block=(256,1,1) lds=163840")
a.raw('.amdgcn_target "amdgcn-amd-amdhsa--gfx950"\n.text')
a.raw(kernel_header(NAME))
a(f"s_cmp_ge_u32 s{sB}, 256")
a("s_cbranch_scc1 L_end")
a("s_load_dwordx16 s[76:91], s[0:1], 0")
a("s_load_dwordx8 s[92:99], s[0:1], 64")
a(f"v_and_b32 v{vLANE}, 63, v{vTID}")
a(f"v_lshrrev_b32 v{vT0}, 6, v{vTID}")
a(f"v_and_b32 v{vL15}, 15, v{vTID}")
a(f"v_readfirstlane_b32 s{sW}, v{vT0}")
a(f"v_bfe_u32 v{vQ}, v{vTID}, 4, 2")
a(f"v_lshlrev_b32 v{vA0}, 4, v{vLANE}")
a(f"v_lshrrev_b32 v{vT0}, 2, v{vL15}")
a(f"v_and_b32 v{vT0}, 2, v{vT0}")
a(f"v_xor_b32 v{vT0}, v{vT0}, v{vQ}")
a(f"v_lshlrev_b32 v{vFR}, 6, v{vL15}")
a(f"v_lshl_add_u32 v{vFR}, v{vT0}, 4, v{vFR}")
a(f"v_add_u32 v{vA1}, 40960, v{vFR}")
a(f"s_and_b32 s{sT0}, s{sB}, 7")
a(f"s_lshr_b32 s{sT1}, s{sB}, 6")
a(f"s_lshl_b32 s{sG}, s{sT0}, 2")
a(f"s_add_u32 s{sG}, s{sG}, s{sT1}")
a(f"s_lshr_b32 s{sJ}, s{sB}, 3")
a(f"s_and_b32 s{sJ}, s{sJ}, 7")
a(f"s_lshl_b32 s{sL}, s{sG}, 3")
a(f"s_add_u32 s{sL}, s{sL}, s{sJ}")
a(f"s_lshl_b32 s{sKK0}, s{sT1}, 2")
a(f"s_lshl_b32 s{sT2}, s{sJ}, 1")
a(f"s_add_u32 s{sKK0}, s{sKK0}, s{sT2}")
a(f"s_lshr_b32 s{sT2}, s{sT0}, 1")
a(f"s_add_u32 s{sKK0}, s{sKK0}, s{sT2}")
a(f"s_and_b32 s{sKK0}, s{sKK0}, 15")
a(f"s_mov_b32 s{sPH}, 0")
a(f"s_lshl_b32 s{sW1K}, s{sW}, 10")
a(f"s_lshl_b32 s{sW16K}, s{sW}, 14")
a(f"s_mul_i32 s{sW5K}, s{sW}, 5120")
a(f"s_lshl_b32 s{sMB}, s{sL}, {MB_SH}")
a(f"s_add_u32 s{sMB}, s{sMB}, {MB_OFF}")
a("s_waitcnt lgkmcnt(0)")
P = lambda i: 76 + 2 * i
srd(a, SX, P(0), 2048 * 1024)
srd(a, SWQ, P(1), 512 * 3072)
srd(a, SWO, P(2), 512 * 1024)
srd(a, SK_, P(4), 2048 * 1024)
srd(a, SV_, P(5), 2048 * 1024)
srd(a, SSK, P(6), 4096)
srd(a, SH, P(7), 512 * 4096)
a(f"s_mov_b32 s{sSD}, s{P(8)}")
a(f"s_mov_b32 s{sSD+1}, s{P(8)+1}")
srd(a, SOUT, P(9), 2048 * 1024)
srd(a, SDBG, P(10), 256)
srd(a, SWS, P(11), 1 << 28)
srd(a, SX2, P(11), 2048 * 1024, off=X2_OFF)
a(f"s_lshl_b32 s{sT0}, s{sL}, 2")
a(f"s_load_dword s{sD}, s[{sSD}:{sSD+1}], s{sT0}")

prof("start")
yK, yV, ySK, yT, yO = 144, 164, 172, 188, 228
a(f"v_and_b32 v{vT0}, 7, v{vTID}")
a(f"v_lshrrev_b32 v{vT1}, 3, v{vTID}")
a(f"s_lshl_b32 s{sT0}, s{sG}, 16")
a(f"s_lshl_b32 s{sT1}, s{sJ}, 7")
a(f"s_add_u32 s{sT0}, s{sT0}, s{sT1}")
a(f"v_lshlrev_b32 v{vT2}, 11, v{vT1}")
a(f"v_lshl_add_u32 v{vT2}, v{vT0}, 4, v{vT2}")
a(f"v_add_u32 v{vT2}, s{sT0}, v{vT2}")
for i in range(5):
    a(f"v_add_u32 v{yT+i}, {(i-3)*1024}, v{vT2}")
for i in range(5):
    a(f"buffer_load_dwordx4 {V(yK+4*i,4)}, v{yT+i}, {S4(SK_)}, 0 offen"); vm.issue("y1")
for i in range(2):
    a(f"buffer_load_dwordx4 {V(yV+4*i,4)}, v{yT+3+i}, {S4(SV_)}, 0 offen"); vm.issue("y1")
a(f"s_lshl_b32 s{sT1}, s{sJ}, 9")
a(f"v_lshlrev_b32 v{yT+5}, 6, v{vT0}")
for i in range(4):
    a(f"buffer_load_dwordx4 {V(ySK+4*i,4)}, v{yT+5}, {S4(SSK)}, s{sT1} offen offset:{16*i}"); vm.issue("y1")
a(f"s_or_b32 s{sT2}, s{sL}, s{sW}")
a(f"s_cmp_lg_u32 s{sT2}, 0")
a("s_cbranch_scc1 L_nonce_done")
a(f"s_memrealtime s[{sN}:{sN+1}]")
a("s_waitcnt lgkmcnt(0)")
a(f"s_or_b32 s{sN+1}, s{sN+1}, 0x80000000")
a(f"s_andn2_b32 s{sN}, s{sN}, 1")
a(f"v_mov_b32 v{vP0}, s{sN}")
a(f"v_mov_b32 v{vP0+1}, s{sN+1}")
a(f"v_mov_b32 v{vT0}, 0")
a("s_mov_b64 exec, 1")
a(f"buffer_store_dwordx2 {V(vP0,2)}, v{vT0}, {S4(SDBG)}, 0 offen sc1")
a("s_mov_b64 exec, -1")
a.flush()
a.label("L_nonce_done")

a(f"v_add_u32 v{vS0}, s{sW1K}, v{vFR}")
a(f"v_add_u32 v{vS0}, 1024, v{vS0}")
a(f"v_add_u32 v{vS1}, 40960, v{vS0}")
a(f"v_add_u32 v{vSH}, s{sW5K}, v{vFR}")
a(f"v_lshrrev_b32 v{vT0}, 5, v{vLANE}")
a(f"v_lshlrev_b32 v{vTR}, 10, v{vT0}")
a(f"v_bfe_u32 v{vT0}, v{vLANE}, 2, 3")
a(f"v_lshl_add_u32 v{vTR}, v{vT0}, 7, v{vTR}")
a(f"v_lshrrev_b32 v{vT0}, 1, v{vT0}")
a(f"v_xor_b32 v{vT0}, s{sW}, v{vT0}")
a(f"v_lshl_add_u32 v{vTR}, v{vT0}, 5, v{vTR}")
a(f"v_and_b32 v{vT0}, 3, v{vLANE}")
a(f"v_lshl_add_u32 v{vTR}, v{vT0}, 3, v{vTR}")
a(f"v_lshrrev_b32 v{vT0}, 2, v{vLANE}")
a(f"v_lshlrev_b32 v{vXD}, 10, v{vT0}")
a(f"v_lshrrev_b32 v{vT1}, 4, v{vLANE}")
a(f"v_and_b32 v{vT1}, 2, v{vT1}")
a(f"v_and_b32 v{vT0}, 3, v{vLANE}")
a(f"v_xor_b32 v{vT0}, v{vT0}, v{vT1}")
a(f"v_lshl_add_u32 v{vXD}, v{vT0}, 4, v{vXD}")
a(f"s_lshl_b32 s{sT0}, s{sG}, 16")
a(f"v_add_u32 v{vXD}, s{sT0}, v{vXD}")
a(f"v_add_u32 v{vXDH}, {-16384 & 0xffffffff}, v{vXD}")
a(f"v_bfe_u32 v{vT0}, v{vLANE}, 3, 2")
a(f"v_lshrrev_b32 v{vT1}, 5, v{vLANE}")
a(f"v_lshl_add_u32 v{vT0}, v{vT1}, 3, v{vT0}")
a(f"s_and_b32 s{sT0}, s{sW}, 1")
a(f"s_lshl_b32 s{sT0}, s{sT0}, 4")
a(f"s_lshr_b32 s{sT1}, s{sW}, 1")
a(f"s_lshl_b32 s{sT1}, s{sT1}, 2")
a(f"s_add_u32 s{sT0}, s{sT0}, s{sT1}")
a(f"v_add_u32 v{vT0}, s{sT0}, v{vT0}")
a(f"v_lshrrev_b32 v{vT1}, 4, v{vLANE}")
a(f"v_lshlrev_b32 v{vT1}, 1, v{vT1}")
a(f"v_and_b32 v{vT2}, 7, v{vLANE}")
a(f"v_xor_b32 v{vT1}, v{vT1}, v{vT2}")
a(f"v_lshlrev_b32 v{vT1}, 4, v{vT1}")
a(f"s_lshl_b32 s{sT0}, s{sJ}, 7")
a(f"v_add_u32 v{vT1}, s{sT0}, v{vT1}")
vWOD = 238
a(f"v_lshl_add_u32 v{vWOD}, v{vT0}, 10, v{vT1}")
a(f"v_mul_u32_u24 v{vWD}, 3072, v{vT0}")
a(f"v_add_u32 v{vWD}, v{vWD}, v{vT1}")
a(f"v_and_b32 v{vT0}, 1, v{vLANE}")
a(f"v_cmp_eq_u32 s[{sPAR}:{sPAR+1}], 1, v{vT0}")
a(f"v_lshl_add_u32 v{vT1}, v{vQ}, 2, v{vT0}")
a(f"v_cmp_le_u32 s[{sMC0}:{sMC0+1}], v{vT1}, v{vL15}")
a(f"v_add_u32 v{vT1}, 2, v{vT1}")
a(f"v_cmp_le_u32 s[{sMC1}:{sMC1+1}], v{vT1}, v{vL15}")
for i in range(4):
    a(f"v_mov_b32 v{vONE+i}, 0x3f803f80")

def dma_x_groups(s, srd_):
    x2 = srd_ == SX2
    sc = " sc1" if x2 else ""
    def koff(dst, src):
        if x2:
            a(f"s_and_b32 s{sT3}, s{src}, 1")
            a(f"s_lshl_b32 s{sT3}, s{sT3}, 6")
            a(f"s_lshr_b32 s{dst}, s{src}, 1")
            a(f"s_lshl_b32 s{dst}, s{dst}, 18")
            a(f"s_add_u32 s{dst}, s{dst}, s{sT3}")
        else:
            a(f"s_lshl_b32 s{dst}, s{src}, 6")
    def g1():
        a(f"s_add_u32 s{sT0}, s{sKK0}, {s}")
        a(f"s_and_b32 s{sT0}, s{sT0}, 15")
        koff(sT1, sT0)
        if not x2: a(f"s_add_u32 s{sT1}, s{sT1}, s{sW16K}")
        a(f"s_add_u32 m0, s{sW1K}, {XIMG + (s*5+1)*1024}")
        a(f"buffer_load_dwordx4 v{vXD2 if x2 else vXD}, {S4(srd_)}, s{sT1} offen{sc} lds"); vm.issue(("x", s))
    def g2():
        a(f"s_add_u32 s{sT1}, s{sKK0}, s{sW}")
        a(f"s_add_u32 s{sT1}, s{sT1}, {s}")
        a(f"s_and_b32 s{sT1}, s{sT1}, 15")
        koff(sT1, sT1)
        a(f"s_add_u32 m0, s{sW5K}, {XIMG + s*5*1024}")
        a(f"buffer_load_dwordx4 v{vXDH2 if x2 else vXDH}, {S4(srd_)}, s{sT1} offen{sc} lds"); vm.issue(("h", s // 4))
    return [g1, g2] if s % 4 == 0 else [g1]

def dma_w_groups(s):
    def mk(p):
        def g():
            if p == 0:
                a(f"s_add_u32 s{sT2}, s{sKK0}, {s}")
                a(f"s_and_b32 s{sT2}, s{sT2}, 15")
                a(f"s_mul_i32 s{sT2}, s{sT2}, 98304")
            else:
                a(f"s_add_u32 s{sT2}, s{sT2}, 1024")
            a(f"s_add_u32 m0, s{sW1K}, {WRING + (s % NSLOT)*12288 + p*4096}")
            a(f"buffer_load_dwordx4 v{vWD}, {S4(SWQ)}, s{sT2} offen lds"); vm.issue(("w", s))
        return g
    return [mk(p) for p in range(3)]

def dma_x(s, srd_):
    for g in dma_x_groups(s, srd_): g()
def dma_w(s):
    for g in dma_w_groups(s): g()

def interleave(seq, fillers):
    n, m = len(seq), len(fillers)
    k = 0
    for i, ln in enumerate(seq):
        a(ln)
        while k < m and (k + 1) * n <= (i + 1) * (m + 1) + 0:
            fillers[k](); k += 1
    while k < m:
        fillers[k](); k += 1

DEPTH = NSLOT - 1
for s in range(DEPTH):
    dma_x(s, SX); dma_w(s)

vm.wait("y1")
R = yT
TP = yT + 10
VVv = yT + 18
K0, K1 = yT + 22, yT + 24
for m in range(4):
    for i in range(5):
        a(f"v_lshlrev_b32 v{R+2*i}, 16, v{yK+4*i+m}")
        a(f"v_and_b32 v{R+2*i+1}, 0xffff0000, v{yK+4*i+m}")
    for c in range(2):
        a(f"v_lshlrev_b32 v{TP+0+c}, 16, v{ySK+4*m+2*c}")
        a(f"v_and_b32 v{TP+2+c}, 0xffff0000, v{ySK+4*m+2*c}")
        a(f"v_lshlrev_b32 v{TP+4+c}, 16, v{ySK+4*m+2*c+1}")
        a(f"v_and_b32 v{TP+6+c}, 0xffff0000, v{ySK+4*m+2*c+1}")
    for i in range(2):
        a(f"v_lshlrev_b32 v{VVv+2*i}, 16, v{yV+4*i+m}")
        a(f"v_and_b32 v{VVv+2*i+1}, 0xffff0000, v{yV+4*i+m}")
    for (Kx, r0) in ((K0, 0), (K1, 1)):
        a(f"v_pk_mul_f32 {V(Kx,2)}, {V(R+2*r0,2)}, {V(TP+6,2)}")
        a(f"v_pk_fma_f32 {V(Kx,2)}, {V(R+2*(r0+1),2)}, {V(TP+4,2)}, {V(Kx,2)}")
        a(f"v_pk_fma_f32 {V(Kx,2)}, {V(R+2*(r0+2),2)}, {V(TP+2,2)}, {V(Kx,2)}")
        a(f"v_pk_fma_f32 {V(Kx,2)}, {V(R+2*(r0+3),2)}, {V(TP+0,2)}, {V(Kx,2)}")
    for Kx in (K0, K1):
        a(f"v_cvt_pk_bf16_f32 v{Kx+1}, v{Kx}, v{Kx+1}")
        a(f"v_lshlrev_b32 v{Kx}, 16, v{Kx+1}")
        a(f"v_and_b32 v{Kx+1}, 0xffff0000, v{Kx+1}")
    a(f"v_pk_mul_f32 {V(K0,2)}, {V(K0,2)}, {V(VVv,2)}")
    a(f"v_pk_mul_f32 {V(K1,2)}, {V(K1,2)}, {V(VVv+2,2)}")
    a(f"v_cvt_pk_bf16_f32 v{yO+2*m}, v{K1}, v{K0}")
    a(f"v_cvt_pk_bf16_f32 v{yO+2*m+1}, v{K1+1}, v{K0+1}")
a(f"v_and_b32 v{vT0}, 7, v{vTID}")
a(f"v_lshrrev_b32 v{vT1}, 3, v{vTID}")
a(f"v_sub_u32 v{vT1}, 31, v{vT1}")
a(f"v_lshlrev_b32 v{vT2}, 2, v{vT0}")
a(f"v_xor_b32 v{vT1}, v{vT1}, v{vT2}")
a(f"v_lshlrev_b32 v{vT1}, 2, v{vT1}")
a(f"v_lshl_add_u32 v{vT1}, v{vT0}, 10, v{vT1}")
a(f"v_add_u32 v{vT1}, {Y1T}, v{vT1}")
for i in range(8):
    a(f"ds_write_b32 v{vT1}, v{yO+i} offset:{128*i}")
a("s_waitcnt lgkmcnt(0)")
barrier()
a(f"v_lshrrev_b32 v{vT0}, 3, v{vTID}")
a(f"v_and_b32 v{vT1}, 7, v{vTID}")
a(f"v_lshrrev_b32 v{vT2}, 3, v{vT0}")
a(f"v_xor_b32 v{yT}, v{vT1}, v{vT2}")
a(f"v_lshlrev_b32 v{yT}, 4, v{yT}")
a(f"v_lshl_add_u32 v{yT}, v{vT0}, 7, v{yT}")
a(f"v_add_u32 v{yT}, {Y1T}, v{yT}")
a(f"v_xor_b32 v{yT+1}, 64, v{yT}")
a(f"ds_read_b128 {V(yK,4)}, v{yT}")
a(f"ds_read_b128 {V(yK+4,4)}, v{yT+1} offset:4096")
a(f"v_lshlrev_b32 v{yT+2}, 12, v{vT0}")
a(f"v_lshl_add_u32 v{yT+2}, v{vT1}, 4, v{yT+2}")
a(f"s_lshl_b32 s{sT0}, s{sJ}, 18")
a(f"s_lshl_b32 s{sT1}, s{sG}, 7")
a(f"s_sub_u32 s{sT0}, s{sT0}, s{sT1}")
a(f"s_add_u32 s{sT0}, s{sT0}, {KVT_OFF + 3968}")
a(f"s_add_u32 s{sT1}, s{sT0}, {32*4096}")
a("s_waitcnt lgkmcnt(0)")
a(f"buffer_store_dwordx4 {V(yK,4)}, v{yT+2}, {S4(SWS)}, s{sT0} offen sc1"); vm.issue("y1st")
a(f"buffer_store_dwordx4 {V(yK+4,4)}, v{yT+2}, {S4(SWS)}, s{sT1} offen sc1"); vm.issue("y1st")
prof("y1done")

def ldsg(line, tag):
    def g():
        a(line); lg.issue(tag)
    return g

def lds_reads_x_groups(s, buf):
    out = []
    base, off = (vFR, s*5*1024) if s < 8 else (vA1, (s-8)*5*1024)
    for t in range(5):
        out.append(ldsg(f"ds_read_b128 {V(vXA+20*buf+4*t,4)}, v{base} offset:{XIMG + off + t*1024}", ("xa", s)))
    base, off = (vS0, s*5120) if s < 8 else (vS1, (s-8)*5120)
    out.append(ldsg(f"ds_read_b128 {V(vSO+4*buf,4)}, v{base} offset:{XIMG + off}", ("xa", s)))
    if s % 4 == 3:
        out.append(ldsg(f"ds_read_b128 {V(vSHF+4*((s//4)&1)*0,4)}, v{vSH} offset:{XIMG + (s//4)*20480}", ("xa", s)))
    return out

def lds_reads_x(s, buf):
    for g in lds_reads_x_groups(s, buf): g()

def merge_fillers(early, spread, n):
    slots = [[] for _ in range(n)]
    for i, g in enumerate(early):
        slots[min(i, n-1)].append(g)
    m = len(spread)
    for k, g in enumerate(spread):
        slots[min(n-1, ((k + 1) * n) // (m + 1))].append(g)
    return slots

def mfmas(s, buf, with_cs, fillers=()):
    first = (s == 0)
    def C(r): return "0" if first else V(r, 4)
    wq, wk, wv = A(12*s, 4), A(12*s+4, 4), A(12*s+8, 4)
    xa = lambda t: V(vXA + 20*buf + 4*t, 4)
    seq = []
    for t in range(5):
        seq.append(f"v_mfma_f32_16x16x32_bf16 {V(vKT+4*t,4)}, {wk}, {xa(t)}, {C(vKT+4*t)}")
        seq.append(f"v_mfma_f32_16x16x32_bf16 {V(vVV+4*t,4)}, {xa(t)}, {wv}, {C(vVV+4*t)}")
        if t: seq.append(f"v_mfma_f32_16x16x32_bf16 {V(vQT+4*(t-1),4)}, {wq}, {xa(t)}, {C(vQT+4*(t-1))}")
    if with_cs:
        seq.append(f"v_mfma_f32_16x16x32_bf16 {V(vCS,4)}, {wq}, {V(vONE,4)}, {C(vCS)}")
        seq.append(f"v_mfma_f32_16x16x32_bf16 {V(vCS+4,4)}, {wk}, {V(vONE,4)}, {C(vCS+4)}")
        seq.append(f"v_mfma_f32_16x16x32_bf16 {V(vCS+8,4)}, {V(vONE,4)}, {wv}, {C(vCS+8)}")
    so = V(vSO + 4*buf, 4)
    seq.append(f"v_mfma_f32_16x16x32_bf16 {V(vST,4)}, {V(vONE,4)}, {so}, {C(vST)}")
    seq.append(f"v_mfma_f32_16x16x32_bf16 {V(vST+4,4)}, {so}, {so}, {C(vST+4)}")
    if s % 4 == 3:
        c0 = "0" if s == 3 else None
        seq.append(f"v_mfma_f32_16x16x32_bf16 {V(vST+8,4)}, {V(vONE,4)}, {V(vSHF,4)}, {c0 or V(vST+8,4)}")
        seq.append(f"v_mfma_f32_16x16x32_bf16 {V(vST+12,4)}, {V(vSHF,4)}, {V(vSHF,4)}, {c0 or V(vST+12,4)}")
    early, spread = fillers if fillers else ([], [])
    slots = merge_fillers(early, spread, len(seq))
    for ln, sl in zip(seq, slots):
        a(ln)
        for g in sl: g()

def zero_stats():
    pass

a(f"v_add_u32 v236, {WRING}, v{vTR}")
a(f"v_add_u32 v237, {WRING + 36864}, v{vTR}")
zero_stats()
yH = 144
vPL = 214
def wo_group(i):
    def g():
        a(f"s_add_u32 s{sT0}, s{sKK0}, {i}")
        a(f"s_and_b32 s{sT0}, s{sT0}, 15")
        a(f"s_lshl_b32 s{sT1}, s{sT0}, 15")
        a(f"s_add_u32 m0, s{sW1K}, {WOIMG + i*4096}")
        a(f"buffer_load_dwordx4 v{vWOD}, {S4(SWO)}, s{sT1} offen lds"); vm.issue("wo")
    return g
def h_group():
    a(f"v_lshlrev_b32 v{vT0}, 4, v{vTID}")
    a(f"s_lshl_b32 s{sT0}, s{sL}, 13")
    for c in range(2):
        if c: a(f"s_add_u32 s{sT0}, s{sT0}, 4096")
        a(f"buffer_load_dwordx4 {V(yH+8*c,4)}, v{vT0}, {S4(SH)}, s{sT0} offen"); vm.issue("h")
        a(f"buffer_load_dword v{yH+8*c+4}, v{vT0}, {S4(SH)}, s{sT0} offen offset:16"); vm.issue("h")
def async_poll(mboff):
    def g():
        a(f"v_lshlrev_b32 v{vT2}, 7, v{vLANE}")
        a(f"v_and_b32 v{vT2}, 0xfff, v{vT2}")
        a(f"s_add_u32 s{sT0}, s{sMB}, {mboff}")
        a(f"buffer_load_dwordx2 {V(vPL,2)}, v{vT2}, {S4(SWS)}, s{sT0} offen sc1"); vm.issue("apoll")
    return g
def async_check(n, mboff, name):
    L = a.newlabel("L_achk")
    set_exec(n)
    a(f"v_cmp_ne_u64 vcc, s[{sN}:{sN+1}], {V(vPL,2)}")
    a("s_mov_b64 exec, -1")
    a(f"s_cbranch_vccz {L}")
    poll(n, mboff, name)
    a.flush()
    a.label(L)
S1SIG = f"""s_lshl_b32 s{sT0}, s{sJ}, 5
v_add_u32 v{vT1}, s{sT0}, v{vLANE}
v_lshlrev_b32 v{vT1}, {MB_SH}, v{vT1}
s_lshl_b32 s{sT0}, s{sG}, 7
s_add_u32 s{sT0}, s{sT0}, {MB_OFF + MB_S1}
v_add_u32 v{vT1}, s{sT0}, v{vT1}"""
for s in range(16):
    vm.wait(("x", s), ("w", s), ("h", s // 4))
    barrier()
    fl = (dma_x_groups(s + DEPTH, SX) + dma_w_groups(s + DEPTH)) if s + DEPTH < 16 else []
    if s == 0:
        for g in fl: g()
    if s == 3:
        a(f"v_mov_b32 v{vT0}, 0")
        a(f"buffer_load_dwordx2 {V(vNL,2)}, v{vT0}, {S4(SDBG)}, 0 offen sc1"); vm.issue("nonce")
    if s == 9:
        a(f"v_readfirstlane_b32 s{sN}, v{vNL}")
        a(f"v_readfirstlane_b32 s{sN+1}, v{vNL+1}")
        a(f"s_cmp_eq_u32 s{sN+1}, 0")
        a("s_cbranch_scc1 L_s1_defer")
        signal(32, S1SIG)
        a.label("L_s1_defer")
    if s in (11, 12, 13): fl = [wo_group(4*(s-11) + i) for i in range(4)]
    if s == 13: fl.append(h_group)
    if s == 14: fl = [wo_group(12 + i) for i in range(3)]
    if s == 15: fl = [async_poll(MB_S1)]
    rd = lds_reads_x_groups(s, s & 1)
    for p in range(3):
        for h in range(2):
            off = (s % NSLOT) * 12288 + p * 4096 + h * 2048
            rd.append(ldsg(f"ds_read_b64_tr_b16 {A(12*s+4*p+2*h,2)}, v{236 if off < 36864 else 237} offset:{off % 36864}", ("xa", s)))
    if s > 0:
        mfmas(s - 1, (s - 1) & 1, True, (rd, fl))
    else:
        for g in rd: g()
    lg.drain()
barrier()
wo_group(15)()
mfmas(15, 1, True)
prof("p1gemm")

a(f"s_cmp_lg_u32 s{sN+1}, 0")
a("s_cbranch_scc1 L_nonce_ok")
a(f"v_mov_b32 v{vT0}, 0")
a.flush()
a.label("L_nonce_chk")
a(f"buffer_load_dwordx2 {V(vNL,2)}, v{vT0}, {S4(SDBG)}, 0 offen sc1")
a("s_waitcnt vmcnt(0)")
a(f"v_readfirstlane_b32 s{sN}, v{vNL}")
a(f"v_readfirstlane_b32 s{sN+1}, v{vNL+1}")
a(f"s_cmp_eq_u32 s{sN+1}, 0")
a("s_cbranch_scc1 L_nonce_chk")
signal(32, S1SIG)
a.label("L_nonce_ok")
vm.wait("apoll")
async_check(32, MB_S1, "s1")
a(f"s_lshl_b32 s{sT0}, s{sL}, 13")
a(f"s_lshl_b32 s{sT1}, s{sW}, 11")
a(f"s_add_u32 s{sT0}, s{sT0}, s{sT1}")
a(f"s_add_u32 s{sT0}, s{sT0}, {KVT_OFF}")
a(f"s_lshr_b32 s{sT2}, s{sW}, 1")
a(f"s_mul_i32 s{sT2}, s{sT2}, {URP - 4096}")
a(f"s_add_u32 s{sT2}, s{sT2}, s{sT1}")
a(f"s_add_u32 m0, s{sT2}, {UR}")
a(f"buffer_load_dwordx4 v{vA0}, {S4(SWS)}, s{sT0} offen sc1 lds")
a(f"buffer_load_dwordx4 v{vA0}, {S4(SWS)}, s{sT0} offen offset:1024 sc1 lds")
a(f"s_mov_b32 s{sOOFF}, {O1_OFF}")
a(f"s_mov_b32 s{sSIG}, {MB_S2}")
a(f"s_mov_b32 s{sSTAT}, {MB_ST0}")

a.flush()
a.label("L_attn")
vm.reset(); lg.reset()
prof("a_begin")
T = 84
a(f"v_lshlrev_b32 v{vT0}, 3, v{vL15}")
a(f"s_lshl_b32 s{sT0}, s{sW}, 7")
a(f"v_add_u32 v{vT0}, s{sT0}, v{vT0}")
a(f"v_add_u32 v{vT0}, {MISC}, v{vT0}")
for base in (vST, vST + 8):
    a(f"v_mov_b32 v{base+1}, v{base+4}")
    for i, m in ((1, 0x22222222), (2, 0x44444444), (3, 0x88888888)):
        a(f"s_mov_b32 s{sEX}, {hex(m)}")
        a(f"s_mov_b32 s{sEX+1}, {hex(m)}")
        a(f"v_cndmask_b32 v{base+1}, v{base+1}, v{base+4+i}, s[{sEX}:{sEX+1}]")
a("s_mov_b32 exec_lo, 0x00f0000f")
a("s_mov_b32 exec_hi, 0xf0000f00")
a(f"ds_write_b64 v{vT0}, {V(vST,2)}")
a(f"ds_write_b64 v{vT0}, {V(vST+8,2)} offset:512")
a("s_mov_b64 exec, -1")
a("s_waitcnt lgkmcnt(0)")
barrier()
a(f"v_lshlrev_b32 v{vT0}, 3, v{vLANE}")
a(f"v_add_u32 v{vT0}, {MISC}, v{vT0}")
a(f"ds_read_b64 {V(T,2)}, v{vT0}")
a(f"v_lshlrev_b32 v{vT1}, 3, v{vL15}")
a(f"v_add_u32 v{vT1}, {MISC}, v{vT1}")
for i in range(4):
    a(f"ds_read_b64 {V(T+2+2*i,2)}, v{vT1} offset:{512 + 128*i}")
a("s_waitcnt lgkmcnt(0)")
a(f"v_pk_add_f32 {V(T+2,2)}, {V(T+2,2)}, {V(T+4,2)}")
a(f"v_pk_add_f32 {V(T+6,2)}, {V(T+6,2)}, {V(T+8,2)}")
a(f"v_pk_add_f32 {V(T+2,2)}, {V(T+2,2)}, {V(T+6,2)}")
ln_math(T, T+1, T+10, T+11, T+12, T+13)
ln_math(T+2, T+3, T+14, T+15, T+16, T+17)
a(f"s_mul_i32 s{sT0}, s{sW}, 640")
a(f"s_add_u32 s{sT0}, s{sT0}, {ABW}")
a(f"v_lshl_add_u32 v{vT0}, v{vLANE}, 2, s{sT0}")
a(f"v_lshl_add_u32 v{vT1}, v{vL15}, 2, s{sT0}")
a(f"v_lshl_add_u32 v{vT2}, v{vQ}, 4, s{sT0}")
a(f"ds_write2_b32 v{vT0}, v{T+10}, v{T+11} offset0:16 offset1:96")
a(f"ds_write2_b32 v{vT1}, v{T+14}, v{T+15} offset0:0 offset1:80")
a("s_waitcnt lgkmcnt(0)")
vAB = 84
vAV = 94
for t in range(5):
    a(f"ds_read2_b32 {V(vAB+2*t,2)}, v{vT1} offset0:{16*t} offset1:{80+16*t}")
for t in range(5):
    a(f"ds_read_b128 {V(vAV+8*t,4)}, v{vT2} offset:{64*t}")
    a(f"ds_read_b128 {V(vAV+8*t+4,4)}, v{vT2} offset:{320+64*t}")
a("s_waitcnt lgkmcnt(0)")
vQb, vKb, vVb, vU = 160, 168, 178, 188
def norm_qk(acc, cs, t, dst):
    ab = V(vAB + 2*t, 2)
    for h in range(2):
        a(f"v_pk_mul_f32 {V(vU+2*h,2)}, {V(cs+2*h,2)}, {ab} op_sel:[0,1] op_sel_hi:[1,1]")
        a(f"v_pk_fma_f32 {V(vU+2*h,2)}, {V(acc+2*h,2)}, {ab}, {V(vU+2*h,2)} op_sel:[0,0,0] op_sel_hi:[1,0,1]")
    for h in range(2):
        a(f"v_cvt_pk_bf16_f32 v{dst+h}, v{vU+2*h}, v{vU+2*h+1}")
for t in range(5):
    norm_qk(vKT + 4*t, vCS + 4, t, vKb + 2*t)
    if t: norm_qk(vQT + 4*(t-1), vCS, t, vQb + 2*(t-1))
    for h in range(2):
        a(f"v_pk_mul_f32 {V(vU+4+2*h,2)}, {V(vAV+8*t+4+2*h,2)}, {V(vCS+8,2)} op_sel:[0,0] op_sel_hi:[1,0]")
        a(f"v_pk_fma_f32 {V(vU+4+2*h,2)}, {V(vVV+4*t+2*h,2)}, {V(vAV+8*t+2*h,2)}, {V(vU+4+2*h,2)}")
    for h in range(2):
        a(f"v_cvt_pk_bf16_f32 v{vVb+2*t+h}, v{vU+4+2*h}, v{vU+4+2*h+1}")
prof("a_norm")
vSc, vSp = 16, 32
for t in range(1, 5):
    a(f"v_mfma_f32_16x16x16_bf16 {V(vSc+4*(t-1),4)}, {V(vKb+2*t,2)}, {V(vQb+2*(t-1),2)}, 0")
    a(f"v_mfma_f32_16x16x16_bf16 {V(vSp+4*(t-1),4)}, {V(vKb+2*(t-1),2)}, {V(vQb+2*(t-1),2)}, 0")
a(f"s_cmp_lg_u32 s{sG}, 0")
a("s_cbranch_scc1 L_nomask")
a.flush()
for i in range(4):
    a(f"v_mov_b32 v{vSp+i}, 0xf149f2ca")
a.flush()
a.label("L_nomask")
PARM, MC = f"s[{sPAR}:{sPAR+1}]", [f"s[{sMC0}:{sMC0+1}]", f"s[{sMC1}:{sMC1+1}]"]
vLg = 48
vMx = 56
vTm = 60
vE = 64
for t in range(4):
    for i in range(2):
        a(f"v_cndmask_b32 v{vSc+4*t+2*i}, v{vSc+4*t+2*i}, v{vSc+4*t+2*i+1}, {PARM}")
        a(f"v_cndmask_b32 v{vSp+4*t+2*i}, v{vSp+4*t+2*i}, v{vSp+4*t+2*i+1}, {PARM}")
        a(f"v_cndmask_b32 v{vLg+2*t+i}, v{vSp+4*t+2*i}, v{vSc+4*t+2*i}, {MC[i]}")
    a(f"v_cvt_pk_bf16_f32 v{vLg+2*t+1}, v{vLg+2*t}, v{vLg+2*t+1}")
    a(f"v_lshlrev_b32 v{vLg+2*t}, 16, v{vLg+2*t+1}")
    a(f"v_and_b32 v{vLg+2*t+1}, 0xffff0000, v{vLg+2*t+1}")
    a(f"v_max_f32 v{vMx+t}, v{vLg+2*t}, v{vLg+2*t+1}")
allreduce("v_max_f32", [vMx+t for t in range(4)], [vTm+t for t in range(4)])
a(f"s_mov_b32 s{sT0}, 0x3eb8aa3b")
for t in range(4):
    for i in range(2):
        a(f"v_sub_f32 v{vLg+2*t+i}, v{vLg+2*t+i}, v{vMx+t}")
        a(f"v_mul_f32 v{vLg+2*t+i}, s{sT0}, v{vLg+2*t+i}")
        a(f"v_exp_f32 v{vLg+2*t+i}, v{vLg+2*t+i}")
for t in range(4):
    a(f"v_add_f32 v{vMx+t}, v{vLg+2*t}, v{vLg+2*t+1}")
allreduce("v_add_f32", [vMx+t for t in range(4)], [vTm+t for t in range(4)])
vPc, vPp = 16, 24
for t in range(4):
    a(f"v_rcp_f32 v{vMx+t}, v{vMx+t}")
for t in range(4):
    a(f"v_cndmask_b32 v{vTm}, v{vMx+t}, 0, {PARM}")
    a(f"v_cndmask_b32 v{vTm+1}, 0, v{vMx+t}, {PARM}")
    for i in range(2):
        a(f"v_mul_f32 v{vTm+2}, v{vLg+2*t+i}, v{vTm}")
        a(f"v_mul_f32 v{vTm+3}, v{vLg+2*t+i}, v{vTm+1}")
        a(f"v_cvt_pk_bf16_f32 v{vTm+2}, v{vTm+2}, v{vTm+3}")
        a(f"v_cndmask_b32 v{vPc+2*t+i}, 0, v{vTm+2}, {MC[i]}")
        a(f"v_cndmask_b32 v{vPp+2*t+i}, v{vTm+2}, 0, {MC[i]}")
vO = 32
for t in range(1, 5):
    a(f"v_mfma_f32_16x16x16_bf16 {V(vO+4*(t-1),4)}, {V(vVb+2*t,2)}, {V(vPc+2*(t-1),2)}, 0")
for t in range(1, 5):
    a(f"v_mfma_f32_16x16x16_bf16 {V(vO+4*(t-1),4)}, {V(vVb+2*(t-1),2)}, {V(vPp+2*(t-1),2)}, {V(vO+4*(t-1),4)}")
prof("a_pv")
vOP = 48
for t in range(4):
    a(f"v_cvt_pk_bf16_f32 v{vOP+2*t}, v{vO+4*t}, v{vO+4*t+1}")
    a(f"v_cvt_pk_bf16_f32 v{vOP+2*t+1}, v{vO+4*t+2}, v{vO+4*t+3}")
tile_to_lds(vOP, 56)
a(f"s_lshl_b32 s{sT0}, s{sG}, 16")
a(f"s_lshl_b32 s{sT1}, s{sJ}, 7")
a(f"s_add_u32 s{sT0}, s{sT0}, s{sT1}")
a(f"s_add_u32 s{sT0}, s{sT0}, s{sOOFF}")
a(f"s_add_u32 s{sT1}, s{sT0}, 32768")
a(f"buffer_store_dwordx4 {V(56,4)}, v{vT0}, {S4(SWS)}, s{sT0} offen sc1")
a(f"buffer_store_dwordx4 {V(60,4)}, v{vT0}, {S4(SWS)}, s{sT1} offen sc1")
vm.drain()
barrier()
signal(8, f"""s_lshl_b32 s{sT0}, s{sG}, 3
v_add_u32 v{vT1}, s{sT0}, v{vLANE}
v_lshlrev_b32 v{vT1}, {MB_SH}, v{vT1}
s_lshl_b32 s{sT0}, s{sJ}, 7
s_add_u32 s{sT0}, s{sT0}, s{sSIG}
s_add_u32 s{sT0}, s{sT0}, {MB_OFF}
v_add_u32 v{vT1}, s{sT0}, v{vT1}""")
prof("attn")
if STAGE <= 1:
    a("s_branch L_end")

a(f"s_cmp_lg_u32 s{sPH}, 0")
a("s_cbranch_scc1 L_p2")
for s in range(16):
    for h in range(2):
        a(f"ds_read_b64_tr_b16 {A(192+4*s+2*h,2)}, v{vTR} offset:{WOIMG + s*4096 + h*2048}")
    if s % 4 == 3: a("s_waitcnt lgkmcnt(0)")
a(f"v_lshlrev_b32 v{vT0}, 4, v{vTID}")
a(f"v_add_u32 v{vT0}, {HC + 32}, v{vT0}")
a(f"v_cmp_eq_u32 vcc, 255, v{vTID}")
for c in range(2):
    b = yH + 8*c
    a(f"v_cndmask_b32 v{b+4}, v{b+4}, 0, vcc")
    a(f"ds_write_b128 v{vT0}, {V(b,4)} offset:{2*c*HCP}")
    for i in range(4):
        a(f"v_alignbit_b32 v{160+i}, v{b+i+1}, v{b+i}, 16")
    a(f"ds_write_b128 v{vT0}, {V(160,4)} offset:{(2*c+1)*HCP}")
a(f"v_mov_b32 v160, 0\nv_mov_b32 v161, 0\nv_mov_b32 v162, 0\nv_mov_b32 v163, 0")
a(f"v_lshlrev_b32 v{vT1}, 4, v{vLANE}")
a(f"s_mov_b32 exec_lo, -1\ns_mov_b32 exec_hi, 0")
a(f"v_add_u32 v{vT2}, {UR + 4096}, v{vT1}")
a(f"ds_write_b128 v{vT2}, {V(160,4)}")
a(f"ds_write_b128 v{vT2}, {V(160,4)} offset:{URP}")
a(f"s_mov_b64 exec, 3")
a(f"v_add_u32 v{vT2}, {HC}, v{vT1}")
a(f"ds_write_b128 v{vT2}, {V(160,4)}")
a(f"ds_write_b128 v{vT2}, {V(160,4)} offset:{2*HCP}")
a(f"s_mov_b64 exec, 1")
a(f"ds_write_b128 v{vT2}, {V(160,4)} offset:{HCP}")
a(f"ds_write_b128 v{vT2}, {V(160,4)} offset:{3*HCP}")
a("s_mov_b64 exec, -1")
a(f"v_cmp_eq_u32 vcc, 0, v{vTID}")
a(f"s_and_saveexec_b64 s[{sEX}:{sEX+1}], vcc")
a(f"v_mov_b32 v{vT2}, {HC}")
for c in range(2):
    a(f"v_lshlrev_b32 v163, 16, v{yH+8*c}")
    a(f"ds_write_b128 v{vT2}, {V(160,4)} offset:{(2*c+1)*HCP + 16}")
    a("s_waitcnt lgkmcnt(0)")
a(f"s_mov_b64 exec, s[{sEX}:{sEX+1}]")
yF, yG, yAcc = 16, 48, 84
yFA, yGA = 116, 120
a(f"v_add_u32 v{vT0}, 1, v{vL15}")
a(f"v_and_b32 v{vT0}, 30, v{vT0}")
a(f"v_lshlrev_b32 v{vT0}, 1, v{vT0}")
a(f"v_lshlrev_b32 v{vT1}, 4, v{vQ}")
a(f"v_sub_u32 v{vT0}, v{vT0}, v{vT1}")
a(f"v_mov_b32 v{vT1}, {HCP}")
a(f"v_cndmask_b32 v{vT1}, v{vT1}, 0, {PARM}")
a(f"v_add_u32 v{vT0}, v{vT0}, v{vT1}")
a(f"s_lshr_b32 s{sT0}, s{sW}, 1")
a(f"s_mul_i32 s{sT1}, s{sT0}, {2*HCP}")
a(f"s_and_b32 s{sT2}, s{sW}, 1")
a(f"s_lshl_b32 s{sT2}, s{sT2}, 8")
a(f"s_sub_u32 s{sT1}, s{sT1}, s{sT2}")
for ap in range(4):
    a(f"s_add_u32 s{sT3}, s{sT1}, {HC + 4080 - 512*(2*ap+1) - 192}")
    a(f"v_add_u32 v{yFA+ap}, s{sT3}, v{vT0}")
a(f"v_lshlrev_b32 v{vT0}, 5, v{vL15}")
a(f"v_lshl_add_u32 v{vT0}, v{vQ}, 4, v{vT0}")
a(f"s_mul_i32 s{sT1}, s{sT0}, {URP}")
a(f"s_sub_u32 s{sT1}, s{sT1}, s{sT2}")
a(f"s_add_u32 s{sT1}, s{sT1}, {UR + 8144 - 512*14 - 192}")
a(f"v_sub_u32 v{yGA}, s{sT1}, v{vT0}")
a("s_waitcnt vmcnt(0) lgkmcnt(0)")
barrier()
prof("y2start")
if int(os.environ.get("PRETOUCH", "1")):
    a(f"v_lshlrev_b32 v{vT0}, 7, v{vLANE}")
    a(f"s_mul_i32 s{sT0}, s{sW}, {22*128}")
    a(f"s_add_u32 s{sT0}, s{sT0}, s{sMB}")
    a(f"s_add_u32 s{sT0}, s{sT0}, {MB_S5}")
    set_exec(22)
    a(f"buffer_load_dword v216, v{vT0}, {S4(SWS)}, s{sT0} offen sc1")
    a("s_mov_b64 exec, -1")
vRA = 122
def res_addr():
    a(f"v_lshlrev_b32 v{vRA}, 10, v{vL15}")
    a(f"v_lshl_add_u32 v{vRA}, v{vQ}, 3, v{vRA}")
    a(f"s_lshl_b32 s{sT4}, s{sG}, 16")
    a(f"s_lshl_b32 s{sT1}, s{sJ}, 7")
    a(f"s_add_u32 s{sT4}, s{sT4}, s{sT1}")
    a(f"s_lshl_b32 s{sT1}, s{sW}, 5")
    a(f"s_add_u32 s{sT4}, s{sT4}, s{sT1}")
def res_loads():
    res_addr()
    for t in range(4):
        a(f"s_add_u32 s{sT1}, s{sT4}, {16384*t}")
        a(f"buffer_load_dwordx2 {V(vX2+2*t,2)}, v{vRA}, {S4(SX)}, s{sT1} offen")
def o_dma():
    a(f"v_add_u32 v{vT2}, s{sW16K}, v{vXD}")
    for s in range(16):
        a(f"s_add_u32 s{sT0}, s{sKK0}, {s}")
        a(f"s_and_b32 s{sT0}, s{sT0}, 15")
        a(f"s_lshl_b32 s{sT1}, s{sT0}, 6")
        a(f"s_add_u32 s{sT1}, s{sT1}, s{sOOFF}")
        a(f"s_add_u32 m0, s{sW1K}, {OIMG + s*4096}")
        a(f"buffer_load_dwordx4 v{vT2}, {S4(SWS)}, s{sT1} offen sc1 lds"); vm.issue(("o", s // 4))
YB = [(16, 48), (144, 176)]
def y2_reads(rr):
    F, G = YB[rr & 1]
    out = []
    order = []
    for aa in range(8):
        ap, hi = aa // 2, aa % 2
        off = ((1 - hi) * 512 + (3 - rr) * 64) // 4
        out.append(ldsg(f"ds_read2_b32 {V(F+4*aa,2)}, v{yFA+ap} offset0:{off} offset1:{off+1}", ("y", rr)))
        out.append(ldsg(f"ds_read2_b32 {V(F+4*aa+2,2)}, v{yFA+ap} offset0:{off+2} offset1:{off+3}", ("y", rr)))
    for bb in range(8):
        b = 7 + bb
        out.append(ldsg(f"ds_read_b128 {V(G+4*bb,4)}, v{yGA} offset:{(14-b)*512 + (3-rr)*64}", ("y", rr)))
    return out
lg.reset()
for g in y2_reads(0): g()
for rr in range(4):
    a("s_waitcnt lgkmcnt(0)"); lg.reset()
    F, G = YB[rr & 1]
    seq = []
    started = set()
    for bb in range(8):
        b = 7 + bb
        for aa in range(8):
            c = b - aa
            if 0 <= c <= 7:
                first = (rr == 0 and c not in started); started.add(c)
                seq.append(f"v_mfma_f32_16x16x32_bf16 {V(yAcc+4*c,4)}, {V(F+4*aa,4)}, {V(G+4*bb,4)}, {'0' if first else V(yAcc+4*c,4)}")
    slots = merge_fillers(y2_reads(rr + 1) if rr < 3 else [async_poll(MB_S2), res_loads], [], len(seq))
    for ln, sl in zip(seq, slots):
        a(ln)
        for g in sl: g()
a("s_waitcnt vmcnt(0)")
async_check(8, MB_S2, "o1")
o_dma()
barrier()
a(f"s_lshl_b32 s{sT0}, s{sW}, 12")
a(f"s_add_u32 s{sT0}, s{sT0}, {ACCX}")
a(f"v_add_u32 v{vT0}, s{sT0}, v{vA0}")
a(f"s_xor_b32 s{sT1}, s{sW}, 1")
a(f"s_lshl_b32 s{sT1}, s{sT1}, 12")
a(f"s_add_u32 s{sT1}, s{sT1}, {ACCX}")
a(f"v_add_u32 v{vT1}, s{sT1}, v{vA0}")
a(f"s_and_b32 s{sT2}, s{sW}, 1")
a(f"s_cmp_eq_u32 s{sT2}, 0")
a("s_cbranch_scc1 L_y2_even")
a.flush()
for i in range(4):
    a(f"ds_write_b128 v{vT0}, {V(yAcc+8*i,4)} offset:{1024*i}")
    for r in range(4): a(f"v_mov_b32 v{yF+4*i+r}, v{yAcc+8*i+4+r}")
a("s_branch L_y2_x")
a.label("L_y2_even")
a.flush()
for i in range(4):
    a(f"ds_write_b128 v{vT0}, {V(yAcc+8*i+4,4)} offset:{1024*i}")
    for r in range(4): a(f"v_mov_b32 v{yF+4*i+r}, v{yAcc+8*i+r}")
a.label("L_y2_x")
a("s_waitcnt lgkmcnt(0)")
barrier()
for i in range(4):
    a(f"ds_read_b128 {V(yG+4*i,4)}, v{vT1} offset:{1024*i}")
a(f"v_lshlrev_b32 v{vT0}, 5, v{vL15}")
a(f"v_lshl_add_u32 v{vT0}, v{vQ}, 3, v{vT0}")
a(f"s_lshr_b32 s{sT0}, s{sW}, 1")
a(f"s_mul_i32 s{sT1}, s{sT0}, {URP}")
a(f"s_lshl_b32 s{sT3}, s{sT2}, 9")
a(f"s_sub_u32 s{sT1}, s{sT1}, s{sT3}")
a(f"s_add_u32 s{sT1}, s{sT1}, {UR + 4088 - 3*1024}")
a(f"v_sub_u32 v{vT1}, s{sT1}, v{vT0}")
for i in range(4):
    a(f"ds_read_b64 {V(64+2*i,2)}, v{vT1} offset:{(3-i)*1024}")
a(f"s_lshl_b32 s{sT1}, s{sD}, 16")
a(f"s_and_b32 s{sT3}, s{sD}, 0xffff0000")
a(f"s_cmp_eq_u32 s{sT0}, 0")
a(f"s_cselect_b32 s{sT1}, s{sT1}, s{sT3}")
a(f"s_lshl_b32 s{sT3}, s{sL}, 1")
a(f"s_add_u32 s{sT3}, s{sT3}, s{sT0}")
a(f"s_lshl_b32 s{sT3}, s{sT3}, 12")
a(f"s_lshl_b32 s{sT4}, s{sT2}, 9")
a(f"s_add_u32 s{sT3}, s{sT3}, s{sT4}")
a(f"s_add_u32 s{sT3}, s{sT3}, {YT_OFF}")
a("s_waitcnt lgkmcnt(0)")
for i in range(4):
    y = yF + 4*i
    a(f"v_pk_add_f32 {V(y,2)}, {V(y,2)}, {V(yG+4*i,2)}")
    a(f"v_pk_add_f32 {V(y+2,2)}, {V(y+2,2)}, {V(yG+4*i+2,2)}")
    a(f"v_cvt_pk_bf16_f32 v{y}, v{y}, v{y+1}")
    a(f"v_cvt_pk_bf16_f32 v{y+2}, v{y+2}, v{y+3}")
    a(f"v_and_b32 v{y+1}, 0xffff0000, v{y}")
    a(f"v_lshlrev_b32 v{y}, 16, v{y}")
    a(f"v_and_b32 v{y+3}, 0xffff0000, v{y+2}")
    a(f"v_lshlrev_b32 v{y+2}, 16, v{y+2}")
    k0 = 64 + 2*i; u = 72
    a(f"v_and_b32 v{u}, 0xffff0000, v{k0+1}")
    a(f"v_lshlrev_b32 v{u+1}, 16, v{k0+1}")
    a(f"v_and_b32 v{u+2}, 0xffff0000, v{k0}")
    a(f"v_lshlrev_b32 v{u+3}, 16, v{k0}")
    for r in range(4): a(f"v_mul_f32 v{u+r}, s{sT1}, v{u+r}")
    a(f"v_cvt_pk_bf16_f32 v{u}, v{u}, v{u+1}")
    a(f"v_cvt_pk_bf16_f32 v{u+2}, v{u+2}, v{u+3}")
    a(f"v_and_b32 v{u+1}, 0xffff0000, v{u}")
    a(f"v_lshlrev_b32 v{u}, 16, v{u}")
    a(f"v_and_b32 v{u+3}, 0xffff0000, v{u+2}")
    a(f"v_lshlrev_b32 v{u+2}, 16, v{u+2}")
    a(f"v_pk_add_f32 {V(y,2)}, {V(y,2)}, {V(u,2)}")
    a(f"v_pk_add_f32 {V(y+2,2)}, {V(y+2,2)}, {V(u+2,2)}")
    a(f"v_cvt_pk_bf16_f32 v{y}, v{y}, v{y+1}")
    a(f"v_cvt_pk_bf16_f32 v{y+1}, v{y+2}, v{y+3}")
    a(f"buffer_store_dwordx2 {V(y,2)}, v{vT0}, {S4(SWS)}, s{sT3} offen offset:{1024*i} sc1")
vm.drain()
barrier()
signal(32, f"""s_lshr_b32 s{sT0}, s{sL}, 5
v_lshl_add_u32 v{vT1}, v{vLANE}, 3, s{sT0}
v_lshlrev_b32 v{vT1}, {MB_SH}, v{vT1}
s_and_b32 s{sT0}, s{sL}, 31
s_lshl_b32 s{sT0}, s{sT0}, 7
s_add_u32 s{sT0}, s{sT0}, {MB_OFF + MB_S3}
v_add_u32 v{vT1}, s{sT0}, v{vT1}""")
prof("y2")
if STAGE <= 2:
    a("s_branch L_end")
a("s_branch L_p2_gemm")

a.flush()
a.label("L_p2")
vm.reset(); lg.reset()
poll(8, f"s{sSIG}", "o")
prof("p2_owait")
vm.reset()
o_dma()
a.flush()
a.label("L_p2_gemm")
vOB = 121
a(f"v_add_u32 v{vOB}, {OIMG}, v{vFR}")
vPA = 16
vOF = 32
def p2_reads(s):
    for t in range(4):
        a(f"ds_read_b128 {V(vOF+16*(s&1)+4*t,4)}, v{vOB} offset:{s*4096 + t*1024}"); lg.issue(("of", s))
for s in range(16):
    if s % 4 == 0:
        vm.wait(("o", s // 4))
        barrier()
        p2_reads(s)
    if s % 4 != 3:
        p2_reads(s + 1)
    lg.wait(("of", s))
    for t in range(4):
        a(f"v_mfma_f32_16x16x32_bf16 {V(vPA+4*t,4)}, {A(192+4*s,4)}, {V(vOF+16*(s&1)+4*t,4)}, {'0' if s == 0 else V(vPA+4*t,4)}")
prof("p2_gemm")
vX1 = 64
vSt = 72
vW = 84
for t in range(4):
    c = vPA + 4*t
    a(f"v_cvt_pk_bf16_f32 v{c}, v{c}, v{c+1}")
    a(f"v_cvt_pk_bf16_f32 v{c+2}, v{c+2}, v{c+3}")
    a(f"v_and_b32 v{c+1}, 0xffff0000, v{c}")
    a(f"v_lshlrev_b32 v{c}, 16, v{c}")
    a(f"v_and_b32 v{c+3}, 0xffff0000, v{c+2}")
    a(f"v_lshlrev_b32 v{c+2}, 16, v{c+2}")
    a(f"v_lshlrev_b32 v{vW}, 16, v{vX2+2*t}")
    a(f"v_and_b32 v{vW+1}, 0xffff0000, v{vX2+2*t}")
    a(f"v_lshlrev_b32 v{vW+2}, 16, v{vX2+2*t+1}")
    a(f"v_and_b32 v{vW+3}, 0xffff0000, v{vX2+2*t+1}")
    a(f"v_pk_add_f32 {V(c,2)}, {V(c,2)}, {V(vW,2)}")
    a(f"v_pk_add_f32 {V(c+2,2)}, {V(c+2,2)}, {V(vW+2,2)}")
    a(f"v_cvt_pk_bf16_f32 v{vX1+2*t}, v{c}, v{c+1}")
    a(f"v_cvt_pk_bf16_f32 v{vX1+2*t+1}, v{c+2}, v{c+3}")
    a(f"v_lshlrev_b32 v{c}, 16, v{vX1+2*t}")
    a(f"v_and_b32 v{c+1}, 0xffff0000, v{vX1+2*t}")
    a(f"v_lshlrev_b32 v{c+2}, 16, v{vX1+2*t+1}")
    a(f"v_and_b32 v{c+3}, 0xffff0000, v{vX1+2*t+1}")
    a(f"v_pk_add_f32 {V(vW,2)}, {V(c,2)}, {V(c+2,2)}")
    a(f"v_pk_mul_f32 {V(vW+2,2)}, {V(c,2)}, {V(c,2)}")
    a(f"v_pk_fma_f32 {V(vW+2,2)}, {V(c+2,2)}, {V(c+2,2)}, {V(vW+2,2)}")
    a(f"v_add_f32 v{vSt+2*t}, v{vW}, v{vW+1}")
    a(f"v_add_f32 v{vSt+2*t+1}, v{vW+2}, v{vW+3}")
a(f"v_lshlrev_b32 v{vT0}, 9, v{vQ}")
a(f"v_lshl_add_u32 v{vT0}, v{vL15}, 3, v{vT0}")
a(f"s_lshl_b32 s{sT0}, s{sW}, 11")
a(f"s_add_u32 s{sT0}, s{sT0}, {PS}")
a(f"v_add_u32 v{vT0}, s{sT0}, v{vT0}")
for t in range(4):
    a(f"ds_write_b64 v{vT0}, {V(vSt+2*t,2)} offset:{128*t}")
a("s_waitcnt lgkmcnt(0)")
barrier()
prof("p2_ps")
a(f"v_lshlrev_b32 v{vT0}, 3, v{vLANE}")
a(f"v_add_u32 v{vT1}, {PS}, v{vT0}")
for half in range(2):
    for i in range(8):
        a(f"ds_read_b64 {V(vW+2*i+16*half,2)}, v{vT1} offset:{512*(8*half+i)}")
    a("s_waitcnt lgkmcnt(0)") if half == 0 else None
a("s_waitcnt lgkmcnt(0)")
n = 16
while n > 1:
    n //= 2
    for i in range(n):
        a(f"v_pk_add_f32 {V(vW+2*i,2)}, {V(vW+2*i,2)}, {V(vW+2*(i+n),2)}")
a(f"v_mov_b32 v{vW+2}, s{sN}")
a(f"v_mov_b32 v{vW+3}, s{sN+1}")
a(f"s_lshl_b32 s{sT0}, s{sG}, 3")
a(f"s_lshl_b32 s{sT1}, s{sW}, 1")
a(f"s_add_u32 s{sT0}, s{sT0}, s{sT1}")
a(f"s_lshl_b32 s{sT0}, s{sT0}, {MB_SH}")
a(f"s_lshl_b32 s{sT1}, s{sJ}, 10")
a(f"s_add_u32 s{sT0}, s{sT0}, s{sT1}")
a(f"s_add_u32 s{sT0}, s{sT0}, s{sSTAT}")
a(f"s_add_u32 s{sT0}, s{sT0}, {MB_OFF}")
a(f"s_add_u32 s{sT1}, s{sT0}, {MB_SZ}")
a(f"buffer_store_dwordx4 {V(vW,4)}, v{vA0}, {S4(SWS)}, s{sT0} offen sc1")
a(f"buffer_store_dwordx4 {V(vW,4)}, v{vA0}, {S4(SWS)}, s{sT1} offen sc1")
a(f"s_cmp_lg_u32 s{sPH}, 0")
a("s_cbranch_scc1 L_p2_noy2")
poll(32, MB_S3, "s3")
prof("p2_s3")
a(f"v_lshrrev_b32 v{vT0}, 3, v{vLANE}")
a(f"v_lshlrev_b32 v{vT0}, 12, v{vT0}")
a(f"v_and_b32 v{vT1}, 7, v{vLANE}")
a(f"v_lshl_add_u32 v{vT0}, v{vT1}, 4, v{vT0}")
a(f"s_lshl_b32 s{sT0}, s{sJ}, 18")
a(f"s_lshl_b32 s{sT1}, s{sG}, 7")
a(f"s_add_u32 s{sT0}, s{sT0}, s{sT1}")
a(f"s_lshl_b32 s{sT1}, s{sW}, 16")
a(f"s_add_u32 s{sT0}, s{sT0}, s{sT1}")
a(f"s_add_u32 s{sT0}, s{sT0}, {YT_OFF}")
a(f"s_lshl_b32 s{sT1}, s{sW}, 11")
a(f"s_add_u32 m0, s{sT1}, {YTT}")
a(f"buffer_load_dwordx4 v{vT0}, {S4(SWS)}, s{sT0} offen sc1 lds")
a(f"s_add_u32 s{sT0}, s{sT0}, 32768")
a(f"s_add_u32 m0, s{sT1}, {YTT + 1024}")
a(f"buffer_load_dwordx4 v{vT0}, {S4(SWS)}, s{sT0} offen sc1 lds")
a("s_waitcnt vmcnt(0)")
a(f"v_lshrrev_b32 v{vT1}, 2, v{vLANE}")
a(f"v_lshlrev_b32 v{vT1}, 7, v{vT1}")
a(f"v_and_b32 v{vT2}, 3, v{vLANE}")
a(f"v_lshl_add_u32 v{vT1}, v{vT2}, 3, v{vT1}")
a(f"s_lshl_b32 s{sT0}, s{sW}, 11")
a(f"s_add_u32 s{sT0}, s{sT0}, {YTT}")
a(f"v_add_u32 v{vT1}, s{sT0}, v{vT1}")
for t in range(4):
    a(f"ds_read_b64_tr_b16 {V(vYY+2*t,2)}, v{vT1} offset:{32*t}")
a("s_waitcnt lgkmcnt(0)")
a.flush()
a.label("L_p2_noy2")
prof("p2_pub")
a(f"s_add_u32 s{sT0}, s{sMB}, s{sSTAT}")
a(f"s_lshl_b32 s{sT1}, s{sW}, 11")
a(f"s_add_u32 s{sT0}, s{sT0}, s{sT1}")
a("s_branch L_poll_st1")
a.label("L_poll_st")
a("s_sleep 1")
a.label("L_poll_st1")
for i in range(2):
    a(f"buffer_load_dwordx4 {V(vW+4*i,4)}, v{vA0}, {S4(SWS)}, s{sT0} offen offset:{1024*i} sc1")
a("s_waitcnt vmcnt(0)")
a(f"v_cmp_ne_u64 vcc, s[{sN}:{sN+1}], {V(vW+2,2)}")
a(f"v_cmp_ne_u64 s[{sEX}:{sEX+1}], s[{sN}:{sN+1}], {V(vW+6,2)}")
a(f"s_or_b64 vcc, vcc, s[{sEX}:{sEX+1}]")
a("s_cbranch_vccnz L_poll_st")
a(f"v_pk_add_f32 {V(vW,2)}, {V(vW,2)}, {V(vW+4,2)}")
a(f"s_lshl_b32 s{sT1}, s{sW}, 9")
a(f"s_add_u32 s{sT1}, s{sT1}, {MISC + 4096}")
a(f"v_lshl_add_u32 v{vT1}, v{vLANE}, 3, s{sT1}")
a(f"ds_write_b64 v{vT1}, {V(vW,2)}")
a(f"v_lshlrev_b32 v{vT1}, 3, v{vLANE}")
a(f"v_add_u32 v{vT1}, {MISC + 4096}, v{vT1}")
a("s_waitcnt lgkmcnt(0)")
barrier()
prof("p2_stats")
for i in range(4):
    a(f"ds_read_b64 {V(vW+2*i,2)}, v{vT1} offset:{512*i}")
a("s_waitcnt lgkmcnt(0)")
a(f"v_pk_add_f32 {V(vW,2)}, {V(vW,2)}, {V(vW+2,2)}")
a(f"v_pk_add_f32 {V(vW+4,2)}, {V(vW+4,2)}, {V(vW+6,2)}")
a(f"v_pk_add_f32 {V(vW,2)}, {V(vW,2)}, {V(vW+4,2)}")
ln_math(vW, vW+1, vW+2, vW+3, vW+4, vW+5)
a(f"s_mul_i32 s{sT0}, s{sW}, 640")
a(f"s_add_u32 s{sT0}, s{sT0}, {ABW}")
a(f"v_lshl_add_u32 v{vT1}, v{vLANE}, 3, s{sT0}")
a(f"v_lshl_add_u32 v{vT2}, v{vL15}, 3, s{sT0}")
a(f"ds_write_b64 v{vT1}, {V(vW+2,2)}")
a("s_waitcnt lgkmcnt(0)")
for t in range(4):
    a(f"ds_read_b64 {V(vW+8+2*t,2)}, v{vT2} offset:{128*t}")
a("s_waitcnt lgkmcnt(0)")
for t in range(4):
    ab = V(vW+8+2*t, 2)
    x, y, u = vPA + 4*t, 104, 108
    a(f"v_lshlrev_b32 v{y}, 16, v{vYY+2*t}")
    a(f"v_and_b32 v{y+1}, 0xffff0000, v{vYY+2*t}")
    a(f"v_lshlrev_b32 v{y+2}, 16, v{vYY+2*t+1}")
    a(f"v_and_b32 v{y+3}, 0xffff0000, v{vYY+2*t+1}")
    for h in range(2):
        a(f"v_pk_fma_f32 {V(u+2*h,2)}, {V(x+2*h,2)}, {ab}, {ab} op_sel:[0,0,1] op_sel_hi:[1,0,1]")
        a(f"v_pk_fma_f32 {V(u+2*h,2)}, {V(u+2*h,2)}, {V(y+2*h,2)}, {V(x+2*h,2)}")
    a(f"v_cvt_pk_bf16_f32 v{vX2+2*t}, v{u}, v{u+1}")
    a(f"v_cvt_pk_bf16_f32 v{vX2+2*t+1}, v{u+2}, v{u+3}")
tile_to_lds(vX2, vW)
a(f"s_lshl_b32 s{sT4}, s{sG}, 16")
a(f"s_lshl_b32 s{sT1}, s{sJ}, 7")
a(f"s_add_u32 s{sT4}, s{sT4}, s{sT1}")
prof("p2_epi")
a(f"s_add_u32 s{sT1}, s{sT4}, 32768")
a(f"s_cmp_lg_u32 s{sPH}, 0")
a("s_cbranch_scc1 L_final")
a(f"v_and_b32 v{vT1}, 0x70, v{vT0}")
a(f"v_lshrrev_b32 v{vT0}, 10, v{vT0}")
a(f"v_lshl_add_u32 v{vT0}, v{vT0}, 7, v{vT1}")
a(f"s_lshl_b32 s{sT4}, s{sJ}, 18")
a(f"s_lshl_b32 s{sT1}, s{sG}, 13")
a(f"s_add_u32 s{sT4}, s{sT4}, s{sT1}")
a(f"s_add_u32 s{sT1}, s{sT4}, 4096")
a(f"buffer_store_dwordx4 {V(vW,4)}, v{vT0}, {S4(SX2)}, s{sT4} offen sc1")
a(f"buffer_store_dwordx4 {V(vW+4,4)}, v{vT0}, {S4(SX2)}, s{sT1} offen sc1")
vm.drain()
barrier()
signal(16, f"""s_lshl_b32 s{sT0}, s{sG}, 3
v_add_u32 v{vT1}, s{sT0}, v{vLANE}
v_lshlrev_b32 v{vT1}, {MB_SH}, v{vT1}
v_and_b32 v{vT2}, 8, v{vLANE}
v_lshl_add_u32 v{vT1}, v{vT2}, 7, v{vT1}
s_lshl_b32 s{sT0}, s{sJ}, 7
s_add_u32 s{sT0}, s{sT0}, {MB_OFF + MB_S5}
v_add_u32 v{vT1}, s{sT0}, v{vT1}""")
prof("p2_done")
if STAGE <= 3:
    a("s_branch L_end")

a(f"s_mov_b32 s{sPH}, 1")
a(f"s_mov_b32 s{sOOFF}, {O3_OFF}")
a(f"s_mov_b32 s{sSIG}, {MB_S6}")
a(f"s_mov_b32 s{sSTAT}, {MB_ST1}")
zero_stats()
a(f"v_lshrrev_b32 v{vT0}, 2, v{vLANE}")
a(f"v_lshlrev_b32 v{vXDH2}, 7, v{vT0}")
a(f"v_and_b32 v{vT1}, 0x30, v{vXD}")
a(f"v_add_u32 v{vXDH2}, v{vXDH2}, v{vT1}")
a(f"s_lshl_b32 s{sT0}, s{sG}, 13")
a(f"s_lshl_b32 s{sT1}, s{sW}, 11")
a(f"s_add_u32 s{sT1}, s{sT1}, s{sT0}")
a(f"v_add_u32 v{vXD2}, s{sT1}, v{vXDH2}")
a(f"s_sub_u32 s{sT0}, s{sT0}, 2048")
a(f"s_cmp_eq_u32 s{sG}, 0")
a(f"s_cselect_b32 s{sT0}, 0x40000000, s{sT0}")
a(f"v_add_u32 v{vXDH2}, s{sT0}, v{vXDH2}")
a(f"s_mov_b32 s{sT1}, 0xffff")
a(f"s_cmp_eq_u32 s{sG}, 0")
a(f"s_cselect_b32 exec_lo, 0xff, s{sT1}")
a("s_mov_b32 exec_hi, 0")
poll(16, MB_S5, "x2", exec_set=True)
a(f"s_xor_b32 s{sN}, s{sN}, 1")
prof("p3_wait")
vm.reset(); lg.reset()
for s in range(8):
    dma_x(s, SX2)
for s in range(16):
    if s % 4 == 0:
        vm.wait(("x", s + 3), ("h", s // 4))
        barrier()
        lds_reads_x(s, s & 1)
    rd = lds_reads_x_groups(s + 1, (s + 1) & 1) if s % 4 != 3 else []
    lg.wait(("xa", s))
    fl = (dma_x_groups(8 + 2*s, SX2) + dma_x_groups(9 + 2*s, SX2)) if s < 4 else []
    mfmas(s, s & 1, False, (rd, fl))
prof("p3_gemm")
a.flush()
a("s_branch L_attn")

a.label("L_final")
a(f"buffer_store_dwordx4 {V(vW,4)}, v{vT0}, {S4(SOUT)}, s{sT4} offen")
a(f"buffer_store_dwordx4 {V(vW+4,4)}, v{vT0}, {S4(SOUT)}, s{sT1} offen")
prof("final")
a.label("L_end")
a("s_endpgm")
a.raw('.section .rodata,"a"')
a.raw(kernel_desc(NAME, 512, 102, 256))
out = sys.argv[1] if len(sys.argv) > 1 else "interleave_layers__sliding_local_dilated__ssm_conv_h3__prompt.s"
open(out, "w").write(a.text())
print("wrote", out, "lines", len(a.lines), "pad states", a.npad)
```

```python
import re

_REG = re.compile(r"^(-|abs\()?(v|a|s)(\d+|\[(\d+):(\d+)\])\)?$")

def regs_of(tok):
    tok = tok.strip()
    if tok in ("vcc",):
        return {("s", 106), ("s", 107)}
    if tok in ("vcc_lo",): return {("s", 106)}
    if tok in ("vcc_hi",): return {("s", 107)}
    if tok == "exec": return {("s", 126), ("s", 127)}
    if tok == "m0": return {("s", 124)}
    m = _REG.match(tok)
    if not m:
        return set()
    k = m.group(2)
    if m.group(4) is not None:
        lo, hi = int(m.group(4)), int(m.group(5))
    else:
        lo = hi = int(m.group(3))
    return {(k, i) for i in range(lo, hi + 1)}

TRANS = ("v_exp_f32", "v_log_f32", "v_rcp_f32", "v_rsq_f32", "v_sqrt_f32", "v_sin_f32", "v_cos_f32")

class Ins:
    __slots__ = ("mn", "ops", "dst", "src", "cls", "passes", "srcC", "srcAB", "pos", "mods", "text")

def parse(line):
    s = line.split(";")[0].strip()
    if not s:
        return None
    parts = s.split(None, 1)
    mn = parts[0]
    rest = parts[1] if len(parts) > 1 else ""
    ops = [o.strip() for o in re.split(r",(?![^\(]*\))", rest)] if rest else []
    mods = ""
    if ops:
        last = ops[-1].split(None, 1)
        if len(last) > 1:
            ops[-1] = last[0]; mods = last[1]
    i = Ins(); i.mn = mn; i.ops = ops; i.mods = mods; i.text = s
    i.dst = set(); i.src = set(); i.srcC = set(); i.srcAB = set(); i.passes = 0
    R = [regs_of(o) for o in ops]
    if mn.startswith("v_mfma"):
        i.cls = "mfma"
        i.passes = 8 if "32x32" in mn else 4
        i.dst = R[0]; i.srcAB = R[1] | R[2]; i.srcC = R[3] if len(R) > 3 else set()
        i.src = i.srcAB | i.srcC
    elif mn.startswith("v_"):
        i.cls = "valu"
        if mn.startswith("v_permlane") and "swap" in mn:
            i.dst = R[0] | R[1]; i.src = R[0] | R[1]
        elif mn.startswith(("v_add_co", "v_sub_co", "v_addc_co", "v_subb_co")):
            i.dst = R[0] | R[1]; i.src = set().union(*R[2:])
        else:
            i.dst = R[0]; i.src = set().union(*R[1:]) if len(R) > 1 else set()
            if mn.startswith(("v_fmac", "v_dot2c", "v_pk_fmac")) or "dpp" in mn:
                i.src |= R[0]
            if mn.startswith("v_cndmask") and len(ops) == 3:
                i.src |= regs_of("vcc")
    elif mn.startswith("ds_"):
        i.cls = "ds"
        if mn.startswith(("ds_read", "ds_bpermute", "ds_permute", "ds_swizzle")):
            i.dst = R[0]; i.src = set().union(*R[1:])
        else:
            i.src = set().union(*R)
    elif mn.startswith(("buffer_", "global_")):
        i.cls = "vmem"
        if "load" in mn and "lds" not in mods.split():
            i.dst = R[0]; i.src = set().union(*R[1:])
        else:
            i.src = set().union(*R) if R else set()
            if "lds" in mods.split():
                i.src |= regs_of("m0")
    elif mn.startswith("s_"):
        i.cls = "salu"
        if mn.startswith(("s_cmp", "s_waitcnt", "s_barrier", "s_nop", "s_branch", "s_cbranch", "s_endpgm", "s_sleep", "s_setprio", "s_setpc", "s_bitcmp")):
            i.src = set().union(*R) if R else set()
        else:
            i.dst = R[0] if R else set(); i.src = set().union(*R[1:]) if len(R) > 1 else set()
            if "saveexec" in mn:
                i.dst |= regs_of("exec")
    else:
        raise ValueError("unknown instr " + s)
    return i

def vonly(s):
    return {r for r in s if r[0] in "va"}
def sonly(s):
    return {r for r in s if r[0] == "s"}

def required(p, c):
    n = 0
    if p.cls == "valu":
        pv = vonly(p.dst); ps = sonly(p.dst)
        if c.cls == "mfma" and pv & c.src: n = max(n, 2)
        if re.sub(r"_e(32|64)$", "", p.mn) in TRANS and c.cls in ("valu", "mfma") and pv & (c.src | c.dst): n = max(n, 1)
        if c.cls == "valu" and (c.mn.startswith("v_permlane") or "dpp" in c.mn or "row_" in c.mods) and pv & c.src: n = max(n, 2)
        if c.cls == "valu" and c.mn.startswith(("v_readfirstlane", "v_readlane")) and pv & c.src: n = max(n, 1)
        if ps:
            if c.cls == "valu" and ps & c.src:
                n = max(n, 4 if c.mn.startswith(("v_readlane", "v_writelane")) else 2)
            if c.cls == "vmem" and ps & c.src: n = max(n, 5)
            if c.cls == "salu" and ps & c.src: n = max(n, 1)
        if p.mn.startswith("v_dot"):
            if c.cls == "valu" and c.mn == p.mn and pv & c.src and pv == vonly(c.dst) :
                pass
            elif pv & (c.src | c.dst): n = max(n, 3)
    if p.cls == "mfma":
        big = {4: 8, 8: 12}[p.passes]
        if c.cls == "mfma":
            if p.dst & c.srcAB: n = max(n, big)
            if p.dst & c.srcC:
                if not (p.dst == c.srcC and p.passes == c.passes): n = max(n, big - 2)
            elif p.dst & c.dst: n = max(n, big)
        else:
            if p.dst & (c.src | c.dst): n = max(n, big)
            if c.cls == "valu" and p.srcC & c.dst: n = max(n, {4: 3, 8: 7}[p.passes])
    if p.cls == "salu":
        if ("s", 124) in p.dst and c.cls == "vmem" and ("s", 124) in c.src: n = max(n, 1)
    if p.cls == "vmem" and "store" in p.mn and ("x4" in p.mn or "x3" in p.mn):
        data = regs_of(p.ops[0])
        if c.cls in ("valu", "mfma") and data & c.dst: n = max(n, 2)
        elif data & c.dst: n = max(n, 1)
    return n

class Asm:
    def __init__(self):
        self.lines = []
        self.nlabel = 0
        self.hist = []
        self.pos = 0
        self.npad = 0
        self.rec = None
        self.bg = []
        self.bg_every = 0
        self.bg_cnt = 0
        self.in_bg = False
    def bg_start(self, groups, every):
        self.bg += self.record(groups); self.bg_every = every; self.bg_cnt = 0
    def bg_pause(self):
        e = self.bg_every; self.bg_every = 0; return e
    def bg_resume(self, e):
        self.bg_every = e
    def bg_flush(self):
        self.bg_every = 0
        while self.bg:
            self.replay(self.bg.pop(0))
    def record(self, groups):
        self.rec = []
        for g in groups: g()
        r, self.rec = self.rec, None
        units = []
        for it in r:
            if it[0] == "l": units.append([it])
            else: units[-1].append(it)
        return units
    def replay(self, unit):
        for it in unit:
            if it[0] in ("l", "x"):
                if it[1] is not None: self._emit(it[1])
            elif it[0] == "lab": self.label(it[1])
            else: it[1].issue(it[2])
    def weave(self, seq, first, rest, per=2):
        f = self.record(first); r = self.record(rest)
        n = len(seq); m = len(r); kr = 0
        for i, ln in enumerate(seq):
            self(ln)
            k = per
            while r and (kr + 1) * n <= (i + 1) * (m + 1):
                self.replay(r.pop(0)); kr += 1; k -= 1
            if f:
                self.replay(f.pop(0)); k -= 1
        for u in f + r: self.replay(u)
    def _emit(self, l):
        if self.rec is not None:
            if not l.startswith(";"): self.rec.append(("l", l))
            return
        ins = parse(l)
        if ins is None:
            self.lines.append("    " + l); return
        need = 0
        for p, pos in self.hist:
            r = required(p, ins)
            if r:
                have = self.pos - pos - 1
                need = max(need, r - have)
        while need > 0:
            k = min(need, 16)
            self.lines.append(f"    s_nop {k-1}")
            self.pos += k; need -= k; self.npad += k
        self.lines.append("    " + l)
        if ins.mn == "s_nop":
            self.pos += int(ins.ops[0], 0) + 1
        else:
            self.hist.append((ins, self.pos))
            self.pos += 1
        self.hist = [(p, pos) for p, pos in self.hist if self.pos - pos <= 24]
        if self.bg_every and self.bg and not self.in_bg and ins.cls in ("valu", "ds", "mfma"):
            self.bg_cnt += 1
            if self.bg_cnt >= self.bg_every:
                self.bg_cnt = 0
                self.in_bg = True
                self.replay(self.bg.pop(0))
                self.in_bg = False
    def __call__(self, s):
        for l in s.strip("\n").split("\n"):
            l = l.strip()
            if l: self._emit(l)
    def raw(self, s):
        self.lines.append(s)
    def label(self, name, pad=0):
        self.lines.append(name + ":")
        if pad:
            self(f"s_nop {pad-1}")
    def flush(self):
        need = 0
        for p, pos in self.hist:
            if p.cls == "mfma": r = {4: 8, 8: 12}[p.passes]
            elif p.cls == "valu": r = 5 if sonly(p.dst) else 3
            else: r = 2
            need = max(need, r - (self.pos - pos - 1))
        if need > 0:
            self(f"s_nop {need-1}")
    def newlabel(self, base="L"):
        self.nlabel += 1
        return f"{base}_{self.nlabel}"
    def comment(self, s):
        self.lines.append("    ; " + s)
    def text(self):
        return "\n".join(self.lines) + "\n"

class Cnt:
    def __init__(self, a, name, maxv):
        self.a = a; self.name = name; self.q = []; self.maxv = maxv
    def issue(self, tag, n=1):
        if self.a.rec is not None:
            self.a.rec.append(("i", self, tag)); return
        self.q += [tag] * n
    def wait(self, *tags):
        idx = -1
        for i, t in enumerate(self.q):
            if t in tags: idx = i
        if idx < 0: return
        n = len(self.q) - 1 - idx
        assert n <= self.maxv, (self.name, n)
        self.a(f"s_waitcnt {self.name}({n})")
        self.q = self.q[idx + 1:]
    def drain(self):
        self.a(f"s_waitcnt {self.name}(0)")
        self.q = []
    def reset(self):
        self.q = []

def kernel_header(name):
    return f""".globl {name}
.p2align 8
.type {name},@function
{name}:"""

def kernel_desc(name, vgpr=256, sgpr=102, accum=256):
    return f""".p2align 6
.amdhsa_kernel {name}
  .amdhsa_next_free_vgpr {vgpr}
  .amdhsa_next_free_sgpr {sgpr}
  .amdhsa_accum_offset {accum}
  .amdhsa_group_segment_fixed_size 0
  .amdhsa_kernarg_size 96
  .amdhsa_user_sgpr_count 2
  .amdhsa_user_sgpr_kernarg_segment_ptr 1
  .amdhsa_system_sgpr_workgroup_id_x 1
.end_amdhsa_kernel"""

def srd(a, d, base, nbytes, off=0):
    if off:
        a(f"s_add_u32 s{d}, s{base}, {off}")
        a(f"s_addc_u32 s{d+1}, s{base+1}, 0")
        a(f"s_and_b32 s{d+1}, s{d+1}, 0xffff")
    else:
        a(f"s_mov_b32 s{d}, s{base}")
        a(f"s_and_b32 s{d+1}, s{base+1}, 0xffff")
    a(f"s_mov_b32 s{d+2}, {nbytes}")
    a(f"s_mov_b32 s{d+3}, 0x00020000")
```

```python
import sys, os
sys.path.insert(0, os.path.dirname(os.path.abspath(__file__)))
from asmlib import *

NAME = "interleave_layers__sliding_local_dilated__ssm_conv_h3__prompt_kernel"
STAGE = int(os.environ.get("STAGE", "9"))
PROF = int(os.environ.get("PROF", "0"))
ENV = lambda k, d: int(os.environ.get(k, str(d)))

KVT_OFF = 0
YT_OFF = KVT_OFF
O1_OFF = 4 << 20
X2_OFF = O1_OFF
O3_OFF = 8 << 20
MB_OFF = 16 << 20
MB_SH = 14
MB_SZ = 1 << MB_SH
MB_S1, MB_S2, MB_S3, MB_S5, MB_S6 = 64, 0, 16, 32, 48
MB_ST = 4096
PROF_OFF = 32 << 20

XIMG = 0
WRING = 81920
NSLOT = 6
WOIMG = 0
UR, URP = 65536, 4608
HC, HCP = 74752, 4160
ACCX = HC
YTT = HC
PS = HC + 8192
OT = PS
MISC = 91392
ABW = MISC + 1024
OIMG = 98304
Y1T = 155648

sB, sW, sG, sJ, sKK0 = 2, 3, 4, 5, 6
SX, SWQ, SWO, SK_, SV_, SH, SOUT, SDBG, SWS, SX2, SSK = 8, 12, 16, 20, 24, 28, 32, 36, 40, 44, 48
sD = 52
sPAR, sMC0, sMC1 = 54, 56, 58
sL = 60
sT0, sT1, sT2, sT3, sT4 = 61, 62, 63, 64, 75
sW1K, sW16K, sW5K, sMB = 65, 66, 67, 68
sTILE = 69
sEX = 72
sN = 78
sXo, sW3K, sW64 = 80, 81, 82
sTP = 84
sB0, sB1 = 70, 71
sPT = 92

def S4(n): return f"s[{n}:{n+3}]"
def S2(n): return f"s[{n}:{n+1}]"
def V(n, k=1): return f"v{n}" if k == 1 else f"v[{n}:{n+k-1}]"
def A(n, k=1): return f"a{n}" if k == 1 else f"a[{n}:{n+k-1}]"

vTID, vLANE, vL15, vQ = 0, 1, 2, 3
vA0, vA1, vS0, vS1, vSH, vTR, vXD, vXDH, vWD = 4, 5, 6, 7, 8, 9, 10, 11, 12
vT0, vT1, vT2 = 13, 14, 15
vQT, vKT, vVV = 16, 32, 52
vXA = 84
vSO = 124
vSHF = 132
vONE = 136
vXDW, vKVD, vL128 = 140, 141, 142
yH = 144
vST = 196
vPL = 214
vNL = 220
vP0 = 222
vCS = 224
vTRW0, vTRW1, vWOD, vFR = 236, 237, 238, 239
vX2, vYY = 240, 248

a = Asm()
vm = Cnt(a, "vmcnt", 63)
lg = Cnt(a, "lgkmcnt", 15)
prof_idx = [0]
PARM, MC = S2(sPAR), [S2(sMC0), S2(sMC1)]

def prof(tag):
    if not PROF: return
    e = a.bg_pause()
    i = prof_idx[0]; prof_idx[0] += 1
    a(f"s_memtime {S2(sPT)}")
    a("s_waitcnt lgkmcnt(0)")
    lg.reset()
    a(f"v_mov_b32 v218, s{sPT}")
    a(f"s_lshl_b32 s{sPT+2}, s{sL}, 9")
    a(f"s_add_u32 s{sPT+2}, s{sPT+2}, {PROF_OFF + 4*i}")
    a(f"v_mov_b32 v219, 0")
    a(f"v_cmp_eq_u32 {S2(sPT+6)}, 0, v{vTID}")
    a(f"s_and_saveexec_b64 {S2(sPT+4)}, {S2(sPT+6)}")
    a(f"buffer_store_dword v218, v219, {S4(SWS)}, s{sPT+2} offen")
    a(f"s_mov_b64 exec, {S2(sPT+4)}")
    vm.issue("prof")
    a.bg_resume(e)

def set_exec(n):
    a(f"s_mov_b32 exec_lo, {hex((1 << min(n,32)) - 1)}")
    a(f"s_mov_b32 exec_hi, {hex((1 << (n-32)) - 1) if n > 32 else 0}")

def barrier(): a("s_barrier")

def poll(n, mboff, name, exec_set=False):
    L = a.newlabel("L_poll_" + name)
    if not exec_set: set_exec(n)
    a(f"s_add_u32 s{sT0}, s{sMB}, {mboff}")
    a.flush()
    a.label(L)
    a(f"buffer_load_dwordx2 {V(vP0,2)}, v{vL128}, {S4(SWS)}, s{sT0} offen sc1")
    a("s_waitcnt vmcnt(0)")
    a(f"v_cmp_ne_u64 vcc, {S2(sN)}, {V(vP0,2)}")
    a(f"s_cbranch_vccnz {L}")
    a("s_mov_b64 exec, -1")
    vm.reset()

def async_poll(mboff):
    def g():
        a(f"s_add_u32 s{sB0}, s{sMB}, {mboff}")
        a(f"buffer_load_dwordx2 {V(vPL,2)}, v{vL128}, {S4(SWS)}, s{sB0} offen sc1"); vm.issue("apoll")
    return g

def async_check(n, mboff, name):
    L = a.newlabel("L_achk")
    vm.wait("apoll")
    set_exec(n)
    a(f"v_cmp_ne_u64 vcc, {S2(sN)}, {V(vPL,2)}")
    a("s_mov_b64 exec, -1")
    a(f"s_cbranch_vccz {L}")
    q = list(vm.q)
    poll(n, mboff, name)
    vm.q = q
    a.flush()
    a.label(L)

def signal(n, addr_code):
    L = a.newlabel("L_sig")
    a(f"s_cmp_lg_u32 s{sW}, 0")
    a(f"s_cbranch_scc1 {L}")
    a(addr_code)
    a(f"v_mov_b32 v{vP0}, s{sN}")
    a(f"v_mov_b32 v{vP0+1}, s{sN+1}")
    set_exec(n)
    a(f"buffer_store_dwordx2 {V(vP0,2)}, v{vT1}, {S4(SWS)}, 0 offen sc1")
    a("s_mov_b64 exec, -1")
    a.flush()
    a.label(L)

def group_sig(mboff, n=8):
    extra = f"v_and_b32 v{vT2}, 8, v{vLANE}\nv_lshl_add_u32 v{vT1}, v{vT2}, 7, v{vT1}\n" if n > 8 else ""
    return f"""s_lshl_b32 s{sT0}, s{sG}, 3
v_add_u32 v{vT1}, s{sT0}, v{vLANE}
v_lshlrev_b32 v{vT1}, {MB_SH}, v{vT1}
{extra}s_lshl_b32 s{sT0}, s{sJ}, 7
s_add_u32 s{sT0}, s{sT0}, {MB_OFF + mboff}
v_add_u32 v{vT1}, s{sT0}, v{vT1}"""

def allreduce(op, regs, tmps):
    for sw in ("v_permlane16_swap_b32", "v_permlane32_swap_b32"):
        for r, t in zip(regs, tmps): a(f"v_mov_b32 v{t}, v{r}")
        for r, t in zip(regs, tmps): a(f"{sw} v{r}, v{t}")
        for r, t in zip(regs, tmps): a(f"{op} v{r}, v{r}, v{t}")

def ln_math(sets):
    steps = [
        "v_mul_f32 v{t0}, 0x3b000000, v{S}", "v_mul_f32 v{t1}, 0x3b000000, v{SS}",
        "v_fma_f32 v{t1}, -v{t0}, v{t0}, v{t1}", "v_max_f32 v{t1}, 0, v{t1}",
        "v_cvt_pk_bf16_f32 v{t0}, v{t0}, v{t1}", "v_and_b32 v{t1}, 0xffff0000, v{t0}",
        "v_lshlrev_b32 v{t0}, 16, v{t0}", "v_add_f32 v{t1}, 0x3727c5ac, v{t1}",
        "v_cvt_pk_bf16_f32 v{t1}, v{t1}, v{t1}", "v_lshlrev_b32 v{t1}, 16, v{t1}",
        "v_sqrt_f32 v{t1}, v{t1}", "v_cvt_pk_bf16_f32 v{t1}, v{t1}, v{t1}",
        "v_lshlrev_b32 v{t1}, 16, v{t1}", "v_rcp_f32 v{A}, v{t1}",
        "v_mul_f32 v{B}, -v{t0}, v{A}"]
    for st in steps:
        for (S, SS, A_, B_, t0, t1) in sets:
            a(st.format(S=S, SS=SS, A=A_, B=B_, t0=t0, t1=t1))

def ldsg(line, tag):
    def g(): a(line); lg.issue(tag)
    return g
def vmg(line, tag):
    def g(): a(line); vm.issue(tag)
    return g

def tile_to_lds(src, tmp):
    a(f"v_lshrrev_b32 v{vT0}, 1, v{vQ}")
    a(f"s_lshl_b32 s{sT0}, s{sW}, 1")
    a(f"v_add_u32 v{vT0}, s{sT0}, v{vT0}")
    a(f"v_and_b32 v{vT1}, 7, v{vL15}")
    a(f"v_xor_b32 v{vT0}, v{vT0}, v{vT1}")
    a(f"v_lshlrev_b32 v{vT0}, 4, v{vT0}")
    a(f"v_lshl_add_u32 v{vT0}, v{vL15}, 7, v{vT0}")
    a(f"v_and_b32 v{vT1}, 1, v{vQ}")
    a(f"v_lshl_add_u32 v{vT0}, v{vT1}, 3, v{vT0}")
    a(f"v_add_u32 v{vT0}, {OT}, v{vT0}")
    for t in range(4):
        a(f"ds_write_b64 v{vT0}, {V(src+2*t,2)} offset:{2048*t}")
    a(f"v_lshlrev_b32 v{vT1}, 4, v{vTID}")
    a(f"v_add_u32 v{vT1}, {OT}, v{vT1}")
    a(f"v_lshrrev_b32 v{vT2}, 3, v{vTID}")
    a(f"v_xor_b32 v{vT0}, v{vTID}, v{vT2}")
    a(f"v_and_b32 v{vT0}, 7, v{vT0}")
    a(f"v_lshlrev_b32 v{vT0}, 4, v{vT0}")
    a(f"v_lshl_add_u32 v{vT0}, v{vT2}, 10, v{vT0}")
    a("s_waitcnt lgkmcnt(0)")
    barrier()
    a(f"ds_read_b128 {V(tmp,4)}, v{vT1}")
    a(f"ds_read_b128 {V(tmp+4,4)}, v{vT1} offset:4096")
    a("s_waitcnt lgkmcnt(0)")

a.raw("; @launch grid=(256,1,1) block=(256,1,1) lds=163840")
a.raw('.amdgcn_target "amdgcn-amd-amdhsa--gfx950"\n.text')
a.raw(kernel_header(NAME))
a(f"s_cmp_ge_u32 s{sB}, 256")
a("s_cbranch_scc1 L_end")
a("s_load_dwordx16 s[76:91], s[0:1], 0")
a("s_load_dwordx8 s[92:99], s[0:1], 64")
a(f"v_and_b32 v{vLANE}, 63, v{vTID}")
a(f"v_lshrrev_b32 v{vT0}, 6, v{vTID}")
a(f"v_and_b32 v{vL15}, 15, v{vTID}")
a(f"v_readfirstlane_b32 s{sW}, v{vT0}")
a(f"v_bfe_u32 v{vQ}, v{vTID}, 4, 2")
a(f"v_lshlrev_b32 v{vA0}, 4, v{vLANE}")
a(f"v_lshrrev_b32 v{vT0}, 2, v{vL15}")
a(f"v_and_b32 v{vT0}, 2, v{vT0}")
a(f"v_xor_b32 v{vT0}, v{vT0}, v{vQ}")
a(f"v_lshlrev_b32 v{vFR}, 6, v{vL15}")
a(f"v_lshl_add_u32 v{vFR}, v{vT0}, 4, v{vFR}")
a(f"v_add_u32 v{vA1}, 40960, v{vFR}")
a(f"v_lshlrev_b32 v{vL128}, 7, v{vLANE}")
a(f"v_and_b32 v{vL128}, 0xfff, v{vL128}")
a(f"s_and_b32 s{sT0}, s{sB}, 7")
a(f"s_lshr_b32 s{sT1}, s{sB}, 3")
a(f"s_lshr_b32 s{sT2}, s{sT1}, 3")
a(f"s_lshl_b32 s{sG}, s{sT0}, 2")
a(f"s_add_u32 s{sG}, s{sG}, s{sT2}")
a(f"s_and_b32 s{sJ}, s{sT1}, 7")
a(f"s_lshl_b32 s{sKK0}, s{sT2}, 2")
a(f"s_lshl_b32 s{sT2}, s{sJ}, 1")
a(f"s_add_u32 s{sKK0}, s{sKK0}, s{sT2}")
a(f"s_lshr_b32 s{sT2}, s{sT0}, 1")
a(f"s_add_u32 s{sKK0}, s{sKK0}, s{sT2}")
a(f"s_and_b32 s{sKK0}, s{sKK0}, 15")
a(f"s_lshl_b32 s{sL}, s{sG}, 3")
a(f"s_add_u32 s{sL}, s{sL}, s{sJ}")
a(f"s_lshl_b32 s{sW1K}, s{sW}, 10")
a(f"s_lshl_b32 s{sW16K}, s{sW}, 14")
a(f"s_mul_i32 s{sW5K}, s{sW}, 5120")
a(f"s_lshl_b32 s{sMB}, s{sL}, {MB_SH}")
a(f"s_add_u32 s{sMB}, s{sMB}, {MB_OFF}")
a(f"s_lshl_b32 s{sTILE}, s{sG}, 16")
a(f"s_lshl_b32 s{sT1}, s{sJ}, 7")
a(f"s_add_u32 s{sTILE}, s{sTILE}, s{sT1}")
a(f"v_add_u32 v{vS0}, s{sW1K}, v{vFR}")
a(f"v_add_u32 v{vS0}, 1024, v{vS0}")
a(f"v_add_u32 v{vS1}, 40960, v{vS0}")
a(f"v_add_u32 v{vSH}, s{sW5K}, v{vFR}")
a(f"v_lshrrev_b32 v{vT1}, 5, v{vLANE}")
a(f"v_lshlrev_b32 v{vTR}, 10, v{vT1}")
a(f"v_bfe_u32 v{vT0}, v{vLANE}, 2, 3")
a(f"v_lshl_add_u32 v{vTR}, v{vT0}, 7, v{vTR}")
a(f"v_lshrrev_b32 v{vT0}, 1, v{vT0}")
a(f"v_xor_b32 v{vT0}, s{sW}, v{vT0}")
a(f"v_lshl_add_u32 v{vTR}, v{vT0}, 5, v{vTR}")
a(f"v_and_b32 v{vT0}, 3, v{vLANE}")
a(f"v_lshl_add_u32 v{vTR}, v{vT0}, 3, v{vTR}")
a(f"v_lshl_add_u32 v{vTRW0}, v{vT1}, 11, v{vTR}")
a(f"v_add_u32 v{vTRW1}, {WRING + 36864}, v{vTRW0}")
a(f"v_add_u32 v{vTRW0}, {WRING}, v{vTRW0}")
a(f"v_lshrrev_b32 v{vT0}, 2, v{vLANE}")
a(f"v_lshlrev_b32 v{vXD}, 10, v{vT0}")
a(f"v_lshrrev_b32 v{vT1}, 4, v{vLANE}")
a(f"v_and_b32 v{vT1}, 2, v{vT1}")
a(f"v_and_b32 v{vT0}, 3, v{vLANE}")
a(f"v_xor_b32 v{vT0}, v{vT0}, v{vT1}")
a(f"v_lshl_add_u32 v{vXD}, v{vT0}, 4, v{vXD}")
a(f"s_lshl_b32 s{sT0}, s{sG}, 16")
a(f"v_add_u32 v{vXD}, s{sT0}, v{vXD}")
a(f"v_add_u32 v{vXDH}, {-16384 & 0xffffffff}, v{vXD}")
a(f"v_add_u32 v{vXDW}, s{sW16K}, v{vXD}")
a(f"v_bfe_u32 v{vT0}, v{vLANE}, 3, 2")
a(f"v_lshrrev_b32 v{vT1}, 5, v{vLANE}")
a(f"v_lshl_add_u32 v{vT0}, v{vT1}, 3, v{vT0}")
a(f"s_and_b32 s{sT0}, s{sW}, 1")
a(f"s_lshl_b32 s{sT0}, s{sT0}, 4")
a(f"s_lshr_b32 s{sT1}, s{sW}, 1")
a(f"s_lshl_b32 s{sT1}, s{sT1}, 2")
a(f"s_add_u32 s{sT0}, s{sT0}, s{sT1}")
a(f"v_add_u32 v{vT0}, s{sT0}, v{vT0}")
a(f"v_lshrrev_b32 v{vT1}, 4, v{vLANE}")
a(f"v_lshlrev_b32 v{vT1}, 1, v{vT1}")
a(f"v_and_b32 v{vT2}, 7, v{vLANE}")
a(f"v_xor_b32 v{vT1}, v{vT1}, v{vT2}")
a(f"v_lshlrev_b32 v{vT1}, 4, v{vT1}")
a(f"s_lshl_b32 s{sT0}, s{sJ}, 7")
a(f"v_add_u32 v{vT1}, s{sT0}, v{vT1}")
a(f"v_lshl_add_u32 v{vWOD}, v{vT0}, 10, v{vT1}")
a(f"v_mul_u32_u24 v{vWD}, 3072, v{vT0}")
a(f"v_add_u32 v{vWD}, v{vWD}, v{vT1}")
a(f"v_and_b32 v{vT0}, 1, v{vLANE}")
a(f"v_cmp_eq_u32 {PARM}, 1, v{vT0}")
a(f"v_lshl_add_u32 v{vT1}, v{vQ}, 2, v{vT0}")
a(f"v_cmp_le_u32 {MC[0]}, v{vT1}, v{vL15}")
a(f"v_add_u32 v{vT1}, 2, v{vT1}")
a(f"v_cmp_le_u32 {MC[1]}, v{vT1}, v{vL15}")
for i in range(4):
    a(f"v_mov_b32 v{vONE+i}, 0x3f803f80")
a("s_waitcnt lgkmcnt(0)")
P = lambda i: 76 + 2 * i
srd(a, SX, P(0), 2048 * 1024)
srd(a, SWQ, P(1), 512 * 3072)
srd(a, SWO, P(2), 512 * 1024)
srd(a, SK_, P(4), 2048 * 1024)
srd(a, SV_, P(5), 2048 * 1024)
srd(a, SSK, P(6), 4096)
srd(a, SH, P(7), 512 * 4096)
srd(a, SOUT, P(9), 2048 * 1024)
srd(a, SDBG, P(10), 256)
srd(a, SWS, P(11), 1 << 28)
srd(a, SX2, P(11), 2048 * 1024, off=X2_OFF)
a(f"s_lshl_b32 s{sT0}, s{sL}, 2")
a(f"s_load_dword s{sD}, {S2(P(8))}, s{sT0}")
a("s_waitcnt lgkmcnt(0)") if PROF else None
a(f"s_mul_i32 s{sT3}, s{sW}, 3072")
a(f"s_lshl_b32 s{sT4}, s{sW}, 6")

def k_reset(): a(f"s_lshl_b32 s{sXo}, s{sKK0}, 6")
def k_next():
    a(f"s_add_u32 s{sXo}, s{sXo}, 64")
    a(f"s_and_b32 s{sXo}, s{sXo}, 1023")
def dma_x_groups(s, srd_):
    sc = " sc1" if srd_ == SX2 else ""
    def g1():
        a(f"s_add_u32 m0, s{sW1K}, {XIMG + (s*5+1)*1024}")
        a(f"buffer_load_dwordx4 v{vXDW}, {S4(srd_)}, s{sXo} offen{sc} lds"); vm.issue(("x", s))
    def g2():
        a(f"s_add_u32 s{sB0}, s{sXo}, s{sW64}")
        a(f"s_and_b32 s{sB0}, s{sB0}, 1023")
        a(f"s_add_u32 m0, s{sW5K}, {XIMG + s*5*1024}")
        a(f"buffer_load_dwordx4 v{vXDH}, {S4(srd_)}, s{sB0} offen{sc} lds"); vm.issue(("h", s // 4))
    return [g1, g2] if s % 4 == 0 else [g1]
def dma_w_groups(s):
    def g():
        a(f"s_mul_i32 s{sB1}, s{sXo}, 1536")
        a(f"s_add_u32 m0, s{sW3K}, {WRING + (s % NSLOT)*12288}")
        for p in range(3):
            a(f"buffer_load_dwordx4 v{vWD}, {S4(SWQ)}, s{sB1} offen offset:{1024*p} lds"); vm.issue(("w", s))
    return [g]
def wo_group(i):
    def g():
        a(f"s_lshl_b32 s{sB1}, s{sXo}, 9")
        a(f"s_add_u32 m0, s{sW1K}, {WOIMG + i*4096}")
        a(f"buffer_load_dwordx4 v{vWOD}, {S4(SWO)}, s{sB1} offen lds"); vm.issue("wo")
        k_next()
    return g
def h_group():
    a(f"v_lshlrev_b32 v{vT0}, 4, v{vTID}")
    a(f"s_lshl_b32 s{sB0}, s{sL}, 13")
    for c in range(2):
        if c: a(f"s_add_u32 s{sB0}, s{sB0}, 4096")
        a(f"buffer_load_dwordx4 {V(yH+8*c,4)}, v{vT0}, {S4(SH)}, s{sB0} offen"); vm.issue("h")
        a(f"buffer_load_dword v{yH+8*c+4}, v{vT0}, {S4(SH)}, s{sB0} offen offset:16"); vm.issue("h")
yK, yV, ySK, yA = 144, 164, 172, 188
def y1_loads():
    a.comment("Y1 loads: thread -> c8 = tid&7 (8 channels), rp = tid>>3 (row pair)")
    a(f"v_and_b32 v{vT0}, 7, v{vTID}")
    a(f"v_lshrrev_b32 v{vT1}, 3, v{vTID}")
    a(f"v_lshlrev_b32 v{vT2}, 11, v{vT1}")
    a(f"v_lshl_add_u32 v{vT2}, v{vT0}, 4, v{vT2}")
    a(f"v_add_u32 v{vT2}, s{sTILE}, v{vT2}")
    for i in range(5): a(f"v_add_u32 v{yA+i}, {(i-3)*1024}, v{vT2}")
    a(f"s_lshl_b32 s{sT1}, s{sJ}, 9")
    a(f"v_lshlrev_b32 v{yA+5}, 6, v{vT0}")
    for i in range(5):
        a(f"buffer_load_dwordx4 {V(yK+4*i,4)}, v{yA+i}, {S4(SK_)}, 0 offen"); vm.issue("y1")
    for i in range(2):
        a(f"buffer_load_dwordx4 {V(yV+4*i,4)}, v{yA+3+i}, {S4(SV_)}, 0 offen"); vm.issue("y1")
    for i in range(4):
        a(f"buffer_load_dwordx4 {V(ySK+4*i,4)}, v{yA+5}, {S4(SSK)}, s{sT1} offen offset:{16*i}"); vm.issue("y1")
def y1_compute():
    a.comment("Y1 compute")
    vm.wait("y1")
    R, TP, VVv, K0, K1 = 240, 188, 250, 254, 212
    yO = lambda i: yK + (i >> 1) + 4 * (i & 1)
    for m in range(4):
        for i in range(5):
            a(f"v_lshlrev_b32 v{R+2*i}, 16, v{yK+4*i+m}")
            a(f"v_and_b32 v{R+2*i+1}, 0xffff0000, v{yK+4*i+m}")
        for c in range(2):
            a(f"v_lshlrev_b32 v{TP+0+c}, 16, v{ySK+4*m+2*c}")
            a(f"v_and_b32 v{TP+2+c}, 0xffff0000, v{ySK+4*m+2*c}")
            a(f"v_lshlrev_b32 v{TP+4+c}, 16, v{ySK+4*m+2*c+1}")
            a(f"v_and_b32 v{TP+6+c}, 0xffff0000, v{ySK+4*m+2*c+1}")
        for i in range(2):
            a(f"v_lshlrev_b32 v{VVv+2*i}, 16, v{yV+4*i+m}")
            a(f"v_and_b32 v{VVv+2*i+1}, 0xffff0000, v{yV+4*i+m}")
        for (Kx, r0) in ((K0, 0), (K1, 1)): a(f"v_pk_mul_f32 {V(Kx,2)}, {V(R+2*r0,2)}, {V(TP+6,2)}")
        for d in (1, 2, 3):
            for (Kx, r0) in ((K0, 0), (K1, 1)):
                a(f"v_pk_fma_f32 {V(Kx,2)}, {V(R+2*(r0+d),2)}, {V(TP+6-2*d,2)}, {V(Kx,2)}")
        for Kx in (K0, K1):
            a(f"v_cvt_pk_bf16_f32 v{Kx+1}, v{Kx}, v{Kx+1}")
            a(f"v_lshlrev_b32 v{Kx}, 16, v{Kx+1}")
            a(f"v_and_b32 v{Kx+1}, 0xffff0000, v{Kx+1}")
        a(f"v_pk_mul_f32 {V(K0,2)}, {V(K0,2)}, {V(VVv,2)}")
        a(f"v_pk_mul_f32 {V(K1,2)}, {V(K1,2)}, {V(VVv+2,2)}")
        a(f"v_cvt_pk_bf16_f32 v{yO(2*m)}, v{K1}, v{K0}")
        a(f"v_cvt_pk_bf16_f32 v{yO(2*m+1)}, v{K1+1}, v{K0+1}")
    a(f"v_and_b32 v{vT0}, 7, v{vTID}")
    a(f"v_lshrrev_b32 v{vT1}, 3, v{vTID}")
    a(f"v_sub_u32 v{vT1}, 31, v{vT1}")
    a(f"v_lshlrev_b32 v{vT2}, 2, v{vT0}")
    a(f"v_xor_b32 v{vT1}, v{vT1}, v{vT2}")
    a(f"v_lshlrev_b32 v{vT1}, 2, v{vT1}")
    a(f"v_lshl_add_u32 v{vT1}, v{vT0}, 10, v{vT1}")
    a(f"v_add_u32 v{vT1}, {Y1T}, v{vT1}")
    for i in range(8): a(f"ds_write_b32 v{vT1}, v{yO(i)} offset:{128*i}")
    a(f"v_lshrrev_b32 v{vT0}, 3, v{vTID}")
    a(f"v_and_b32 v{vT1}, 7, v{vTID}")
    a(f"v_lshrrev_b32 v{vT2}, 3, v{vT0}")
    a(f"v_xor_b32 v{TP}, v{vT1}, v{vT2}")
    a(f"v_lshlrev_b32 v{TP}, 4, v{TP}")
    a(f"v_lshl_add_u32 v{TP}, v{vT0}, 7, v{TP}")
    a(f"v_add_u32 v{TP}, {Y1T}, v{TP}")
    a(f"v_xor_b32 v{TP+1}, 64, v{TP}")
    a(f"v_lshlrev_b32 v{TP+2}, 12, v{vT0}")
    a(f"v_lshl_add_u32 v{TP+2}, v{vT1}, 4, v{TP+2}")
    a(f"s_lshl_b32 s{sT0}, s{sJ}, 18")
    a(f"s_lshl_b32 s{sT1}, s{sG}, 7")
    a(f"s_sub_u32 s{sT0}, s{sT0}, s{sT1}")
    a(f"s_add_u32 s{sT0}, s{sT0}, {KVT_OFF + 3968}")
    a(f"s_add_u32 s{sT1}, s{sT0}, {32*4096}")
    a("s_waitcnt lgkmcnt(0)")
    barrier()
    a(f"ds_read_b128 {V(yV,4)}, v{TP}")
    a(f"ds_read_b128 {V(yV+4,4)}, v{TP+1} offset:4096")
    a("s_waitcnt lgkmcnt(0)")
    a(f"buffer_store_dwordx4 {V(yV,4)}, v{TP+2}, {S4(SWS)}, s{sT0} offen sc1"); vm.issue("y1st")
    a(f"buffer_store_dwordx4 {V(yV+4,4)}, v{TP+2}, {S4(SWS)}, s{sT1} offen sc1"); vm.issue("y1st")
    prof("y1done")
S1SIG = f"""s_lshl_b32 s{sT0}, s{sJ}, 5
v_add_u32 v{vT1}, s{sT0}, v{vLANE}
v_lshlrev_b32 v{vT1}, {MB_SH}, v{vT1}
s_lshl_b32 s{sT0}, s{sG}, 7
s_add_u32 s{sT0}, s{sT0}, {MB_OFF + MB_S1}
v_add_u32 v{vT1}, s{sT0}, v{vT1}"""
def o_groups(ooff):
    def mk(s):
        def g():
            if s == 0: k_reset()
            a(f"s_add_u32 s{sB1}, s{sXo}, {ooff}")
            a(f"s_add_u32 m0, s{sW1K}, {OIMG + s*4096}")
            a(f"buffer_load_dwordx4 v{vXDW}, {S4(SWS)}, s{sB1} offen sc1 lds"); vm.issue(("o", s // 4))
            k_next()
        return g
    return [mk(s) for s in range(16)]

a(f"s_mov_b32 s{sW3K}, s{sT3}")
a(f"s_mov_b32 s{sW64}, s{sT4}")
prof("start")
DEPTH = NSLOT - 1
k_reset()
for s in range(DEPTH):
    for g in dma_x_groups(s, SX) + dma_w_groups(s): g()
    k_next()
a(f"s_or_b32 s{sT2}, s{sL}, s{sW}")
a(f"s_cmp_lg_u32 s{sT2}, 0")
a("s_cbranch_scc1 L_nonce_done")
a(f"s_memrealtime {S2(sN)}")
a("s_waitcnt lgkmcnt(0)")
a(f"s_or_b32 s{sN+1}, s{sN+1}, 0x80000000")
a(f"s_andn2_b32 s{sN}, s{sN}, 1")
a(f"v_mov_b32 v{vP0}, s{sN}")
a(f"v_mov_b32 v{vP0+1}, s{sN+1}")
a(f"v_mov_b32 v{vT0}, 0")
a("s_mov_b64 exec, 1")
a(f"buffer_store_dwordx2 {V(vP0,2)}, v{vT0}, {S4(SDBG)}, 0 offen sc1")
a("s_mov_b64 exec, -1")
a.flush()
a.label("L_nonce_done")

def x_reads(s, buf):
    out = []
    base, off = (vFR, s*5*1024) if s < 8 else (vA1, (s-8)*5*1024)
    for t in range(5):
        out.append(ldsg(f"ds_read_b128 {V(vXA+20*buf+4*t,4)}, v{base} offset:{XIMG + off + t*1024}", ("xa", s)))
    base, off = (vS0, s*5120) if s < 8 else (vS1, (s-8)*5120)
    out.append(ldsg(f"ds_read_b128 {V(vSO+4*buf,4)}, v{base} offset:{XIMG + off}", ("xa", s)))
    if s % 4 == 3:
        out.append(ldsg(f"ds_read_b128 {V(vSHF,4)}, v{vSH} offset:{XIMG + (s//4)*20480}", ("xa", s)))
    return out

def mfmas(s, buf, with_cs, early=(), spread=()):
    first = (s == 0)
    def C(r): return "0" if first else V(r, 4)
    wq, wk, wv = A(12*s, 4), A(12*s+4, 4), A(12*s+8, 4)
    xa = lambda t: V(vXA + 20*buf + 4*t, 4)
    M = "v_mfma_f32_16x16x32_bf16"
    seq = []
    for t in range(5):
        seq.append(f"{M} {V(vKT+4*t,4)}, {wk}, {xa(t)}, {C(vKT+4*t)}")
        seq.append(f"{M} {V(vVV+4*t,4)}, {xa(t)}, {wv}, {C(vVV+4*t)}")
        if t: seq.append(f"{M} {V(vQT+4*(t-1),4)}, {wq}, {xa(t)}, {C(vQT+4*(t-1))}")
    if with_cs:
        seq.append(f"{M} {V(vCS,4)}, {wq}, {V(vONE,4)}, {C(vCS)}")
        seq.append(f"{M} {V(vCS+4,4)}, {wk}, {V(vONE,4)}, {C(vCS+4)}")
        seq.append(f"{M} {V(vCS+8,4)}, {V(vONE,4)}, {wv}, {C(vCS+8)}")
    so = V(vSO + 4*buf, 4)
    seq.append(f"{M} {V(vST,4)}, {V(vONE,4)}, {so}, {C(vST)}")
    seq.append(f"{M} {V(vST+4,4)}, {so}, {so}, {C(vST+4)}")
    if s % 4 == 3:
        c0 = "0" if s == 3 else None
        seq.append(f"{M} {V(vST+8,4)}, {V(vONE,4)}, {V(vSHF,4)}, {c0 or V(vST+8,4)}")
        seq.append(f"{M} {V(vST+12,4)}, {V(vSHF,4)}, {V(vSHF,4)}, {c0 or V(vST+12,4)}")
    a.weave(seq, list(early), list(spread))

Y1LD, Y1AT, S1AT = ENV("Y1LD", -1), ENV("Y1AT", 5), ENV("S1AT", 11)
if Y1LD < 0: y1_loads()
for s in range(16):
    vm.wait(("x", s), ("w", s), ("h", s // 4))
    if s == S1AT: vm.wait("y1st", "nonce")
    barrier()
    fl = (dma_x_groups(s + DEPTH, SX) + dma_w_groups(s + DEPTH) + [k_next]) if s + DEPTH < 16 else []
    if s == 0:
        for g in fl: g()
    if s == 3:
        a(f"v_mov_b32 v{vT0}, 0")
        a(f"buffer_load_dwordx2 {V(vNL,2)}, v{vT0}, {S4(SDBG)}, 0 offen sc1"); vm.issue("nonce")
    if s == S1AT:
        a(f"v_readfirstlane_b32 s{sN}, v{vNL}")
        a(f"v_readfirstlane_b32 s{sN+1}, v{vNL+1}")
        a(f"s_cmp_eq_u32 s{sN+1}, 0")
        a("s_cbranch_scc1 L_s1_defer")
        signal(32, S1SIG)
        a.label("L_s1_defer")
    if s in (11, 12, 13): fl = [wo_group(4*(s-11) + i) for i in range(4)]
    if s == 13: fl.append(h_group)
    if s == 14: fl = [wo_group(12 + i) for i in range(3)]
    rd = x_reads(s, s & 1)
    for p in range(3):
        for h in range(2):
            off = (s % NSLOT) * 12288 + p * 1024 + h * 6144
            rd.append(ldsg(f"ds_read_b64_tr_b16 {A(12*s+4*p+2*h,2)}, v{vTRW0 if off < 36864 else vTRW1} offset:{off % 36864}", ("xa", s)))
    if s > 0: mfmas(s - 1, (s - 1) & 1, True, rd, fl)
    else:
        for g in rd: g()
    lg.drain()
    if s == Y1LD: y1_loads()
    if s == Y1AT: y1_compute()
barrier()
wo_group(15)()
mfmas(15, 1, True)
prof("p1gemm")
a(f"s_cmp_lg_u32 s{sN+1}, 0")
a("s_cbranch_scc1 L_nonce_ok")
a(f"v_mov_b32 v{vT0}, 0")
a.flush()
a.label("L_nonce_chk")
a(f"buffer_load_dwordx2 {V(vNL,2)}, v{vT0}, {S4(SDBG)}, 0 offen sc1")
a("s_waitcnt vmcnt(0)")
a(f"v_readfirstlane_b32 s{sN}, v{vNL}")
a(f"v_readfirstlane_b32 s{sN+1}, v{vNL+1}")
a(f"s_cmp_eq_u32 s{sN+1}, 0")
a("s_cbranch_scc1 L_nonce_chk")
signal(32, S1SIG)
a.label("L_nonce_ok")

def attention(ph, ooff, sig):
    T = 84
    prof(f"a{ph}_begin")
    a(f"v_lshlrev_b32 v{vT0}, 3, v{vL15}")
    a(f"s_lshl_b32 s{sT0}, s{sW}, 7")
    a(f"v_add_u32 v{vT0}, s{sT0}, v{vT0}")
    a(f"v_add_u32 v{vT0}, {MISC}, v{vT0}")
    for i, m in ((1, 0x22222222), (2, 0x44444444), (3, 0x88888888)):
        a(f"s_mov_b32 s{sEX}, {hex(m)}")
        a(f"s_mov_b32 s{sEX+1}, {hex(m)}")
        for base in (vST, vST + 8):
            a(f"v_cndmask_b32 v{base+1}, v{base+4 if i == 1 else base+1}, v{base+4+i}, {S2(sEX)}")
    e = a.bg_pause()
    a("s_mov_b32 exec_lo, 0x00f0000f")
    a("s_mov_b32 exec_hi, 0xf0000f00")
    a(f"ds_write_b64 v{vT0}, {V(vST,2)}")
    a(f"ds_write_b64 v{vT0}, {V(vST+8,2)} offset:512")
    a("s_mov_b64 exec, -1")
    a.bg_resume(e)
    a(f"v_lshlrev_b32 v{vT0}, 3, v{vLANE}")
    a(f"v_add_u32 v{vT0}, {MISC}, v{vT0}")
    a(f"v_lshlrev_b32 v{vT1}, 3, v{vL15}")
    a(f"v_add_u32 v{vT1}, {MISC}, v{vT1}")
    a("s_waitcnt lgkmcnt(0)")
    barrier()
    a(f"ds_read_b64 {V(T,2)}, v{vT0}")
    for i in range(4):
        a(f"ds_read_b64 {V(T+2+2*i,2)}, v{vT1} offset:{512 + 128*i}")
    a(f"s_mul_i32 s{sT0}, s{sW}, 640")
    a(f"s_add_u32 s{sT0}, s{sT0}, {ABW}")
    a(f"v_lshl_add_u32 v{vT0}, v{vLANE}, 2, s{sT0}")
    a(f"v_lshl_add_u32 v{vT1}, v{vL15}, 2, s{sT0}")
    a(f"v_lshl_add_u32 v{vT2}, v{vQ}, 4, s{sT0}")
    a("s_waitcnt lgkmcnt(0)")
    a(f"v_pk_add_f32 {V(T+2,2)}, {V(T+2,2)}, {V(T+4,2)}")
    a(f"v_pk_add_f32 {V(T+6,2)}, {V(T+6,2)}, {V(T+8,2)}")
    a(f"v_pk_add_f32 {V(T+2,2)}, {V(T+2,2)}, {V(T+6,2)}")
    ln_math([(T, T+1, T+10, T+11, T+12, T+13), (T+2, T+3, T+14, T+15, T+16, T+17)])
    a(f"ds_write2_b32 v{vT0}, v{T+10}, v{T+11} offset0:16 offset1:96")
    a(f"ds_write2_b32 v{vT1}, v{T+14}, v{T+15} offset0:0 offset1:80")
    a("s_waitcnt lgkmcnt(0)")
    vAB, vAV = 84, 94
    for t in range(5):
        a(f"ds_read2_b32 {V(vAB+2*t,2)}, v{vT1} offset0:{16*t} offset1:{80+16*t}")
    for t in range(5):
        a(f"ds_read_b128 {V(vAV+8*t,4)}, v{vT2} offset:{64*t}")
        a(f"ds_read_b128 {V(vAV+8*t+4,4)}, v{vT2} offset:{320+64*t}")
    a("s_waitcnt lgkmcnt(10)")
    vQb, vKb, vVb, vU = 160, 168, 178, 188
    def norm_qk(acc, cs, t, dst):
        ab = V(vAB + 2*t, 2)
        for h in range(2):
            a(f"v_pk_mul_f32 {V(vU+2*h,2)}, {V(cs+2*h,2)}, {ab} op_sel:[0,1] op_sel_hi:[1,1]")
            a(f"v_pk_fma_f32 {V(vU+2*h,2)}, {V(acc+2*h,2)}, {ab}, {V(vU+2*h,2)} op_sel:[0,0,0] op_sel_hi:[1,0,1]")
        for h in range(2):
            a(f"v_cvt_pk_bf16_f32 v{dst+h}, v{vU+2*h}, v{vU+2*h+1}")
    for t in range(5):
        norm_qk(vKT + 4*t, vCS + 4, t, vKb + 2*t)
        if t: norm_qk(vQT + 4*(t-1), vCS, t, vQb + 2*(t-1))
    vSc, vSp = 16, 32
    for t in range(1, 5):
        a(f"v_mfma_f32_16x16x16_bf16 {V(vSc+4*(t-1),4)}, {V(vKb+2*t,2)}, {V(vQb+2*(t-1),2)}, 0")
        a(f"v_mfma_f32_16x16x16_bf16 {V(vSp+4*(t-1),4)}, {V(vKb+2*(t-1),2)}, {V(vQb+2*(t-1),2)}, 0")
    a("s_waitcnt lgkmcnt(0)")
    for t in range(5):
        for h in range(2):
            a(f"v_pk_mul_f32 {V(vU+4+2*h,2)}, {V(vAV+8*t+4+2*h,2)}, {V(vCS+8,2)} op_sel:[0,0] op_sel_hi:[1,0]")
            a(f"v_pk_fma_f32 {V(vU+4+2*h,2)}, {V(vVV+4*t+2*h,2)}, {V(vAV+8*t+2*h,2)}, {V(vU+4+2*h,2)}")
        for h in range(2):
            a(f"v_cvt_pk_bf16_f32 v{vVb+2*t+h}, v{vU+4+2*h}, v{vU+4+2*h+1}")
    prof(f"a{ph}_norm")
    e = a.bg_pause()
    Ln = a.newlabel("L_nomask")
    a(f"s_cmp_lg_u32 s{sG}, 0")
    a(f"s_cbranch_scc1 {Ln}")
    a.flush()
    for i in range(4): a(f"v_mov_b32 v{vSp+i}, 0xf149f2ca")
    a.flush()
    a.label(Ln)
    a.bg_resume(e)
    vLg, vMx, vTm = 48, 56, 60
    for t in range(4):
        for i in range(2):
            a(f"v_cndmask_b32 v{vSc+4*t+2*i}, v{vSc+4*t+2*i}, v{vSc+4*t+2*i+1}, {PARM}")
            a(f"v_cndmask_b32 v{vSp+4*t+2*i}, v{vSp+4*t+2*i}, v{vSp+4*t+2*i+1}, {PARM}")
            a(f"v_cndmask_b32 v{vLg+2*t+i}, v{vSp+4*t+2*i}, v{vSc+4*t+2*i}, {MC[i]}")
        a(f"v_cvt_pk_bf16_f32 v{vLg+2*t+1}, v{vLg+2*t}, v{vLg+2*t+1}")
        a(f"v_lshlrev_b32 v{vLg+2*t}, 16, v{vLg+2*t+1}")
        a(f"v_and_b32 v{vLg+2*t+1}, 0xffff0000, v{vLg+2*t+1}")
        a(f"v_max_f32 v{vMx+t}, v{vLg+2*t}, v{vLg+2*t+1}")
    allreduce("v_max_f32", [vMx+t for t in range(4)], [vTm+t for t in range(4)])
    a(f"s_mov_b32 s{sT0}, 0x3eb8aa3b")
    for t in range(4):
        for i in range(2): a(f"v_sub_f32 v{vLg+2*t+i}, v{vLg+2*t+i}, v{vMx+t}")
    for t in range(4):
        for i in range(2): a(f"v_mul_f32 v{vLg+2*t+i}, s{sT0}, v{vLg+2*t+i}")
    for t in range(4):
        for i in range(2): a(f"v_exp_f32 v{vLg+2*t+i}, v{vLg+2*t+i}")
    for t in range(4): a(f"v_add_f32 v{vMx+t}, v{vLg+2*t}, v{vLg+2*t+1}")
    allreduce("v_add_f32", [vMx+t for t in range(4)], [vTm+t for t in range(4)])
    vPc, vPp = 16, 24
    for t in range(4): a(f"v_rcp_f32 v{vMx+t}, v{vMx+t}")
    for t in range(4):
        a(f"v_cndmask_b32 v{vTm}, v{vMx+t}, 0, {PARM}")
        a(f"v_cndmask_b32 v{vTm+1}, 0, v{vMx+t}, {PARM}")
        for i in range(2):
            a(f"v_mul_f32 v{vTm+2}, v{vLg+2*t+i}, v{vTm}")
            a(f"v_mul_f32 v{vTm+3}, v{vLg+2*t+i}, v{vTm+1}")
            a(f"v_cvt_pk_bf16_f32 v{vTm+2}, v{vTm+2}, v{vTm+3}")
            a(f"v_cndmask_b32 v{vPc+2*t+i}, 0, v{vTm+2}, {MC[i]}")
            a(f"v_cndmask_b32 v{vPp+2*t+i}, v{vTm+2}, 0, {MC[i]}")
    vO = 32
    for t in range(1, 5):
        a(f"v_mfma_f32_16x16x16_bf16 {V(vO+4*(t-1),4)}, {V(vVb+2*t,2)}, {V(vPc+2*(t-1),2)}, 0")
    for t in range(1, 5):
        a(f"v_mfma_f32_16x16x16_bf16 {V(vO+4*(t-1),4)}, {V(vVb+2*(t-1),2)}, {V(vPp+2*(t-1),2)}, {V(vO+4*(t-1),4)}")
    prof(f"a{ph}_pv")
    a.bg_flush()
    if ph == 0:
        async_check(32, MB_S1, "s1")
        a(f"s_lshl_b32 s{sT0}, s{sL}, 13")
        a(f"s_lshl_b32 s{sT1}, s{sW}, 11")
        a(f"s_add_u32 s{sT0}, s{sT0}, s{sT1}")
        a(f"s_add_u32 s{sT0}, s{sT0}, {KVT_OFF}")
        a(f"s_lshr_b32 s{sT2}, s{sW}, 1")
        a(f"s_mul_i32 s{sT2}, s{sT2}, {URP - 4096}")
        a(f"s_add_u32 s{sT2}, s{sT2}, s{sT1}")
        a(f"s_add_u32 m0, s{sT2}, {UR}")
        a(f"buffer_load_dwordx4 v{vA0}, {S4(SWS)}, s{sT0} offen sc1 lds")
        a(f"buffer_load_dwordx4 v{vA0}, {S4(SWS)}, s{sT0} offen offset:1024 sc1 lds")
    vOP = 48
    for t in range(4):
        a(f"v_cvt_pk_bf16_f32 v{vOP+2*t}, v{vO+4*t}, v{vO+4*t+1}")
        a(f"v_cvt_pk_bf16_f32 v{vOP+2*t+1}, v{vO+4*t+2}, v{vO+4*t+3}")
    tile_to_lds(vOP, 56)
    a(f"s_add_u32 s{sT0}, s{sTILE}, {ooff}")
    a(f"s_add_u32 s{sT1}, s{sT0}, 32768")
    a(f"buffer_store_dwordx4 {V(56,4)}, v{vT0}, {S4(SWS)}, s{sT0} offen sc1")
    a(f"buffer_store_dwordx4 {V(60,4)}, v{vT0}, {S4(SWS)}, s{sT1} offen sc1")
    vm.drain()
    barrier()
    signal(8, group_sig(sig))
    prof(f"a{ph}_done")

def pretouch():
    mode = ENV("PRETOUCH", 2)
    a(f"s_lshl_b32 s{sB0}, s{sW}, 11")
    a(f"s_add_u32 s{sB0}, s{sB0}, s{sMB}")
    a(f"s_add_u32 s{sB0}, s{sB0}, {MB_ST}")
    if mode == 1:
        a(f"buffer_store_dwordx4 {V(vONE,4)}, v{vA0}, {S4(SWS)}, s{sB0} offen sc1"); vm.issue("pt")
        a(f"buffer_store_dwordx4 {V(vONE,4)}, v{vA0}, {S4(SWS)}, s{sB0} offen offset:1024 sc1"); vm.issue("pt")
    else:
        a(f"v_lshlrev_b32 v217, 7, v{vL15}")
        a(f"buffer_load_dword v216, v217, {S4(SWS)}, s{sB0} offen sc1"); vm.issue("pt")

a.bg_start(([pretouch] if ENV("PRETOUCH", 2) else []) + [async_poll(MB_S1)], ENV("BGEVERY", 8))
attention(0, O1_OFF, MB_S2)
if STAGE <= 1: a("s_branch L_end")

a(f"v_mov_b32 v160, 0\nv_mov_b32 v161, 0\nv_mov_b32 v162, 0\nv_mov_b32 v163, 0")
a(f"s_mov_b32 exec_lo, -1\ns_mov_b32 exec_hi, 0")
a(f"v_add_u32 v{vT2}, {UR + 4096}, v{vA0}")
a(f"ds_write_b128 v{vT2}, {V(160,4)}")
a(f"ds_write_b128 v{vT2}, {V(160,4)} offset:{URP}")
a(f"s_mov_b64 exec, 3")
a(f"v_add_u32 v{vT2}, {HC}, v{vA0}")
a(f"ds_write_b128 v{vT2}, {V(160,4)}")
a(f"ds_write_b128 v{vT2}, {V(160,4)} offset:{2*HCP}")
a(f"s_mov_b64 exec, 1")
a(f"ds_write_b128 v{vT2}, {V(160,4)} offset:{HCP}")
a(f"ds_write_b128 v{vT2}, {V(160,4)} offset:{3*HCP}")
a(f"s_mov_b64 exec, -1")
a(f"v_lshlrev_b32 v{vT0}, 4, v{vTID}")
a(f"v_add_u32 v{vT0}, {HC + 32}, v{vT0}")
a(f"v_cmp_eq_u32 vcc, 255, v{vTID}")
for c in range(2):
    b = yH + 8*c
    a(f"v_cndmask_b32 v{b+4}, v{b+4}, 0, vcc")
    a(f"ds_write_b128 v{vT0}, {V(b,4)} offset:{2*c*HCP}")
    for i in range(4): a(f"v_alignbit_b32 v{164+4*c+i}, v{b+i+1}, v{b+i}, 16")
    a(f"ds_write_b128 v{vT0}, {V(164+4*c,4)} offset:{(2*c+1)*HCP}")
a(f"v_cmp_eq_u32 vcc, 0, v{vTID}")
a(f"s_and_saveexec_b64 {S2(sEX)}, vcc")
a(f"v_mov_b32 v{vT2}, {HC}")
a(f"v_lshlrev_b32 v163, 16, v{yH}")
a(f"ds_write_b128 v{vT2}, {V(160,4)} offset:{HCP + 16}")
a(f"v_mov_b32 v172, 0\nv_mov_b32 v173, 0\nv_mov_b32 v174, 0")
a(f"v_lshlrev_b32 v175, 16, v{yH+8}")
a(f"ds_write_b128 v{vT2}, {V(172,4)} offset:{3*HCP + 16}")
a(f"s_mov_b64 exec, {S2(sEX)}")
yF, yG, yAcc, yFA, yGA = 16, 48, 84, 116, 120
a(f"v_add_u32 v{vT0}, 1, v{vL15}")
a(f"v_and_b32 v{vT0}, 30, v{vT0}")
a(f"v_lshlrev_b32 v{vT0}, 1, v{vT0}")
a(f"v_lshlrev_b32 v{vT1}, 4, v{vQ}")
a(f"v_sub_u32 v{vT0}, v{vT0}, v{vT1}")
a(f"v_mov_b32 v{vT1}, {HCP}")
a(f"v_cndmask_b32 v{vT1}, v{vT1}, 0, {PARM}")
a(f"v_add_u32 v{vT0}, v{vT0}, v{vT1}")
a(f"s_lshr_b32 s{sT0}, s{sW}, 1")
a(f"s_mul_i32 s{sT1}, s{sT0}, {2*HCP}")
a(f"s_and_b32 s{sT2}, s{sW}, 1")
a(f"s_lshl_b32 s{sT2}, s{sT2}, 8")
a(f"s_sub_u32 s{sT1}, s{sT1}, s{sT2}")
for ap in range(4):
    a(f"s_add_u32 s{sT3}, s{sT1}, {HC + 4080 - 512*(2*ap+1) - 192}")
    a(f"v_add_u32 v{yFA+ap}, s{sT3}, v{vT0}")
a(f"v_lshlrev_b32 v{vT0}, 5, v{vL15}")
a(f"v_lshl_add_u32 v{vT0}, v{vQ}, 4, v{vT0}")
a(f"s_mul_i32 s{sT1}, s{sT0}, {URP}")
a(f"s_sub_u32 s{sT1}, s{sT1}, s{sT2}")
a(f"s_add_u32 s{sT1}, s{sT1}, {UR + 8144 - 512*14 - 192}")
a(f"v_sub_u32 v{yGA}, s{sT1}, v{vT0}")
a("s_waitcnt lgkmcnt(0)")
barrier()
prof("y2start")
vm.reset()
vRA = 122
def res_loads():
    a(f"v_lshlrev_b32 v{vRA}, 10, v{vL15}")
    a(f"v_lshl_add_u32 v{vRA}, v{vQ}, 3, v{vRA}")
    a(f"s_lshl_b32 s{sB1}, s{sW}, 5")
    a(f"s_add_u32 s{sB1}, s{sB1}, s{sTILE}")
    for t in range(4):
        if t: a(f"s_add_u32 s{sB1}, s{sB1}, 16384")
        a(f"buffer_load_dwordx2 {V(vX2+2*t,2)}, v{vRA}, {S4(SX)}, s{sB1} offen"); vm.issue("res")
YB = [(16, 48), (144, 176)]
def y2_reads(rr):
    F, G = YB[rr & 1]
    out = []
    for aa in range(8):
        ap, hi = aa // 2, aa % 2
        off = ((1 - hi) * 512 + (3 - rr) * 64) // 4
        out.append(ldsg(f"ds_read2_b32 {V(F+4*aa,2)}, v{yFA+ap} offset0:{off} offset1:{off+1}", ("y", rr)))
        out.append(ldsg(f"ds_read2_b32 {V(F+4*aa+2,2)}, v{yFA+ap} offset0:{off+2} offset1:{off+3}", ("y", rr)))
    for bb in range(8):
        out.append(ldsg(f"ds_read_b128 {V(G+4*bb,4)}, v{yGA} offset:{(7-bb)*512 + (3-rr)*64}", ("y", rr)))
    return out
def wo_reads(lo, hi):
    return [ldsg(f"ds_read_b64_tr_b16 {A(192+4*s+2*h,2)}, v{vTR} offset:{WOIMG + s*4096 + h*2048}", "wot")
            for s in range(lo, hi) for h in range(2)]
lg.reset()
for g in y2_reads(0): g()
OG = o_groups(O1_OFF)
for rr in range(4):
    a("s_waitcnt lgkmcnt(0)"); lg.reset()
    F, G = YB[rr & 1]
    seq = []; started = set()
    for bb in range(8):
        for aa in range(8):
            c = 7 + bb - aa
            if 0 <= c <= 7:
                first = (rr == 0 and c not in started); started.add(c)
                seq.append(f"v_mfma_f32_16x16x32_bf16 {V(yAcc+4*c,4)}, {V(F+4*aa,4)}, {V(G+4*bb,4)}, {'0' if first else V(yAcc+4*c,4)}")
    if rr == 2: async_check(8, MB_S2, "o1")
    sp = {0: [async_poll(MB_S2), res_loads], 1: [], 2: OG[:8], 3: OG[8:]}[rr]
    early = (y2_reads(rr + 1) + wo_reads(3*rr, 3*rr+3)) if rr < 3 else wo_reads(9, 16)
    a.weave(seq, early, sp)
prof("y2mfma")
a("s_waitcnt lgkmcnt(0)")
barrier()
a(f"s_lshl_b32 s{sT0}, s{sW}, 12")
a(f"s_add_u32 s{sT0}, s{sT0}, {ACCX}")
a(f"v_add_u32 v{vT0}, s{sT0}, v{vA0}")
a(f"s_xor_b32 s{sT1}, s{sW}, 1")
a(f"s_lshl_b32 s{sT1}, s{sT1}, 12")
a(f"s_add_u32 s{sT1}, s{sT1}, {ACCX}")
a(f"v_add_u32 v{vT1}, s{sT1}, v{vA0}")
a(f"s_and_b32 s{sT2}, s{sW}, 1")
a(f"s_cmp_eq_u32 s{sT2}, 0")
a("s_cbranch_scc1 L_y2_even")
a.flush()
for i in range(4):
    a(f"ds_write_b128 v{vT0}, {V(yAcc+8*i,4)} offset:{1024*i}")
    for r in range(4): a(f"v_mov_b32 v{yF+4*i+r}, v{yAcc+8*i+4+r}")
a("s_branch L_y2_x")
a.label("L_y2_even")
a.flush()
for i in range(4):
    a(f"ds_write_b128 v{vT0}, {V(yAcc+8*i+4,4)} offset:{1024*i}")
    for r in range(4): a(f"v_mov_b32 v{yF+4*i+r}, v{yAcc+8*i+r}")
a.label("L_y2_x")
a(f"v_lshlrev_b32 v{vT0}, 5, v{vL15}")
a(f"v_lshl_add_u32 v{vT0}, v{vQ}, 3, v{vT0}")
a(f"s_lshr_b32 s{sT0}, s{sW}, 1")
a(f"s_mul_i32 s{sT1}, s{sT0}, {URP}")
a(f"s_lshl_b32 s{sT3}, s{sT2}, 9")
a(f"s_sub_u32 s{sT1}, s{sT1}, s{sT3}")
a(f"s_add_u32 s{sT1}, s{sT1}, {UR + 4088 - 3*1024}")
a(f"v_sub_u32 v{vT2}, s{sT1}, v{vT0}")
for i in range(4): a(f"ds_read_b64 {V(64+2*i,2)}, v{vT2} offset:{(3-i)*1024}")
a(f"s_lshl_b32 s{sT1}, s{sD}, 16")
a(f"s_and_b32 s{sT3}, s{sD}, 0xffff0000")
a(f"s_cmp_eq_u32 s{sT0}, 0")
a(f"s_cselect_b32 s{sT1}, s{sT1}, s{sT3}")
a(f"s_lshl_b32 s{sT3}, s{sL}, 1")
a(f"s_add_u32 s{sT3}, s{sT3}, s{sT0}")
a(f"s_lshl_b32 s{sT3}, s{sT3}, 12")
a(f"s_lshl_b32 s{sT4}, s{sT2}, 9")
a(f"s_add_u32 s{sT3}, s{sT3}, s{sT4}")
a(f"s_add_u32 s{sT3}, s{sT3}, {YT_OFF}")
a("s_waitcnt lgkmcnt(0)")
barrier()
for i in range(4): a(f"ds_read_b128 {V(yG+4*i,4)}, v{vT1} offset:{1024*i}")
for i in range(4):
    k0, u = 64 + 2*i, 144 + 4*i
    a(f"v_and_b32 v{u}, 0xffff0000, v{k0+1}")
    a(f"v_lshlrev_b32 v{u+1}, 16, v{k0+1}")
    a(f"v_and_b32 v{u+2}, 0xffff0000, v{k0}")
    a(f"v_lshlrev_b32 v{u+3}, 16, v{k0}")
    for r in range(4): a(f"v_mul_f32 v{u+r}, s{sT1}, v{u+r}")
    a(f"v_cvt_pk_bf16_f32 v{u}, v{u}, v{u+1}")
    a(f"v_cvt_pk_bf16_f32 v{u+2}, v{u+2}, v{u+3}")
    a(f"v_and_b32 v{u+1}, 0xffff0000, v{u}")
    a(f"v_lshlrev_b32 v{u}, 16, v{u}")
    a(f"v_and_b32 v{u+3}, 0xffff0000, v{u+2}")
    a(f"v_lshlrev_b32 v{u+2}, 16, v{u+2}")
a("s_waitcnt lgkmcnt(0)")
for i in range(4):
    y, u = yF + 4*i, 144 + 4*i
    a(f"v_pk_add_f32 {V(y,2)}, {V(y,2)}, {V(yG+4*i,2)}")
    a(f"v_pk_add_f32 {V(y+2,2)}, {V(y+2,2)}, {V(yG+4*i+2,2)}")
    a(f"v_cvt_pk_bf16_f32 v{y}, v{y}, v{y+1}")
    a(f"v_cvt_pk_bf16_f32 v{y+2}, v{y+2}, v{y+3}")
    a(f"v_and_b32 v{y+1}, 0xffff0000, v{y}")
    a(f"v_lshlrev_b32 v{y}, 16, v{y}")
    a(f"v_and_b32 v{y+3}, 0xffff0000, v{y+2}")
    a(f"v_lshlrev_b32 v{y+2}, 16, v{y+2}")
    a(f"v_pk_add_f32 {V(y,2)}, {V(y,2)}, {V(u,2)}")
    a(f"v_pk_add_f32 {V(y+2,2)}, {V(y+2,2)}, {V(u+2,2)}")
    a(f"v_cvt_pk_bf16_f32 v{y}, v{y}, v{y+1}")
    a(f"v_cvt_pk_bf16_f32 v{y+1}, v{y+2}, v{y+3}")
    a(f"buffer_store_dwordx2 {V(y,2)}, v{vT0}, {S4(SWS)}, s{sT3} offen offset:{1024*i} sc1"); vm.issue("yst")
S3SIG = f"""s_lshr_b32 s{sT0}, s{sL}, 5
v_lshl_add_u32 v{vT1}, v{vLANE}, 3, s{sT0}
v_lshlrev_b32 v{vT1}, {MB_SH}, v{vT1}
s_and_b32 s{sT0}, s{sL}, 31
s_lshl_b32 s{sT0}, s{sT0}, 7
s_add_u32 s{sT0}, s{sT0}, {MB_OFF + MB_S3}
v_add_u32 v{vT1}, s{sT0}, v{vT1}"""
prof("y2")
if STAGE <= 2:
    vm.drain()
    a("s_branch L_end")

def p2(ph):
    vOB, vPA, vOF = 121, 16, 32
    a(f"v_add_u32 v{vOB}, {OIMG}, v{vFR}")
    def rd(s):
        return [ldsg(f"ds_read_b128 {V(vOF+16*(s&1)+4*t,4)}, v{vOB} offset:{s*4096 + t*1024}", ("of", s)) for t in range(4)]
    for s in range(16):
        if s % 4 == 0:
            vm.wait(("o", s // 4))
            if ph == 1 or s == 0: barrier()
            if ph == 1 or s == 0:
                for g in rd(s): g()
        lg.wait(("of", s))
        nxt = rd(s + 1) if (s < 15 and (ph == 0 or s % 4 != 3)) else []
        seq = [f"v_mfma_f32_16x16x32_bf16 {V(vPA+4*t,4)}, {A(192+4*s,4)}, {V(vOF+16*(s&1)+4*t,4)}, {'0' if s == 0 else V(vPA+4*t,4)}" for t in range(4)]
        a.weave(seq, nxt, [])
    prof(f"p{ph}_gemm")
    vX1, vSt, vW = 64, 72, 84
    for t in range(4):
        c = vPA + 4*t
        a(f"v_cvt_pk_bf16_f32 v{c}, v{c}, v{c+1}")
        a(f"v_cvt_pk_bf16_f32 v{c+2}, v{c+2}, v{c+3}")
        a(f"v_and_b32 v{c+1}, 0xffff0000, v{c}")
        a(f"v_lshlrev_b32 v{c}, 16, v{c}")
        a(f"v_and_b32 v{c+3}, 0xffff0000, v{c+2}")
        a(f"v_lshlrev_b32 v{c+2}, 16, v{c+2}")
        a(f"v_lshlrev_b32 v{vW}, 16, v{vX2+2*t}")
        a(f"v_and_b32 v{vW+1}, 0xffff0000, v{vX2+2*t}")
        a(f"v_lshlrev_b32 v{vW+2}, 16, v{vX2+2*t+1}")
        a(f"v_and_b32 v{vW+3}, 0xffff0000, v{vX2+2*t+1}")
        a(f"v_pk_add_f32 {V(c,2)}, {V(c,2)}, {V(vW,2)}")
        a(f"v_pk_add_f32 {V(c+2,2)}, {V(c+2,2)}, {V(vW+2,2)}")
        a(f"v_cvt_pk_bf16_f32 v{vX1+2*t}, v{c}, v{c+1}")
        a(f"v_cvt_pk_bf16_f32 v{vX1+2*t+1}, v{c+2}, v{c+3}")
        a(f"v_lshlrev_b32 v{c}, 16, v{vX1+2*t}")
        a(f"v_and_b32 v{c+1}, 0xffff0000, v{vX1+2*t}")
        a(f"v_lshlrev_b32 v{c+2}, 16, v{vX1+2*t+1}")
        a(f"v_and_b32 v{c+3}, 0xffff0000, v{vX1+2*t+1}")
        a(f"v_pk_add_f32 {V(vW,2)}, {V(c,2)}, {V(c+2,2)}")
        a(f"v_pk_mul_f32 {V(vW+2,2)}, {V(c,2)}, {V(c,2)}")
        a(f"v_pk_fma_f32 {V(vW+2,2)}, {V(c+2,2)}, {V(c+2,2)}, {V(vW+2,2)}")
        a(f"v_add_f32 v{vSt+2*t}, v{vW}, v{vW+1}")
        a(f"v_add_f32 v{vSt+2*t+1}, v{vW+2}, v{vW+3}")
    a(f"v_lshlrev_b32 v{vT0}, 9, v{vQ}")
    a(f"v_lshl_add_u32 v{vT0}, v{vL15}, 3, v{vT0}")
    a(f"s_lshl_b32 s{sT0}, s{sW}, 11")
    a(f"s_add_u32 s{sT0}, s{sT0}, {PS}")
    a(f"v_add_u32 v{vT0}, s{sT0}, v{vT0}")
    for t in range(4): a(f"ds_write_b64 v{vT0}, {V(vSt+2*t,2)} offset:{128*t}")
    a(f"v_lshlrev_b32 v{vT0}, 3, v{vLANE}")
    a(f"v_add_u32 v{vT2}, {PS}, v{vT0}")
    a("s_waitcnt vmcnt(0) lgkmcnt(0)" if ph == 0 else "s_waitcnt lgkmcnt(0)")
    barrier()
    prof(f"p{ph}_ps")
    for i in range(8): a(f"ds_read_b64 {V(vW+2*i,2)}, v{vT2} offset:{512*i}")
    if ph == 0: signal(32, S3SIG)
    a("s_waitcnt lgkmcnt(0)")
    for i in range(8): a(f"ds_read_b64 {V(vW+16+2*i,2)}, v{vT2} offset:{512*(8+i)}")
    a(f"s_lshl_b32 s{sT0}, s{sG}, 3")
    a(f"s_lshl_b32 s{sT1}, s{sW}, 1")
    a(f"s_add_u32 s{sT0}, s{sT0}, s{sT1}")
    a(f"s_lshl_b32 s{sT0}, s{sT0}, {MB_SH}")
    a(f"s_lshl_b32 s{sT1}, s{sJ}, 10")
    a(f"s_add_u32 s{sT0}, s{sT0}, s{sT1}")
    a(f"s_add_u32 s{sT0}, s{sT0}, {MB_OFF + MB_ST}")
    a(f"s_add_u32 s{sT1}, s{sT0}, {MB_SZ}")
    n = 8
    while n > 1:
        n //= 2
        for i in range(n): a(f"v_pk_add_f32 {V(vW+2*i,2)}, {V(vW+2*i,2)}, {V(vW+2*(i+n),2)}")
    a("s_waitcnt lgkmcnt(0)")
    n = 8
    while n > 1:
        n //= 2
        for i in range(n): a(f"v_pk_add_f32 {V(vW+16+2*i,2)}, {V(vW+16+2*i,2)}, {V(vW+16+2*(i+n),2)}")
    a(f"v_pk_add_f32 {V(vW,2)}, {V(vW,2)}, {V(vW+16,2)}")
    a(f"v_mov_b32 v{vW+2}, s{sN}")
    a(f"v_mov_b32 v{vW+3}, s{sN+1}")
    a(f"buffer_store_dwordx4 {V(vW,4)}, v{vA0}, {S4(SWS)}, s{sT0} offen sc1")
    a(f"buffer_store_dwordx4 {V(vW,4)}, v{vA0}, {S4(SWS)}, s{sT1} offen sc1")
    prof(f"p{ph}_pub")
    a(f"s_add_u32 s{sT0}, s{sMB}, {MB_ST}")
    a(f"s_lshl_b32 s{sT1}, s{sW}, 11")
    a(f"s_add_u32 s{sT0}, s{sT0}, s{sT1}")
    L0, L1 = a.newlabel("L_pst"), a.newlabel("L_pst")
    a.flush()
    a(f"s_branch {L1}")
    a.label(L0)
    a("s_sleep 1")
    a.label(L1)
    for i in range(2):
        a(f"buffer_load_dwordx4 {V(vW+4*i,4)}, v{vA0}, {S4(SWS)}, s{sT0} offen offset:{1024*i} sc1")
    a("s_waitcnt vmcnt(0)")
    a(f"v_cmp_ne_u64 vcc, {S2(sN)}, {V(vW+2,2)}")
    a(f"v_cmp_ne_u64 {S2(sEX)}, {S2(sN)}, {V(vW+6,2)}")
    a(f"s_or_b64 vcc, vcc, {S2(sEX)}")
    a(f"s_cbranch_vccnz {L0}")
    a(f"v_pk_add_f32 {V(vW,2)}, {V(vW,2)}, {V(vW+4,2)}")
    a(f"s_lshl_b32 s{sT1}, s{sW}, 9")
    a(f"s_add_u32 s{sT1}, s{sT1}, {MISC + 4096}")
    a(f"v_lshl_add_u32 v{vT1}, v{vLANE}, 3, s{sT1}")
    a(f"ds_write_b64 v{vT1}, {V(vW,2)}")
    if ph == 0:
        poll(32, MB_S3, "s3")
        prof("p0_s3")
        a(f"v_lshrrev_b32 v{vT0}, 3, v{vLANE}")
        a(f"v_lshlrev_b32 v{vT0}, 12, v{vT0}")
        a(f"v_and_b32 v{vT1}, 7, v{vLANE}")
        a(f"v_lshl_add_u32 v{vT0}, v{vT1}, 4, v{vT0}")
        a(f"s_lshl_b32 s{sT0}, s{sJ}, 18")
        a(f"s_lshl_b32 s{sT1}, s{sG}, 7")
        a(f"s_add_u32 s{sT0}, s{sT0}, s{sT1}")
        a(f"s_lshl_b32 s{sT1}, s{sW}, 16")
        a(f"s_add_u32 s{sT0}, s{sT0}, s{sT1}")
        a(f"s_add_u32 s{sT0}, s{sT0}, {YT_OFF}")
        a(f"s_lshl_b32 s{sT1}, s{sW}, 11")
        a(f"s_add_u32 m0, s{sT1}, {YTT}")
        a(f"buffer_load_dwordx4 v{vT0}, {S4(SWS)}, s{sT0} offen sc1 lds")
        a(f"s_add_u32 s{sT0}, s{sT0}, 32768")
        a(f"s_add_u32 m0, s{sT1}, {YTT + 1024}")
        a(f"buffer_load_dwordx4 v{vT0}, {S4(SWS)}, s{sT0} offen sc1 lds")
    a(f"v_lshlrev_b32 v{vT1}, 3, v{vL15}")
    a(f"v_add_u32 v{vT1}, {MISC + 4096}, v{vT1}")
    a("s_waitcnt lgkmcnt(0)")
    barrier()
    prof(f"p{ph}_stats")
    for t in range(4):
        for i in range(4): a(f"ds_read_b64 {V(vW+8*t+2*i,2)}, v{vT1} offset:{512*i + 128*t}")
    a("s_waitcnt lgkmcnt(0)")
    for t in range(4):
        b = vW + 8*t
        a(f"v_pk_add_f32 {V(b,2)}, {V(b,2)}, {V(b+2,2)}")
        a(f"v_pk_add_f32 {V(b+4,2)}, {V(b+4,2)}, {V(b+6,2)}")
    for t in range(4):
        b = vW + 8*t
        a(f"v_pk_add_f32 {V(b,2)}, {V(b,2)}, {V(b+4,2)}")
    ln_math([(vW+8*t, vW+8*t+1, vW+8*t+2, vW+8*t+3, vW+8*t+4, vW+8*t+5) for t in range(4)])
    if ph == 0:
        a(f"v_lshrrev_b32 v{vT1}, 2, v{vLANE}")
        a(f"v_lshlrev_b32 v{vT1}, 7, v{vT1}")
        a(f"v_and_b32 v{vT2}, 3, v{vLANE}")
        a(f"v_lshl_add_u32 v{vT1}, v{vT2}, 3, v{vT1}")
        a(f"s_lshl_b32 s{sT0}, s{sW}, 11")
        a(f"s_add_u32 s{sT0}, s{sT0}, {YTT}")
        a(f"v_add_u32 v{vT1}, s{sT0}, v{vT1}")
        a("s_waitcnt vmcnt(0)")
        for t in range(4): a(f"ds_read_b64_tr_b16 {V(vYY+2*t,2)}, v{vT1} offset:{32*t}")
        a("s_waitcnt lgkmcnt(0)")
    for t in range(4):
        ab = V(vW+8*t+2, 2)
        x, y, u = vPA + 4*t, 32 + 8*t, 36 + 8*t
        a(f"v_lshlrev_b32 v{y}, 16, v{vYY+2*t}")
        a(f"v_and_b32 v{y+1}, 0xffff0000, v{vYY+2*t}")
        a(f"v_lshlrev_b32 v{y+2}, 16, v{vYY+2*t+1}")
        a(f"v_and_b32 v{y+3}, 0xffff0000, v{vYY+2*t+1}")
        for h in range(2):
            a(f"v_pk_fma_f32 {V(u+2*h,2)}, {V(x+2*h,2)}, {ab}, {ab} op_sel:[0,0,1] op_sel_hi:[1,0,1]")
            a(f"v_pk_fma_f32 {V(u+2*h,2)}, {V(u+2*h,2)}, {V(y+2*h,2)}, {V(x+2*h,2)}")
        a(f"v_cvt_pk_bf16_f32 v{vX2+2*t}, v{u}, v{u+1}")
        a(f"v_cvt_pk_bf16_f32 v{vX2+2*t+1}, v{u+2}, v{u+3}")
    tile_to_lds(vX2, vW)
    prof(f"p{ph}_epi")
    a(f"s_add_u32 s{sT1}, s{sTILE}, 32768")
    if ph == 0:
        a(f"buffer_store_dwordx4 {V(vW,4)}, v{vT0}, {S4(SX2)}, s{sTILE} offen sc1")
        a(f"buffer_store_dwordx4 {V(vW+4,4)}, v{vT0}, {S4(SX2)}, s{sT1} offen sc1")
        vm.drain()
        barrier()
        signal(16, group_sig(MB_S5, 16))
        prof("p0_done")
    else:
        a(f"buffer_store_dwordx4 {V(vW,4)}, v{vT0}, {S4(SOUT)}, s{sTILE} offen")
        a(f"buffer_store_dwordx4 {V(vW+4,4)}, v{vT0}, {S4(SOUT)}, s{sT1} offen")
        prof("final")

lg.reset()
vm.wait(("o", 3))
p2(0)
if STAGE <= 3: a("s_branch L_end")

a(f"s_mov_b32 s{sT1}, 0xffff")
a(f"s_cmp_eq_u32 s{sG}, 0")
a(f"s_cselect_b32 exec_lo, 0xff, s{sT1}")
a("s_mov_b32 exec_hi, 0")
poll(16, MB_S5, "x2", exec_set=True)
a(f"s_xor_b32 s{sN}, s{sN}, 1")
prof("p3_wait")
vm.reset(); lg.reset()
k_reset()
for s in range(8):
    for g in dma_x_groups(s, SX2): g()
    k_next()
for s in range(16):
    if s % 4 == 0:
        vm.wait(("x", s + 3), ("h", s // 4))
        barrier()
        for g in x_reads(s, s & 1): g()
    rd = x_reads(s + 1, (s + 1) & 1) if s % 4 != 3 else []
    lg.wait(("xa", s))
    fl = (dma_x_groups(8 + 2*s, SX2) + [k_next] + dma_x_groups(9 + 2*s, SX2) + [k_next]) if s < 4 else []
    mfmas(s, s & 1, False, rd, fl)
prof("p3_gemm")
attention(1, O3_OFF, MB_S6)
poll(8, MB_S6, "o3")
prof("p1_owait")
vm.reset(); lg.reset()
for g in o_groups(O3_OFF): g()
p2(1)
a.label("L_end")
a("s_endpgm")
a.raw('.section .rodata,"a"')
a.raw(kernel_desc(NAME, 512, 102, 256))
out = sys.argv[1] if len(sys.argv) > 1 else "interleave_layers__sliding_local_dilated__ssm_conv_h3__prompt.s"
open(out, "w").write(a.text())
print("wrote", out, "lines", len(a.lines), "pad states", a.npad)
```

```python
import sys, os
sys.path.insert(0, os.path.dirname(os.path.abspath(__file__)))
from asmlib import *

NAME = "interleave_layers__sliding_local_dilated__ssm_conv_h3__prompt_kernel"
STAGE = int(os.environ.get("STAGE", "9"))
PROF = int(os.environ.get("PROF", "0"))

KVT_OFF = 0
YT_OFF = KVT_OFF
O1_OFF = 4 << 20
X2_OFF = O1_OFF
O3_OFF = 8 << 20
MB_OFF = 16 << 20
MB_SZ = 32768
MB_SH = 15
MB_S1, MB_S2, MB_S3, MB_S5, MB_S6 = 0, 16, 32, 48, 64
MB_ST0, MB_ST1 = 4096, 4096
PROF_OFF = 32 << 20

XIMG = 0
WRING = 81920
NSLOT = 6
Y1T = 155648
WOIMG = 0
UR = 65536
URP = 4608
HC = 74752
HCP = 4160
ACCX = 74752
YTT = 74752
MISC = 91392
ST_OWN = MISC
ST_H = MISC + 512
ABW = MISC + 1024
PS = HC + 8192
OIMG = 98304

sB, sW, sG, sJ, sKK0, sPH = 2, 3, 4, 5, 6, 7
SX, SWQ, SWO, SK_, SV_, SSK, SH, SOUT, SDBG, SWS, SX2 = 8, 12, 16, 20, 24, 28, 32, 36, 40, 44, 48
sSD = 52
sPAR, sMC0, sMC1 = 54, 56, 58
sL = 60
sT0, sT1, sT2, sT3 = 61, 62, 63, 64
sW1K, sW16K, sW5K = 65, 66, 67
sMB = 68
sOOFF, sSIG, sSTAT = 69, 70, 71
sEX = 72
sD = 74
sT4, sT5 = 75, 76
sN = 78
sPT = 90

def S4(n): return f"s[{n}:{n+3}]"
def V(n, k=1): return f"v{n}" if k == 1 else f"v[{n}:{n+k-1}]"
def A(n, k=1): return f"a{n}" if k == 1 else f"a[{n}:{n+k-1}]"

vTID, vLANE, vL15, vQ = 0, 1, 2, 3
vA0, vA1, vS0, vS1, vSH, vTR, vXD, vXDH, vWD = 4, 5, 6, 7, 8, 9, 10, 11, 12
vT0, vT1, vT2 = 13, 14, 15
vQT = 16
vKT = 32
vVV = 52
vCS = 224
vXA = 84
vSO = 124
vSHF = 132
vONE = 136
vST = 196
vXD2, vXDH2 = 236, 237
vFR = 239
vP0 = 222
vNL = 220
vX2 = 240
vYY = 248

a = Asm()
vm = Cnt(a, "vmcnt", 63)
lg = Cnt(a, "lgkmcnt", 15)
prof_idx = [0]

def prof(tag):
    if not PROF: return
    i = prof_idx[0]; prof_idx[0] += 1
    a(f"s_memtime s[{sPT}:{sPT+1}]")
    a("s_waitcnt lgkmcnt(0)")
    lg.reset()
    a(f"v_mov_b32 v218, s{sPT}")
    a(f"s_lshl_b32 s{sPT+2}, s{sL}, 9")
    a(f"s_lshl_b32 s{sPT+3}, s{sPH}, 8")
    a(f"s_add_u32 s{sPT+2}, s{sPT+2}, s{sPT+3}")
    a(f"s_add_u32 s{sPT+2}, s{sPT+2}, {PROF_OFF + 4*i}")
    a(f"v_mov_b32 v219, 0")
    a(f"v_cmp_eq_u32 s[{sPT+6}:{sPT+7}], 0, v{vTID}")
    a(f"s_and_saveexec_b64 s[{sPT+4}:{sPT+5}], s[{sPT+6}:{sPT+7}]")
    a(f"buffer_store_dword v218, v219, {S4(SWS)}, s{sPT+2} offen")
    a(f"s_mov_b64 exec, s[{sPT+4}:{sPT+5}]")
    vm.issue("prof")

def set_exec(n):
    a(f"s_mov_b32 exec_lo, {hex((1 << min(n,32)) - 1)}")
    a(f"s_mov_b32 exec_hi, {hex((1 << (n-32)) - 1) if n > 32 else 0}")

def poll(n, mboff, name, exec_set=False):
    L = a.newlabel("L_poll_" + name)
    a(f"v_lshlrev_b32 v{vT2}, 7, v{vLANE}")
    if not exec_set: set_exec(n)
    a(f"s_add_u32 s{sT0}, s{sMB}, {mboff}")
    a.flush()
    a.label(L)
    a(f"buffer_load_dwordx2 {V(vP0,2)}, v{vT2}, {S4(SWS)}, s{sT0} offen sc1")
    a("s_waitcnt vmcnt(0)")
    a(f"v_cmp_ne_u64 vcc, s[{sN}:{sN+1}], {V(vP0,2)}")
    a(f"s_cbranch_vccnz {L}")
    a("s_mov_b64 exec, -1")
    vm.reset()

def signal(n, addr_code):
    L = a.newlabel("L_sig")
    a(f"s_cmp_lg_u32 s{sW}, 0")
    a(f"s_cbranch_scc1 {L}")
    a(addr_code)
    a(f"v_mov_b32 v{vP0}, s{sN}")
    a(f"v_mov_b32 v{vP0+1}, s{sN+1}")
    set_exec(n)
    a(f"buffer_store_dwordx2 {V(vP0,2)}, v{vT1}, {S4(SWS)}, 0 offen sc1")
    a("s_mov_b64 exec, -1")
    a.flush()
    a.label(L)

def allreduce(op, regs, tmps):
    for sw in ("v_permlane16_swap_b32", "v_permlane32_swap_b32"):
        for r, t in zip(regs, tmps): a(f"v_mov_b32 v{t}, v{r}")
        for r, t in zip(regs, tmps): a(f"{sw} v{r}, v{t}")
        for r, t in zip(regs, tmps): a(f"{op} v{r}, v{r}, v{t}")

def ln_math(vS, vSS, vAo, vBo, t0, t1):
    a(f"v_mul_f32 v{t0}, 0x3b000000, v{vS}")
    a(f"v_mul_f32 v{t1}, 0x3b000000, v{vSS}")
    a(f"v_fma_f32 v{t1}, -v{t0}, v{t0}, v{t1}")
    a(f"v_max_f32 v{t1}, 0, v{t1}")
    a(f"v_cvt_pk_bf16_f32 v{t0}, v{t0}, v{t1}")
    a(f"v_and_b32 v{t1}, 0xffff0000, v{t0}")
    a(f"v_lshlrev_b32 v{t0}, 16, v{t0}")
    a(f"v_add_f32 v{t1}, 0x3727c5ac, v{t1}")
    a(f"v_cvt_pk_bf16_f32 v{t1}, v{t1}, v{t1}")
    a(f"v_lshlrev_b32 v{t1}, 16, v{t1}")
    a(f"v_sqrt_f32 v{t1}, v{t1}")
    a(f"v_cvt_pk_bf16_f32 v{t1}, v{t1}, v{t1}")
    a(f"v_lshlrev_b32 v{t1}, 16, v{t1}")
    a(f"v_rcp_f32 v{vAo}, v{t1}")
    a(f"v_mul_f32 v{vBo}, v{t0}, v{vAo}")
    a(f"v_sub_f32 v{vBo}, 0, v{vBo}")

def barrier():
    a("s_barrier")

OT = PS
def tile_to_lds(src, tmp, s1sig=False):
    a(f"v_lshrrev_b32 v{vT0}, 1, v{vQ}")
    a(f"s_lshl_b32 s{sT0}, s{sW}, 1")
    a(f"v_add_u32 v{vT0}, s{sT0}, v{vT0}")
    a(f"v_and_b32 v{vT1}, 7, v{vL15}")
    a(f"v_xor_b32 v{vT0}, v{vT0}, v{vT1}")
    a(f"v_lshlrev_b32 v{vT0}, 4, v{vT0}")
    a(f"v_lshl_add_u32 v{vT0}, v{vL15}, 7, v{vT0}")
    a(f"v_and_b32 v{vT1}, 1, v{vQ}")
    a(f"v_lshl_add_u32 v{vT0}, v{vT1}, 3, v{vT0}")
    a(f"v_add_u32 v{vT0}, {OT}, v{vT0}")
    for t in range(4):
        a(f"ds_write_b64 v{vT0}, {V(src+2*t,2)} offset:{2048*t}")
    a(f"v_lshlrev_b32 v{vT1}, 4, v{vTID}")
    a(f"v_add_u32 v{vT1}, {OT}, v{vT1}")
    a(f"v_lshrrev_b32 v{vT2}, 3, v{vTID}")
    a(f"v_xor_b32 v{vT0}, v{vTID}, v{vT2}")
    a(f"v_and_b32 v{vT0}, 7, v{vT0}")
    a(f"v_lshlrev_b32 v{vT0}, 4, v{vT0}")
    a(f"v_lshl_add_u32 v{vT0}, v{vT2}, 10, v{vT0}")
    a("s_waitcnt vmcnt(0) lgkmcnt(0)" if s1sig else "s_waitcnt lgkmcnt(0)")
    barrier()
    a(f"ds_read_b128 {V(tmp,4)}, v{vT1}")
    a(f"ds_read_b128 {V(tmp+4,4)}, v{vT1} offset:4096")
    if s1sig:
        a(f"s_cmp_lg_u32 s{sPH}, 0")
        a("s_cbranch_scc1 L_no_s1")
        signal(32, S1SIG)
        a.label("L_no_s1")
    a("s_waitcnt lgkmcnt(0)")

a.raw("; @launch grid=(256,1,1) block=(256,1,1) lds=163840")
a.raw('.amdgcn_target "amdgcn-amd-amdhsa--gfx950"\n.text')
a.raw(kernel_header(NAME))
a(f"s_cmp_ge_u32 s{sB}, 256")
a("s_cbranch_scc1 L_end")
a("s_load_dwordx16 s[76:91], s[0:1], 0")
a("s_load_dwordx8 s[92:99], s[0:1], 64")
a(f"v_and_b32 v{vLANE}, 63, v{vTID}")
a(f"v_lshrrev_b32 v{vT0}, 6, v{vTID}")
a(f"v_and_b32 v{vL15}, 15, v{vTID}")
a(f"v_readfirstlane_b32 s{sW}, v{vT0}")
a(f"v_bfe_u32 v{vQ}, v{vTID}, 4, 2")
a(f"v_lshlrev_b32 v{vA0}, 4, v{vLANE}")
a(f"v_lshrrev_b32 v{vT0}, 2, v{vL15}")
a(f"v_and_b32 v{vT0}, 2, v{vT0}")
a(f"v_xor_b32 v{vT0}, v{vT0}, v{vQ}")
a(f"v_lshlrev_b32 v{vFR}, 6, v{vL15}")
a(f"v_lshl_add_u32 v{vFR}, v{vT0}, 4, v{vFR}")
a(f"v_add_u32 v{vA1}, 40960, v{vFR}")
MAPNJ = int(os.environ.get("MAPNJ", "8"))
a(f"s_and_b32 s{sT0}, s{sB}, 7")
a(f"s_lshr_b32 s{sT1}, s{sB}, 3")
if MAPNJ == 8:
    a(f"s_lshr_b32 s{sT2}, s{sT1}, 3")
    a(f"s_lshl_b32 s{sG}, s{sT0}, 2")
    a(f"s_add_u32 s{sG}, s{sG}, s{sT2}")
    a(f"s_and_b32 s{sJ}, s{sT1}, 7")
    a(f"s_lshl_b32 s{sKK0}, s{sT2}, 2")
    a(f"s_lshl_b32 s{sT2}, s{sJ}, 1")
    a(f"s_add_u32 s{sKK0}, s{sKK0}, s{sT2}")
    a(f"s_lshr_b32 s{sT2}, s{sT0}, 1")
    a(f"s_add_u32 s{sKK0}, s{sKK0}, s{sT2}")
elif MAPNJ == 4:
    a(f"s_lshr_b32 s{sG}, s{sT0}, 1")
    a(f"s_lshl_b32 s{sG}, s{sG}, 3")
    a(f"s_lshr_b32 s{sT2}, s{sT1}, 2")
    a(f"s_add_u32 s{sG}, s{sG}, s{sT2}")
    a(f"s_and_b32 s{sJ}, s{sT0}, 1")
    a(f"s_lshl_b32 s{sJ}, s{sJ}, 2")
    a(f"s_and_b32 s{sT3}, s{sT1}, 3")
    a(f"s_add_u32 s{sJ}, s{sJ}, s{sT3}")
    a(f"s_lshl_b32 s{sKK0}, s{sT2}, 1")
    a(f"s_lshl_b32 s{sT3}, s{sT3}, 2")
    a(f"s_add_u32 s{sKK0}, s{sKK0}, s{sT3}")
    a(f"s_lshr_b32 s{sT2}, s{sT0}, 2")
    a(f"s_add_u32 s{sKK0}, s{sKK0}, s{sT2}")
elif MAPNJ == 2:
    a(f"s_lshr_b32 s{sG}, s{sT0}, 2")
    a(f"s_lshl_b32 s{sG}, s{sG}, 4")
    a(f"s_lshr_b32 s{sT2}, s{sT1}, 1")
    a(f"s_add_u32 s{sG}, s{sG}, s{sT2}")
    a(f"s_and_b32 s{sJ}, s{sT0}, 3")
    a(f"s_lshl_b32 s{sJ}, s{sJ}, 1")
    a(f"s_and_b32 s{sT3}, s{sT1}, 1")
    a(f"s_add_u32 s{sJ}, s{sJ}, s{sT3}")
    a(f"s_lshl_b32 s{sT3}, s{sJ}, 1")
    a(f"s_add_u32 s{sKK0}, s{sT2}, s{sT3}")
a(f"s_and_b32 s{sKK0}, s{sKK0}, 15")
a(f"s_lshl_b32 s{sL}, s{sG}, 3")
a(f"s_add_u32 s{sL}, s{sL}, s{sJ}")
a(f"s_mov_b32 s{sPH}, 0")
a(f"s_lshl_b32 s{sW1K}, s{sW}, 10")
a(f"s_lshl_b32 s{sW16K}, s{sW}, 14")
a(f"s_mul_i32 s{sW5K}, s{sW}, 5120")
a(f"s_lshl_b32 s{sMB}, s{sL}, {MB_SH}")
a(f"s_add_u32 s{sMB}, s{sMB}, {MB_OFF}")
a("s_waitcnt lgkmcnt(0)")
P = lambda i: 76 + 2 * i
srd(a, SX, P(0), 2048 * 1024)
srd(a, SWQ, P(1), 512 * 3072)
srd(a, SWO, P(2), 512 * 1024)
srd(a, SK_, P(4), 2048 * 1024)
srd(a, SV_, P(5), 2048 * 1024)
srd(a, SSK, P(6), 4096)
srd(a, SH, P(7), 512 * 4096)
a(f"s_mov_b32 s{sSD}, s{P(8)}")
a(f"s_mov_b32 s{sSD+1}, s{P(8)+1}")
srd(a, SOUT, P(9), 2048 * 1024)
srd(a, SDBG, P(10), 256)
srd(a, SWS, P(11), 1 << 28)
srd(a, SX2, P(11), 2048 * 1024, off=X2_OFF)
a(f"s_lshl_b32 s{sT0}, s{sL}, 2")
a(f"s_load_dword s{sD}, s[{sSD}:{sSD+1}], s{sT0}")

prof("start")
yK, yV, ySK, yT, yO, yR = 144, 164, 172, 84, 110, 118
yA = 188
def y1_addr():
    a.comment("Y1 loads: thread -> c8 = tid&7 (8 channels), rp = tid>>3 (row pair)")
    a(f"v_and_b32 v{vT0}, 7, v{vTID}")
    a(f"v_lshrrev_b32 v{vT1}, 3, v{vTID}")
    a(f"s_lshl_b32 s{sT0}, s{sG}, 16")
    a(f"s_lshl_b32 s{sT1}, s{sJ}, 7")
    a(f"s_add_u32 s{sT0}, s{sT0}, s{sT1}")
    a(f"v_lshlrev_b32 v{vT2}, 11, v{vT1}")
    a(f"v_lshl_add_u32 v{vT2}, v{vT0}, 4, v{vT2}")
    a(f"v_add_u32 v{vT2}, s{sT0}, v{vT2}")
    for i in range(5):
        a(f"v_add_u32 v{yA+i}, {(i-3)*1024}, v{vT2}")
    a(f"s_lshl_b32 s{sT1}, s{sJ}, 9")
    a(f"v_lshlrev_b32 v{yA+5}, 6, v{vT0}")
    a(f"v_add_u32 v{yA+5}, s{sT1}, v{yA+5}")
def vmg(line, tag):
    def g():
        a(line); vm.issue(tag)
    return g
def y1_load_groups():
    out = []
    for i in range(5):
        out.append(vmg(f"buffer_load_dwordx4 {V(yK+4*i,4)}, v{yA+i}, {S4(SK_)}, 0 offen", "y1"))
    for i in range(2):
        out.append(vmg(f"buffer_load_dwordx4 {V(yV+4*i,4)}, v{yA+3+i}, {S4(SV_)}, 0 offen", "y1"))
    for i in range(4):
        out.append(vmg(f"buffer_load_dwordx4 {V(ySK+4*i,4)}, v{yA+5}, {S4(SSK)}, 0 offen offset:{16*i}", "y1"))
    return out
y1_addr()
for g in y1_load_groups(): g()
a(f"s_or_b32 s{sT2}, s{sL}, s{sW}")
a(f"s_cmp_lg_u32 s{sT2}, 0")
a("s_cbranch_scc1 L_nonce_done")
a(f"s_memrealtime s[{sN}:{sN+1}]")
a("s_waitcnt lgkmcnt(0)")
a(f"s_or_b32 s{sN+1}, s{sN+1}, 0x80000000")
a(f"s_andn2_b32 s{sN}, s{sN}, 1")
a(f"v_mov_b32 v{vP0}, s{sN}")
a(f"v_mov_b32 v{vP0+1}, s{sN+1}")
a(f"v_mov_b32 v{vT0}, 0")
a("s_mov_b64 exec, 1")
a(f"buffer_store_dwordx2 {V(vP0,2)}, v{vT0}, {S4(SDBG)}, 0 offen sc1")
a("s_mov_b64 exec, -1")
a.flush()
a.label("L_nonce_done")

a(f"v_add_u32 v{vS0}, s{sW1K}, v{vFR}")
a(f"v_add_u32 v{vS0}, 1024, v{vS0}")
a(f"v_add_u32 v{vS1}, 40960, v{vS0}")
a(f"v_add_u32 v{vSH}, s{sW5K}, v{vFR}")
a(f"v_lshrrev_b32 v{vT0}, 5, v{vLANE}")
a(f"v_lshlrev_b32 v{vTR}, 10, v{vT0}")
a(f"v_bfe_u32 v{vT0}, v{vLANE}, 2, 3")
a(f"v_lshl_add_u32 v{vTR}, v{vT0}, 7, v{vTR}")
a(f"v_lshrrev_b32 v{vT0}, 1, v{vT0}")
a(f"v_xor_b32 v{vT0}, s{sW}, v{vT0}")
a(f"v_lshl_add_u32 v{vTR}, v{vT0}, 5, v{vTR}")
a(f"v_and_b32 v{vT0}, 3, v{vLANE}")
a(f"v_lshl_add_u32 v{vTR}, v{vT0}, 3, v{vTR}")
a(f"v_lshrrev_b32 v{vT0}, 2, v{vLANE}")
a(f"v_lshlrev_b32 v{vXD}, 10, v{vT0}")
a(f"v_lshrrev_b32 v{vT1}, 4, v{vLANE}")
a(f"v_and_b32 v{vT1}, 2, v{vT1}")
a(f"v_and_b32 v{vT0}, 3, v{vLANE}")
a(f"v_xor_b32 v{vT0}, v{vT0}, v{vT1}")
a(f"v_lshl_add_u32 v{vXD}, v{vT0}, 4, v{vXD}")
a(f"s_lshl_b32 s{sT0}, s{sG}, 16")
a(f"v_add_u32 v{vXD}, s{sT0}, v{vXD}")
a(f"v_add_u32 v{vXDH}, {-16384 & 0xffffffff}, v{vXD}")
a(f"v_bfe_u32 v{vT0}, v{vLANE}, 3, 2")
a(f"v_lshrrev_b32 v{vT1}, 5, v{vLANE}")
a(f"v_lshl_add_u32 v{vT0}, v{vT1}, 3, v{vT0}")
a(f"s_and_b32 s{sT0}, s{sW}, 1")
a(f"s_lshl_b32 s{sT0}, s{sT0}, 4")
a(f"s_lshr_b32 s{sT1}, s{sW}, 1")
a(f"s_lshl_b32 s{sT1}, s{sT1}, 2")
a(f"s_add_u32 s{sT0}, s{sT0}, s{sT1}")
a(f"v_add_u32 v{vT0}, s{sT0}, v{vT0}")
a(f"v_lshrrev_b32 v{vT1}, 4, v{vLANE}")
a(f"v_lshlrev_b32 v{vT1}, 1, v{vT1}")
a(f"v_and_b32 v{vT2}, 7, v{vLANE}")
a(f"v_xor_b32 v{vT1}, v{vT1}, v{vT2}")
a(f"v_lshlrev_b32 v{vT1}, 4, v{vT1}")
a(f"s_lshl_b32 s{sT0}, s{sJ}, 7")
a(f"v_add_u32 v{vT1}, s{sT0}, v{vT1}")
vWOD = 238
a(f"v_lshl_add_u32 v{vWOD}, v{vT0}, 10, v{vT1}")
a(f"v_mul_u32_u24 v{vWD}, 3072, v{vT0}")
a(f"v_add_u32 v{vWD}, v{vWD}, v{vT1}")
a(f"v_and_b32 v{vT0}, 1, v{vLANE}")
a(f"v_cmp_eq_u32 s[{sPAR}:{sPAR+1}], 1, v{vT0}")
a(f"v_lshl_add_u32 v{vT1}, v{vQ}, 2, v{vT0}")
a(f"v_cmp_le_u32 s[{sMC0}:{sMC0+1}], v{vT1}, v{vL15}")
a(f"v_add_u32 v{vT1}, 2, v{vT1}")
a(f"v_cmp_le_u32 s[{sMC1}:{sMC1+1}], v{vT1}, v{vL15}")
for i in range(4):
    a(f"v_mov_b32 v{vONE+i}, 0x3f803f80")

sXo, sW3K, sW64 = 80, 81, 82
vXDW = 140
a(f"s_mul_i32 s{sW3K}, s{sW}, 3072")
a(f"s_lshl_b32 s{sW64}, s{sW}, 6")
a(f"v_add_u32 v{vXDW}, s{sW16K}, v{vXD}")
def k_reset():
    a(f"s_lshl_b32 s{sXo}, s{sKK0}, 6")
def k_next():
    a(f"s_add_u32 s{sXo}, s{sXo}, 64")
    a(f"s_and_b32 s{sXo}, s{sXo}, 1023")
def dma_x_groups(s, srd_):
    sc = " sc1" if srd_ == SX2 else ""
    def g1():
        a(f"s_add_u32 m0, s{sW1K}, {XIMG + (s*5+1)*1024}")
        a(f"buffer_load_dwordx4 v{vXDW}, {S4(srd_)}, s{sXo} offen{sc} lds"); vm.issue(("x", s))
    def g2():
        a(f"s_add_u32 s{sT1}, s{sXo}, s{sW64}")
        a(f"s_and_b32 s{sT1}, s{sT1}, 1023")
        a(f"s_add_u32 m0, s{sW5K}, {XIMG + s*5*1024}")
        a(f"buffer_load_dwordx4 v{vXDH}, {S4(srd_)}, s{sT1} offen{sc} lds"); vm.issue(("h", s // 4))
    return [g1, g2] if s % 4 == 0 else [g1]

def dma_w_groups(s):
    def g():
        a(f"s_mul_i32 s{sT2}, s{sXo}, 1536")
        a(f"s_add_u32 m0, s{sW3K}, {WRING + (s % NSLOT)*12288}")
        for p in range(3):
            a(f"buffer_load_dwordx4 v{vWD}, {S4(SWQ)}, s{sT2} offen offset:{1024*p} lds"); vm.issue(("w", s))
    return [g]

def dma_x(s, srd_):
    for g in dma_x_groups(s, srd_): g()
def dma_w(s):
    for g in dma_w_groups(s): g()

def interleave(seq, fillers):
    n, m = len(seq), len(fillers)
    k = 0
    for i, ln in enumerate(seq):
        a(ln)
        while k < m and (k + 1) * n <= (i + 1) * (m + 1) + 0:
            fillers[k](); k += 1
    while k < m:
        fillers[k](); k += 1

DEPTH = NSLOT - 1
k_reset()
for s in range(DEPTH):
    dma_x(s, SX); dma_w(s); k_next()

vm.wait("y1")
R = yT
TP = yT + 10
VVv = yT + 18
K0, K1 = yT + 22, yT + 24
for m in range(4):
    for i in range(5):
        a(f"v_lshlrev_b32 v{R+2*i}, 16, v{yK+4*i+m}")
        a(f"v_and_b32 v{R+2*i+1}, 0xffff0000, v{yK+4*i+m}")
    for c in range(2):
        a(f"v_lshlrev_b32 v{TP+0+c}, 16, v{ySK+4*m+2*c}")
        a(f"v_and_b32 v{TP+2+c}, 0xffff0000, v{ySK+4*m+2*c}")
        a(f"v_lshlrev_b32 v{TP+4+c}, 16, v{ySK+4*m+2*c+1}")
        a(f"v_and_b32 v{TP+6+c}, 0xffff0000, v{ySK+4*m+2*c+1}")
    for i in range(2):
        a(f"v_lshlrev_b32 v{VVv+2*i}, 16, v{yV+4*i+m}")
        a(f"v_and_b32 v{VVv+2*i+1}, 0xffff0000, v{yV+4*i+m}")
    for (Kx, r0) in ((K0, 0), (K1, 1)):
        a(f"v_pk_mul_f32 {V(Kx,2)}, {V(R+2*r0,2)}, {V(TP+6,2)}")
        a(f"v_pk_fma_f32 {V(Kx,2)}, {V(R+2*(r0+1),2)}, {V(TP+4,2)}, {V(Kx,2)}")
        a(f"v_pk_fma_f32 {V(Kx,2)}, {V(R+2*(r0+2),2)}, {V(TP+2,2)}, {V(Kx,2)}")
        a(f"v_pk_fma_f32 {V(Kx,2)}, {V(R+2*(r0+3),2)}, {V(TP+0,2)}, {V(Kx,2)}")
    for Kx in (K0, K1):
        a(f"v_cvt_pk_bf16_f32 v{Kx+1}, v{Kx}, v{Kx+1}")
        a(f"v_lshlrev_b32 v{Kx}, 16, v{Kx+1}")
        a(f"v_and_b32 v{Kx+1}, 0xffff0000, v{Kx+1}")
    a(f"v_pk_mul_f32 {V(K0,2)}, {V(K0,2)}, {V(VVv,2)}")
    a(f"v_pk_mul_f32 {V(K1,2)}, {V(K1,2)}, {V(VVv+2,2)}")
    a(f"v_cvt_pk_bf16_f32 v{yO+2*m}, v{K1}, v{K0}")
    a(f"v_cvt_pk_bf16_f32 v{yO+2*m+1}, v{K1+1}, v{K0+1}")
a(f"v_and_b32 v{vT0}, 7, v{vTID}")
a(f"v_lshrrev_b32 v{vT1}, 3, v{vTID}")
a(f"v_sub_u32 v{vT1}, 31, v{vT1}")
a(f"v_lshlrev_b32 v{vT2}, 2, v{vT0}")
a(f"v_xor_b32 v{vT1}, v{vT1}, v{vT2}")
a(f"v_lshlrev_b32 v{vT1}, 2, v{vT1}")
a(f"v_lshl_add_u32 v{vT1}, v{vT0}, 10, v{vT1}")
a(f"v_add_u32 v{vT1}, {Y1T}, v{vT1}")
for i in range(8):
    a(f"ds_write_b32 v{vT1}, v{yO+i} offset:{128*i}")
a("s_waitcnt lgkmcnt(0)")
barrier()
a(f"v_lshrrev_b32 v{vT0}, 3, v{vTID}")
a(f"v_and_b32 v{vT1}, 7, v{vTID}")
a(f"v_lshrrev_b32 v{vT2}, 3, v{vT0}")
a(f"v_xor_b32 v{yT}, v{vT1}, v{vT2}")
a(f"v_lshlrev_b32 v{yT}, 4, v{yT}")
a(f"v_lshl_add_u32 v{yT}, v{vT0}, 7, v{yT}")
a(f"v_add_u32 v{yT}, {Y1T}, v{yT}")
a(f"v_xor_b32 v{yT+1}, 64, v{yT}")
a(f"ds_read_b128 {V(yR,4)}, v{yT}")
a(f"ds_read_b128 {V(yR+4,4)}, v{yT+1} offset:4096")
a(f"v_lshlrev_b32 v{yT+2}, 12, v{vT0}")
a(f"v_lshl_add_u32 v{yT+2}, v{vT1}, 4, v{yT+2}")
a(f"s_lshl_b32 s{sT0}, s{sJ}, 18")
a(f"s_lshl_b32 s{sT1}, s{sG}, 7")
a(f"s_sub_u32 s{sT0}, s{sT0}, s{sT1}")
a(f"s_add_u32 s{sT0}, s{sT0}, {KVT_OFF + 3968}")
a(f"s_add_u32 s{sT1}, s{sT0}, {32*4096}")
a("s_waitcnt lgkmcnt(0)")
a(f"buffer_store_dwordx4 {V(yR,4)}, v{yT+2}, {S4(SWS)}, s{sT0} offen sc1"); vm.issue("y1st")
a(f"buffer_store_dwordx4 {V(yR+4,4)}, v{yT+2}, {S4(SWS)}, s{sT1} offen sc1"); vm.issue("y1st")
prof("y1done")

def ldsg(line, tag):
    def g():
        a(line); lg.issue(tag)
    return g

def lds_reads_x_groups(s, buf):
    out = []
    base, off = (vFR, s*5*1024) if s < 8 else (vA1, (s-8)*5*1024)
    for t in range(5):
        out.append(ldsg(f"ds_read_b128 {V(vXA+20*buf+4*t,4)}, v{base} offset:{XIMG + off + t*1024}", ("xa", s)))
    base, off = (vS0, s*5120) if s < 8 else (vS1, (s-8)*5120)
    out.append(ldsg(f"ds_read_b128 {V(vSO+4*buf,4)}, v{base} offset:{XIMG + off}", ("xa", s)))
    if s % 4 == 3:
        out.append(ldsg(f"ds_read_b128 {V(vSHF+4*((s//4)&1)*0,4)}, v{vSH} offset:{XIMG + (s//4)*20480}", ("xa", s)))
    return out

def lds_reads_x(s, buf):
    for g in lds_reads_x_groups(s, buf): g()

def merge_fillers(early, spread, n):
    slots = [[] for _ in range(n)]
    for i, g in enumerate(early):
        slots[min(i, n-1)].append(g)
    m = len(spread)
    for k, g in enumerate(spread):
        slots[min(n-1, ((k + 1) * n) // (m + 1))].append(g)
    return slots

def mfmas(s, buf, with_cs, fillers=()):
    first = (s == 0)
    def C(r): return "0" if first else V(r, 4)
    wq, wk, wv = A(12*s, 4), A(12*s+4, 4), A(12*s+8, 4)
    xa = lambda t: V(vXA + 20*buf + 4*t, 4)
    seq = []
    for t in range(5):
        seq.append(f"v_mfma_f32_16x16x32_bf16 {V(vKT+4*t,4)}, {wk}, {xa(t)}, {C(vKT+4*t)}")
        seq.append(f"v_mfma_f32_16x16x32_bf16 {V(vVV+4*t,4)}, {xa(t)}, {wv}, {C(vVV+4*t)}")
        if t: seq.append(f"v_mfma_f32_16x16x32_bf16 {V(vQT+4*(t-1),4)}, {wq}, {xa(t)}, {C(vQT+4*(t-1))}")
    if with_cs:
        seq.append(f"v_mfma_f32_16x16x32_bf16 {V(vCS,4)}, {wq}, {V(vONE,4)}, {C(vCS)}")
        seq.append(f"v_mfma_f32_16x16x32_bf16 {V(vCS+4,4)}, {wk}, {V(vONE,4)}, {C(vCS+4)}")
        seq.append(f"v_mfma_f32_16x16x32_bf16 {V(vCS+8,4)}, {V(vONE,4)}, {wv}, {C(vCS+8)}")
    so = V(vSO + 4*buf, 4)
    seq.append(f"v_mfma_f32_16x16x32_bf16 {V(vST,4)}, {V(vONE,4)}, {so}, {C(vST)}")
    seq.append(f"v_mfma_f32_16x16x32_bf16 {V(vST+4,4)}, {so}, {so}, {C(vST+4)}")
    if s % 4 == 3:
        c0 = "0" if s == 3 else None
        seq.append(f"v_mfma_f32_16x16x32_bf16 {V(vST+8,4)}, {V(vONE,4)}, {V(vSHF,4)}, {c0 or V(vST+8,4)}")
        seq.append(f"v_mfma_f32_16x16x32_bf16 {V(vST+12,4)}, {V(vSHF,4)}, {V(vSHF,4)}, {c0 or V(vST+12,4)}")
    early, spread = fillers if fillers else ([], [])
    a.weave(seq, early, spread)

def zero_stats():
    pass

a(f"v_lshrrev_b32 v{vT0}, 5, v{vLANE}")
a(f"v_lshl_add_u32 v236, v{vT0}, 11, v{vTR}")
a(f"v_add_u32 v237, {WRING + 36864}, v236")
a(f"v_add_u32 v236, {WRING}, v236")
zero_stats()
yH = 144
vPL = 214
def wo_group(i):
    def g():
        a(f"s_lshl_b32 s{sT1}, s{sXo}, 9")
        a(f"s_add_u32 m0, s{sW1K}, {WOIMG + i*4096}")
        a(f"buffer_load_dwordx4 v{vWOD}, {S4(SWO)}, s{sT1} offen lds"); vm.issue("wo")
        k_next()
    return g
def h_group():
    a(f"v_lshlrev_b32 v{vT0}, 4, v{vTID}")
    a(f"s_lshl_b32 s{sT0}, s{sL}, 13")
    for c in range(2):
        if c: a(f"s_add_u32 s{sT0}, s{sT0}, 4096")
        a(f"buffer_load_dwordx4 {V(yH+8*c,4)}, v{vT0}, {S4(SH)}, s{sT0} offen"); vm.issue("h")
        a(f"buffer_load_dword v{yH+8*c+4}, v{vT0}, {S4(SH)}, s{sT0} offen offset:16"); vm.issue("h")
def async_poll(mboff):
    def g():
        a(f"v_lshlrev_b32 v{vT2}, 7, v{vLANE}")
        a(f"v_and_b32 v{vT2}, 0xfff, v{vT2}")
        a(f"s_add_u32 s{sT0}, s{sMB}, {mboff}")
        a(f"buffer_load_dwordx2 {V(vPL,2)}, v{vT2}, {S4(SWS)}, s{sT0} offen sc1"); vm.issue("apoll")
    return g
def async_check(n, mboff, name):
    L = a.newlabel("L_achk")
    set_exec(n)
    a(f"v_cmp_ne_u64 vcc, s[{sN}:{sN+1}], {V(vPL,2)}")
    a("s_mov_b64 exec, -1")
    a(f"s_cbranch_vccz {L}")
    poll(n, mboff, name)
    a.flush()
    a.label(L)
S1SIG = f"""s_lshl_b32 s{sT0}, s{sJ}, 5
v_add_u32 v{vT1}, s{sT0}, v{vLANE}
v_lshlrev_b32 v{vT1}, {MB_SH}, v{vT1}
s_lshl_b32 s{sT0}, s{sG}, 7
s_add_u32 s{sT0}, s{sT0}, {MB_OFF + MB_S1}
v_add_u32 v{vT1}, s{sT0}, v{vT1}"""
for s in range(16):
    vm.wait(("x", s), ("w", s), ("h", s // 4))
    barrier()
    fl = (dma_x_groups(s + DEPTH, SX) + dma_w_groups(s + DEPTH) + [k_next]) if s + DEPTH < 16 else []
    if s == 0:
        for g in fl: g()
    if s == 3:
        a(f"v_mov_b32 v{vT0}, 0")
        a(f"buffer_load_dwordx2 {V(vNL,2)}, v{vT0}, {S4(SDBG)}, 0 offen sc1"); vm.issue("nonce")
    if s == 9:
        a(f"v_readfirstlane_b32 s{sN}, v{vNL}")
        a(f"v_readfirstlane_b32 s{sN+1}, v{vNL+1}")
        a(f"s_cmp_eq_u32 s{sN+1}, 0")
        a("s_cbranch_scc1 L_s1_defer")
        signal(32, S1SIG)
        a.label("L_s1_defer")
    if s in (11, 12, 13): fl = [wo_group(4*(s-11) + i) for i in range(4)]
    if s == 13: fl.append(h_group)
    if s == 14: fl = [wo_group(12 + i) for i in range(3)]
    if s == 15: fl = [async_poll(MB_S1)]
    rd = lds_reads_x_groups(s, s & 1)
    for p in range(3):
        for h in range(2):
            off = (s % NSLOT) * 12288 + p * 1024 + h * 6144
            rd.append(ldsg(f"ds_read_b64_tr_b16 {A(12*s+4*p+2*h,2)}, v{236 if off < 36864 else 237} offset:{off % 36864}", ("xa", s)))
    if s > 0:
        mfmas(s - 1, (s - 1) & 1, True, (rd, fl))
    else:
        for g in rd: g()
    lg.drain()
barrier()
wo_group(15)()
mfmas(15, 1, True)
prof("p1gemm")

a(f"s_cmp_lg_u32 s{sN+1}, 0")
a("s_cbranch_scc1 L_nonce_ok")
a(f"v_mov_b32 v{vT0}, 0")
a.flush()
a.label("L_nonce_chk")
a(f"buffer_load_dwordx2 {V(vNL,2)}, v{vT0}, {S4(SDBG)}, 0 offen sc1")
a("s_waitcnt vmcnt(0)")
a(f"v_readfirstlane_b32 s{sN}, v{vNL}")
a(f"v_readfirstlane_b32 s{sN+1}, v{vNL+1}")
a(f"s_cmp_eq_u32 s{sN+1}, 0")
a("s_cbranch_scc1 L_nonce_chk")
signal(32, S1SIG)
a.label("L_nonce_ok")
vm.wait("apoll")
async_check(32, MB_S1, "s1")
a(f"s_lshl_b32 s{sT0}, s{sL}, 13")
a(f"s_lshl_b32 s{sT1}, s{sW}, 11")
a(f"s_add_u32 s{sT0}, s{sT0}, s{sT1}")
a(f"s_add_u32 s{sT0}, s{sT0}, {KVT_OFF}")
a(f"s_lshr_b32 s{sT2}, s{sW}, 1")
a(f"s_mul_i32 s{sT2}, s{sT2}, {URP - 4096}")
a(f"s_add_u32 s{sT2}, s{sT2}, s{sT1}")
a(f"s_add_u32 m0, s{sT2}, {UR}")
a(f"buffer_load_dwordx4 v{vA0}, {S4(SWS)}, s{sT0} offen sc1 lds")
a(f"buffer_load_dwordx4 v{vA0}, {S4(SWS)}, s{sT0} offen offset:1024 sc1 lds")
a(f"s_mov_b32 s{sOOFF}, {O1_OFF}")
a(f"s_mov_b32 s{sSIG}, {MB_S2}")
a(f"s_mov_b32 s{sSTAT}, {MB_ST0}")

a.flush()
a.label("L_attn")
vm.reset(); lg.reset()
prof("a_begin")
T = 84
a(f"v_lshlrev_b32 v{vT0}, 3, v{vL15}")
a(f"s_lshl_b32 s{sT0}, s{sW}, 7")
a(f"v_add_u32 v{vT0}, s{sT0}, v{vT0}")
a(f"v_add_u32 v{vT0}, {MISC}, v{vT0}")
for base in (vST, vST + 8):
    a(f"v_mov_b32 v{base+1}, v{base+4}")
    for i, m in ((1, 0x22222222), (2, 0x44444444), (3, 0x88888888)):
        a(f"s_mov_b32 s{sEX}, {hex(m)}")
        a(f"s_mov_b32 s{sEX+1}, {hex(m)}")
        a(f"v_cndmask_b32 v{base+1}, v{base+1}, v{base+4+i}, s[{sEX}:{sEX+1}]")
a("s_mov_b32 exec_lo, 0x00f0000f")
a("s_mov_b32 exec_hi, 0xf0000f00")
a(f"ds_write_b64 v{vT0}, {V(vST,2)}")
a(f"ds_write_b64 v{vT0}, {V(vST+8,2)} offset:512")
a("s_mov_b64 exec, -1")
a("s_waitcnt lgkmcnt(0)")
barrier()
a(f"v_lshlrev_b32 v{vT0}, 3, v{vLANE}")
a(f"v_add_u32 v{vT0}, {MISC}, v{vT0}")
a(f"ds_read_b64 {V(T,2)}, v{vT0}")
a(f"v_lshlrev_b32 v{vT1}, 3, v{vL15}")
a(f"v_add_u32 v{vT1}, {MISC}, v{vT1}")
for i in range(4):
    a(f"ds_read_b64 {V(T+2+2*i,2)}, v{vT1} offset:{512 + 128*i}")
a("s_waitcnt lgkmcnt(0)")
a(f"v_pk_add_f32 {V(T+2,2)}, {V(T+2,2)}, {V(T+4,2)}")
a(f"v_pk_add_f32 {V(T+6,2)}, {V(T+6,2)}, {V(T+8,2)}")
a(f"v_pk_add_f32 {V(T+2,2)}, {V(T+2,2)}, {V(T+6,2)}")
ln_math(T, T+1, T+10, T+11, T+12, T+13)
ln_math(T+2, T+3, T+14, T+15, T+16, T+17)
a(f"s_mul_i32 s{sT0}, s{sW}, 640")
a(f"s_add_u32 s{sT0}, s{sT0}, {ABW}")
a(f"v_lshl_add_u32 v{vT0}, v{vLANE}, 2, s{sT0}")
a(f"v_lshl_add_u32 v{vT1}, v{vL15}, 2, s{sT0}")
a(f"v_lshl_add_u32 v{vT2}, v{vQ}, 4, s{sT0}")
a(f"ds_write2_b32 v{vT0}, v{T+10}, v{T+11} offset0:16 offset1:96")
a(f"ds_write2_b32 v{vT1}, v{T+14}, v{T+15} offset0:0 offset1:80")
a("s_waitcnt lgkmcnt(0)")
vAB = 84
vAV = 94
for t in range(5):
    a(f"ds_read2_b32 {V(vAB+2*t,2)}, v{vT1} offset0:{16*t} offset1:{80+16*t}")
for t in range(5):
    a(f"ds_read_b128 {V(vAV+8*t,4)}, v{vT2} offset:{64*t}")
    a(f"ds_read_b128 {V(vAV+8*t+4,4)}, v{vT2} offset:{320+64*t}")
a("s_waitcnt lgkmcnt(0)")
vQb, vKb, vVb, vU = 160, 168, 178, 188
def norm_qk(acc, cs, t, dst):
    ab = V(vAB + 2*t, 2)
    for h in range(2):
        a(f"v_pk_mul_f32 {V(vU+2*h,2)}, {V(cs+2*h,2)}, {ab} op_sel:[0,1] op_sel_hi:[1,1]")
        a(f"v_pk_fma_f32 {V(vU+2*h,2)}, {V(acc+2*h,2)}, {ab}, {V(vU+2*h,2)} op_sel:[0,0,0] op_sel_hi:[1,0,1]")
    for h in range(2):
        a(f"v_cvt_pk_bf16_f32 v{dst+h}, v{vU+2*h}, v{vU+2*h+1}")
for t in range(5):
    norm_qk(vKT + 4*t, vCS + 4, t, vKb + 2*t)
    if t: norm_qk(vQT + 4*(t-1), vCS, t, vQb + 2*(t-1))
    for h in range(2):
        a(f"v_pk_mul_f32 {V(vU+4+2*h,2)}, {V(vAV+8*t+4+2*h,2)}, {V(vCS+8,2)} op_sel:[0,0] op_sel_hi:[1,0]")
        a(f"v_pk_fma_f32 {V(vU+4+2*h,2)}, {V(vVV+4*t+2*h,2)}, {V(vAV+8*t+2*h,2)}, {V(vU+4+2*h,2)}")
    for h in range(2):
        a(f"v_cvt_pk_bf16_f32 v{vVb+2*t+h}, v{vU+4+2*h}, v{vU+4+2*h+1}")
prof("a_norm")
vSc, vSp = 16, 32
for t in range(1, 5):
    a(f"v_mfma_f32_16x16x16_bf16 {V(vSc+4*(t-1),4)}, {V(vKb+2*t,2)}, {V(vQb+2*(t-1),2)}, 0")
    a(f"v_mfma_f32_16x16x16_bf16 {V(vSp+4*(t-1),4)}, {V(vKb+2*(t-1),2)}, {V(vQb+2*(t-1),2)}, 0")
a(f"s_cmp_lg_u32 s{sG}, 0")
a("s_cbranch_scc1 L_nomask")
a.flush()
for i in range(4):
    a(f"v_mov_b32 v{vSp+i}, 0xf149f2ca")
a.flush()
a.label("L_nomask")
PARM, MC = f"s[{sPAR}:{sPAR+1}]", [f"s[{sMC0}:{sMC0+1}]", f"s[{sMC1}:{sMC1+1}]"]
vLg = 48
vMx = 56
vTm = 60
vE = 64
for t in range(4):
    for i in range(2):
        a(f"v_cndmask_b32 v{vSc+4*t+2*i}, v{vSc+4*t+2*i}, v{vSc+4*t+2*i+1}, {PARM}")
        a(f"v_cndmask_b32 v{vSp+4*t+2*i}, v{vSp+4*t+2*i}, v{vSp+4*t+2*i+1}, {PARM}")
        a(f"v_cndmask_b32 v{vLg+2*t+i}, v{vSp+4*t+2*i}, v{vSc+4*t+2*i}, {MC[i]}")
    a(f"v_cvt_pk_bf16_f32 v{vLg+2*t+1}, v{vLg+2*t}, v{vLg+2*t+1}")
    a(f"v_lshlrev_b32 v{vLg+2*t}, 16, v{vLg+2*t+1}")
    a(f"v_and_b32 v{vLg+2*t+1}, 0xffff0000, v{vLg+2*t+1}")
    a(f"v_max_f32 v{vMx+t}, v{vLg+2*t}, v{vLg+2*t+1}")
allreduce("v_max_f32", [vMx+t for t in range(4)], [vTm+t for t in range(4)])
a(f"s_mov_b32 s{sT0}, 0x3eb8aa3b")
for t in range(4):
    for i in range(2):
        a(f"v_sub_f32 v{vLg+2*t+i}, v{vLg+2*t+i}, v{vMx+t}")
        a(f"v_mul_f32 v{vLg+2*t+i}, s{sT0}, v{vLg+2*t+i}")
        a(f"v_exp_f32 v{vLg+2*t+i}, v{vLg+2*t+i}")
for t in range(4):
    a(f"v_add_f32 v{vMx+t}, v{vLg+2*t}, v{vLg+2*t+1}")
allreduce("v_add_f32", [vMx+t for t in range(4)], [vTm+t for t in range(4)])
vPc, vPp = 16, 24
for t in range(4):
    a(f"v_rcp_f32 v{vMx+t}, v{vMx+t}")
for t in range(4):
    a(f"v_cndmask_b32 v{vTm}, v{vMx+t}, 0, {PARM}")
    a(f"v_cndmask_b32 v{vTm+1}, 0, v{vMx+t}, {PARM}")
    for i in range(2):
        a(f"v_mul_f32 v{vTm+2}, v{vLg+2*t+i}, v{vTm}")
        a(f"v_mul_f32 v{vTm+3}, v{vLg+2*t+i}, v{vTm+1}")
        a(f"v_cvt_pk_bf16_f32 v{vTm+2}, v{vTm+2}, v{vTm+3}")
        a(f"v_cndmask_b32 v{vPc+2*t+i}, 0, v{vTm+2}, {MC[i]}")
        a(f"v_cndmask_b32 v{vPp+2*t+i}, v{vTm+2}, 0, {MC[i]}")
vO = 32
for t in range(1, 5):
    a(f"v_mfma_f32_16x16x16_bf16 {V(vO+4*(t-1),4)}, {V(vVb+2*t,2)}, {V(vPc+2*(t-1),2)}, 0")
for t in range(1, 5):
    a(f"v_mfma_f32_16x16x16_bf16 {V(vO+4*(t-1),4)}, {V(vVb+2*(t-1),2)}, {V(vPp+2*(t-1),2)}, {V(vO+4*(t-1),4)}")
prof("a_pv")
vOP = 48
for t in range(4):
    a(f"v_cvt_pk_bf16_f32 v{vOP+2*t}, v{vO+4*t}, v{vO+4*t+1}")
    a(f"v_cvt_pk_bf16_f32 v{vOP+2*t+1}, v{vO+4*t+2}, v{vO+4*t+3}")
tile_to_lds(vOP, 56)
a(f"s_lshl_b32 s{sT0}, s{sG}, 16")
a(f"s_lshl_b32 s{sT1}, s{sJ}, 7")
a(f"s_add_u32 s{sT0}, s{sT0}, s{sT1}")
a(f"s_add_u32 s{sT0}, s{sT0}, s{sOOFF}")
a(f"s_add_u32 s{sT1}, s{sT0}, 32768")
a(f"buffer_store_dwordx4 {V(56,4)}, v{vT0}, {S4(SWS)}, s{sT0} offen sc1")
a(f"buffer_store_dwordx4 {V(60,4)}, v{vT0}, {S4(SWS)}, s{sT1} offen sc1")
vm.drain()
barrier()
signal(8, f"""s_lshl_b32 s{sT0}, s{sG}, 3
v_add_u32 v{vT1}, s{sT0}, v{vLANE}
v_lshlrev_b32 v{vT1}, {MB_SH}, v{vT1}
s_lshl_b32 s{sT0}, s{sJ}, 7
s_add_u32 s{sT0}, s{sT0}, s{sSIG}
s_add_u32 s{sT0}, s{sT0}, {MB_OFF}
v_add_u32 v{vT1}, s{sT0}, v{vT1}""")
prof("attn")
if STAGE <= 1:
    a("s_branch L_end")

a(f"s_cmp_lg_u32 s{sPH}, 0")
a("s_cbranch_scc1 L_p2")
for s in range(16):
    for h in range(2):
        a(f"ds_read_b64_tr_b16 {A(192+4*s+2*h,2)}, v{vTR} offset:{WOIMG + s*4096 + h*2048}")
    if s % 4 == 3: a("s_waitcnt lgkmcnt(0)")
a(f"v_lshlrev_b32 v{vT0}, 4, v{vTID}")
a(f"v_add_u32 v{vT0}, {HC + 32}, v{vT0}")
a(f"v_cmp_eq_u32 vcc, 255, v{vTID}")
for c in range(2):
    b = yH + 8*c
    a(f"v_cndmask_b32 v{b+4}, v{b+4}, 0, vcc")
    a(f"ds_write_b128 v{vT0}, {V(b,4)} offset:{2*c*HCP}")
    for i in range(4):
        a(f"v_alignbit_b32 v{160+i}, v{b+i+1}, v{b+i}, 16")
    a(f"ds_write_b128 v{vT0}, {V(160,4)} offset:{(2*c+1)*HCP}")
a(f"v_mov_b32 v160, 0\nv_mov_b32 v161, 0\nv_mov_b32 v162, 0\nv_mov_b32 v163, 0")
a(f"v_lshlrev_b32 v{vT1}, 4, v{vLANE}")
a(f"s_mov_b32 exec_lo, -1\ns_mov_b32 exec_hi, 0")
a(f"v_add_u32 v{vT2}, {UR + 4096}, v{vT1}")
a(f"ds_write_b128 v{vT2}, {V(160,4)}")
a(f"ds_write_b128 v{vT2}, {V(160,4)} offset:{URP}")
a(f"s_mov_b64 exec, 3")
a(f"v_add_u32 v{vT2}, {HC}, v{vT1}")
a(f"ds_write_b128 v{vT2}, {V(160,4)}")
a(f"ds_write_b128 v{vT2}, {V(160,4)} offset:{2*HCP}")
a(f"s_mov_b64 exec, 1")
a(f"ds_write_b128 v{vT2}, {V(160,4)} offset:{HCP}")
a(f"ds_write_b128 v{vT2}, {V(160,4)} offset:{3*HCP}")
a("s_mov_b64 exec, -1")
a(f"v_cmp_eq_u32 vcc, 0, v{vTID}")
a(f"s_and_saveexec_b64 s[{sEX}:{sEX+1}], vcc")
a(f"v_mov_b32 v{vT2}, {HC}")
for c in range(2):
    a(f"v_lshlrev_b32 v163, 16, v{yH+8*c}")
    a(f"ds_write_b128 v{vT2}, {V(160,4)} offset:{(2*c+1)*HCP + 16}")
    a("s_waitcnt lgkmcnt(0)")
a(f"s_mov_b64 exec, s[{sEX}:{sEX+1}]")
yF, yG, yAcc = 16, 48, 84
yFA, yGA = 116, 120
a(f"v_add_u32 v{vT0}, 1, v{vL15}")
a(f"v_and_b32 v{vT0}, 30, v{vT0}")
a(f"v_lshlrev_b32 v{vT0}, 1, v{vT0}")
a(f"v_lshlrev_b32 v{vT1}, 4, v{vQ}")
a(f"v_sub_u32 v{vT0}, v{vT0}, v{vT1}")
a(f"v_mov_b32 v{vT1}, {HCP}")
a(f"v_cndmask_b32 v{vT1}, v{vT1}, 0, {PARM}")
a(f"v_add_u32 v{vT0}, v{vT0}, v{vT1}")
a(f"s_lshr_b32 s{sT0}, s{sW}, 1")
a(f"s_mul_i32 s{sT1}, s{sT0}, {2*HCP}")
a(f"s_and_b32 s{sT2}, s{sW}, 1")
a(f"s_lshl_b32 s{sT2}, s{sT2}, 8")
a(f"s_sub_u32 s{sT1}, s{sT1}, s{sT2}")
for ap in range(4):
    a(f"s_add_u32 s{sT3}, s{sT1}, {HC + 4080 - 512*(2*ap+1) - 192}")
    a(f"v_add_u32 v{yFA+ap}, s{sT3}, v{vT0}")
a(f"v_lshlrev_b32 v{vT0}, 5, v{vL15}")
a(f"v_lshl_add_u32 v{vT0}, v{vQ}, 4, v{vT0}")
a(f"s_mul_i32 s{sT1}, s{sT0}, {URP}")
a(f"s_sub_u32 s{sT1}, s{sT1}, s{sT2}")
a(f"s_add_u32 s{sT1}, s{sT1}, {UR + 8144 - 512*14 - 192}")
a(f"v_sub_u32 v{yGA}, s{sT1}, v{vT0}")
a("s_waitcnt vmcnt(0) lgkmcnt(0)")
barrier()
prof("y2start")
if int(os.environ.get("PRETOUCH", "1")):
    a(f"v_lshlrev_b32 v{vT0}, 7, v{vLANE}")
    a(f"s_lshl_b32 s{sT0}, s{sW}, 11")
    a(f"s_add_u32 s{sT0}, s{sT0}, s{sMB}")
    a(f"s_add_u32 s{sT0}, s{sT0}, {MB_ST0}")
    set_exec(16)
    a(f"buffer_load_dword v216, v{vT0}, {S4(SWS)}, s{sT0} offen sc1")
    a(f"v_lshlrev_b32 v{vT0}, 10, v{vLANE}")
    a(f"s_lshl_b32 s{sT0}, s{sG}, 16")
    a(f"s_lshl_b32 s{sT1}, s{sJ}, 7")
    a(f"s_add_u32 s{sT0}, s{sT0}, s{sT1}")
    a(f"s_add_u32 s{sT0}, s{sT0}, s{sW16K}")
    a(f"s_add_u32 s{sT0}, s{sT0}, {O3_OFF}")
    a(f"buffer_load_dword v217, v{vT0}, {S4(SWS)}, s{sT0} offen sc1")
    a("s_mov_b64 exec, -1")
vRA = 122
def res_addr():
    a(f"v_lshlrev_b32 v{vRA}, 10, v{vL15}")
    a(f"v_lshl_add_u32 v{vRA}, v{vQ}, 3, v{vRA}")
    a(f"s_lshl_b32 s{sT4}, s{sG}, 16")
    a(f"s_lshl_b32 s{sT1}, s{sJ}, 7")
    a(f"s_add_u32 s{sT4}, s{sT4}, s{sT1}")
    a(f"s_lshl_b32 s{sT1}, s{sW}, 5")
    a(f"s_add_u32 s{sT4}, s{sT4}, s{sT1}")
def res_loads():
    res_addr()
    for t in range(4):
        a(f"s_add_u32 s{sT1}, s{sT4}, {16384*t}")
        a(f"buffer_load_dwordx2 {V(vX2+2*t,2)}, v{vRA}, {S4(SX)}, s{sT1} offen")
def o_groups():
    def mk(s):
        def g():
            if s == 0: k_reset()
            a(f"s_add_u32 s{sT1}, s{sXo}, s{sOOFF}")
            a(f"s_add_u32 m0, s{sW1K}, {OIMG + s*4096}")
            a(f"buffer_load_dwordx4 v{vXDW}, {S4(SWS)}, s{sT1} offen sc1 lds"); vm.issue(("o", s // 4))
            k_next()
        return g
    return [mk(s) for s in range(16)]
def o_dma():
    for g in o_groups(): g()
YB = [(16, 48), (144, 176)]
def y2_reads(rr):
    F, G = YB[rr & 1]
    out = []
    order = []
    for aa in range(8):
        ap, hi = aa // 2, aa % 2
        off = ((1 - hi) * 512 + (3 - rr) * 64) // 4
        out.append(ldsg(f"ds_read2_b32 {V(F+4*aa,2)}, v{yFA+ap} offset0:{off} offset1:{off+1}", ("y", rr)))
        out.append(ldsg(f"ds_read2_b32 {V(F+4*aa+2,2)}, v{yFA+ap} offset0:{off+2} offset1:{off+3}", ("y", rr)))
    for bb in range(8):
        b = 7 + bb
        out.append(ldsg(f"ds_read_b128 {V(G+4*bb,4)}, v{yGA} offset:{(14-b)*512 + (3-rr)*64}", ("y", rr)))
    return out
lg.reset()
for g in y2_reads(0): g()
for rr in range(4):
    a("s_waitcnt lgkmcnt(0)"); lg.reset()
    F, G = YB[rr & 1]
    seq = []
    started = set()
    for bb in range(8):
        b = 7 + bb
        for aa in range(8):
            c = b - aa
            if 0 <= c <= 7:
                first = (rr == 0 and c not in started); started.add(c)
                seq.append(f"v_mfma_f32_16x16x32_bf16 {V(yAcc+4*c,4)}, {V(F+4*aa,4)}, {V(G+4*bb,4)}, {'0' if first else V(yAcc+4*c,4)}")
    if rr == 2:
        a("s_waitcnt vmcnt(0)")
        async_check(8, MB_S2, "o1")
    og = o_groups()
    sp = {0: [res_loads], 1: [async_poll(MB_S2)], 2: og[:8], 3: og[8:]}[rr]
    a.weave(seq, y2_reads(rr + 1) if rr < 3 else [], sp)
prof("y2mfma")
barrier()
a(f"s_lshl_b32 s{sT0}, s{sW}, 12")
a(f"s_add_u32 s{sT0}, s{sT0}, {ACCX}")
a(f"v_add_u32 v{vT0}, s{sT0}, v{vA0}")
a(f"s_xor_b32 s{sT1}, s{sW}, 1")
a(f"s_lshl_b32 s{sT1}, s{sT1}, 12")
a(f"s_add_u32 s{sT1}, s{sT1}, {ACCX}")
a(f"v_add_u32 v{vT1}, s{sT1}, v{vA0}")
a(f"s_and_b32 s{sT2}, s{sW}, 1")
a(f"s_cmp_eq_u32 s{sT2}, 0")
a("s_cbranch_scc1 L_y2_even")
a.flush()
for i in range(4):
    a(f"ds_write_b128 v{vT0}, {V(yAcc+8*i,4)} offset:{1024*i}")
    for r in range(4): a(f"v_mov_b32 v{yF+4*i+r}, v{yAcc+8*i+4+r}")
a("s_branch L_y2_x")
a.label("L_y2_even")
a.flush()
for i in range(4):
    a(f"ds_write_b128 v{vT0}, {V(yAcc+8*i+4,4)} offset:{1024*i}")
    for r in range(4): a(f"v_mov_b32 v{yF+4*i+r}, v{yAcc+8*i+r}")
a.label("L_y2_x")
a("s_waitcnt lgkmcnt(0)")
barrier()
for i in range(4):
    a(f"ds_read_b128 {V(yG+4*i,4)}, v{vT1} offset:{1024*i}")
a(f"v_lshlrev_b32 v{vT0}, 5, v{vL15}")
a(f"v_lshl_add_u32 v{vT0}, v{vQ}, 3, v{vT0}")
a(f"s_lshr_b32 s{sT0}, s{sW}, 1")
a(f"s_mul_i32 s{sT1}, s{sT0}, {URP}")
a(f"s_lshl_b32 s{sT3}, s{sT2}, 9")
a(f"s_sub_u32 s{sT1}, s{sT1}, s{sT3}")
a(f"s_add_u32 s{sT1}, s{sT1}, {UR + 4088 - 3*1024}")
a(f"v_sub_u32 v{vT1}, s{sT1}, v{vT0}")
for i in range(4):
    a(f"ds_read_b64 {V(64+2*i,2)}, v{vT1} offset:{(3-i)*1024}")
a(f"s_lshl_b32 s{sT1}, s{sD}, 16")
a(f"s_and_b32 s{sT3}, s{sD}, 0xffff0000")
a(f"s_cmp_eq_u32 s{sT0}, 0")
a(f"s_cselect_b32 s{sT1}, s{sT1}, s{sT3}")
a(f"s_lshl_b32 s{sT3}, s{sL}, 1")
a(f"s_add_u32 s{sT3}, s{sT3}, s{sT0}")
a(f"s_lshl_b32 s{sT3}, s{sT3}, 12")
a(f"s_lshl_b32 s{sT4}, s{sT2}, 9")
a(f"s_add_u32 s{sT3}, s{sT3}, s{sT4}")
a(f"s_add_u32 s{sT3}, s{sT3}, {YT_OFF}")
a("s_waitcnt lgkmcnt(0)")
for i in range(4):
    y = yF + 4*i
    a(f"v_pk_add_f32 {V(y,2)}, {V(y,2)}, {V(yG+4*i,2)}")
    a(f"v_pk_add_f32 {V(y+2,2)}, {V(y+2,2)}, {V(yG+4*i+2,2)}")
    a(f"v_cvt_pk_bf16_f32 v{y}, v{y}, v{y+1}")
    a(f"v_cvt_pk_bf16_f32 v{y+2}, v{y+2}, v{y+3}")
    a(f"v_and_b32 v{y+1}, 0xffff0000, v{y}")
    a(f"v_lshlrev_b32 v{y}, 16, v{y}")
    a(f"v_and_b32 v{y+3}, 0xffff0000, v{y+2}")
    a(f"v_lshlrev_b32 v{y+2}, 16, v{y+2}")
    k0 = 64 + 2*i; u = 72
    a(f"v_and_b32 v{u}, 0xffff0000, v{k0+1}")
    a(f"v_lshlrev_b32 v{u+1}, 16, v{k0+1}")
    a(f"v_and_b32 v{u+2}, 0xffff0000, v{k0}")
    a(f"v_lshlrev_b32 v{u+3}, 16, v{k0}")
    for r in range(4): a(f"v_mul_f32 v{u+r}, s{sT1}, v{u+r}")
    a(f"v_cvt_pk_bf16_f32 v{u}, v{u}, v{u+1}")
    a(f"v_cvt_pk_bf16_f32 v{u+2}, v{u+2}, v{u+3}")
    a(f"v_and_b32 v{u+1}, 0xffff0000, v{u}")
    a(f"v_lshlrev_b32 v{u}, 16, v{u}")
    a(f"v_and_b32 v{u+3}, 0xffff0000, v{u+2}")
    a(f"v_lshlrev_b32 v{u+2}, 16, v{u+2}")
    a(f"v_pk_add_f32 {V(y,2)}, {V(y,2)}, {V(u,2)}")
    a(f"v_pk_add_f32 {V(y+2,2)}, {V(y+2,2)}, {V(u+2,2)}")
    a(f"v_cvt_pk_bf16_f32 v{y}, v{y}, v{y+1}")
    a(f"v_cvt_pk_bf16_f32 v{y+1}, v{y+2}, v{y+3}")
    a(f"buffer_store_dwordx2 {V(y,2)}, v{vT0}, {S4(SWS)}, s{sT3} offen offset:{1024*i} sc1")
vm.drain()
barrier()
signal(32, f"""s_lshr_b32 s{sT0}, s{sL}, 5
v_lshl_add_u32 v{vT1}, v{vLANE}, 3, s{sT0}
v_lshlrev_b32 v{vT1}, {MB_SH}, v{vT1}
s_and_b32 s{sT0}, s{sL}, 31
s_lshl_b32 s{sT0}, s{sT0}, 7
s_add_u32 s{sT0}, s{sT0}, {MB_OFF + MB_S3}
v_add_u32 v{vT1}, s{sT0}, v{vT1}""")
prof("y2")
if STAGE <= 2:
    a("s_branch L_end")
a("s_branch L_p2_gemm")

a.flush()
a.label("L_p2")
vm.reset(); lg.reset()
poll(8, f"s{sSIG}", "o")
prof("p2_owait")
vm.reset()
o_dma()
a.flush()
a.label("L_p2_gemm")
vOB = 121
a(f"v_add_u32 v{vOB}, {OIMG}, v{vFR}")
vPA = 16
vOF = 32
def p2_reads(s):
    for t in range(4):
        a(f"ds_read_b128 {V(vOF+16*(s&1)+4*t,4)}, v{vOB} offset:{s*4096 + t*1024}"); lg.issue(("of", s))
for s in range(16):
    if s % 4 == 0:
        vm.wait(("o", s // 4))
        barrier()
        p2_reads(s)
    if s % 4 != 3:
        p2_reads(s + 1)
    lg.wait(("of", s))
    for t in range(4):
        a(f"v_mfma_f32_16x16x32_bf16 {V(vPA+4*t,4)}, {A(192+4*s,4)}, {V(vOF+16*(s&1)+4*t,4)}, {'0' if s == 0 else V(vPA+4*t,4)}")
prof("p2_gemm")
vX1 = 64
vSt = 72
vW = 84
for t in range(4):
    c = vPA + 4*t
    a(f"v_cvt_pk_bf16_f32 v{c}, v{c}, v{c+1}")
    a(f"v_cvt_pk_bf16_f32 v{c+2}, v{c+2}, v{c+3}")
    a(f"v_and_b32 v{c+1}, 0xffff0000, v{c}")
    a(f"v_lshlrev_b32 v{c}, 16, v{c}")
    a(f"v_and_b32 v{c+3}, 0xffff0000, v{c+2}")
    a(f"v_lshlrev_b32 v{c+2}, 16, v{c+2}")
    a(f"v_lshlrev_b32 v{vW}, 16, v{vX2+2*t}")
    a(f"v_and_b32 v{vW+1}, 0xffff0000, v{vX2+2*t}")
    a(f"v_lshlrev_b32 v{vW+2}, 16, v{vX2+2*t+1}")
    a(f"v_and_b32 v{vW+3}, 0xffff0000, v{vX2+2*t+1}")
    a(f"v_pk_add_f32 {V(c,2)}, {V(c,2)}, {V(vW,2)}")
    a(f"v_pk_add_f32 {V(c+2,2)}, {V(c+2,2)}, {V(vW+2,2)}")
    a(f"v_cvt_pk_bf16_f32 v{vX1+2*t}, v{c}, v{c+1}")
    a(f"v_cvt_pk_bf16_f32 v{vX1+2*t+1}, v{c+2}, v{c+3}")
    a(f"v_lshlrev_b32 v{c}, 16, v{vX1+2*t}")
    a(f"v_and_b32 v{c+1}, 0xffff0000, v{vX1+2*t}")
    a(f"v_lshlrev_b32 v{c+2}, 16, v{vX1+2*t+1}")
    a(f"v_and_b32 v{c+3}, 0xffff0000, v{vX1+2*t+1}")
    a(f"v_pk_add_f32 {V(vW,2)}, {V(c,2)}, {V(c+2,2)}")
    a(f"v_pk_mul_f32 {V(vW+2,2)}, {V(c,2)}, {V(c,2)}")
    a(f"v_pk_fma_f32 {V(vW+2,2)}, {V(c+2,2)}, {V(c+2,2)}, {V(vW+2,2)}")
    a(f"v_add_f32 v{vSt+2*t}, v{vW}, v{vW+1}")
    a(f"v_add_f32 v{vSt+2*t+1}, v{vW+2}, v{vW+3}")
a(f"v_lshlrev_b32 v{vT0}, 9, v{vQ}")
a(f"v_lshl_add_u32 v{vT0}, v{vL15}, 3, v{vT0}")
a(f"s_lshl_b32 s{sT0}, s{sW}, 11")
a(f"s_add_u32 s{sT0}, s{sT0}, {PS}")
a(f"v_add_u32 v{vT0}, s{sT0}, v{vT0}")
for t in range(4):
    a(f"ds_write_b64 v{vT0}, {V(vSt+2*t,2)} offset:{128*t}")
a("s_waitcnt lgkmcnt(0)")
barrier()
prof("p2_ps")
a(f"v_lshlrev_b32 v{vT0}, 3, v{vLANE}")
a(f"v_add_u32 v{vT1}, {PS}, v{vT0}")
for half in range(2):
    for i in range(8):
        a(f"ds_read_b64 {V(vW+2*i+16*half,2)}, v{vT1} offset:{512*(8*half+i)}")
    a("s_waitcnt lgkmcnt(0)") if half == 0 else None
a("s_waitcnt lgkmcnt(0)")
n = 16
while n > 1:
    n //= 2
    for i in range(n):
        a(f"v_pk_add_f32 {V(vW+2*i,2)}, {V(vW+2*i,2)}, {V(vW+2*(i+n),2)}")
a(f"v_mov_b32 v{vW+2}, s{sN}")
a(f"v_mov_b32 v{vW+3}, s{sN+1}")
a(f"s_lshl_b32 s{sT0}, s{sG}, 3")
a(f"s_lshl_b32 s{sT1}, s{sW}, 1")
a(f"s_add_u32 s{sT0}, s{sT0}, s{sT1}")
a(f"s_lshl_b32 s{sT0}, s{sT0}, {MB_SH}")
a(f"s_lshl_b32 s{sT1}, s{sJ}, 10")
a(f"s_add_u32 s{sT0}, s{sT0}, s{sT1}")
a(f"s_add_u32 s{sT0}, s{sT0}, s{sSTAT}")
a(f"s_add_u32 s{sT0}, s{sT0}, {MB_OFF}")
a(f"s_add_u32 s{sT1}, s{sT0}, {MB_SZ}")
a(f"buffer_store_dwordx4 {V(vW,4)}, v{vA0}, {S4(SWS)}, s{sT0} offen sc1")
a(f"buffer_store_dwordx4 {V(vW,4)}, v{vA0}, {S4(SWS)}, s{sT1} offen sc1")
a(f"s_cmp_lg_u32 s{sPH}, 0")
a("s_cbranch_scc1 L_p2_noy2")
poll(32, MB_S3, "s3")
prof("p2_s3")
a(f"v_lshrrev_b32 v{vT0}, 3, v{vLANE}")
a(f"v_lshlrev_b32 v{vT0}, 12, v{vT0}")
a(f"v_and_b32 v{vT1}, 7, v{vLANE}")
a(f"v_lshl_add_u32 v{vT0}, v{vT1}, 4, v{vT0}")
a(f"s_lshl_b32 s{sT0}, s{sJ}, 18")
a(f"s_lshl_b32 s{sT1}, s{sG}, 7")
a(f"s_add_u32 s{sT0}, s{sT0}, s{sT1}")
a(f"s_lshl_b32 s{sT1}, s{sW}, 16")
a(f"s_add_u32 s{sT0}, s{sT0}, s{sT1}")
a(f"s_add_u32 s{sT0}, s{sT0}, {YT_OFF}")
a(f"s_lshl_b32 s{sT1}, s{sW}, 11")
a(f"s_add_u32 m0, s{sT1}, {YTT}")
a(f"buffer_load_dwordx4 v{vT0}, {S4(SWS)}, s{sT0} offen sc1 lds")
a(f"s_add_u32 s{sT0}, s{sT0}, 32768")
a(f"s_add_u32 m0, s{sT1}, {YTT + 1024}")
a(f"buffer_load_dwordx4 v{vT0}, {S4(SWS)}, s{sT0} offen sc1 lds")
a("s_waitcnt vmcnt(0)")
a(f"v_lshrrev_b32 v{vT1}, 2, v{vLANE}")
a(f"v_lshlrev_b32 v{vT1}, 7, v{vT1}")
a(f"v_and_b32 v{vT2}, 3, v{vLANE}")
a(f"v_lshl_add_u32 v{vT1}, v{vT2}, 3, v{vT1}")
a(f"s_lshl_b32 s{sT0}, s{sW}, 11")
a(f"s_add_u32 s{sT0}, s{sT0}, {YTT}")
a(f"v_add_u32 v{vT1}, s{sT0}, v{vT1}")
for t in range(4):
    a(f"ds_read_b64_tr_b16 {V(vYY+2*t,2)}, v{vT1} offset:{32*t}")
a("s_waitcnt lgkmcnt(0)")
a.flush()
a.label("L_p2_noy2")
prof("p2_pub")
a(f"s_add_u32 s{sT0}, s{sMB}, s{sSTAT}")
a(f"s_lshl_b32 s{sT1}, s{sW}, 11")
a(f"s_add_u32 s{sT0}, s{sT0}, s{sT1}")
a("s_branch L_poll_st1")
a.label("L_poll_st")
a("s_sleep 1")
a.label("L_poll_st1")
for i in range(2):
    a(f"buffer_load_dwordx4 {V(vW+4*i,4)}, v{vA0}, {S4(SWS)}, s{sT0} offen offset:{1024*i} sc1")
a("s_waitcnt vmcnt(0)")
a(f"v_cmp_ne_u64 vcc, s[{sN}:{sN+1}], {V(vW+2,2)}")
a(f"v_cmp_ne_u64 s[{sEX}:{sEX+1}], s[{sN}:{sN+1}], {V(vW+6,2)}")
a(f"s_or_b64 vcc, vcc, s[{sEX}:{sEX+1}]")
a("s_cbranch_vccnz L_poll_st")
a(f"v_pk_add_f32 {V(vW,2)}, {V(vW,2)}, {V(vW+4,2)}")
a(f"s_lshl_b32 s{sT1}, s{sW}, 9")
a(f"s_add_u32 s{sT1}, s{sT1}, {MISC + 4096}")
a(f"v_lshl_add_u32 v{vT1}, v{vLANE}, 3, s{sT1}")
a(f"ds_write_b64 v{vT1}, {V(vW,2)}")
a(f"v_lshlrev_b32 v{vT1}, 3, v{vLANE}")
a(f"v_add_u32 v{vT1}, {MISC + 4096}, v{vT1}")
a("s_waitcnt lgkmcnt(0)")
barrier()
prof("p2_stats")
for i in range(4):
    a(f"ds_read_b64 {V(vW+2*i,2)}, v{vT1} offset:{512*i}")
a("s_waitcnt lgkmcnt(0)")
a(f"v_pk_add_f32 {V(vW,2)}, {V(vW,2)}, {V(vW+2,2)}")
a(f"v_pk_add_f32 {V(vW+4,2)}, {V(vW+4,2)}, {V(vW+6,2)}")
a(f"v_pk_add_f32 {V(vW,2)}, {V(vW,2)}, {V(vW+4,2)}")
ln_math(vW, vW+1, vW+2, vW+3, vW+4, vW+5)
a(f"s_mul_i32 s{sT0}, s{sW}, 640")
a(f"s_add_u32 s{sT0}, s{sT0}, {ABW}")
a(f"v_lshl_add_u32 v{vT1}, v{vLANE}, 3, s{sT0}")
a(f"v_lshl_add_u32 v{vT2}, v{vL15}, 3, s{sT0}")
a(f"ds_write_b64 v{vT1}, {V(vW+2,2)}")
a("s_waitcnt lgkmcnt(0)")
for t in range(4):
    a(f"ds_read_b64 {V(vW+8+2*t,2)}, v{vT2} offset:{128*t}")
a("s_waitcnt lgkmcnt(0)")
for t in range(4):
    ab = V(vW+8+2*t, 2)
    x, y, u = vPA + 4*t, 104, 108
    a(f"v_lshlrev_b32 v{y}, 16, v{vYY+2*t}")
    a(f"v_and_b32 v{y+1}, 0xffff0000, v{vYY+2*t}")
    a(f"v_lshlrev_b32 v{y+2}, 16, v{vYY+2*t+1}")
    a(f"v_and_b32 v{y+3}, 0xffff0000, v{vYY+2*t+1}")
    for h in range(2):
        a(f"v_pk_fma_f32 {V(u+2*h,2)}, {V(x+2*h,2)}, {ab}, {ab} op_sel:[0,0,1] op_sel_hi:[1,0,1]")
        a(f"v_pk_fma_f32 {V(u+2*h,2)}, {V(u+2*h,2)}, {V(y+2*h,2)}, {V(x+2*h,2)}")
    a(f"v_cvt_pk_bf16_f32 v{vX2+2*t}, v{u}, v{u+1}")
    a(f"v_cvt_pk_bf16_f32 v{vX2+2*t+1}, v{u+2}, v{u+3}")
tile_to_lds(vX2, vW)
a(f"s_lshl_b32 s{sT4}, s{sG}, 16")
a(f"s_lshl_b32 s{sT1}, s{sJ}, 7")
a(f"s_add_u32 s{sT4}, s{sT4}, s{sT1}")
prof("p2_epi")
a(f"s_add_u32 s{sT1}, s{sT4}, 32768")
a(f"s_cmp_lg_u32 s{sPH}, 0")
a("s_cbranch_scc1 L_final")
a(f"buffer_store_dwordx4 {V(vW,4)}, v{vT0}, {S4(SX2)}, s{sT4} offen sc1")
a(f"buffer_store_dwordx4 {V(vW+4,4)}, v{vT0}, {S4(SX2)}, s{sT1} offen sc1")
vm.drain()
barrier()
signal(16, f"""s_lshl_b32 s{sT0}, s{sG}, 3
v_add_u32 v{vT1}, s{sT0}, v{vLANE}
v_lshlrev_b32 v{vT1}, {MB_SH}, v{vT1}
v_and_b32 v{vT2}, 8, v{vLANE}
v_lshl_add_u32 v{vT1}, v{vT2}, 7, v{vT1}
s_lshl_b32 s{sT0}, s{sJ}, 7
s_add_u32 s{sT0}, s{sT0}, {MB_OFF + MB_S5}
v_add_u32 v{vT1}, s{sT0}, v{vT1}""")
prof("p2_done")
if STAGE <= 3:
    a("s_branch L_end")

a(f"s_mov_b32 s{sPH}, 1")
a(f"s_mov_b32 s{sOOFF}, {O3_OFF}")
a(f"s_mov_b32 s{sSIG}, {MB_S6}")
a(f"s_mov_b32 s{sSTAT}, {MB_ST1}")
zero_stats()
a(f"s_mov_b32 s{sT1}, 0xffff")
a(f"s_cmp_eq_u32 s{sG}, 0")
a(f"s_cselect_b32 exec_lo, 0xff, s{sT1}")
a("s_mov_b32 exec_hi, 0")
poll(16, MB_S5, "x2", exec_set=True)
a(f"s_xor_b32 s{sN}, s{sN}, 1")
prof("p3_wait")
vm.reset(); lg.reset()
k_reset()
for s in range(8):
    dma_x(s, SX2); k_next()
for s in range(16):
    if s % 4 == 0:
        vm.wait(("x", s + 3), ("h", s // 4))
        barrier()
        lds_reads_x(s, s & 1)
    rd = lds_reads_x_groups(s + 1, (s + 1) & 1) if s % 4 != 3 else []
    lg.wait(("xa", s))
    fl = (dma_x_groups(8 + 2*s, SX2) + [k_next] + dma_x_groups(9 + 2*s, SX2) + [k_next]) if s < 4 else []
    mfmas(s, s & 1, False, (rd, fl))
prof("p3_gemm")
a.flush()
a("s_branch L_attn")

a.label("L_final")
a(f"buffer_store_dwordx4 {V(vW,4)}, v{vT0}, {S4(SOUT)}, s{sT4} offen")
a(f"buffer_store_dwordx4 {V(vW+4,4)}, v{vT0}, {S4(SOUT)}, s{sT1} offen")
prof("final")
a.label("L_end")
a("s_endpgm")
a.raw('.section .rodata,"a"')
a.raw(kernel_desc(NAME, 512, 102, 256))
out = sys.argv[1] if len(sys.argv) > 1 else "interleave_layers__sliding_local_dilated__ssm_conv_h3__prompt.s"
open(out, "w").write(a.text())
print("wrote", out, "lines", len(a.lines), "pad states", a.npad)
```

```python
import sys, os
sys.path.insert(0, os.path.dirname(os.path.abspath(__file__)))
from asmlib import *

NAME = "interleave_layers__sliding_local_dilated__ssm_conv_h3__prompt_kernel"
STAGE = int(os.environ.get("STAGE", "9"))
PROF = int(os.environ.get("PROF", "0"))
ENV = lambda k, d: int(os.environ.get(k, str(d)))

KVT_OFF = 0
YT_OFF = KVT_OFF
O1_OFF = 4 << 20
X2_OFF = O1_OFF
O3_OFF = 8 << 20
MB_OFF = 16 << 20
MB_SH = 14
MB_SZ = 1 << MB_SH
MB_S1, MB_S2, MB_S3, MB_S5, MB_S6 = 64, 0, 16, 32, 48
MB_ST = 4096
PROF_OFF = 32 << 20

XIMG = 0
WRING = 81920
NSLOT = 6
WOIMG = 0
UR, URP = 65536, 4608
HC, HCP = 74752, 4160
ACCX = HC
YTT = HC
PS = HC + 8192
OT = PS
MISC = 91392
ABW = MISC + 1024
OIMG = 98304
Y1T = 155648

sB, sW, sG, sJ, sKK0 = 2, 3, 4, 5, 6
SX, SWQ, SWO, SK_, SV_, SH, SOUT, SDBG, SWS, SX2, SSK = 8, 12, 16, 20, 24, 28, 32, 36, 40, 44, 48
sD = 52
sPAR, sMC0, sMC1 = 54, 56, 58
sL = 60
sT0, sT1, sT2, sT3, sT4 = 61, 62, 63, 64, 75
sW1K, sW16K, sW5K, sMB = 65, 66, 67, 68
sTILE = 69
sEX = 72
sN = 78
sXo, sW3K, sW64 = 80, 81, 82
sTP = 84
sB0, sB1 = 70, 71
sPT = 92

def S4(n): return f"s[{n}:{n+3}]"
def S2(n): return f"s[{n}:{n+1}]"
def V(n, k=1): return f"v{n}" if k == 1 else f"v[{n}:{n+k-1}]"
def A(n, k=1): return f"a{n}" if k == 1 else f"a[{n}:{n+k-1}]"

vTID, vLANE, vL15, vQ = 0, 1, 2, 3
vA0, vA1, vS0, vS1, vSH, vTR, vXD, vXDH, vWD = 4, 5, 6, 7, 8, 9, 10, 11, 12
vT0, vT1, vT2 = 13, 14, 15
vQT, vKT, vVV = 16, 32, 52
vXA = 84
vSO = 124
vSHF = 132
vONE = 136
vXDW, vKVD, vL128 = 140, 141, 142
yH = 144
vST = 196
vPL = 214
vNL = 220
vP0 = 222
vCS = 224
vTRW0, vTRW1, vWOD, vFR = 236, 237, 238, 239
vX2, vYY = 240, 248

a = Asm()
vm = Cnt(a, "vmcnt", 63)
lg = Cnt(a, "lgkmcnt", 15)
prof_idx = [0]
PARM, MC = S2(sPAR), [S2(sMC0), S2(sMC1)]

DBGTAGS = ["start", "y1done", "p1gemm", "a0_done", "y2", "p0_pub", "p0_stats", "p0_done", "p3_wait", "p3_gemm", "a1_done", "p1_gemm", "final"]
def prof_dbg(tag):
    if tag not in DBGTAGS: return
    e = a.bg_pause()
    i = DBGTAGS.index(tag)
    L = a.newlabel("L_pd")
    a(f"s_cmp_lg_u32 s{sL}, 37")
    a(f"s_cbranch_scc1 {L}")
    a(f"s_memtime {S2(sPT)}")
    if tag in ("start", "final"): a(f"s_memrealtime {S2(sPT+2)}")
    a("s_waitcnt lgkmcnt(0)")
    if tag == "start":
        a(f"s_mov_b32 s100, s{sPT}")
        a(f"s_mov_b32 s101, s{sPT+2}")
    a(f"s_sub_u32 s{sPT}, s{sPT}, s100")
    a(f"v_mov_b32 v218, s{sPT}")
    a(f"v_mov_b32 v219, {12 + 4*i}")
    a(f"v_cmp_eq_u32 {S2(sPT+6)}, 0, v{vTID}")
    a(f"s_and_saveexec_b64 {S2(sPT+4)}, {S2(sPT+6)}")
    a(f"buffer_store_dword v218, v219, {S4(SDBG)}, 0 offen")
    if tag == "final":
        a(f"s_sub_u32 s{sPT+2}, s{sPT+2}, s101")
        a(f"v_mov_b32 v218, s{sPT+2}")
        a(f"v_mov_b32 v219, 8")
        a(f"buffer_store_dword v218, v219, {S4(SDBG)}, 0 offen")
    a(f"s_mov_b64 exec, {S2(sPT+4)}")
    a.flush()
    a.label(L)
    a("s_waitcnt lgkmcnt(0)")
    lg.reset()
    a.bg_resume(e)

def prof(tag):
    if not PROF: return
    if PROF == 2: return prof_dbg(tag)
    e = a.bg_pause()
    i = prof_idx[0]; prof_idx[0] += 1
    a(f"s_memtime {S2(sPT)}")
    a("s_waitcnt lgkmcnt(0)")
    lg.reset()
    a(f"v_mov_b32 v218, s{sPT}")
    a(f"s_lshl_b32 s{sPT+2}, s{sL}, 9")
    a(f"s_add_u32 s{sPT+2}, s{sPT+2}, {PROF_OFF + 4*i}")
    a(f"v_mov_b32 v219, 0")
    a(f"v_cmp_eq_u32 {S2(sPT+6)}, 0, v{vTID}")
    a(f"s_and_saveexec_b64 {S2(sPT+4)}, {S2(sPT+6)}")
    a(f"buffer_store_dword v218, v219, {S4(SWS)}, s{sPT+2} offen")
    a(f"s_mov_b64 exec, {S2(sPT+4)}")
    vm.issue("prof")
    a.bg_resume(e)

def set_exec(n):
    a(f"s_mov_b32 exec_lo, {hex((1 << min(n,32)) - 1)}")
    a(f"s_mov_b32 exec_hi, {hex((1 << (n-32)) - 1) if n > 32 else 0}")

def barrier(): a("s_barrier")

def poll(n, mboff, name, exec_set=False):
    L = a.newlabel("L_poll_" + name)
    if not exec_set: set_exec(n)
    a(f"s_add_u32 s{sT0}, s{sMB}, {mboff}")
    a.flush()
    a.label(L)
    a(f"buffer_load_dwordx2 {V(vP0,2)}, v{vL128}, {S4(SWS)}, s{sT0} offen sc1")
    a("s_waitcnt vmcnt(0)")
    a(f"v_cmp_ne_u64 vcc, {S2(sN)}, {V(vP0,2)}")
    a(f"s_cbranch_vccnz {L}")
    a("s_mov_b64 exec, -1")
    vm.reset()

def async_poll(mboff):
    def g():
        a(f"s_add_u32 s{sB0}, s{sMB}, {mboff}")
        a(f"buffer_load_dwordx2 {V(vPL,2)}, v{vL128}, {S4(SWS)}, s{sB0} offen sc1"); vm.issue("apoll")
    return g

def async_check(n, mboff, name):
    L = a.newlabel("L_achk")
    vm.wait("apoll")
    set_exec(n)
    a(f"v_cmp_ne_u64 vcc, {S2(sN)}, {V(vPL,2)}")
    a("s_mov_b64 exec, -1")
    a(f"s_cbranch_vccz {L}")
    q = list(vm.q)
    poll(n, mboff, name)
    vm.q = q
    a.flush()
    a.label(L)

def signal(n, addr_code):
    L = a.newlabel("L_sig")
    a(f"s_cmp_lg_u32 s{sW}, 0")
    a(f"s_cbranch_scc1 {L}")
    a(addr_code)
    a(f"v_mov_b32 v{vP0}, s{sN}")
    a(f"v_mov_b32 v{vP0+1}, s{sN+1}")
    set_exec(n)
    a(f"buffer_store_dwordx2 {V(vP0,2)}, v{vT1}, {S4(SWS)}, 0 offen sc1")
    a("s_mov_b64 exec, -1")
    a.flush()
    a.label(L)

def group_sig(mboff, n=8):
    extra = f"v_and_b32 v{vT2}, 8, v{vLANE}\nv_lshl_add_u32 v{vT1}, v{vT2}, 7, v{vT1}\n" if n > 8 else ""
    return f"""s_lshl_b32 s{sT0}, s{sG}, 3
v_add_u32 v{vT1}, s{sT0}, v{vLANE}
v_lshlrev_b32 v{vT1}, {MB_SH}, v{vT1}
{extra}s_lshl_b32 s{sT0}, s{sJ}, 7
s_add_u32 s{sT0}, s{sT0}, {MB_OFF + mboff}
v_add_u32 v{vT1}, s{sT0}, v{vT1}"""

def allreduce(op, regs, tmps):
    for sw in ("v_permlane16_swap_b32", "v_permlane32_swap_b32"):
        for r, t in zip(regs, tmps): a(f"v_mov_b32 v{t}, v{r}")
        for r, t in zip(regs, tmps): a(f"{sw} v{r}, v{t}")
        for r, t in zip(regs, tmps): a(f"{op} v{r}, v{r}, v{t}")

def ln_math(sets):
    steps = [
        "v_mul_f32 v{t0}, 0x3b000000, v{S}", "v_mul_f32 v{t1}, 0x3b000000, v{SS}",
        "v_fma_f32 v{t1}, -v{t0}, v{t0}, v{t1}", "v_max_f32 v{t1}, 0, v{t1}",
        "v_cvt_pk_bf16_f32 v{t0}, v{t0}, v{t1}", "v_and_b32 v{t1}, 0xffff0000, v{t0}",
        "v_lshlrev_b32 v{t0}, 16, v{t0}", "v_add_f32 v{t1}, 0x3727c5ac, v{t1}",
        "v_cvt_pk_bf16_f32 v{t1}, v{t1}, v{t1}", "v_lshlrev_b32 v{t1}, 16, v{t1}",
        "v_sqrt_f32 v{t1}, v{t1}", "v_cvt_pk_bf16_f32 v{t1}, v{t1}, v{t1}",
        "v_lshlrev_b32 v{t1}, 16, v{t1}", "v_rcp_f32 v{A}, v{t1}",
        "v_mul_f32 v{B}, -v{t0}, v{A}"]
    for st in steps:
        for (S, SS, A_, B_, t0, t1) in sets:
            a(st.format(S=S, SS=SS, A=A_, B=B_, t0=t0, t1=t1))

def ldsg(line, tag):
    def g(): a(line); lg.issue(tag)
    return g
def vmg(line, tag):
    def g(): a(line); vm.issue(tag)
    return g

def tile_to_lds(src, tmp):
    a(f"v_lshrrev_b32 v{vT0}, 1, v{vQ}")
    a(f"s_lshl_b32 s{sT0}, s{sW}, 1")
    a(f"v_add_u32 v{vT0}, s{sT0}, v{vT0}")
    a(f"v_and_b32 v{vT1}, 7, v{vL15}")
    a(f"v_xor_b32 v{vT0}, v{vT0}, v{vT1}")
    a(f"v_lshlrev_b32 v{vT0}, 4, v{vT0}")
    a(f"v_lshl_add_u32 v{vT0}, v{vL15}, 7, v{vT0}")
    a(f"v_and_b32 v{vT1}, 1, v{vQ}")
    a(f"v_lshl_add_u32 v{vT0}, v{vT1}, 3, v{vT0}")
    a(f"v_add_u32 v{vT0}, {OT}, v{vT0}")
    for t in range(4):
        a(f"ds_write_b64 v{vT0}, {V(src+2*t,2)} offset:{2048*t}")
    a(f"v_lshlrev_b32 v{vT1}, 4, v{vTID}")
    a(f"v_add_u32 v{vT1}, {OT}, v{vT1}")
    a(f"v_lshrrev_b32 v{vT2}, 3, v{vTID}")
    a(f"v_xor_b32 v{vT0}, v{vTID}, v{vT2}")
    a(f"v_and_b32 v{vT0}, 7, v{vT0}")
    a(f"v_lshlrev_b32 v{vT0}, 4, v{vT0}")
    a(f"v_lshl_add_u32 v{vT0}, v{vT2}, 10, v{vT0}")
    a("s_waitcnt lgkmcnt(0)")
    barrier()
    a(f"ds_read_b128 {V(tmp,4)}, v{vT1}")
    a(f"ds_read_b128 {V(tmp+4,4)}, v{vT1} offset:4096")
    a("s_waitcnt lgkmcnt(0)")

a.raw("; @launch grid=(256,1,1) block=(256,1,1) lds=163840")
a.raw('.amdgcn_target "amdgcn-amd-amdhsa--gfx950"\n.text')
a.raw(kernel_header(NAME))
a(f"s_cmp_ge_u32 s{sB}, 256")
a("s_cbranch_scc1 L_end")
a("s_load_dwordx16 s[76:91], s[0:1], 0")
a("s_load_dwordx8 s[92:99], s[0:1], 64")
a(f"v_and_b32 v{vLANE}, 63, v{vTID}")
a(f"v_lshrrev_b32 v{vT0}, 6, v{vTID}")
a(f"v_and_b32 v{vL15}, 15, v{vTID}")
a(f"v_readfirstlane_b32 s{sW}, v{vT0}")
a(f"v_bfe_u32 v{vQ}, v{vTID}, 4, 2")
a(f"v_lshlrev_b32 v{vA0}, 4, v{vLANE}")
a(f"v_lshrrev_b32 v{vT0}, 2, v{vL15}")
a(f"v_and_b32 v{vT0}, 2, v{vT0}")
a(f"v_xor_b32 v{vT0}, v{vT0}, v{vQ}")
a(f"v_lshlrev_b32 v{vFR}, 6, v{vL15}")
a(f"v_lshl_add_u32 v{vFR}, v{vT0}, 4, v{vFR}")
a(f"v_add_u32 v{vA1}, 40960, v{vFR}")
a(f"v_lshlrev_b32 v{vL128}, 7, v{vLANE}")
a(f"v_and_b32 v{vL128}, 0xfff, v{vL128}")
a(f"s_and_b32 s{sT0}, s{sB}, 7")
a(f"s_lshr_b32 s{sT1}, s{sB}, 3")
a(f"s_lshr_b32 s{sT2}, s{sT1}, 3")
a(f"s_lshl_b32 s{sG}, s{sT0}, 2")
a(f"s_add_u32 s{sG}, s{sG}, s{sT2}")
a(f"s_and_b32 s{sJ}, s{sT1}, 7")
a(f"s_lshl_b32 s{sKK0}, s{sT2}, 2")
a(f"s_lshl_b32 s{sT2}, s{sJ}, 1")
a(f"s_add_u32 s{sKK0}, s{sKK0}, s{sT2}")
a(f"s_lshr_b32 s{sT2}, s{sT0}, 1")
a(f"s_add_u32 s{sKK0}, s{sKK0}, s{sT2}")
a(f"s_and_b32 s{sKK0}, s{sKK0}, 15")
a(f"s_lshl_b32 s{sL}, s{sG}, 3")
a(f"s_add_u32 s{sL}, s{sL}, s{sJ}")
a(f"s_lshl_b32 s{sW1K}, s{sW}, 10")
a(f"s_lshl_b32 s{sW16K}, s{sW}, 14")
a(f"s_mul_i32 s{sW5K}, s{sW}, 5120")
a(f"s_lshl_b32 s{sMB}, s{sL}, {MB_SH}")
a(f"s_add_u32 s{sMB}, s{sMB}, {MB_OFF}")
a(f"s_lshl_b32 s{sTILE}, s{sG}, 16")
a(f"s_lshl_b32 s{sT1}, s{sJ}, 7")
a(f"s_add_u32 s{sTILE}, s{sTILE}, s{sT1}")
a(f"v_add_u32 v{vS0}, s{sW1K}, v{vFR}")
a(f"v_add_u32 v{vS0}, 1024, v{vS0}")
a(f"v_add_u32 v{vS1}, 40960, v{vS0}")
a(f"v_add_u32 v{vSH}, s{sW5K}, v{vFR}")
a(f"v_lshrrev_b32 v{vT1}, 5, v{vLANE}")
a(f"v_lshlrev_b32 v{vTR}, 10, v{vT1}")
a(f"v_bfe_u32 v{vT0}, v{vLANE}, 2, 3")
a(f"v_lshl_add_u32 v{vTR}, v{vT0}, 7, v{vTR}")
a(f"v_lshrrev_b32 v{vT0}, 1, v{vT0}")
a(f"v_xor_b32 v{vT0}, s{sW}, v{vT0}")
a(f"v_lshl_add_u32 v{vTR}, v{vT0}, 5, v{vTR}")
a(f"v_and_b32 v{vT0}, 3, v{vLANE}")
a(f"v_lshl_add_u32 v{vTR}, v{vT0}, 3, v{vTR}")
a(f"v_lshl_add_u32 v{vTRW0}, v{vT1}, 11, v{vTR}")
a(f"v_add_u32 v{vTRW1}, {WRING + 36864}, v{vTRW0}")
a(f"v_add_u32 v{vTRW0}, {WRING}, v{vTRW0}")
a(f"v_lshrrev_b32 v{vT0}, 2, v{vLANE}")
a(f"v_lshlrev_b32 v{vXD}, 10, v{vT0}")
a(f"v_lshrrev_b32 v{vT1}, 4, v{vLANE}")
a(f"v_and_b32 v{vT1}, 2, v{vT1}")
a(f"v_and_b32 v{vT0}, 3, v{vLANE}")
a(f"v_xor_b32 v{vT0}, v{vT0}, v{vT1}")
a(f"v_lshl_add_u32 v{vXD}, v{vT0}, 4, v{vXD}")
a(f"s_lshl_b32 s{sT0}, s{sG}, 16")
a(f"v_add_u32 v{vXD}, s{sT0}, v{vXD}")
a(f"v_add_u32 v{vXDH}, {-16384 & 0xffffffff}, v{vXD}")
a(f"v_add_u32 v{vXDW}, s{sW16K}, v{vXD}")
a(f"v_bfe_u32 v{vT0}, v{vLANE}, 3, 2")
a(f"v_lshrrev_b32 v{vT1}, 5, v{vLANE}")
a(f"v_lshl_add_u32 v{vT0}, v{vT1}, 3, v{vT0}")
a(f"s_and_b32 s{sT0}, s{sW}, 1")
a(f"s_lshl_b32 s{sT0}, s{sT0}, 4")
a(f"s_lshr_b32 s{sT1}, s{sW}, 1")
a(f"s_lshl_b32 s{sT1}, s{sT1}, 2")
a(f"s_add_u32 s{sT0}, s{sT0}, s{sT1}")
a(f"v_add_u32 v{vT0}, s{sT0}, v{vT0}")
a(f"v_lshrrev_b32 v{vT1}, 4, v{vLANE}")
a(f"v_lshlrev_b32 v{vT1}, 1, v{vT1}")
a(f"v_and_b32 v{vT2}, 7, v{vLANE}")
a(f"v_xor_b32 v{vT1}, v{vT1}, v{vT2}")
a(f"v_lshlrev_b32 v{vT1}, 4, v{vT1}")
a(f"s_lshl_b32 s{sT0}, s{sJ}, 7")
a(f"v_add_u32 v{vT1}, s{sT0}, v{vT1}")
a(f"v_lshl_add_u32 v{vWOD}, v{vT0}, 10, v{vT1}")
a(f"v_mul_u32_u24 v{vWD}, 3072, v{vT0}")
a(f"v_add_u32 v{vWD}, v{vWD}, v{vT1}")
a(f"v_and_b32 v{vT0}, 1, v{vLANE}")
a(f"v_cmp_eq_u32 {PARM}, 1, v{vT0}")
a(f"v_lshl_add_u32 v{vT1}, v{vQ}, 2, v{vT0}")
a(f"v_cmp_le_u32 {MC[0]}, v{vT1}, v{vL15}")
a(f"v_add_u32 v{vT1}, 2, v{vT1}")
a(f"v_cmp_le_u32 {MC[1]}, v{vT1}, v{vL15}")
for i in range(4):
    a(f"v_mov_b32 v{vONE+i}, 0x3f803f80")
a("s_waitcnt lgkmcnt(0)")
P = lambda i: 76 + 2 * i
srd(a, SX, P(0), 2048 * 1024)
srd(a, SWQ, P(1), 512 * 3072)
srd(a, SWO, P(2), 512 * 1024)
srd(a, SK_, P(4), 2048 * 1024)
srd(a, SV_, P(5), 2048 * 1024)
srd(a, SSK, P(6), 4096)
srd(a, SH, P(7), 512 * 4096)
srd(a, SOUT, P(9), 2048 * 1024)
srd(a, SDBG, P(10), 256)
srd(a, SWS, P(11), 1 << 28)
srd(a, SX2, P(11), 2048 * 1024, off=X2_OFF)
a(f"s_lshl_b32 s{sT0}, s{sL}, 2")
a(f"s_load_dword s{sD}, {S2(P(8))}, s{sT0}")
a("s_waitcnt lgkmcnt(0)") if PROF else None
a(f"s_mul_i32 s{sT3}, s{sW}, 3072")
a(f"s_lshl_b32 s{sT4}, s{sW}, 6")

def k_reset(): a(f"s_lshl_b32 s{sXo}, s{sKK0}, 6")
def k_next():
    a(f"s_add_u32 s{sXo}, s{sXo}, 64")
    a(f"s_and_b32 s{sXo}, s{sXo}, 1023")
def dma_x_groups(s, srd_):
    sc = " sc1" if srd_ == SX2 else ""
    def g1():
        a(f"s_add_u32 m0, s{sW1K}, {XIMG + (s*5+1)*1024}")
        a(f"buffer_load_dwordx4 v{vXDW}, {S4(srd_)}, s{sXo} offen{sc} lds"); vm.issue(("x", s))
    def g2():
        a(f"s_add_u32 s{sB0}, s{sXo}, s{sW64}")
        a(f"s_and_b32 s{sB0}, s{sB0}, 1023")
        a(f"s_add_u32 m0, s{sW5K}, {XIMG + s*5*1024}")
        a(f"buffer_load_dwordx4 v{vXDH}, {S4(srd_)}, s{sB0} offen{sc} lds"); vm.issue(("h", s // 4))
    return [g1, g2] if s % 4 == 0 else [g1]
def dma_w_groups(s):
    def g():
        a(f"s_mul_i32 s{sB1}, s{sXo}, 1536")
        a(f"s_add_u32 m0, s{sW3K}, {WRING + (s % NSLOT)*12288}")
        for p in range(3):
            a(f"buffer_load_dwordx4 v{vWD}, {S4(SWQ)}, s{sB1} offen offset:{1024*p} lds"); vm.issue(("w", s))
    return [g]
def wo_group(i):
    def g():
        a(f"s_lshl_b32 s{sB1}, s{sXo}, 9")
        a(f"s_add_u32 m0, s{sW1K}, {WOIMG + i*4096}")
        a(f"buffer_load_dwordx4 v{vWOD}, {S4(SWO)}, s{sB1} offen lds"); vm.issue("wo")
        k_next()
    return g
def h_group():
    a(f"v_lshlrev_b32 v{vT0}, 4, v{vTID}")
    a(f"s_lshl_b32 s{sB0}, s{sL}, 13")
    for c in range(2):
        if c: a(f"s_add_u32 s{sB0}, s{sB0}, 4096")
        a(f"buffer_load_dwordx4 {V(yH+8*c,4)}, v{vT0}, {S4(SH)}, s{sB0} offen"); vm.issue("h")
        a(f"buffer_load_dword v{yH+8*c+4}, v{vT0}, {S4(SH)}, s{sB0} offen offset:16"); vm.issue("h")
yK, yV, ySK, yA = 144, 164, 172, 188
def y1_loads():
    a.comment("Y1 loads: thread -> c8 = tid&7 (8 channels), rp = tid>>3 (row pair)")
    a(f"v_and_b32 v{vT0}, 7, v{vTID}")
    a(f"v_lshrrev_b32 v{vT1}, 3, v{vTID}")
    a(f"v_lshlrev_b32 v{vT2}, 11, v{vT1}")
    a(f"v_lshl_add_u32 v{vT2}, v{vT0}, 4, v{vT2}")
    a(f"v_add_u32 v{vT2}, s{sTILE}, v{vT2}")
    for i in range(5): a(f"v_add_u32 v{yA+i}, {(i-3)*1024}, v{vT2}")
    a(f"s_lshl_b32 s{sT1}, s{sJ}, 9")
    a(f"v_lshlrev_b32 v{yA+5}, 6, v{vT0}")
    for i in range(5):
        a(f"buffer_load_dwordx4 {V(yK+4*i,4)}, v{yA+i}, {S4(SK_)}, 0 offen"); vm.issue("y1")
    for i in range(2):
        a(f"buffer_load_dwordx4 {V(yV+4*i,4)}, v{yA+3+i}, {S4(SV_)}, 0 offen"); vm.issue("y1")
    for i in range(4):
        a(f"buffer_load_dwordx4 {V(ySK+4*i,4)}, v{yA+5}, {S4(SSK)}, s{sT1} offen offset:{16*i}"); vm.issue("y1")
def y1_compute():
    a.comment("Y1 compute")
    vm.wait("y1")
    R, TP, VVv, K0, K1 = 240, 188, 250, 254, 212
    yO = lambda i: yK + (i >> 1) + 4 * (i & 1)
    for m in range(4):
        for i in range(5):
            a(f"v_lshlrev_b32 v{R+2*i}, 16, v{yK+4*i+m}")
            a(f"v_and_b32 v{R+2*i+1}, 0xffff0000, v{yK+4*i+m}")
        for c in range(2):
            a(f"v_lshlrev_b32 v{TP+0+c}, 16, v{ySK+4*m+2*c}")
            a(f"v_and_b32 v{TP+2+c}, 0xffff0000, v{ySK+4*m+2*c}")
            a(f"v_lshlrev_b32 v{TP+4+c}, 16, v{ySK+4*m+2*c+1}")
            a(f"v_and_b32 v{TP+6+c}, 0xffff0000, v{ySK+4*m+2*c+1}")
        for i in range(2):
            a(f"v_lshlrev_b32 v{VVv+2*i}, 16, v{yV+4*i+m}")
            a(f"v_and_b32 v{VVv+2*i+1}, 0xffff0000, v{yV+4*i+m}")
        for (Kx, r0) in ((K0, 0), (K1, 1)): a(f"v_pk_mul_f32 {V(Kx,2)}, {V(R+2*r0,2)}, {V(TP+6,2)}")
        for d in (1, 2, 3):
            for (Kx, r0) in ((K0, 0), (K1, 1)):
                a(f"v_pk_fma_f32 {V(Kx,2)}, {V(R+2*(r0+d),2)}, {V(TP+6-2*d,2)}, {V(Kx,2)}")
        for Kx in (K0, K1):
            a(f"v_cvt_pk_bf16_f32 v{Kx+1}, v{Kx}, v{Kx+1}")
            a(f"v_lshlrev_b32 v{Kx}, 16, v{Kx+1}")
            a(f"v_and_b32 v{Kx+1}, 0xffff0000, v{Kx+1}")
        a(f"v_pk_mul_f32 {V(K0,2)}, {V(K0,2)}, {V(VVv,2)}")
        a(f"v_pk_mul_f32 {V(K1,2)}, {V(K1,2)}, {V(VVv+2,2)}")
        a(f"v_cvt_pk_bf16_f32 v{yO(2*m)}, v{K1}, v{K0}")
        a(f"v_cvt_pk_bf16_f32 v{yO(2*m+1)}, v{K1+1}, v{K0+1}")
    a(f"v_and_b32 v{vT0}, 7, v{vTID}")
    a(f"v_lshrrev_b32 v{vT1}, 3, v{vTID}")
    a(f"v_sub_u32 v{vT1}, 31, v{vT1}")
    a(f"v_lshlrev_b32 v{vT2}, 2, v{vT0}")
    a(f"v_xor_b32 v{vT1}, v{vT1}, v{vT2}")
    a(f"v_lshlrev_b32 v{vT1}, 2, v{vT1}")
    a(f"v_lshl_add_u32 v{vT1}, v{vT0}, 10, v{vT1}")
    a(f"v_add_u32 v{vT1}, {Y1T}, v{vT1}")
    for i in range(8): a(f"ds_write_b32 v{vT1}, v{yO(i)} offset:{128*i}")
    a(f"v_lshrrev_b32 v{vT0}, 3, v{vTID}")
    a(f"v_and_b32 v{vT1}, 7, v{vTID}")
    a(f"v_lshrrev_b32 v{vT2}, 3, v{vT0}")
    a(f"v_xor_b32 v{TP}, v{vT1}, v{vT2}")
    a(f"v_lshlrev_b32 v{TP}, 4, v{TP}")
    a(f"v_lshl_add_u32 v{TP}, v{vT0}, 7, v{TP}")
    a(f"v_add_u32 v{TP}, {Y1T}, v{TP}")
    a(f"v_xor_b32 v{TP+1}, 64, v{TP}")
    a(f"v_lshlrev_b32 v{TP+2}, 12, v{vT0}")
    a(f"v_lshl_add_u32 v{TP+2}, v{vT1}, 4, v{TP+2}")
    a(f"s_lshl_b32 s{sT0}, s{sJ}, 18")
    a(f"s_lshl_b32 s{sT1}, s{sG}, 7")
    a(f"s_sub_u32 s{sT0}, s{sT0}, s{sT1}")
    a(f"s_add_u32 s{sT0}, s{sT0}, {KVT_OFF + 3968}")
    a(f"s_add_u32 s{sT1}, s{sT0}, {32*4096}")
    a("s_waitcnt lgkmcnt(0)")
    barrier()
    a(f"ds_read_b128 {V(yV,4)}, v{TP}")
    a(f"ds_read_b128 {V(yV+4,4)}, v{TP+1} offset:4096")
    a("s_waitcnt lgkmcnt(0)")
    a(f"buffer_store_dwordx4 {V(yV,4)}, v{TP+2}, {S4(SWS)}, s{sT0} offen sc1"); vm.issue("y1st")
    a(f"buffer_store_dwordx4 {V(yV+4,4)}, v{TP+2}, {S4(SWS)}, s{sT1} offen sc1"); vm.issue("y1st")
    prof("y1done")
S1SIG = f"""s_lshl_b32 s{sT0}, s{sJ}, 5
v_add_u32 v{vT1}, s{sT0}, v{vLANE}
v_lshlrev_b32 v{vT1}, {MB_SH}, v{vT1}
s_lshl_b32 s{sT0}, s{sG}, 7
s_add_u32 s{sT0}, s{sT0}, {MB_OFF + MB_S1}
v_add_u32 v{vT1}, s{sT0}, v{vT1}"""
def o_groups(ooff):
    def mk(s):
        def g():
            if s == 0: k_reset()
            a(f"s_add_u32 s{sB1}, s{sXo}, {ooff}")
            a(f"s_add_u32 m0, s{sW1K}, {OIMG + s*4096}")
            a(f"buffer_load_dwordx4 v{vXDW}, {S4(SWS)}, s{sB1} offen sc1 lds"); vm.issue(("o", s // 4))
            k_next()
        return g
    return [mk(s) for s in range(16)]

a(f"s_mov_b32 s{sW3K}, s{sT3}")
a(f"s_mov_b32 s{sW64}, s{sT4}")
prof("start")
DEPTH = NSLOT - 1
k_reset()
for s in range(DEPTH):
    for g in dma_x_groups(s, SX) + dma_w_groups(s): g()
    k_next()
a(f"s_or_b32 s{sT2}, s{sL}, s{sW}")
a(f"s_cmp_lg_u32 s{sT2}, 0")
a("s_cbranch_scc1 L_nonce_done")
a(f"s_memrealtime {S2(sN)}")
a("s_waitcnt lgkmcnt(0)")
a(f"s_or_b32 s{sN+1}, s{sN+1}, 0x80000000")
a(f"s_andn2_b32 s{sN}, s{sN}, 1")
a(f"v_mov_b32 v{vP0}, s{sN}")
a(f"v_mov_b32 v{vP0+1}, s{sN+1}")
a(f"v_mov_b32 v{vT0}, 0")
a("s_mov_b64 exec, 1")
a(f"buffer_store_dwordx2 {V(vP0,2)}, v{vT0}, {S4(SDBG)}, 0 offen sc1")
a("s_mov_b64 exec, -1")
a.flush()
a.label("L_nonce_done")

def x_reads(s, buf):
    out = []
    base, off = (vFR, s*5*1024) if s < 8 else (vA1, (s-8)*5*1024)
    for t in range(5):
        out.append(ldsg(f"ds_read_b128 {V(vXA+20*buf+4*t,4)}, v{base} offset:{XIMG + off + t*1024}", ("xa", s)))
    base, off = (vS0, s*5120) if s < 8 else (vS1, (s-8)*5120)
    out.append(ldsg(f"ds_read_b128 {V(vSO+4*buf,4)}, v{base} offset:{XIMG + off}", ("xa", s)))
    if s % 4 == 3:
        out.append(ldsg(f"ds_read_b128 {V(vSHF,4)}, v{vSH} offset:{XIMG + (s//4)*20480}", ("xa", s)))
    return out

def mfmas(s, buf, with_cs, early=(), spread=()):
    first = (s == 0)
    def C(r): return "0" if first else V(r, 4)
    wq, wk, wv = A(12*s, 4), A(12*s+4, 4), A(12*s+8, 4)
    xa = lambda t: V(vXA + 20*buf + 4*t, 4)
    M = "v_mfma_f32_16x16x32_bf16"
    seq = []
    for t in range(5):
        seq.append(f"{M} {V(vKT+4*t,4)}, {wk}, {xa(t)}, {C(vKT+4*t)}")
        seq.append(f"{M} {V(vVV+4*t,4)}, {xa(t)}, {wv}, {C(vVV+4*t)}")
        if t: seq.append(f"{M} {V(vQT+4*(t-1),4)}, {wq}, {xa(t)}, {C(vQT+4*(t-1))}")
    if with_cs:
        seq.append(f"{M} {V(vCS,4)}, {wq}, {V(vONE,4)}, {C(vCS)}")
        seq.append(f"{M} {V(vCS+4,4)}, {wk}, {V(vONE,4)}, {C(vCS+4)}")
        seq.append(f"{M} {V(vCS+8,4)}, {V(vONE,4)}, {wv}, {C(vCS+8)}")
    so = V(vSO + 4*buf, 4)
    seq.append(f"{M} {V(vST,4)}, {V(vONE,4)}, {so}, {C(vST)}")
    seq.append(f"{M} {V(vST+4,4)}, {so}, {so}, {C(vST+4)}")
    if s % 4 == 3:
        c0 = "0" if s == 3 else None
        seq.append(f"{M} {V(vST+8,4)}, {V(vONE,4)}, {V(vSHF,4)}, {c0 or V(vST+8,4)}")
        seq.append(f"{M} {V(vST+12,4)}, {V(vSHF,4)}, {V(vSHF,4)}, {c0 or V(vST+12,4)}")
    a.weave(seq, list(early), list(spread))

Y1LD, Y1AT, S1AT = ENV("Y1LD", -1), ENV("Y1AT", 5), ENV("S1AT", 11)
if Y1LD < 0: y1_loads()
for s in range(16):
    vm.wait(("x", s), ("w", s), ("h", s // 4))
    if s == S1AT: vm.wait("y1st", "nonce")
    barrier()
    fl = (dma_x_groups(s + DEPTH, SX) + dma_w_groups(s + DEPTH) + [k_next]) if s + DEPTH < 16 else []
    if s == 0:
        for g in fl: g()
    if s == 3:
        a(f"v_mov_b32 v{vT0}, 0")
        a(f"buffer_load_dwordx2 {V(vNL,2)}, v{vT0}, {S4(SDBG)}, 0 offen sc1"); vm.issue("nonce")
    if s == S1AT:
        a(f"v_readfirstlane_b32 s{sN}, v{vNL}")
        a(f"v_readfirstlane_b32 s{sN+1}, v{vNL+1}")
        a(f"s_cmp_eq_u32 s{sN+1}, 0")
        a("s_cbranch_scc1 L_s1_defer")
        signal(32, S1SIG)
        a.label("L_s1_defer")
    if s in (11, 12, 13): fl = [wo_group(4*(s-11) + i) for i in range(4)]
    if s == 13: fl.append(h_group)
    if s == 14: fl = [wo_group(12 + i) for i in range(3)]
    rd = x_reads(s, s & 1)
    for p in range(3):
        for h in range(2):
            off = (s % NSLOT) * 12288 + p * 1024 + h * 6144
            rd.append(ldsg(f"ds_read_b64_tr_b16 {A(12*s+4*p+2*h,2)}, v{vTRW0 if off < 36864 else vTRW1} offset:{off % 36864}", ("xa", s)))
    if s > 0: mfmas(s - 1, (s - 1) & 1, True, rd, fl)
    else:
        for g in rd: g()
    lg.drain()
    if s == Y1LD: y1_loads()
    if s == Y1AT: y1_compute()
barrier()
wo_group(15)()
mfmas(15, 1, True)
prof("p1gemm")
a(f"s_cmp_lg_u32 s{sN+1}, 0")
a("s_cbranch_scc1 L_nonce_ok")
a(f"v_mov_b32 v{vT0}, 0")
a.flush()
a.label("L_nonce_chk")
a(f"buffer_load_dwordx2 {V(vNL,2)}, v{vT0}, {S4(SDBG)}, 0 offen sc1")
a("s_waitcnt vmcnt(0)")
a(f"v_readfirstlane_b32 s{sN}, v{vNL}")
a(f"v_readfirstlane_b32 s{sN+1}, v{vNL+1}")
a(f"s_cmp_eq_u32 s{sN+1}, 0")
a("s_cbranch_scc1 L_nonce_chk")
signal(32, S1SIG)
a.label("L_nonce_ok")

def attention(ph, ooff, sig):
    T = 84
    prof(f"a{ph}_begin")
    a(f"v_lshlrev_b32 v{vT0}, 3, v{vL15}")
    a(f"s_lshl_b32 s{sT0}, s{sW}, 7")
    a(f"v_add_u32 v{vT0}, s{sT0}, v{vT0}")
    a(f"v_add_u32 v{vT0}, {MISC}, v{vT0}")
    for i, m in ((1, 0x22222222), (2, 0x44444444), (3, 0x88888888)):
        a(f"s_mov_b32 s{sEX}, {hex(m)}")
        a(f"s_mov_b32 s{sEX+1}, {hex(m)}")
        for base in (vST, vST + 8):
            a(f"v_cndmask_b32 v{base+1}, v{base+4 if i == 1 else base+1}, v{base+4+i}, {S2(sEX)}")
    e = a.bg_pause()
    a("s_mov_b32 exec_lo, 0x00f0000f")
    a("s_mov_b32 exec_hi, 0xf0000f00")
    a(f"ds_write_b64 v{vT0}, {V(vST,2)}")
    a(f"ds_write_b64 v{vT0}, {V(vST+8,2)} offset:512")
    a("s_mov_b64 exec, -1")
    a.bg_resume(e)
    a(f"v_lshlrev_b32 v{vT0}, 3, v{vLANE}")
    a(f"v_add_u32 v{vT0}, {MISC}, v{vT0}")
    a(f"v_lshlrev_b32 v{vT1}, 3, v{vL15}")
    a(f"v_add_u32 v{vT1}, {MISC}, v{vT1}")
    a("s_waitcnt lgkmcnt(0)")
    barrier()
    a(f"ds_read_b64 {V(T,2)}, v{vT0}")
    for i in range(4):
        a(f"ds_read_b64 {V(T+2+2*i,2)}, v{vT1} offset:{512 + 128*i}")
    a(f"s_mul_i32 s{sT0}, s{sW}, 640")
    a(f"s_add_u32 s{sT0}, s{sT0}, {ABW}")
    a(f"v_lshl_add_u32 v{vT0}, v{vLANE}, 2, s{sT0}")
    a(f"v_lshl_add_u32 v{vT1}, v{vL15}, 2, s{sT0}")
    a(f"v_lshl_add_u32 v{vT2}, v{vQ}, 4, s{sT0}")
    a("s_waitcnt lgkmcnt(0)")
    a(f"v_pk_add_f32 {V(T+2,2)}, {V(T+2,2)}, {V(T+4,2)}")
    a(f"v_pk_add_f32 {V(T+6,2)}, {V(T+6,2)}, {V(T+8,2)}")
    a(f"v_pk_add_f32 {V(T+2,2)}, {V(T+2,2)}, {V(T+6,2)}")
    ln_math([(T, T+1, T+10, T+11, T+12, T+13), (T+2, T+3, T+14, T+15, T+16, T+17)])
    a(f"ds_write2_b32 v{vT0}, v{T+10}, v{T+11} offset0:16 offset1:96")
    a(f"ds_write2_b32 v{vT1}, v{T+14}, v{T+15} offset0:0 offset1:80")
    a("s_waitcnt lgkmcnt(0)")
    vAB, vAV = 84, 94
    for t in range(5):
        a(f"ds_read2_b32 {V(vAB+2*t,2)}, v{vT1} offset0:{16*t} offset1:{80+16*t}")
    for t in range(5):
        a(f"ds_read_b128 {V(vAV+8*t,4)}, v{vT2} offset:{64*t}")
        a(f"ds_read_b128 {V(vAV+8*t+4,4)}, v{vT2} offset:{320+64*t}")
    a("s_waitcnt lgkmcnt(10)")
    vQb, vKb, vVb, vU = 160, 168, 178, 188
    def norm_qk(acc, cs, t, dst):
        ab = V(vAB + 2*t, 2)
        for h in range(2):
            a(f"v_pk_mul_f32 {V(vU+2*h,2)}, {V(cs+2*h,2)}, {ab} op_sel:[0,1] op_sel_hi:[1,1]")
            a(f"v_pk_fma_f32 {V(vU+2*h,2)}, {V(acc+2*h,2)}, {ab}, {V(vU+2*h,2)} op_sel:[0,0,0] op_sel_hi:[1,0,1]")
        for h in range(2):
            a(f"v_cvt_pk_bf16_f32 v{dst+h}, v{vU+2*h}, v{vU+2*h+1}")
    for t in range(5):
        norm_qk(vKT + 4*t, vCS + 4, t, vKb + 2*t)
        if t: norm_qk(vQT + 4*(t-1), vCS, t, vQb + 2*(t-1))
    vSc, vSp = 16, 32
    for t in range(1, 5):
        a(f"v_mfma_f32_16x16x16_bf16 {V(vSc+4*(t-1),4)}, {V(vKb+2*t,2)}, {V(vQb+2*(t-1),2)}, 0")
        a(f"v_mfma_f32_16x16x16_bf16 {V(vSp+4*(t-1),4)}, {V(vKb+2*(t-1),2)}, {V(vQb+2*(t-1),2)}, 0")
    a("s_waitcnt lgkmcnt(0)")
    for t in range(5):
        for h in range(2):
            a(f"v_pk_mul_f32 {V(vU+4+2*h,2)}, {V(vAV+8*t+4+2*h,2)}, {V(vCS+8,2)} op_sel:[0,0] op_sel_hi:[1,0]")
            a(f"v_pk_fma_f32 {V(vU+4+2*h,2)}, {V(vVV+4*t+2*h,2)}, {V(vAV+8*t+2*h,2)}, {V(vU+4+2*h,2)}")
        for h in range(2):
            a(f"v_cvt_pk_bf16_f32 v{vVb+2*t+h}, v{vU+4+2*h}, v{vU+4+2*h+1}")
    prof(f"a{ph}_norm")
    e = a.bg_pause()
    Ln = a.newlabel("L_nomask")
    a(f"s_cmp_lg_u32 s{sG}, 0")
    a(f"s_cbranch_scc1 {Ln}")
    a.flush()
    for i in range(4): a(f"v_mov_b32 v{vSp+i}, 0xf149f2ca")
    a.flush()
    a.label(Ln)
    a.bg_resume(e)
    vLg, vMx, vTm = 48, 56, 60
    for t in range(4):
        for i in range(2):
            a(f"v_cndmask_b32 v{vSc+4*t+2*i}, v{vSc+4*t+2*i}, v{vSc+4*t+2*i+1}, {PARM}")
            a(f"v_cndmask_b32 v{vSp+4*t+2*i}, v{vSp+4*t+2*i}, v{vSp+4*t+2*i+1}, {PARM}")
            a(f"v_cndmask_b32 v{vLg+2*t+i}, v{vSp+4*t+2*i}, v{vSc+4*t+2*i}, {MC[i]}")
        a(f"v_cvt_pk_bf16_f32 v{vLg+2*t+1}, v{vLg+2*t}, v{vLg+2*t+1}")
        a(f"v_lshlrev_b32 v{vLg+2*t}, 16, v{vLg+2*t+1}")
        a(f"v_and_b32 v{vLg+2*t+1}, 0xffff0000, v{vLg+2*t+1}")
        a(f"v_max_f32 v{vMx+t}, v{vLg+2*t}, v{vLg+2*t+1}")
    allreduce("v_max_f32", [vMx+t for t in range(4)], [vTm+t for t in range(4)])
    a(f"s_mov_b32 s{sT0}, 0x3eb8aa3b")
    for t in range(4):
        for i in range(2): a(f"v_sub_f32 v{vLg+2*t+i}, v{vLg+2*t+i}, v{vMx+t}")
    for t in range(4):
        for i in range(2): a(f"v_mul_f32 v{vLg+2*t+i}, s{sT0}, v{vLg+2*t+i}")
    for t in range(4):
        for i in range(2): a(f"v_exp_f32 v{vLg+2*t+i}, v{vLg+2*t+i}")
    for t in range(4): a(f"v_add_f32 v{vMx+t}, v{vLg+2*t}, v{vLg+2*t+1}")
    allreduce("v_add_f32", [vMx+t for t in range(4)], [vTm+t for t in range(4)])
    vPc, vPp = 16, 24
    for t in range(4): a(f"v_rcp_f32 v{vMx+t}, v{vMx+t}")
    for t in range(4):
        a(f"v_cndmask_b32 v{vTm}, v{vMx+t}, 0, {PARM}")
        a(f"v_cndmask_b32 v{vTm+1}, 0, v{vMx+t}, {PARM}")
        for i in range(2):
            a(f"v_mul_f32 v{vTm+2}, v{vLg+2*t+i}, v{vTm}")
            a(f"v_mul_f32 v{vTm+3}, v{vLg+2*t+i}, v{vTm+1}")
            a(f"v_cvt_pk_bf16_f32 v{vTm+2}, v{vTm+2}, v{vTm+3}")
            a(f"v_cndmask_b32 v{vPc+2*t+i}, 0, v{vTm+2}, {MC[i]}")
            a(f"v_cndmask_b32 v{vPp+2*t+i}, v{vTm+2}, 0, {MC[i]}")
    vO = 32
    for t in range(1, 5):
        a(f"v_mfma_f32_16x16x16_bf16 {V(vO+4*(t-1),4)}, {V(vVb+2*t,2)}, {V(vPc+2*(t-1),2)}, 0")
    for t in range(1, 5):
        a(f"v_mfma_f32_16x16x16_bf16 {V(vO+4*(t-1),4)}, {V(vVb+2*(t-1),2)}, {V(vPp+2*(t-1),2)}, {V(vO+4*(t-1),4)}")
    prof(f"a{ph}_pv")
    a.bg_flush()
    if ph == 0:
        async_check(32, MB_S1, "s1")
        a(f"s_lshl_b32 s{sT0}, s{sL}, 13")
        a(f"s_lshl_b32 s{sT1}, s{sW}, 11")
        a(f"s_add_u32 s{sT0}, s{sT0}, s{sT1}")
        a(f"s_add_u32 s{sT0}, s{sT0}, {KVT_OFF}")
        a(f"s_lshr_b32 s{sT2}, s{sW}, 1")
        a(f"s_mul_i32 s{sT2}, s{sT2}, {URP - 4096}")
        a(f"s_add_u32 s{sT2}, s{sT2}, s{sT1}")
        a(f"s_add_u32 m0, s{sT2}, {UR}")
        a(f"buffer_load_dwordx4 v{vA0}, {S4(SWS)}, s{sT0} offen sc1 lds")
        a(f"buffer_load_dwordx4 v{vA0}, {S4(SWS)}, s{sT0} offen offset:1024 sc1 lds")
    vOP = 48
    for t in range(4):
        a(f"v_cvt_pk_bf16_f32 v{vOP+2*t}, v{vO+4*t}, v{vO+4*t+1}")
        a(f"v_cvt_pk_bf16_f32 v{vOP+2*t+1}, v{vO+4*t+2}, v{vO+4*t+3}")
    tile_to_lds(vOP, 56)
    a(f"s_add_u32 s{sT0}, s{sTILE}, {ooff}")
    a(f"s_add_u32 s{sT1}, s{sT0}, 32768")
    a(f"buffer_store_dwordx4 {V(56,4)}, v{vT0}, {S4(SWS)}, s{sT0} offen sc1")
    a(f"buffer_store_dwordx4 {V(60,4)}, v{vT0}, {S4(SWS)}, s{sT1} offen sc1")
    vm.drain()
    barrier()
    signal(8, group_sig(sig))
    prof(f"a{ph}_done")

def pretouch():
    mode = ENV("PRETOUCH", 2)
    a(f"s_lshl_b32 s{sB0}, s{sW}, 11")
    a(f"s_add_u32 s{sB0}, s{sB0}, s{sMB}")
    a(f"s_add_u32 s{sB0}, s{sB0}, {MB_ST}")
    if mode == 1:
        a(f"buffer_store_dwordx4 {V(vONE,4)}, v{vA0}, {S4(SWS)}, s{sB0} offen sc1"); vm.issue("pt")
        a(f"buffer_store_dwordx4 {V(vONE,4)}, v{vA0}, {S4(SWS)}, s{sB0} offen offset:1024 sc1"); vm.issue("pt")
    else:
        a(f"v_lshlrev_b32 v217, 7, v{vL15}")
        a(f"buffer_load_dword v216, v217, {S4(SWS)}, s{sB0} offen sc1"); vm.issue("pt")

a.bg_start(([pretouch] if ENV("PRETOUCH", 2) else []) + [async_poll(MB_S1)], ENV("BGEVERY", 8))
attention(0, O1_OFF, MB_S2)
if STAGE <= 1: a("s_branch L_end")

a(f"v_mov_b32 v160, 0\nv_mov_b32 v161, 0\nv_mov_b32 v162, 0\nv_mov_b32 v163, 0")
a(f"s_mov_b32 exec_lo, -1\ns_mov_b32 exec_hi, 0")
a(f"v_add_u32 v{vT2}, {UR + 4096}, v{vA0}")
a(f"ds_write_b128 v{vT2}, {V(160,4)}")
a(f"ds_write_b128 v{vT2}, {V(160,4)} offset:{URP}")
a(f"s_mov_b64 exec, 3")
a(f"v_add_u32 v{vT2}, {HC}, v{vA0}")
a(f"ds_write_b128 v{vT2}, {V(160,4)}")
a(f"ds_write_b128 v{vT2}, {V(160,4)} offset:{2*HCP}")
a(f"s_mov_b64 exec, 1")
a(f"ds_write_b128 v{vT2}, {V(160,4)} offset:{HCP}")
a(f"ds_write_b128 v{vT2}, {V(160,4)} offset:{3*HCP}")
a(f"s_mov_b64 exec, -1")
a(f"v_lshlrev_b32 v{vT0}, 4, v{vTID}")
a(f"v_add_u32 v{vT0}, {HC + 32}, v{vT0}")
a(f"v_cmp_eq_u32 vcc, 255, v{vTID}")
for c in range(2):
    b = yH + 8*c
    a(f"v_cndmask_b32 v{b+4}, v{b+4}, 0, vcc")
    a(f"ds_write_b128 v{vT0}, {V(b,4)} offset:{2*c*HCP}")
    for i in range(4): a(f"v_alignbit_b32 v{164+4*c+i}, v{b+i+1}, v{b+i}, 16")
    a(f"ds_write_b128 v{vT0}, {V(164+4*c,4)} offset:{(2*c+1)*HCP}")
a(f"v_cmp_eq_u32 vcc, 0, v{vTID}")
a(f"s_and_saveexec_b64 {S2(sEX)}, vcc")
a(f"v_mov_b32 v{vT2}, {HC}")
a(f"v_lshlrev_b32 v163, 16, v{yH}")
a(f"ds_write_b128 v{vT2}, {V(160,4)} offset:{HCP + 16}")
a(f"v_mov_b32 v172, 0\nv_mov_b32 v173, 0\nv_mov_b32 v174, 0")
a(f"v_lshlrev_b32 v175, 16, v{yH+8}")
a(f"ds_write_b128 v{vT2}, {V(172,4)} offset:{3*HCP + 16}")
a(f"s_mov_b64 exec, {S2(sEX)}")
yF, yG, yAcc, yFA, yGA = 16, 48, 84, 116, 120
a(f"v_add_u32 v{vT0}, 1, v{vL15}")
a(f"v_and_b32 v{vT0}, 30, v{vT0}")
a(f"v_lshlrev_b32 v{vT0}, 1, v{vT0}")
a(f"v_lshlrev_b32 v{vT1}, 4, v{vQ}")
a(f"v_sub_u32 v{vT0}, v{vT0}, v{vT1}")
a(f"v_mov_b32 v{vT1}, {HCP}")
a(f"v_cndmask_b32 v{vT1}, v{vT1}, 0, {PARM}")
a(f"v_add_u32 v{vT0}, v{vT0}, v{vT1}")
a(f"s_lshr_b32 s{sT0}, s{sW}, 1")
a(f"s_mul_i32 s{sT1}, s{sT0}, {2*HCP}")
a(f"s_and_b32 s{sT2}, s{sW}, 1")
a(f"s_lshl_b32 s{sT2}, s{sT2}, 8")
a(f"s_sub_u32 s{sT1}, s{sT1}, s{sT2}")
for ap in range(4):
    a(f"s_add_u32 s{sT3}, s{sT1}, {HC + 4080 - 512*(2*ap+1) - 192}")
    a(f"v_add_u32 v{yFA+ap}, s{sT3}, v{vT0}")
a(f"v_lshlrev_b32 v{vT0}, 5, v{vL15}")
a(f"v_lshl_add_u32 v{vT0}, v{vQ}, 4, v{vT0}")
a(f"s_mul_i32 s{sT1}, s{sT0}, {URP}")
a(f"s_sub_u32 s{sT1}, s{sT1}, s{sT2}")
a(f"s_add_u32 s{sT1}, s{sT1}, {UR + 8144 - 512*14 - 192}")
a(f"v_sub_u32 v{yGA}, s{sT1}, v{vT0}")
a("s_waitcnt lgkmcnt(0)")
barrier()
prof("y2start")
vm.reset()
vRA = 122
def res_loads():
    a(f"v_lshlrev_b32 v{vRA}, 10, v{vL15}")
    a(f"v_lshl_add_u32 v{vRA}, v{vQ}, 3, v{vRA}")
    a(f"s_lshl_b32 s{sB1}, s{sW}, 5")
    a(f"s_add_u32 s{sB1}, s{sB1}, s{sTILE}")
    for t in range(4):
        if t: a(f"s_add_u32 s{sB1}, s{sB1}, 16384")
        a(f"buffer_load_dwordx2 {V(vX2+2*t,2)}, v{vRA}, {S4(SX)}, s{sB1} offen"); vm.issue("res")
YB = [(16, 48), (144, 176)]
def y2_reads(rr):
    F, G = YB[rr & 1]
    out = []
    for aa in range(8):
        ap, hi = aa // 2, aa % 2
        off = ((1 - hi) * 512 + (3 - rr) * 64) // 4
        out.append(ldsg(f"ds_read2_b32 {V(F+4*aa,2)}, v{yFA+ap} offset0:{off} offset1:{off+1}", ("y", rr)))
        out.append(ldsg(f"ds_read2_b32 {V(F+4*aa+2,2)}, v{yFA+ap} offset0:{off+2} offset1:{off+3}", ("y", rr)))
    for bb in range(8):
        out.append(ldsg(f"ds_read_b128 {V(G+4*bb,4)}, v{yGA} offset:{(7-bb)*512 + (3-rr)*64}", ("y", rr)))
    return out
def wo_reads(lo, hi):
    return [ldsg(f"ds_read_b64_tr_b16 {A(192+4*s+2*h,2)}, v{vTR} offset:{WOIMG + s*4096 + h*2048}", "wot")
            for s in range(lo, hi) for h in range(2)]
lg.reset()
for g in y2_reads(0): g()
OG = o_groups(O1_OFF)
for rr in range(4):
    a("s_waitcnt lgkmcnt(0)"); lg.reset()
    F, G = YB[rr & 1]
    seq = []; started = set()
    for bb in range(8):
        for aa in range(8):
            c = 7 + bb - aa
            if 0 <= c <= 7:
                first = (rr == 0 and c not in started); started.add(c)
                seq.append(f"v_mfma_f32_16x16x32_bf16 {V(yAcc+4*c,4)}, {V(F+4*aa,4)}, {V(G+4*bb,4)}, {'0' if first else V(yAcc+4*c,4)}")
    if rr == 2: async_check(8, MB_S2, "o1")
    sp = {0: [async_poll(MB_S2), res_loads], 1: [], 2: OG[:8], 3: OG[8:]}[rr]
    early = (y2_reads(rr + 1) + wo_reads(3*rr, 3*rr+3)) if rr < 3 else wo_reads(9, 16)
    a.weave(seq, early, sp)
prof("y2mfma")
a("s_waitcnt lgkmcnt(0)")
barrier()
a(f"s_lshl_b32 s{sT0}, s{sW}, 12")
a(f"s_add_u32 s{sT0}, s{sT0}, {ACCX}")
a(f"v_add_u32 v{vT0}, s{sT0}, v{vA0}")
a(f"s_xor_b32 s{sT1}, s{sW}, 1")
a(f"s_lshl_b32 s{sT1}, s{sT1}, 12")
a(f"s_add_u32 s{sT1}, s{sT1}, {ACCX}")
a(f"v_add_u32 v{vT1}, s{sT1}, v{vA0}")
a(f"s_and_b32 s{sT2}, s{sW}, 1")
a(f"s_cmp_eq_u32 s{sT2}, 0")
a("s_cbranch_scc1 L_y2_even")
a.flush()
for i in range(4):
    a(f"ds_write_b128 v{vT0}, {V(yAcc+8*i,4)} offset:{1024*i}")
    for r in range(4): a(f"v_mov_b32 v{yF+4*i+r}, v{yAcc+8*i+4+r}")
a("s_branch L_y2_x")
a.label("L_y2_even")
a.flush()
for i in range(4):
    a(f"ds_write_b128 v{vT0}, {V(yAcc+8*i+4,4)} offset:{1024*i}")
    for r in range(4): a(f"v_mov_b32 v{yF+4*i+r}, v{yAcc+8*i+r}")
a.label("L_y2_x")
a(f"v_lshlrev_b32 v{vT0}, 5, v{vL15}")
a(f"v_lshl_add_u32 v{vT0}, v{vQ}, 3, v{vT0}")
a(f"s_lshr_b32 s{sT0}, s{sW}, 1")
a(f"s_mul_i32 s{sT1}, s{sT0}, {URP}")
a(f"s_lshl_b32 s{sT3}, s{sT2}, 9")
a(f"s_sub_u32 s{sT1}, s{sT1}, s{sT3}")
a(f"s_add_u32 s{sT1}, s{sT1}, {UR + 4088 - 3*1024}")
a(f"v_sub_u32 v{vT2}, s{sT1}, v{vT0}")
for i in range(4): a(f"ds_read_b64 {V(64+2*i,2)}, v{vT2} offset:{(3-i)*1024}")
a(f"s_lshl_b32 s{sT1}, s{sD}, 16")
a(f"s_and_b32 s{sT3}, s{sD}, 0xffff0000")
a(f"s_cmp_eq_u32 s{sT0}, 0")
a(f"s_cselect_b32 s{sT1}, s{sT1}, s{sT3}")
a(f"s_lshl_b32 s{sT3}, s{sL}, 1")
a(f"s_add_u32 s{sT3}, s{sT3}, s{sT0}")
a(f"s_lshl_b32 s{sT3}, s{sT3}, 12")
a(f"s_lshl_b32 s{sT4}, s{sT2}, 9")
a(f"s_add_u32 s{sT3}, s{sT3}, s{sT4}")
a(f"s_add_u32 s{sT3}, s{sT3}, {YT_OFF}")
a("s_waitcnt lgkmcnt(0)")
barrier()
for i in range(4): a(f"ds_read_b128 {V(yG+4*i,4)}, v{vT1} offset:{1024*i}")
for i in range(4):
    k0, u = 64 + 2*i, 144 + 4*i
    a(f"v_and_b32 v{u}, 0xffff0000, v{k0+1}")
    a(f"v_lshlrev_b32 v{u+1}, 16, v{k0+1}")
    a(f"v_and_b32 v{u+2}, 0xffff0000, v{k0}")
    a(f"v_lshlrev_b32 v{u+3}, 16, v{k0}")
    for r in range(4): a(f"v_mul_f32 v{u+r}, s{sT1}, v{u+r}")
    a(f"v_cvt_pk_bf16_f32 v{u}, v{u}, v{u+1}")
    a(f"v_cvt_pk_bf16_f32 v{u+2}, v{u+2}, v{u+3}")
    a(f"v_and_b32 v{u+1}, 0xffff0000, v{u}")
    a(f"v_lshlrev_b32 v{u}, 16, v{u}")
    a(f"v_and_b32 v{u+3}, 0xffff0000, v{u+2}")
    a(f"v_lshlrev_b32 v{u+2}, 16, v{u+2}")
a("s_waitcnt lgkmcnt(0)")
for i in range(4):
    y, u = yF + 4*i, 144 + 4*i
    a(f"v_pk_add_f32 {V(y,2)}, {V(y,2)}, {V(yG+4*i,2)}")
    a(f"v_pk_add_f32 {V(y+2,2)}, {V(y+2,2)}, {V(yG+4*i+2,2)}")
    a(f"v_cvt_pk_bf16_f32 v{y}, v{y}, v{y+1}")
    a(f"v_cvt_pk_bf16_f32 v{y+2}, v{y+2}, v{y+3}")
    a(f"v_and_b32 v{y+1}, 0xffff0000, v{y}")
    a(f"v_lshlrev_b32 v{y}, 16, v{y}")
    a(f"v_and_b32 v{y+3}, 0xffff0000, v{y+2}")
    a(f"v_lshlrev_b32 v{y+2}, 16, v{y+2}")
    a(f"v_pk_add_f32 {V(y,2)}, {V(y,2)}, {V(u,2)}")
    a(f"v_pk_add_f32 {V(y+2,2)}, {V(y+2,2)}, {V(u+2,2)}")
    a(f"v_cvt_pk_bf16_f32 v{y}, v{y}, v{y+1}")
    a(f"v_cvt_pk_bf16_f32 v{y+1}, v{y+2}, v{y+3}")
    a(f"buffer_store_dwordx2 {V(y,2)}, v{vT0}, {S4(SWS)}, s{sT3} offen offset:{1024*i} sc1"); vm.issue("yst")
S3SIG = f"""s_lshr_b32 s{sT0}, s{sL}, 5
v_lshl_add_u32 v{vT1}, v{vLANE}, 3, s{sT0}
v_lshlrev_b32 v{vT1}, {MB_SH}, v{vT1}
s_and_b32 s{sT0}, s{sL}, 31
s_lshl_b32 s{sT0}, s{sT0}, 7
s_add_u32 s{sT0}, s{sT0}, {MB_OFF + MB_S3}
v_add_u32 v{vT1}, s{sT0}, v{vT1}"""
prof("y2")
if STAGE <= 2:
    vm.drain()
    a("s_branch L_end")

def p2(ph):
    vOB, vPA, vOF = 121, 16, 32
    a(f"v_add_u32 v{vOB}, {OIMG}, v{vFR}")
    def rd(s):
        return [ldsg(f"ds_read_b128 {V(vOF+16*(s&1)+4*t,4)}, v{vOB} offset:{s*4096 + t*1024}", ("of", s)) for t in range(4)]
    for s in range(16):
        if s % 4 == 0:
            vm.wait(("o", s // 4))
            if ph == 1 or s == 0: barrier()
            if ph == 1 or s == 0:
                for g in rd(s): g()
        lg.wait(("of", s))
        nxt = rd(s + 1) if (s < 15 and (ph == 0 or s % 4 != 3)) else []
        seq = [f"v_mfma_f32_16x16x32_bf16 {V(vPA+4*t,4)}, {A(192+4*s,4)}, {V(vOF+16*(s&1)+4*t,4)}, {'0' if s == 0 else V(vPA+4*t,4)}" for t in range(4)]
        a.weave(seq, nxt, [])
    prof(f"p{ph}_gemm")
    vX1, vSt, vW = 64, 72, 84
    for t in range(4):
        c = vPA + 4*t
        a(f"v_cvt_pk_bf16_f32 v{c}, v{c}, v{c+1}")
        a(f"v_cvt_pk_bf16_f32 v{c+2}, v{c+2}, v{c+3}")
        a(f"v_and_b32 v{c+1}, 0xffff0000, v{c}")
        a(f"v_lshlrev_b32 v{c}, 16, v{c}")
        a(f"v_and_b32 v{c+3}, 0xffff0000, v{c+2}")
        a(f"v_lshlrev_b32 v{c+2}, 16, v{c+2}")
        a(f"v_lshlrev_b32 v{vW}, 16, v{vX2+2*t}")
        a(f"v_and_b32 v{vW+1}, 0xffff0000, v{vX2+2*t}")
        a(f"v_lshlrev_b32 v{vW+2}, 16, v{vX2+2*t+1}")
        a(f"v_and_b32 v{vW+3}, 0xffff0000, v{vX2+2*t+1}")
        a(f"v_pk_add_f32 {V(c,2)}, {V(c,2)}, {V(vW,2)}")
        a(f"v_pk_add_f32 {V(c+2,2)}, {V(c+2,2)}, {V(vW+2,2)}")
        a(f"v_cvt_pk_bf16_f32 v{vX1+2*t}, v{c}, v{c+1}")
        a(f"v_cvt_pk_bf16_f32 v{vX1+2*t+1}, v{c+2}, v{c+3}")
        a(f"v_lshlrev_b32 v{c}, 16, v{vX1+2*t}")
        a(f"v_and_b32 v{c+1}, 0xffff0000, v{vX1+2*t}")
        a(f"v_lshlrev_b32 v{c+2}, 16, v{vX1+2*t+1}")
        a(f"v_and_b32 v{c+3}, 0xffff0000, v{vX1+2*t+1}")
        a(f"v_pk_add_f32 {V(vW,2)}, {V(c,2)}, {V(c+2,2)}")
        a(f"v_pk_mul_f32 {V(vW+2,2)}, {V(c,2)}, {V(c,2)}")
        a(f"v_pk_fma_f32 {V(vW+2,2)}, {V(c+2,2)}, {V(c+2,2)}, {V(vW+2,2)}")
        a(f"v_add_f32 v{vSt+2*t}, v{vW}, v{vW+1}")
        a(f"v_add_f32 v{vSt+2*t+1}, v{vW+2}, v{vW+3}")
    a(f"v_lshlrev_b32 v{vT0}, 9, v{vQ}")
    a(f"v_lshl_add_u32 v{vT0}, v{vL15}, 3, v{vT0}")
    a(f"s_lshl_b32 s{sT0}, s{sW}, 11")
    a(f"s_add_u32 s{sT0}, s{sT0}, {PS}")
    a(f"v_add_u32 v{vT0}, s{sT0}, v{vT0}")
    for t in range(4): a(f"ds_write_b64 v{vT0}, {V(vSt+2*t,2)} offset:{128*t}")
    a(f"v_lshlrev_b32 v{vT0}, 3, v{vLANE}")
    a(f"v_add_u32 v{vT2}, {PS}, v{vT0}")
    a("s_waitcnt vmcnt(0) lgkmcnt(0)" if ph == 0 else "s_waitcnt lgkmcnt(0)")
    barrier()
    prof(f"p{ph}_ps")
    for i in range(8): a(f"ds_read_b64 {V(vW+2*i,2)}, v{vT2} offset:{512*i}")
    if ph == 0: signal(32, S3SIG)
    a("s_waitcnt lgkmcnt(0)")
    for i in range(8): a(f"ds_read_b64 {V(vW+16+2*i,2)}, v{vT2} offset:{512*(8+i)}")
    a(f"s_lshl_b32 s{sT0}, s{sG}, 3")
    a(f"s_lshl_b32 s{sT1}, s{sW}, 1")
    a(f"s_add_u32 s{sT0}, s{sT0}, s{sT1}")
    a(f"s_lshl_b32 s{sT0}, s{sT0}, {MB_SH}")
    a(f"s_lshl_b32 s{sT1}, s{sJ}, 10")
    a(f"s_add_u32 s{sT0}, s{sT0}, s{sT1}")
    a(f"s_add_u32 s{sT0}, s{sT0}, {MB_OFF + MB_ST}")
    a(f"s_add_u32 s{sT1}, s{sT0}, {MB_SZ}")
    n = 8
    while n > 1:
        n //= 2
        for i in range(n): a(f"v_pk_add_f32 {V(vW+2*i,2)}, {V(vW+2*i,2)}, {V(vW+2*(i+n),2)}")
    a("s_waitcnt lgkmcnt(0)")
    n = 8
    while n > 1:
        n //= 2
        for i in range(n): a(f"v_pk_add_f32 {V(vW+16+2*i,2)}, {V(vW+16+2*i,2)}, {V(vW+16+2*(i+n),2)}")
    a(f"v_pk_add_f32 {V(vW,2)}, {V(vW,2)}, {V(vW+16,2)}")
    a(f"v_mov_b32 v{vW+2}, s{sN}")
    a(f"v_mov_b32 v{vW+3}, s{sN+1}")
    a(f"buffer_store_dwordx4 {V(vW,4)}, v{vA0}, {S4(SWS)}, s{sT0} offen sc1")
    a(f"buffer_store_dwordx4 {V(vW,4)}, v{vA0}, {S4(SWS)}, s{sT1} offen sc1")
    prof(f"p{ph}_pub")
    a(f"s_add_u32 s{sT0}, s{sMB}, {MB_ST}")
    a(f"s_lshl_b32 s{sT1}, s{sW}, 11")
    a(f"s_add_u32 s{sT0}, s{sT0}, s{sT1}")
    L0, L1 = a.newlabel("L_pst"), a.newlabel("L_pst")
    a.flush()
    a(f"s_branch {L1}")
    a.label(L0)
    a("s_sleep 1")
    a.label(L1)
    for i in range(2):
        a(f"buffer_load_dwordx4 {V(vW+4*i,4)}, v{vA0}, {S4(SWS)}, s{sT0} offen offset:{1024*i} sc1")
    a("s_waitcnt vmcnt(0)")
    a(f"v_cmp_ne_u64 vcc, {S2(sN)}, {V(vW+2,2)}")
    a(f"v_cmp_ne_u64 {S2(sEX)}, {S2(sN)}, {V(vW+6,2)}")
    a(f"s_or_b64 vcc, vcc, {S2(sEX)}")
    a(f"s_cbranch_vccnz {L0}")
    a(f"v_pk_add_f32 {V(vW,2)}, {V(vW,2)}, {V(vW+4,2)}")
    a(f"s_lshl_b32 s{sT1}, s{sW}, 9")
    a(f"s_add_u32 s{sT1}, s{sT1}, {MISC + 4096}")
    a(f"v_lshl_add_u32 v{vT1}, v{vLANE}, 3, s{sT1}")
    a(f"ds_write_b64 v{vT1}, {V(vW,2)}")
    if ph == 0:
        poll(32, MB_S3, "s3")
        prof("p0_s3")
        a(f"v_lshrrev_b32 v{vT0}, 3, v{vLANE}")
        a(f"v_lshlrev_b32 v{vT0}, 12, v{vT0}")
        a(f"v_and_b32 v{vT1}, 7, v{vLANE}")
        a(f"v_lshl_add_u32 v{vT0}, v{vT1}, 4, v{vT0}")
        a(f"s_lshl_b32 s{sT0}, s{sJ}, 18")
        a(f"s_lshl_b32 s{sT1}, s{sG}, 7")
        a(f"s_add_u32 s{sT0}, s{sT0}, s{sT1}")
        a(f"s_lshl_b32 s{sT1}, s{sW}, 16")
        a(f"s_add_u32 s{sT0}, s{sT0}, s{sT1}")
        a(f"s_add_u32 s{sT0}, s{sT0}, {YT_OFF}")
        a(f"s_lshl_b32 s{sT1}, s{sW}, 11")
        a(f"s_add_u32 m0, s{sT1}, {YTT}")
        a(f"buffer_load_dwordx4 v{vT0}, {S4(SWS)}, s{sT0} offen sc1 lds")
        a(f"s_add_u32 s{sT0}, s{sT0}, 32768")
        a(f"s_add_u32 m0, s{sT1}, {YTT + 1024}")
        a(f"buffer_load_dwordx4 v{vT0}, {S4(SWS)}, s{sT0} offen sc1 lds")
    a(f"v_lshlrev_b32 v{vT1}, 3, v{vL15}")
    a(f"v_add_u32 v{vT1}, {MISC + 4096}, v{vT1}")
    a("s_waitcnt lgkmcnt(0)")
    barrier()
    prof(f"p{ph}_stats")
    for t in range(4):
        for i in range(4): a(f"ds_read_b64 {V(vW+8*t+2*i,2)}, v{vT1} offset:{512*i + 128*t}")
    a("s_waitcnt lgkmcnt(0)")
    for t in range(4):
        b = vW + 8*t
        a(f"v_pk_add_f32 {V(b,2)}, {V(b,2)}, {V(b+2,2)}")
        a(f"v_pk_add_f32 {V(b+4,2)}, {V(b+4,2)}, {V(b+6,2)}")
    for t in range(4):
        b = vW + 8*t
        a(f"v_pk_add_f32 {V(b,2)}, {V(b,2)}, {V(b+4,2)}")
    ln_math([(vW+8*t, vW+8*t+1, vW+8*t+2, vW+8*t+3, vW+8*t+4, vW+8*t+5) for t in range(4)])
    if ph == 0:
        a(f"v_lshrrev_b32 v{vT1}, 2, v{vLANE}")
        a(f"v_lshlrev_b32 v{vT1}, 7, v{vT1}")
        a(f"v_and_b32 v{vT2}, 3, v{vLANE}")
        a(f"v_lshl_add_u32 v{vT1}, v{vT2}, 3, v{vT1}")
        a(f"s_lshl_b32 s{sT0}, s{sW}, 11")
        a(f"s_add_u32 s{sT0}, s{sT0}, {YTT}")
        a(f"v_add_u32 v{vT1}, s{sT0}, v{vT1}")
        a("s_waitcnt vmcnt(0)")
        for t in range(4): a(f"ds_read_b64_tr_b16 {V(vYY+2*t,2)}, v{vT1} offset:{32*t}")
        a("s_waitcnt lgkmcnt(0)")
    for t in range(4):
        ab = V(vW+8*t+2, 2)
        x, y, u = vPA + 4*t, 32 + 8*t, 36 + 8*t
        a(f"v_lshlrev_b32 v{y}, 16, v{vYY+2*t}")
        a(f"v_and_b32 v{y+1}, 0xffff0000, v{vYY+2*t}")
        a(f"v_lshlrev_b32 v{y+2}, 16, v{vYY+2*t+1}")
        a(f"v_and_b32 v{y+3}, 0xffff0000, v{vYY+2*t+1}")
        for h in range(2):
            a(f"v_pk_fma_f32 {V(u+2*h,2)}, {V(x+2*h,2)}, {ab}, {ab} op_sel:[0,0,1] op_sel_hi:[1,0,1]")
            a(f"v_pk_fma_f32 {V(u+2*h,2)}, {V(u+2*h,2)}, {V(y+2*h,2)}, {V(x+2*h,2)}")
        a(f"v_cvt_pk_bf16_f32 v{vX2+2*t}, v{u}, v{u+1}")
        a(f"v_cvt_pk_bf16_f32 v{vX2+2*t+1}, v{u+2}, v{u+3}")
    tile_to_lds(vX2, vW)
    prof(f"p{ph}_epi")
    a(f"s_add_u32 s{sT1}, s{sTILE}, 32768")
    if ph == 0:
        a(f"buffer_store_dwordx4 {V(vW,4)}, v{vT0}, {S4(SX2)}, s{sTILE} offen sc1")
        a(f"buffer_store_dwordx4 {V(vW+4,4)}, v{vT0}, {S4(SX2)}, s{sT1} offen sc1")
        vm.drain()
        barrier()
        signal(16, group_sig(MB_S5, 16))
        prof("p0_done")
    else:
        a(f"buffer_store_dwordx4 {V(vW,4)}, v{vT0}, {S4(SOUT)}, s{sTILE} offen")
        a(f"buffer_store_dwordx4 {V(vW+4,4)}, v{vT0}, {S4(SOUT)}, s{sT1} offen")
        prof("final")

lg.reset()
vm.wait(("o", 3))
p2(0)
if STAGE <= 3: a("s_branch L_end")

a(f"s_mov_b32 s{sT1}, 0xffff")
a(f"s_cmp_eq_u32 s{sG}, 0")
a(f"s_cselect_b32 exec_lo, 0xff, s{sT1}")
a("s_mov_b32 exec_hi, 0")
poll(16, MB_S5, "x2", exec_set=True)
a(f"s_xor_b32 s{sN}, s{sN}, 1")
prof("p3_wait")
vm.reset(); lg.reset()
k_reset()
for s in range(8):
    for g in dma_x_groups(s, SX2): g()
    k_next()
for s in range(16):
    if s % 4 == 0:
        vm.wait(("x", s + 3), ("h", s // 4))
        barrier()
        for g in x_reads(s, s & 1): g()
    rd = x_reads(s + 1, (s + 1) & 1) if s % 4 != 3 else []
    lg.wait(("xa", s))
    fl = (dma_x_groups(8 + 2*s, SX2) + [k_next] + dma_x_groups(9 + 2*s, SX2) + [k_next]) if s < 4 else []
    mfmas(s, s & 1, False, rd, fl)
prof("p3_gemm")
attention(1, O3_OFF, MB_S6)
poll(8, MB_S6, "o3")
prof("p1_owait")
vm.reset(); lg.reset()
for g in o_groups(O3_OFF): g()
p2(1)
a.label("L_end")
a("s_endpgm")
a.raw('.section .rodata,"a"')
a.raw(kernel_desc(NAME, 512, 102, 256))
out = sys.argv[1] if len(sys.argv) > 1 else "interleave_layers__sliding_local_dilated__ssm_conv_h3__prompt.s"
open(out, "w").write(a.text())
print("wrote", out, "lines", len(a.lines), "pad states", a.npad)
```

```python
import sys, os
sys.path.insert(0, os.path.dirname(os.path.abspath(__file__)))
from asmlib import *

NAME = "interleave_layers__sliding_local_dilated__ssm_conv_h3__prompt_kernel"
STAGE = int(os.environ.get("STAGE", "9"))
PROF = int(os.environ.get("PROF", "0"))
ENV = lambda k, d: int(os.environ.get(k, str(d)))

KVT_OFF = 0
YT_OFF = KVT_OFF
O1_OFF = 4 << 20
X2_OFF = O1_OFF
O3_OFF = 8 << 20
MB_OFF = 16 << 20
MB_SH = 14
MB_SZ = 1 << MB_SH
MB_S1, MB_S2, MB_S3, MB_S5, MB_S6 = 64, 0, 16, 32, 48
MB_ST = 4096
PROF_OFF = 32 << 20

XIMG = 0
WRING = 81920
NSLOT = 6
WOIMG = 0
UR, URP = 65536, 4608
HC, HCP = 74752, 4160
ACCX = HC
YTT = HC
PS = HC + 8192
OT = PS
MISC = 91392
ABW = MISC + 1024
OIMG = 98304
Y1T = 155648

sB, sW, sG, sJ, sKK0 = 2, 3, 4, 5, 6
SX, SWQ, SWO, SK_, SV_, SH, SOUT, SDBG, SWS, SX2, SSK = 8, 12, 16, 20, 24, 28, 32, 36, 40, 44, 48
sD = 52
sPAR, sMC0, sMC1 = 54, 56, 58
sL = 60
sT0, sT1, sT2, sT3, sT4 = 61, 62, 63, 64, 75
sW1K, sW16K, sW5K, sMB = 65, 66, 67, 68
sTILE = 69
sEX = 72
sN = 78
sXo, sW3K, sW64 = 80, 81, 82
sTP = 84
sB0, sB1 = 70, 71
sPT = 92

def S4(n): return f"s[{n}:{n+3}]"
def S2(n): return f"s[{n}:{n+1}]"
def V(n, k=1): return f"v{n}" if k == 1 else f"v[{n}:{n+k-1}]"
def A(n, k=1): return f"a{n}" if k == 1 else f"a[{n}:{n+k-1}]"

vTID, vLANE, vL15, vQ = 0, 1, 2, 3
vA0, vA1, vS0, vS1, vSH, vTR, vXD, vXDH, vWD = 4, 5, 6, 7, 8, 9, 10, 11, 12
vT0, vT1, vT2 = 13, 14, 15
vQT, vKT, vVV = 16, 32, 52
vXA = 84
vSO = 124
vSHF = 132
vONE = 136
vXDW, vKVD, vL128 = 140, 141, 142
yH = 144
vST = 196
vPL = 214
vNL = 220
vP0 = 222
vCS = 224
vTRW0, vTRW1, vWOD, vFR = 236, 237, 238, 239
vX2, vYY = 240, 248

a = Asm()
vm = Cnt(a, "vmcnt", 63)
lg = Cnt(a, "lgkmcnt", 15)
prof_idx = [0]
PARM, MC = S2(sPAR), [S2(sMC0), S2(sMC1)]

DBGTAGS = ["start", "y1done", "p1gemm", "a0_done", "y2", "p0_pub", "p0_stats", "p0_done", "p3_wait", "p3_gemm", "a1_done", "p1_gemm", "final"]
def prof_dbg(tag):
    if tag not in DBGTAGS: return
    e = a.bg_pause()
    i = DBGTAGS.index(tag)
    L = a.newlabel("L_pd")
    a(f"s_cmp_lg_u32 s{sL}, 37")
    a(f"s_cbranch_scc1 {L}")
    a(f"s_memtime {S2(sPT)}")
    if tag in ("start", "final"): a(f"s_memrealtime {S2(sPT+2)}")
    a("s_waitcnt lgkmcnt(0)")
    if tag == "start":
        a(f"s_mov_b32 s100, s{sPT}")
        a(f"s_mov_b32 s101, s{sPT+2}")
    a(f"s_sub_u32 s{sPT}, s{sPT}, s100")
    a(f"v_mov_b32 v218, s{sPT}")
    a(f"v_mov_b32 v219, {12 + 4*i}")
    a(f"v_cmp_eq_u32 {S2(sPT+6)}, 0, v{vTID}")
    a(f"s_and_saveexec_b64 {S2(sPT+4)}, {S2(sPT+6)}")
    a(f"buffer_store_dword v218, v219, {S4(SDBG)}, 0 offen")
    if tag == "final":
        a(f"s_sub_u32 s{sPT+2}, s{sPT+2}, s101")
        a(f"v_mov_b32 v218, s{sPT+2}")
        a(f"v_mov_b32 v219, 8")
        a(f"buffer_store_dword v218, v219, {S4(SDBG)}, 0 offen")
    a(f"s_mov_b64 exec, {S2(sPT+4)}")
    a.flush()
    a.label(L)
    a("s_waitcnt lgkmcnt(0)")
    lg.reset()
    a.bg_resume(e)

def prof(tag):
    if not PROF: return
    if PROF == 2: return prof_dbg(tag)
    e = a.bg_pause()
    i = prof_idx[0]; prof_idx[0] += 1
    a(f"s_memtime {S2(sPT)}")
    a("s_waitcnt lgkmcnt(0)")
    lg.reset()
    a(f"v_mov_b32 v218, s{sPT}")
    a(f"s_lshl_b32 s{sPT+2}, s{sL}, 9")
    a(f"s_add_u32 s{sPT+2}, s{sPT+2}, {PROF_OFF + 4*i}")
    a(f"v_mov_b32 v219, 0")
    a(f"v_cmp_eq_u32 {S2(sPT+6)}, 0, v{vTID}")
    a(f"s_and_saveexec_b64 {S2(sPT+4)}, {S2(sPT+6)}")
    a(f"buffer_store_dword v218, v219, {S4(SWS)}, s{sPT+2} offen")
    a(f"s_mov_b64 exec, {S2(sPT+4)}")
    vm.issue("prof")
    a.bg_resume(e)

def set_exec(n):
    a(f"s_mov_b32 exec_lo, {hex((1 << min(n,32)) - 1)}")
    a(f"s_mov_b32 exec_hi, {hex((1 << (n-32)) - 1) if n > 32 else 0}")

def barrier(): a("s_barrier")

def poll(n, mboff, name, exec_set=False):
    L = a.newlabel("L_poll_" + name)
    if not exec_set: set_exec(n)
    a(f"s_add_u32 s{sT0}, s{sMB}, {mboff}")
    a.flush()
    a.label(L)
    a(f"buffer_load_dwordx2 {V(vP0,2)}, v{vL128}, {S4(SWS)}, s{sT0} offen sc1")
    a("s_waitcnt vmcnt(0)")
    a(f"v_cmp_ne_u64 vcc, {S2(sN)}, {V(vP0,2)}")
    a(f"s_cbranch_vccnz {L}")
    a("s_mov_b64 exec, -1")
    vm.reset()

def async_poll(mboff):
    def g():
        a(f"s_add_u32 s{sB0}, s{sMB}, {mboff}")
        a(f"buffer_load_dwordx2 {V(vPL,2)}, v{vL128}, {S4(SWS)}, s{sB0} offen sc1"); vm.issue("apoll")
    return g

def async_check(n, mboff, name):
    L = a.newlabel("L_achk")
    vm.wait("apoll")
    set_exec(n)
    a(f"v_cmp_ne_u64 vcc, {S2(sN)}, {V(vPL,2)}")
    a("s_mov_b64 exec, -1")
    a(f"s_cbranch_vccz {L}")
    q = list(vm.q)
    poll(n, mboff, name)
    vm.q = q
    a.flush()
    a.label(L)

def signal(n, addr_code):
    L = a.newlabel("L_sig")
    a(f"s_cmp_lg_u32 s{sW}, 0")
    a(f"s_cbranch_scc1 {L}")
    a(addr_code)
    a(f"v_mov_b32 v{vP0}, s{sN}")
    a(f"v_mov_b32 v{vP0+1}, s{sN+1}")
    set_exec(n)
    a(f"buffer_store_dwordx2 {V(vP0,2)}, v{vT1}, {S4(SWS)}, 0 offen sc1")
    a("s_mov_b64 exec, -1")
    a.flush()
    a.label(L)

def group_sig(mboff, n=8):
    extra = f"v_and_b32 v{vT2}, 8, v{vLANE}\nv_lshl_add_u32 v{vT1}, v{vT2}, 7, v{vT1}\n" if n > 8 else ""
    return f"""s_lshl_b32 s{sT0}, s{sG}, 3
v_add_u32 v{vT1}, s{sT0}, v{vLANE}
v_lshlrev_b32 v{vT1}, {MB_SH}, v{vT1}
{extra}s_lshl_b32 s{sT0}, s{sJ}, 7
s_add_u32 s{sT0}, s{sT0}, {MB_OFF + mboff}
v_add_u32 v{vT1}, s{sT0}, v{vT1}"""

def allreduce(op, regs, tmps):
    for sw in ("v_permlane16_swap_b32", "v_permlane32_swap_b32"):
        for r, t in zip(regs, tmps): a(f"v_mov_b32 v{t}, v{r}")
        for r, t in zip(regs, tmps): a(f"{sw} v{r}, v{t}")
        for r, t in zip(regs, tmps): a(f"{op} v{r}, v{r}, v{t}")

def ln_math(sets):
    steps = [
        "v_mul_f32 v{t0}, 0x3b000000, v{S}", "v_mul_f32 v{t1}, 0x3b000000, v{SS}",
        "v_fma_f32 v{t1}, -v{t0}, v{t0}, v{t1}", "v_max_f32 v{t1}, 0, v{t1}",
        "v_cvt_pk_bf16_f32 v{t0}, v{t0}, v{t1}", "v_and_b32 v{t1}, 0xffff0000, v{t0}",
        "v_lshlrev_b32 v{t0}, 16, v{t0}", "v_add_f32 v{t1}, 0x3727c5ac, v{t1}",
        "v_cvt_pk_bf16_f32 v{t1}, v{t1}, v{t1}", "v_lshlrev_b32 v{t1}, 16, v{t1}",
        "v_sqrt_f32 v{t1}, v{t1}", "v_cvt_pk_bf16_f32 v{t1}, v{t1}, v{t1}",
        "v_lshlrev_b32 v{t1}, 16, v{t1}", "v_rcp_f32 v{A}, v{t1}",
        "v_mul_f32 v{B}, -v{t0}, v{A}"]
    for st in steps:
        for (S, SS, A_, B_, t0, t1) in sets:
            a(st.format(S=S, SS=SS, A=A_, B=B_, t0=t0, t1=t1))

def ldsg(line, tag):
    def g(): a(line); lg.issue(tag)
    return g
def vmg(line, tag):
    def g(): a(line); vm.issue(tag)
    return g

def tile_to_lds(src, tmp):
    a(f"v_lshrrev_b32 v{vT0}, 1, v{vQ}")
    a(f"s_lshl_b32 s{sT0}, s{sW}, 1")
    a(f"v_add_u32 v{vT0}, s{sT0}, v{vT0}")
    a(f"v_and_b32 v{vT1}, 7, v{vL15}")
    a(f"v_xor_b32 v{vT0}, v{vT0}, v{vT1}")
    a(f"v_lshlrev_b32 v{vT0}, 4, v{vT0}")
    a(f"v_lshl_add_u32 v{vT0}, v{vL15}, 7, v{vT0}")
    a(f"v_and_b32 v{vT1}, 1, v{vQ}")
    a(f"v_lshl_add_u32 v{vT0}, v{vT1}, 3, v{vT0}")
    a(f"v_add_u32 v{vT0}, {OT}, v{vT0}")
    for t in range(4):
        a(f"ds_write_b64 v{vT0}, {V(src+2*t,2)} offset:{2048*t}")
    a(f"v_lshlrev_b32 v{vT1}, 4, v{vTID}")
    a(f"v_add_u32 v{vT1}, {OT}, v{vT1}")
    a(f"v_lshrrev_b32 v{vT2}, 3, v{vTID}")
    a(f"v_xor_b32 v{vT0}, v{vTID}, v{vT2}")
    a(f"v_and_b32 v{vT0}, 7, v{vT0}")
    a(f"v_lshlrev_b32 v{vT0}, 4, v{vT0}")
    a(f"v_lshl_add_u32 v{vT0}, v{vT2}, 10, v{vT0}")
    a("s_waitcnt lgkmcnt(0)")
    barrier()
    a(f"ds_read_b128 {V(tmp,4)}, v{vT1}")
    a(f"ds_read_b128 {V(tmp+4,4)}, v{vT1} offset:4096")
    a("s_waitcnt lgkmcnt(0)")

a.raw("; @launch grid=(256,1,1) block=(256,1,1) lds=163840")
a.raw('.amdgcn_target "amdgcn-amd-amdhsa--gfx950"\n.text')
a.raw(kernel_header(NAME))
a(f"s_cmp_ge_u32 s{sB}, 256")
a("s_cbranch_scc1 L_end")
a("s_load_dwordx16 s[76:91], s[0:1], 0")
a("s_load_dwordx8 s[92:99], s[0:1], 64")
a(f"v_and_b32 v{vLANE}, 63, v{vTID}")
a(f"v_lshrrev_b32 v{vT0}, 6, v{vTID}")
a(f"v_and_b32 v{vL15}, 15, v{vTID}")
a(f"v_readfirstlane_b32 s{sW}, v{vT0}")
a(f"v_bfe_u32 v{vQ}, v{vTID}, 4, 2")
a(f"v_lshlrev_b32 v{vA0}, 4, v{vLANE}")
a(f"v_lshrrev_b32 v{vT0}, 2, v{vL15}")
a(f"v_and_b32 v{vT0}, 2, v{vT0}")
a(f"v_xor_b32 v{vT0}, v{vT0}, v{vQ}")
a(f"v_lshlrev_b32 v{vFR}, 6, v{vL15}")
a(f"v_lshl_add_u32 v{vFR}, v{vT0}, 4, v{vFR}")
a(f"v_add_u32 v{vA1}, 40960, v{vFR}")
a(f"v_lshlrev_b32 v{vL128}, 7, v{vLANE}")
a(f"v_and_b32 v{vL128}, 0xfff, v{vL128}")
a(f"s_and_b32 s{sT0}, s{sB}, 7")
a(f"s_lshr_b32 s{sT1}, s{sB}, 3")
a(f"s_lshr_b32 s{sT2}, s{sT1}, 3")
a(f"s_lshl_b32 s{sG}, s{sT0}, 2")
a(f"s_add_u32 s{sG}, s{sG}, s{sT2}")
a(f"s_and_b32 s{sJ}, s{sT1}, 7")
a(f"s_lshl_b32 s{sKK0}, s{sT2}, 2")
a(f"s_lshl_b32 s{sT2}, s{sJ}, 1")
a(f"s_add_u32 s{sKK0}, s{sKK0}, s{sT2}")
a(f"s_lshr_b32 s{sT2}, s{sT0}, 1")
a(f"s_add_u32 s{sKK0}, s{sKK0}, s{sT2}")
a(f"s_and_b32 s{sKK0}, s{sKK0}, 15")
a(f"s_lshl_b32 s{sL}, s{sG}, 3")
a(f"s_add_u32 s{sL}, s{sL}, s{sJ}")
a(f"s_lshl_b32 s{sW1K}, s{sW}, 10")
a(f"s_lshl_b32 s{sW16K}, s{sW}, 14")
a(f"s_mul_i32 s{sW5K}, s{sW}, 5120")
a(f"s_lshl_b32 s{sMB}, s{sL}, {MB_SH}")
a(f"s_add_u32 s{sMB}, s{sMB}, {MB_OFF}")
a(f"s_lshl_b32 s{sTILE}, s{sG}, 16")
a(f"s_lshl_b32 s{sT1}, s{sJ}, 7")
a(f"s_add_u32 s{sTILE}, s{sTILE}, s{sT1}")
a(f"v_add_u32 v{vS0}, s{sW1K}, v{vFR}")
a(f"v_add_u32 v{vS0}, 1024, v{vS0}")
a(f"v_add_u32 v{vS1}, 40960, v{vS0}")
a(f"v_add_u32 v{vSH}, s{sW5K}, v{vFR}")
a(f"v_lshrrev_b32 v{vT1}, 5, v{vLANE}")
a(f"v_lshlrev_b32 v{vTR}, 10, v{vT1}")
a(f"v_bfe_u32 v{vT0}, v{vLANE}, 2, 3")
a(f"v_lshl_add_u32 v{vTR}, v{vT0}, 7, v{vTR}")
a(f"v_lshrrev_b32 v{vT0}, 1, v{vT0}")
a(f"v_xor_b32 v{vT0}, s{sW}, v{vT0}")
a(f"v_lshl_add_u32 v{vTR}, v{vT0}, 5, v{vTR}")
a(f"v_and_b32 v{vT0}, 3, v{vLANE}")
a(f"v_lshl_add_u32 v{vTR}, v{vT0}, 3, v{vTR}")
a(f"v_lshl_add_u32 v{vTRW0}, v{vT1}, 11, v{vTR}")
a(f"v_add_u32 v{vTRW1}, {WRING + 36864}, v{vTRW0}")
a(f"v_add_u32 v{vTRW0}, {WRING}, v{vTRW0}")
a(f"v_lshrrev_b32 v{vT0}, 2, v{vLANE}")
a(f"v_lshlrev_b32 v{vXD}, 10, v{vT0}")
a(f"v_lshrrev_b32 v{vT1}, 4, v{vLANE}")
a(f"v_and_b32 v{vT1}, 2, v{vT1}")
a(f"v_and_b32 v{vT0}, 3, v{vLANE}")
a(f"v_xor_b32 v{vT0}, v{vT0}, v{vT1}")
a(f"v_lshl_add_u32 v{vXD}, v{vT0}, 4, v{vXD}")
a(f"s_lshl_b32 s{sT0}, s{sG}, 16")
a(f"v_add_u32 v{vXD}, s{sT0}, v{vXD}")
a(f"v_add_u32 v{vXDH}, {-16384 & 0xffffffff}, v{vXD}")
a(f"v_add_u32 v{vXDW}, s{sW16K}, v{vXD}")
a(f"v_bfe_u32 v{vT0}, v{vLANE}, 3, 2")
a(f"v_lshrrev_b32 v{vT1}, 5, v{vLANE}")
a(f"v_lshl_add_u32 v{vT0}, v{vT1}, 3, v{vT0}")
a(f"s_and_b32 s{sT0}, s{sW}, 1")
a(f"s_lshl_b32 s{sT0}, s{sT0}, 4")
a(f"s_lshr_b32 s{sT1}, s{sW}, 1")
a(f"s_lshl_b32 s{sT1}, s{sT1}, 2")
a(f"s_add_u32 s{sT0}, s{sT0}, s{sT1}")
a(f"v_add_u32 v{vT0}, s{sT0}, v{vT0}")
a(f"v_lshrrev_b32 v{vT1}, 4, v{vLANE}")
a(f"v_lshlrev_b32 v{vT1}, 1, v{vT1}")
a(f"v_and_b32 v{vT2}, 7, v{vLANE}")
a(f"v_xor_b32 v{vT1}, v{vT1}, v{vT2}")
a(f"v_lshlrev_b32 v{vT1}, 4, v{vT1}")
a(f"s_lshl_b32 s{sT0}, s{sJ}, 7")
a(f"v_add_u32 v{vT1}, s{sT0}, v{vT1}")
a(f"v_lshl_add_u32 v{vWOD}, v{vT0}, 10, v{vT1}")
a(f"v_mul_u32_u24 v{vWD}, 3072, v{vT0}")
a(f"v_add_u32 v{vWD}, v{vWD}, v{vT1}")
a(f"v_and_b32 v{vT0}, 1, v{vLANE}")
a(f"v_cmp_eq_u32 {PARM}, 1, v{vT0}")
a(f"v_lshl_add_u32 v{vT1}, v{vQ}, 2, v{vT0}")
a(f"v_cmp_le_u32 {MC[0]}, v{vT1}, v{vL15}")
a(f"v_add_u32 v{vT1}, 2, v{vT1}")
a(f"v_cmp_le_u32 {MC[1]}, v{vT1}, v{vL15}")
for i in range(4):
    a(f"v_mov_b32 v{vONE+i}, 0x3f803f80")
a("s_waitcnt lgkmcnt(0)")
P = lambda i: 76 + 2 * i
srd(a, SX, P(0), 2048 * 1024)
srd(a, SWQ, P(1), 512 * 3072)
srd(a, SWO, P(2), 512 * 1024)
srd(a, SK_, P(4), 2048 * 1024)
srd(a, SV_, P(5), 2048 * 1024)
srd(a, SSK, P(6), 4096)
srd(a, SH, P(7), 512 * 4096)
srd(a, SOUT, P(9), 2048 * 1024)
srd(a, SDBG, P(10), 256)
srd(a, SWS, P(11), 1 << 28)
srd(a, SX2, P(11), 2048 * 1024, off=X2_OFF)
a(f"s_lshl_b32 s{sT0}, s{sL}, 2")
a(f"s_load_dword s{sD}, {S2(P(8))}, s{sT0}")
a("s_waitcnt lgkmcnt(0)") if PROF else None
a(f"s_mul_i32 s{sT3}, s{sW}, 3072")
a(f"s_lshl_b32 s{sT4}, s{sW}, 6")

def k_reset(): a(f"s_lshl_b32 s{sXo}, s{sKK0}, 6")
def k_next():
    a(f"s_add_u32 s{sXo}, s{sXo}, 64")
    a(f"s_and_b32 s{sXo}, s{sXo}, 1023")
def dma_x_groups(s, srd_):
    sc = " sc1" if srd_ == SX2 else ""
    def g1():
        a(f"s_add_u32 m0, s{sW1K}, {XIMG + (s*5+1)*1024}")
        a(f"buffer_load_dwordx4 v{vXDW}, {S4(srd_)}, s{sXo} offen{sc} lds"); vm.issue(("x", s))
    def g2():
        a(f"s_add_u32 s{sB0}, s{sXo}, s{sW64}")
        a(f"s_and_b32 s{sB0}, s{sB0}, 1023")
        a(f"s_add_u32 m0, s{sW5K}, {XIMG + s*5*1024}")
        a(f"buffer_load_dwordx4 v{vXDH}, {S4(srd_)}, s{sB0} offen{sc} lds"); vm.issue(("h", s // 4))
    return [g1, g2] if s % 4 == 0 else [g1]
def dma_w_groups(s):
    def g():
        a(f"s_mul_i32 s{sB1}, s{sXo}, 1536")
        a(f"s_add_u32 m0, s{sW3K}, {WRING + (s % NSLOT)*12288}")
        for p in range(3):
            a(f"buffer_load_dwordx4 v{vWD}, {S4(SWQ)}, s{sB1} offen offset:{1024*p} lds"); vm.issue(("w", s))
    return [g]
def wo_group(i):
    def g():
        a(f"s_lshl_b32 s{sB1}, s{sXo}, 9")
        a(f"s_add_u32 m0, s{sW1K}, {WOIMG + i*4096}")
        a(f"buffer_load_dwordx4 v{vWOD}, {S4(SWO)}, s{sB1} offen lds"); vm.issue("wo")
        k_next()
    return g
def h_group():
    a(f"v_lshlrev_b32 v{vT0}, 4, v{vTID}")
    a(f"s_lshl_b32 s{sB0}, s{sL}, 13")
    for c in range(2):
        if c: a(f"s_add_u32 s{sB0}, s{sB0}, 4096")
        a(f"buffer_load_dwordx4 {V(yH+8*c,4)}, v{vT0}, {S4(SH)}, s{sB0} offen"); vm.issue("h")
        a(f"buffer_load_dword v{yH+8*c+4}, v{vT0}, {S4(SH)}, s{sB0} offen offset:16"); vm.issue("h")
yK, yV, ySK, yA = 144, 164, 172, 188
def y1_loads():
    a.comment("Y1 loads: thread -> c8 = tid&7 (8 channels), rp = tid>>3 (row pair)")
    a(f"v_and_b32 v{vT0}, 7, v{vTID}")
    a(f"v_lshrrev_b32 v{vT1}, 3, v{vTID}")
    a(f"v_lshlrev_b32 v{vT2}, 11, v{vT1}")
    a(f"v_lshl_add_u32 v{vT2}, v{vT0}, 4, v{vT2}")
    a(f"v_add_u32 v{vT2}, s{sTILE}, v{vT2}")
    for i in range(5): a(f"v_add_u32 v{yA+i}, {(i-3)*1024}, v{vT2}")
    a(f"s_lshl_b32 s{sT1}, s{sJ}, 9")
    a(f"v_lshlrev_b32 v{yA+5}, 6, v{vT0}")
    for i in range(5):
        a(f"buffer_load_dwordx4 {V(yK+4*i,4)}, v{yA+i}, {S4(SK_)}, 0 offen"); vm.issue("y1")
    for i in range(2):
        a(f"buffer_load_dwordx4 {V(yV+4*i,4)}, v{yA+3+i}, {S4(SV_)}, 0 offen"); vm.issue("y1")
    for i in range(4):
        a(f"buffer_load_dwordx4 {V(ySK+4*i,4)}, v{yA+5}, {S4(SSK)}, s{sT1} offen offset:{16*i}"); vm.issue("y1")
def y1_compute():
    a.comment("Y1 compute")
    vm.wait("y1")
    R, TP, VVv, K0, K1 = 240, 188, 250, 254, 212
    yO = lambda i: yK + (i >> 1) + 4 * (i & 1)
    for m in range(4):
        for i in range(5):
            a(f"v_lshlrev_b32 v{R+2*i}, 16, v{yK+4*i+m}")
            a(f"v_and_b32 v{R+2*i+1}, 0xffff0000, v{yK+4*i+m}")
        for c in range(2):
            a(f"v_lshlrev_b32 v{TP+0+c}, 16, v{ySK+4*m+2*c}")
            a(f"v_and_b32 v{TP+2+c}, 0xffff0000, v{ySK+4*m+2*c}")
            a(f"v_lshlrev_b32 v{TP+4+c}, 16, v{ySK+4*m+2*c+1}")
            a(f"v_and_b32 v{TP+6+c}, 0xffff0000, v{ySK+4*m+2*c+1}")
        for i in range(2):
            a(f"v_lshlrev_b32 v{VVv+2*i}, 16, v{yV+4*i+m}")
            a(f"v_and_b32 v{VVv+2*i+1}, 0xffff0000, v{yV+4*i+m}")
        for (Kx, r0) in ((K0, 0), (K1, 1)): a(f"v_pk_mul_f32 {V(Kx,2)}, {V(R+2*r0,2)}, {V(TP+6,2)}")
        for d in (1, 2, 3):
            for (Kx, r0) in ((K0, 0), (K1, 1)):
                a(f"v_pk_fma_f32 {V(Kx,2)}, {V(R+2*(r0+d),2)}, {V(TP+6-2*d,2)}, {V(Kx,2)}")
        for Kx in (K0, K1):
            a(f"v_cvt_pk_bf16_f32 v{Kx+1}, v{Kx}, v{Kx+1}")
            a(f"v_lshlrev_b32 v{Kx}, 16, v{Kx+1}")
            a(f"v_and_b32 v{Kx+1}, 0xffff0000, v{Kx+1}")
        a(f"v_pk_mul_f32 {V(K0,2)}, {V(K0,2)}, {V(VVv,2)}")
        a(f"v_pk_mul_f32 {V(K1,2)}, {V(K1,2)}, {V(VVv+2,2)}")
        a(f"v_cvt_pk_bf16_f32 v{yO(2*m)}, v{K1}, v{K0}")
        a(f"v_cvt_pk_bf16_f32 v{yO(2*m+1)}, v{K1+1}, v{K0+1}")
    a(f"v_and_b32 v{vT0}, 7, v{vTID}")
    a(f"v_lshrrev_b32 v{vT1}, 3, v{vTID}")
    a(f"v_sub_u32 v{vT1}, 31, v{vT1}")
    a(f"v_lshlrev_b32 v{vT2}, 2, v{vT0}")
    a(f"v_xor_b32 v{vT1}, v{vT1}, v{vT2}")
    a(f"v_lshlrev_b32 v{vT1}, 2, v{vT1}")
    a(f"v_lshl_add_u32 v{vT1}, v{vT0}, 10, v{vT1}")
    a(f"v_add_u32 v{vT1}, {Y1T}, v{vT1}")
    for i in range(8): a(f"ds_write_b32 v{vT1}, v{yO(i)} offset:{128*i}")
    a(f"v_lshrrev_b32 v{vT0}, 3, v{vTID}")
    a(f"v_and_b32 v{vT1}, 7, v{vTID}")
    a(f"v_lshrrev_b32 v{vT2}, 3, v{vT0}")
    a(f"v_xor_b32 v{TP}, v{vT1}, v{vT2}")
    a(f"v_lshlrev_b32 v{TP}, 4, v{TP}")
    a(f"v_lshl_add_u32 v{TP}, v{vT0}, 7, v{TP}")
    a(f"v_add_u32 v{TP}, {Y1T}, v{TP}")
    a(f"v_xor_b32 v{TP+1}, 64, v{TP}")
    a(f"v_lshlrev_b32 v{TP+2}, 12, v{vT0}")
    a(f"v_lshl_add_u32 v{TP+2}, v{vT1}, 4, v{TP+2}")
    a(f"s_lshl_b32 s{sT0}, s{sJ}, 18")
    a(f"s_lshl_b32 s{sT1}, s{sG}, 7")
    a(f"s_sub_u32 s{sT0}, s{sT0}, s{sT1}")
    a(f"s_add_u32 s{sT0}, s{sT0}, {KVT_OFF + 3968}")
    a(f"s_add_u32 s{sT1}, s{sT0}, {32*4096}")
    a("s_waitcnt lgkmcnt(0)")
    barrier()
    a(f"ds_read_b128 {V(yV,4)}, v{TP}")
    a(f"ds_read_b128 {V(yV+4,4)}, v{TP+1} offset:4096")
    a("s_waitcnt lgkmcnt(0)")
    a(f"buffer_store_dwordx4 {V(yV,4)}, v{TP+2}, {S4(SWS)}, s{sT0} offen sc1"); vm.issue("y1st")
    a(f"buffer_store_dwordx4 {V(yV+4,4)}, v{TP+2}, {S4(SWS)}, s{sT1} offen sc1"); vm.issue("y1st")
    prof("y1done")
S1SIG = f"""s_lshl_b32 s{sT0}, s{sJ}, 5
v_add_u32 v{vT1}, s{sT0}, v{vLANE}
v_lshlrev_b32 v{vT1}, {MB_SH}, v{vT1}
s_lshl_b32 s{sT0}, s{sG}, 7
s_add_u32 s{sT0}, s{sT0}, {MB_OFF + MB_S1}
v_add_u32 v{vT1}, s{sT0}, v{vT1}"""
def o_groups(ooff):
    def mk(s):
        def g():
            if s == 0: k_reset()
            a(f"s_add_u32 s{sB1}, s{sXo}, {ooff}")
            a(f"s_add_u32 m0, s{sW1K}, {OIMG + s*4096}")
            a(f"buffer_load_dwordx4 v{vXDW}, {S4(SWS)}, s{sB1} offen sc1 lds"); vm.issue(("o", s // 4))
            k_next()
        return g
    return [mk(s) for s in range(16)]

a(f"s_mov_b32 s{sW3K}, s{sT3}")
a(f"s_mov_b32 s{sW64}, s{sT4}")
prof("start")
DEPTH = NSLOT - 1
k_reset()
for s in range(DEPTH):
    for g in dma_x_groups(s, SX) + dma_w_groups(s): g()
    k_next()
a(f"s_or_b32 s{sT2}, s{sL}, s{sW}")
a(f"s_cmp_lg_u32 s{sT2}, 0")
a("s_cbranch_scc1 L_nonce_done")
a(f"s_memrealtime {S2(sN)}")
a("s_waitcnt lgkmcnt(0)")
a(f"s_or_b32 s{sN+1}, s{sN+1}, 0x80000000")
a(f"s_andn2_b32 s{sN}, s{sN}, 1")
a(f"v_mov_b32 v{vP0}, s{sN}")
a(f"v_mov_b32 v{vP0+1}, s{sN+1}")
a(f"v_mov_b32 v{vT0}, 0")
a("s_mov_b64 exec, 1")
a(f"buffer_store_dwordx2 {V(vP0,2)}, v{vT0}, {S4(SDBG)}, 0 offen sc1")
a("s_mov_b64 exec, -1")
a.flush()
a.label("L_nonce_done")

def x_reads(s, buf):
    out = []
    base, off = (vFR, s*5*1024) if s < 8 else (vA1, (s-8)*5*1024)
    for t in range(5):
        out.append(ldsg(f"ds_read_b128 {V(vXA+20*buf+4*t,4)}, v{base} offset:{XIMG + off + t*1024}", ("xa", s)))
    base, off = (vS0, s*5120) if s < 8 else (vS1, (s-8)*5120)
    out.append(ldsg(f"ds_read_b128 {V(vSO+4*buf,4)}, v{base} offset:{XIMG + off}", ("xa", s)))
    if s % 4 == 3:
        out.append(ldsg(f"ds_read_b128 {V(vSHF,4)}, v{vSH} offset:{XIMG + (s//4)*20480}", ("xa", s)))
    return out

def mfmas(s, buf, with_cs, early=(), spread=()):
    first = (s == 0)
    def C(r): return "0" if first else V(r, 4)
    wq, wk, wv = A(12*s, 4), A(12*s+4, 4), A(12*s+8, 4)
    xa = lambda t: V(vXA + 20*buf + 4*t, 4)
    M = "v_mfma_f32_16x16x32_bf16"
    seq = []
    for t in range(5):
        seq.append(f"{M} {V(vKT+4*t,4)}, {wk}, {xa(t)}, {C(vKT+4*t)}")
        seq.append(f"{M} {V(vVV+4*t,4)}, {xa(t)}, {wv}, {C(vVV+4*t)}")
        if t: seq.append(f"{M} {V(vQT+4*(t-1),4)}, {wq}, {xa(t)}, {C(vQT+4*(t-1))}")
    if with_cs:
        seq.append(f"{M} {V(vCS,4)}, {wq}, {V(vONE,4)}, {C(vCS)}")
        seq.append(f"{M} {V(vCS+4,4)}, {wk}, {V(vONE,4)}, {C(vCS+4)}")
        seq.append(f"{M} {V(vCS+8,4)}, {V(vONE,4)}, {wv}, {C(vCS+8)}")
    so = V(vSO + 4*buf, 4)
    seq.append(f"{M} {V(vST,4)}, {V(vONE,4)}, {so}, {C(vST)}")
    seq.append(f"{M} {V(vST+4,4)}, {so}, {so}, {C(vST+4)}")
    if s % 4 == 3:
        c0 = "0" if s == 3 else None
        seq.append(f"{M} {V(vST+8,4)}, {V(vONE,4)}, {V(vSHF,4)}, {c0 or V(vST+8,4)}")
        seq.append(f"{M} {V(vST+12,4)}, {V(vSHF,4)}, {V(vSHF,4)}, {c0 or V(vST+12,4)}")
    a.weave(seq, list(early), list(spread))

Y1LD, Y1AT, S1AT = ENV("Y1LD", -1), ENV("Y1AT", 5), ENV("S1AT", 11)
if Y1LD < 0: y1_loads()
for s in range(16):
    vm.wait(("x", s), ("w", s), ("h", s // 4))
    if s == S1AT: vm.wait("y1st", "nonce")
    barrier()
    fl = (dma_x_groups(s + DEPTH, SX) + dma_w_groups(s + DEPTH) + [k_next]) if s + DEPTH < 16 else []
    if s == 0:
        for g in fl: g()
    if s == 3:
        a(f"v_mov_b32 v{vT0}, 0")
        a(f"buffer_load_dwordx2 {V(vNL,2)}, v{vT0}, {S4(SDBG)}, 0 offen sc1"); vm.issue("nonce")
    if s == S1AT:
        a(f"v_readfirstlane_b32 s{sN}, v{vNL}")
        a(f"v_readfirstlane_b32 s{sN+1}, v{vNL+1}")
        a(f"s_cmp_eq_u32 s{sN+1}, 0")
        a("s_cbranch_scc1 L_s1_defer")
        signal(32, S1SIG)
        a.label("L_s1_defer")
    if s in (11, 12, 13): fl = [wo_group(4*(s-11) + i) for i in range(4)]
    if s == 13: fl.append(h_group)
    if s == 14: fl = [wo_group(12 + i) for i in range(3)]
    rd = x_reads(s, s & 1)
    for p in range(3):
        for h in range(2):
            off = (s % NSLOT) * 12288 + p * 1024 + h * 6144
            rd.append(ldsg(f"ds_read_b64_tr_b16 {A(12*s+4*p+2*h,2)}, v{vTRW0 if off < 36864 else vTRW1} offset:{off % 36864}", ("xa", s)))
    if s > 0: mfmas(s - 1, (s - 1) & 1, True, rd, fl)
    else:
        for g in rd: g()
    lg.drain()
    if s == Y1LD: y1_loads()
    if s == Y1AT: y1_compute()
barrier()
wo_group(15)()
mfmas(15, 1, True)
prof("p1gemm")
a(f"s_cmp_lg_u32 s{sN+1}, 0")
a("s_cbranch_scc1 L_nonce_ok")
a(f"v_mov_b32 v{vT0}, 0")
a.flush()
a.label("L_nonce_chk")
a(f"buffer_load_dwordx2 {V(vNL,2)}, v{vT0}, {S4(SDBG)}, 0 offen sc1")
a("s_waitcnt vmcnt(0)")
a(f"v_readfirstlane_b32 s{sN}, v{vNL}")
a(f"v_readfirstlane_b32 s{sN+1}, v{vNL+1}")
a(f"s_cmp_eq_u32 s{sN+1}, 0")
a("s_cbranch_scc1 L_nonce_chk")
signal(32, S1SIG)
a.label("L_nonce_ok")

def attention(ph, ooff, sig):
    T = 84
    prof(f"a{ph}_begin")
    a(f"v_lshlrev_b32 v{vT0}, 3, v{vL15}")
    a(f"s_lshl_b32 s{sT0}, s{sW}, 7")
    a(f"v_add_u32 v{vT0}, s{sT0}, v{vT0}")
    a(f"v_add_u32 v{vT0}, {MISC}, v{vT0}")
    for i, m in ((1, 0x22222222), (2, 0x44444444), (3, 0x88888888)):
        a(f"s_mov_b32 s{sEX}, {hex(m)}")
        a(f"s_mov_b32 s{sEX+1}, {hex(m)}")
        for base in (vST, vST + 8):
            a(f"v_cndmask_b32 v{base+1}, v{base+4 if i == 1 else base+1}, v{base+4+i}, {S2(sEX)}")
    e = a.bg_pause()
    a("s_mov_b32 exec_lo, 0x00f0000f")
    a("s_mov_b32 exec_hi, 0xf0000f00")
    a(f"ds_write_b64 v{vT0}, {V(vST,2)}")
    a(f"ds_write_b64 v{vT0}, {V(vST+8,2)} offset:512")
    a("s_mov_b64 exec, -1")
    a.bg_resume(e)
    a(f"v_lshlrev_b32 v{vT0}, 3, v{vLANE}")
    a(f"v_add_u32 v{vT0}, {MISC}, v{vT0}")
    a(f"v_lshlrev_b32 v{vT1}, 3, v{vL15}")
    a(f"v_add_u32 v{vT1}, {MISC}, v{vT1}")
    a("s_waitcnt lgkmcnt(0)")
    barrier()
    a(f"ds_read_b64 {V(T,2)}, v{vT0}")
    for i in range(4):
        a(f"ds_read_b64 {V(T+2+2*i,2)}, v{vT1} offset:{512 + 128*i}")
    a(f"s_mul_i32 s{sT0}, s{sW}, 640")
    a(f"s_add_u32 s{sT0}, s{sT0}, {ABW}")
    a(f"v_lshl_add_u32 v{vT0}, v{vLANE}, 2, s{sT0}")
    a(f"v_lshl_add_u32 v{vT1}, v{vL15}, 2, s{sT0}")
    a(f"v_lshl_add_u32 v{vT2}, v{vQ}, 4, s{sT0}")
    a("s_waitcnt lgkmcnt(0)")
    a(f"v_pk_add_f32 {V(T+2,2)}, {V(T+2,2)}, {V(T+4,2)}")
    a(f"v_pk_add_f32 {V(T+6,2)}, {V(T+6,2)}, {V(T+8,2)}")
    a(f"v_pk_add_f32 {V(T+2,2)}, {V(T+2,2)}, {V(T+6,2)}")
    ln_math([(T, T+1, T+10, T+11, T+12, T+13), (T+2, T+3, T+14, T+15, T+16, T+17)])
    a(f"ds_write2_b32 v{vT0}, v{T+10}, v{T+11} offset0:16 offset1:96")
    a(f"ds_write2_b32 v{vT1}, v{T+14}, v{T+15} offset0:0 offset1:80")
    a("s_waitcnt lgkmcnt(0)")
    vAB, vAV = 84, 94
    for t in range(5):
        a(f"ds_read2_b32 {V(vAB+2*t,2)}, v{vT1} offset0:{16*t} offset1:{80+16*t}")
    for t in range(5):
        a(f"ds_read_b128 {V(vAV+8*t,4)}, v{vT2} offset:{64*t}")
        a(f"ds_read_b128 {V(vAV+8*t+4,4)}, v{vT2} offset:{320+64*t}")
    a("s_waitcnt lgkmcnt(10)")
    vQb, vKb, vVb, vU = 160, 168, 178, 188
    def norm_qk(acc, cs, t, dst):
        ab = V(vAB + 2*t, 2)
        for h in range(2):
            a(f"v_pk_mul_f32 {V(vU+2*h,2)}, {V(cs+2*h,2)}, {ab} op_sel:[0,1] op_sel_hi:[1,1]")
            a(f"v_pk_fma_f32 {V(vU+2*h,2)}, {V(acc+2*h,2)}, {ab}, {V(vU+2*h,2)} op_sel:[0,0,0] op_sel_hi:[1,0,1]")
        for h in range(2):
            a(f"v_cvt_pk_bf16_f32 v{dst+h}, v{vU+2*h}, v{vU+2*h+1}")
    for t in range(5):
        norm_qk(vKT + 4*t, vCS + 4, t, vKb + 2*t)
        if t: norm_qk(vQT + 4*(t-1), vCS, t, vQb + 2*(t-1))
    vSc, vSp = 16, 32
    for t in range(1, 5):
        a(f"v_mfma_f32_16x16x16_bf16 {V(vSc+4*(t-1),4)}, {V(vKb+2*t,2)}, {V(vQb+2*(t-1),2)}, 0")
        a(f"v_mfma_f32_16x16x16_bf16 {V(vSp+4*(t-1),4)}, {V(vKb+2*(t-1),2)}, {V(vQb+2*(t-1),2)}, 0")
    a("s_waitcnt lgkmcnt(0)")
    for t in range(5):
        for h in range(2):
            a(f"v_pk_mul_f32 {V(vU+4+2*h,2)}, {V(vAV+8*t+4+2*h,2)}, {V(vCS+8,2)} op_sel:[0,0] op_sel_hi:[1,0]")
            a(f"v_pk_fma_f32 {V(vU+4+2*h,2)}, {V(vVV+4*t+2*h,2)}, {V(vAV+8*t+2*h,2)}, {V(vU+4+2*h,2)}")
        for h in range(2):
            a(f"v_cvt_pk_bf16_f32 v{vVb+2*t+h}, v{vU+4+2*h}, v{vU+4+2*h+1}")
    prof(f"a{ph}_norm")
    e = a.bg_pause()
    Ln = a.newlabel("L_nomask")
    a(f"s_cmp_lg_u32 s{sG}, 0")
    a(f"s_cbranch_scc1 {Ln}")
    a.flush()
    for i in range(4): a(f"v_mov_b32 v{vSp+i}, 0xf149f2ca")
    a.flush()
    a.label(Ln)
    a.bg_resume(e)
    vLg, vMx, vTm = 48, 56, 60
    for t in range(4):
        for i in range(2):
            a(f"v_cndmask_b32 v{vSc+4*t+2*i}, v{vSc+4*t+2*i}, v{vSc+4*t+2*i+1}, {PARM}")
            a(f"v_cndmask_b32 v{vSp+4*t+2*i}, v{vSp+4*t+2*i}, v{vSp+4*t+2*i+1}, {PARM}")
            a(f"v_cndmask_b32 v{vLg+2*t+i}, v{vSp+4*t+2*i}, v{vSc+4*t+2*i}, {MC[i]}")
        a(f"v_cvt_pk_bf16_f32 v{vLg+2*t+1}, v{vLg+2*t}, v{vLg+2*t+1}")
        a(f"v_lshlrev_b32 v{vLg+2*t}, 16, v{vLg+2*t+1}")
        a(f"v_and_b32 v{vLg+2*t+1}, 0xffff0000, v{vLg+2*t+1}")
        a(f"v_max_f32 v{vMx+t}, v{vLg+2*t}, v{vLg+2*t+1}")
    allreduce("v_max_f32", [vMx+t for t in range(4)], [vTm+t for t in range(4)])
    a(f"s_mov_b32 s{sT0}, 0x3eb8aa3b")
    for t in range(4):
        for i in range(2): a(f"v_sub_f32 v{vLg+2*t+i}, v{vLg+2*t+i}, v{vMx+t}")
    for t in range(4):
        for i in range(2): a(f"v_mul_f32 v{vLg+2*t+i}, s{sT0}, v{vLg+2*t+i}")
    for t in range(4):
        for i in range(2): a(f"v_exp_f32 v{vLg+2*t+i}, v{vLg+2*t+i}")
    for t in range(4): a(f"v_add_f32 v{vMx+t}, v{vLg+2*t}, v{vLg+2*t+1}")
    allreduce("v_add_f32", [vMx+t for t in range(4)], [vTm+t for t in range(4)])
    vPc, vPp = 16, 24
    for t in range(4): a(f"v_rcp_f32 v{vMx+t}, v{vMx+t}")
    for t in range(4):
        a(f"v_cndmask_b32 v{vTm}, v{vMx+t}, 0, {PARM}")
        a(f"v_cndmask_b32 v{vTm+1}, 0, v{vMx+t}, {PARM}")
        for i in range(2):
            a(f"v_mul_f32 v{vTm+2}, v{vLg+2*t+i}, v{vTm}")
            a(f"v_mul_f32 v{vTm+3}, v{vLg+2*t+i}, v{vTm+1}")
            a(f"v_cvt_pk_bf16_f32 v{vTm+2}, v{vTm+2}, v{vTm+3}")
            a(f"v_cndmask_b32 v{vPc+2*t+i}, 0, v{vTm+2}, {MC[i]}")
            a(f"v_cndmask_b32 v{vPp+2*t+i}, v{vTm+2}, 0, {MC[i]}")
    vO = 32
    for t in range(1, 5):
        a(f"v_mfma_f32_16x16x16_bf16 {V(vO+4*(t-1),4)}, {V(vVb+2*t,2)}, {V(vPc+2*(t-1),2)}, 0")
    for t in range(1, 5):
        a(f"v_mfma_f32_16x16x16_bf16 {V(vO+4*(t-1),4)}, {V(vVb+2*(t-1),2)}, {V(vPp+2*(t-1),2)}, {V(vO+4*(t-1),4)}")
    prof(f"a{ph}_pv")
    a.bg_flush()
    if ph == 0:
        async_check(32, MB_S1, "s1")
        a(f"s_lshl_b32 s{sT0}, s{sL}, 13")
        a(f"s_lshl_b32 s{sT1}, s{sW}, 11")
        a(f"s_add_u32 s{sT0}, s{sT0}, s{sT1}")
        a(f"s_add_u32 s{sT0}, s{sT0}, {KVT_OFF}")
        a(f"s_lshr_b32 s{sT2}, s{sW}, 1")
        a(f"s_mul_i32 s{sT2}, s{sT2}, {URP - 4096}")
        a(f"s_add_u32 s{sT2}, s{sT2}, s{sT1}")
        a(f"s_add_u32 m0, s{sT2}, {UR}")
        a(f"buffer_load_dwordx4 v{vA0}, {S4(SWS)}, s{sT0} offen sc1 lds")
        a(f"buffer_load_dwordx4 v{vA0}, {S4(SWS)}, s{sT0} offen offset:1024 sc1 lds")
    vOP = 48
    for t in range(4):
        a(f"v_cvt_pk_bf16_f32 v{vOP+2*t}, v{vO+4*t}, v{vO+4*t+1}")
        a(f"v_cvt_pk_bf16_f32 v{vOP+2*t+1}, v{vO+4*t+2}, v{vO+4*t+3}")
    tile_to_lds(vOP, 56)
    a(f"s_add_u32 s{sT0}, s{sTILE}, {ooff}")
    a(f"s_add_u32 s{sT1}, s{sT0}, 32768")
    a(f"buffer_store_dwordx4 {V(56,4)}, v{vT0}, {S4(SWS)}, s{sT0} offen sc1")
    a(f"buffer_store_dwordx4 {V(60,4)}, v{vT0}, {S4(SWS)}, s{sT1} offen sc1")
    vm.drain()
    barrier()
    signal(8, group_sig(sig))
    prof(f"a{ph}_done")

def pretouch():
    mode = ENV("PRETOUCH", 2)
    a(f"s_lshl_b32 s{sB0}, s{sW}, 11")
    a(f"s_add_u32 s{sB0}, s{sB0}, s{sMB}")
    a(f"s_add_u32 s{sB0}, s{sB0}, {MB_ST}")
    if mode == 1:
        a(f"buffer_store_dwordx4 {V(vONE,4)}, v{vA0}, {S4(SWS)}, s{sB0} offen sc1"); vm.issue("pt")
        a(f"buffer_store_dwordx4 {V(vONE,4)}, v{vA0}, {S4(SWS)}, s{sB0} offen offset:1024 sc1"); vm.issue("pt")
    else:
        a(f"v_lshlrev_b32 v217, 7, v{vL15}")
        a(f"buffer_load_dword v216, v217, {S4(SWS)}, s{sB0} offen sc1"); vm.issue("pt")

a.bg_start(([pretouch] if ENV("PRETOUCH", 2) else []) + [async_poll(MB_S1)], ENV("BGEVERY", 8))
attention(0, O1_OFF, MB_S2)
if STAGE <= 1: a("s_branch L_end")

a(f"v_mov_b32 v160, 0\nv_mov_b32 v161, 0\nv_mov_b32 v162, 0\nv_mov_b32 v163, 0")
a(f"s_mov_b32 exec_lo, -1\ns_mov_b32 exec_hi, 0")
a(f"v_add_u32 v{vT2}, {UR + 4096}, v{vA0}")
a(f"ds_write_b128 v{vT2}, {V(160,4)}")
a(f"ds_write_b128 v{vT2}, {V(160,4)} offset:{URP}")
a(f"s_mov_b64 exec, 3")
a(f"v_add_u32 v{vT2}, {HC}, v{vA0}")
a(f"ds_write_b128 v{vT2}, {V(160,4)}")
a(f"ds_write_b128 v{vT2}, {V(160,4)} offset:{2*HCP}")
a(f"s_mov_b64 exec, 1")
a(f"ds_write_b128 v{vT2}, {V(160,4)} offset:{HCP}")
a(f"ds_write_b128 v{vT2}, {V(160,4)} offset:{3*HCP}")
a(f"s_mov_b64 exec, -1")
a(f"v_lshlrev_b32 v{vT0}, 4, v{vTID}")
a(f"v_add_u32 v{vT0}, {HC + 32}, v{vT0}")
a(f"v_cmp_eq_u32 vcc, 255, v{vTID}")
for c in range(2):
    b = yH + 8*c
    a(f"v_cndmask_b32 v{b+4}, v{b+4}, 0, vcc")
    a(f"ds_write_b128 v{vT0}, {V(b,4)} offset:{2*c*HCP}")
    for i in range(4): a(f"v_alignbit_b32 v{164+4*c+i}, v{b+i+1}, v{b+i}, 16")
    a(f"ds_write_b128 v{vT0}, {V(164+4*c,4)} offset:{(2*c+1)*HCP}")
a(f"v_cmp_eq_u32 vcc, 0, v{vTID}")
a(f"s_and_saveexec_b64 {S2(sEX)}, vcc")
a(f"v_mov_b32 v{vT2}, {HC}")
a(f"v_lshlrev_b32 v163, 16, v{yH}")
a(f"ds_write_b128 v{vT2}, {V(160,4)} offset:{HCP + 16}")
a(f"v_mov_b32 v172, 0\nv_mov_b32 v173, 0\nv_mov_b32 v174, 0")
a(f"v_lshlrev_b32 v175, 16, v{yH+8}")
a(f"ds_write_b128 v{vT2}, {V(172,4)} offset:{3*HCP + 16}")
a(f"s_mov_b64 exec, {S2(sEX)}")
yF, yG, yAcc, yFA, yGA = 16, 48, 84, 116, 120
a(f"v_add_u32 v{vT0}, 1, v{vL15}")
a(f"v_and_b32 v{vT0}, 30, v{vT0}")
a(f"v_lshlrev_b32 v{vT0}, 1, v{vT0}")
a(f"v_lshlrev_b32 v{vT1}, 4, v{vQ}")
a(f"v_sub_u32 v{vT0}, v{vT0}, v{vT1}")
a(f"v_mov_b32 v{vT1}, {HCP}")
a(f"v_cndmask_b32 v{vT1}, v{vT1}, 0, {PARM}")
a(f"v_add_u32 v{vT0}, v{vT0}, v{vT1}")
a(f"s_lshr_b32 s{sT0}, s{sW}, 1")
a(f"s_mul_i32 s{sT1}, s{sT0}, {2*HCP}")
a(f"s_and_b32 s{sT2}, s{sW}, 1")
a(f"s_lshl_b32 s{sT2}, s{sT2}, 8")
a(f"s_sub_u32 s{sT1}, s{sT1}, s{sT2}")
for ap in range(4):
    a(f"s_add_u32 s{sT3}, s{sT1}, {HC + 4080 - 512*(2*ap+1) - 192}")
    a(f"v_add_u32 v{yFA+ap}, s{sT3}, v{vT0}")
a(f"v_lshlrev_b32 v{vT0}, 5, v{vL15}")
a(f"v_lshl_add_u32 v{vT0}, v{vQ}, 4, v{vT0}")
a(f"s_mul_i32 s{sT1}, s{sT0}, {URP}")
a(f"s_sub_u32 s{sT1}, s{sT1}, s{sT2}")
a(f"s_add_u32 s{sT1}, s{sT1}, {UR + 8144 - 512*14 - 192}")
a(f"v_sub_u32 v{yGA}, s{sT1}, v{vT0}")
a("s_waitcnt lgkmcnt(0)")
barrier()
prof("y2start")
vm.reset()
vRA = 122
def res_loads():
    a(f"v_lshlrev_b32 v{vRA}, 10, v{vL15}")
    a(f"v_lshl_add_u32 v{vRA}, v{vQ}, 3, v{vRA}")
    a(f"s_lshl_b32 s{sB1}, s{sW}, 5")
    a(f"s_add_u32 s{sB1}, s{sB1}, s{sTILE}")
    for t in range(4):
        if t: a(f"s_add_u32 s{sB1}, s{sB1}, 16384")
        a(f"buffer_load_dwordx2 {V(vX2+2*t,2)}, v{vRA}, {S4(SX)}, s{sB1} offen"); vm.issue("res")
YB = [(16, 48), (144, 176)]
def y2_reads(rr):
    F, G = YB[rr & 1]
    out = []
    for aa in range(8):
        ap, hi = aa // 2, aa % 2
        off = ((1 - hi) * 512 + (3 - rr) * 64) // 4
        out.append(ldsg(f"ds_read2_b32 {V(F+4*aa,2)}, v{yFA+ap} offset0:{off} offset1:{off+1}", ("y", rr)))
        out.append(ldsg(f"ds_read2_b32 {V(F+4*aa+2,2)}, v{yFA+ap} offset0:{off+2} offset1:{off+3}", ("y", rr)))
    for bb in range(8):
        out.append(ldsg(f"ds_read_b128 {V(G+4*bb,4)}, v{yGA} offset:{(7-bb)*512 + (3-rr)*64}", ("y", rr)))
    return out
def wo_reads(lo, hi):
    return [ldsg(f"ds_read_b64_tr_b16 {A(192+4*s+2*h,2)}, v{vTR} offset:{WOIMG + s*4096 + h*2048}", "wot")
            for s in range(lo, hi) for h in range(2)]
lg.reset()
for g in y2_reads(0): g()
OG = o_groups(O1_OFF)
for rr in range(4):
    a("s_waitcnt lgkmcnt(0)"); lg.reset()
    F, G = YB[rr & 1]
    seq = []; started = set()
    for bb in range(8):
        for aa in range(8):
            c = 7 + bb - aa
            if 0 <= c <= 7:
                first = (rr == 0 and c not in started); started.add(c)
                seq.append(f"v_mfma_f32_16x16x32_bf16 {V(yAcc+4*c,4)}, {V(F+4*aa,4)}, {V(G+4*bb,4)}, {'0' if first else V(yAcc+4*c,4)}")
    if rr == 2: async_check(8, MB_S2, "o1")
    sp = {0: [async_poll(MB_S2), res_loads], 1: [], 2: OG[:8], 3: OG[8:]}[rr]
    early = (y2_reads(rr + 1) + wo_reads(3*rr, 3*rr+3)) if rr < 3 else wo_reads(9, 16)
    a.weave(seq, early, sp)
prof("y2mfma")
a("s_waitcnt lgkmcnt(0)")
barrier()
a(f"s_lshl_b32 s{sT0}, s{sW}, 12")
a(f"s_add_u32 s{sT0}, s{sT0}, {ACCX}")
a(f"v_add_u32 v{vT0}, s{sT0}, v{vA0}")
a(f"s_xor_b32 s{sT1}, s{sW}, 1")
a(f"s_lshl_b32 s{sT1}, s{sT1}, 12")
a(f"s_add_u32 s{sT1}, s{sT1}, {ACCX}")
a(f"v_add_u32 v{vT1}, s{sT1}, v{vA0}")
a(f"s_and_b32 s{sT2}, s{sW}, 1")
a(f"s_cmp_eq_u32 s{sT2}, 0")
a("s_cbranch_scc1 L_y2_even")
a.flush()
for i in range(4):
    a(f"ds_write_b128 v{vT0}, {V(yAcc+8*i,4)} offset:{1024*i}")
    for r in range(4): a(f"v_mov_b32 v{yF+4*i+r}, v{yAcc+8*i+4+r}")
a("s_branch L_y2_x")
a.label("L_y2_even")
a.flush()
for i in range(4):
    a(f"ds_write_b128 v{vT0}, {V(yAcc+8*i+4,4)} offset:{1024*i}")
    for r in range(4): a(f"v_mov_b32 v{yF+4*i+r}, v{yAcc+8*i+r}")
a.label("L_y2_x")
a(f"v_lshlrev_b32 v{vT0}, 5, v{vL15}")
a(f"v_lshl_add_u32 v{vT0}, v{vQ}, 3, v{vT0}")
a(f"s_lshr_b32 s{sT0}, s{sW}, 1")
a(f"s_mul_i32 s{sT1}, s{sT0}, {URP}")
a(f"s_lshl_b32 s{sT3}, s{sT2}, 9")
a(f"s_sub_u32 s{sT1}, s{sT1}, s{sT3}")
a(f"s_add_u32 s{sT1}, s{sT1}, {UR + 4088 - 3*1024}")
a(f"v_sub_u32 v{vT2}, s{sT1}, v{vT0}")
for i in range(4): a(f"ds_read_b64 {V(64+2*i,2)}, v{vT2} offset:{(3-i)*1024}")
a(f"s_lshl_b32 s{sT1}, s{sD}, 16")
a(f"s_and_b32 s{sT3}, s{sD}, 0xffff0000")
a(f"s_cmp_eq_u32 s{sT0}, 0")
a(f"s_cselect_b32 s{sT1}, s{sT1}, s{sT3}")
a(f"s_lshl_b32 s{sT3}, s{sL}, 1")
a(f"s_add_u32 s{sT3}, s{sT3}, s{sT0}")
a(f"s_lshl_b32 s{sT3}, s{sT3}, 12")
a(f"s_lshl_b32 s{sT4}, s{sT2}, 9")
a(f"s_add_u32 s{sT3}, s{sT3}, s{sT4}")
a(f"s_add_u32 s{sT3}, s{sT3}, {YT_OFF}")
a("s_waitcnt lgkmcnt(0)")
barrier()
for i in range(4): a(f"ds_read_b128 {V(yG+4*i,4)}, v{vT1} offset:{1024*i}")
for i in range(4):
    k0, u = 64 + 2*i, 144 + 4*i
    a(f"v_and_b32 v{u}, 0xffff0000, v{k0+1}")
    a(f"v_lshlrev_b32 v{u+1}, 16, v{k0+1}")
    a(f"v_and_b32 v{u+2}, 0xffff0000, v{k0}")
    a(f"v_lshlrev_b32 v{u+3}, 16, v{k0}")
    for r in range(4): a(f"v_mul_f32 v{u+r}, s{sT1}, v{u+r}")
    a(f"v_cvt_pk_bf16_f32 v{u}, v{u}, v{u+1}")
    a(f"v_cvt_pk_bf16_f32 v{u+2}, v{u+2}, v{u+3}")
    a(f"v_and_b32 v{u+1}, 0xffff0000, v{u}")
    a(f"v_lshlrev_b32 v{u}, 16, v{u}")
    a(f"v_and_b32 v{u+3}, 0xffff0000, v{u+2}")
    a(f"v_lshlrev_b32 v{u+2}, 16, v{u+2}")
a("s_waitcnt lgkmcnt(0)")
for i in range(4):
    y, u = yF + 4*i, 144 + 4*i
    a(f"v_pk_add_f32 {V(y,2)}, {V(y,2)}, {V(yG+4*i,2)}")
    a(f"v_pk_add_f32 {V(y+2,2)}, {V(y+2,2)}, {V(yG+4*i+2,2)}")
    a(f"v_cvt_pk_bf16_f32 v{y}, v{y}, v{y+1}")
    a(f"v_cvt_pk_bf16_f32 v{y+2}, v{y+2}, v{y+3}")
    a(f"v_and_b32 v{y+1}, 0xffff0000, v{y}")
    a(f"v_lshlrev_b32 v{y}, 16, v{y}")
    a(f"v_and_b32 v{y+3}, 0xffff0000, v{y+2}")
    a(f"v_lshlrev_b32 v{y+2}, 16, v{y+2}")
    a(f"v_pk_add_f32 {V(y,2)}, {V(y,2)}, {V(u,2)}")
    a(f"v_pk_add_f32 {V(y+2,2)}, {V(y+2,2)}, {V(u+2,2)}")
    a(f"v_cvt_pk_bf16_f32 v{y}, v{y}, v{y+1}")
    a(f"v_cvt_pk_bf16_f32 v{y+1}, v{y+2}, v{y+3}")
    a(f"buffer_store_dwordx2 {V(y,2)}, v{vT0}, {S4(SWS)}, s{sT3} offen offset:{1024*i} sc1"); vm.issue("yst")
S3SIG = f"""s_lshr_b32 s{sT0}, s{sL}, 5
v_lshl_add_u32 v{vT1}, v{vLANE}, 3, s{sT0}
v_lshlrev_b32 v{vT1}, {MB_SH}, v{vT1}
s_and_b32 s{sT0}, s{sL}, 31
s_lshl_b32 s{sT0}, s{sT0}, 7
s_add_u32 s{sT0}, s{sT0}, {MB_OFF + MB_S3}
v_add_u32 v{vT1}, s{sT0}, v{vT1}"""
prof("y2")
if STAGE <= 2:
    vm.drain()
    a("s_branch L_end")

def p2(ph):
    vOB, vPA, vOF = 121, 16, 32
    a(f"v_add_u32 v{vOB}, {OIMG}, v{vFR}")
    def rd(s):
        return [ldsg(f"ds_read_b128 {V(vOF+16*(s&1)+4*t,4)}, v{vOB} offset:{s*4096 + t*1024}", ("of", s)) for t in range(4)]
    for s in range(16):
        if s % 4 == 0:
            vm.wait(("o", s // 4))
            if ph == 1 or s == 0: barrier()
            if ph == 1 or s == 0:
                for g in rd(s): g()
        lg.wait(("of", s))
        nxt = rd(s + 1) if (s < 15 and (ph == 0 or s % 4 != 3)) else []
        seq = [f"v_mfma_f32_16x16x32_bf16 {V(vPA+4*t,4)}, {A(192+4*s,4)}, {V(vOF+16*(s&1)+4*t,4)}, {'0' if s == 0 else V(vPA+4*t,4)}" for t in range(4)]
        a.weave(seq, nxt, [])
    prof(f"p{ph}_gemm")
    vX1, vSt, vW = 64, 72, 84
    for t in range(4):
        c = vPA + 4*t
        a(f"v_cvt_pk_bf16_f32 v{c}, v{c}, v{c+1}")
        a(f"v_cvt_pk_bf16_f32 v{c+2}, v{c+2}, v{c+3}")
        a(f"v_and_b32 v{c+1}, 0xffff0000, v{c}")
        a(f"v_lshlrev_b32 v{c}, 16, v{c}")
        a(f"v_and_b32 v{c+3}, 0xffff0000, v{c+2}")
        a(f"v_lshlrev_b32 v{c+2}, 16, v{c+2}")
        a(f"v_lshlrev_b32 v{vW}, 16, v{vX2+2*t}")
        a(f"v_and_b32 v{vW+1}, 0xffff0000, v{vX2+2*t}")
        a(f"v_lshlrev_b32 v{vW+2}, 16, v{vX2+2*t+1}")
        a(f"v_and_b32 v{vW+3}, 0xffff0000, v{vX2+2*t+1}")
        a(f"v_pk_add_f32 {V(c,2)}, {V(c,2)}, {V(vW,2)}")
        a(f"v_pk_add_f32 {V(c+2,2)}, {V(c+2,2)}, {V(vW+2,2)}")
        a(f"v_cvt_pk_bf16_f32 v{vX1+2*t}, v{c}, v{c+1}")
        a(f"v_cvt_pk_bf16_f32 v{vX1+2*t+1}, v{c+2}, v{c+3}")
        a(f"v_lshlrev_b32 v{c}, 16, v{vX1+2*t}")
        a(f"v_and_b32 v{c+1}, 0xffff0000, v{vX1+2*t}")
        a(f"v_lshlrev_b32 v{c+2}, 16, v{vX1+2*t+1}")
        a(f"v_and_b32 v{c+3}, 0xffff0000, v{vX1+2*t+1}")
        a(f"v_pk_add_f32 {V(vW,2)}, {V(c,2)}, {V(c+2,2)}")
        a(f"v_pk_mul_f32 {V(vW+2,2)}, {V(c,2)}, {V(c,2)}")
        a(f"v_pk_fma_f32 {V(vW+2,2)}, {V(c+2,2)}, {V(c+2,2)}, {V(vW+2,2)}")
        a(f"v_add_f32 v{vSt+2*t}, v{vW}, v{vW+1}")
        a(f"v_add_f32 v{vSt+2*t+1}, v{vW+2}, v{vW+3}")
    a(f"v_lshlrev_b32 v{vT0}, 9, v{vQ}")
    a(f"v_lshl_add_u32 v{vT0}, v{vL15}, 3, v{vT0}")
    a(f"s_lshl_b32 s{sT0}, s{sW}, 11")
    a(f"s_add_u32 s{sT0}, s{sT0}, {PS}")
    a(f"v_add_u32 v{vT0}, s{sT0}, v{vT0}")
    for t in range(4): a(f"ds_write_b64 v{vT0}, {V(vSt+2*t,2)} offset:{128*t}")
    a(f"v_lshlrev_b32 v{vT0}, 3, v{vLANE}")
    a(f"v_add_u32 v{vT2}, {PS}, v{vT0}")
    a("s_waitcnt vmcnt(0) lgkmcnt(0)" if ph == 0 else "s_waitcnt lgkmcnt(0)")
    barrier()
    prof(f"p{ph}_ps")
    for i in range(8): a(f"ds_read_b64 {V(vW+2*i,2)}, v{vT2} offset:{512*i}")
    if ph == 0: signal(32, S3SIG)
    a("s_waitcnt lgkmcnt(0)")
    for i in range(8): a(f"ds_read_b64 {V(vW+16+2*i,2)}, v{vT2} offset:{512*(8+i)}")
    a(f"s_lshl_b32 s{sT0}, s{sG}, 3")
    a(f"s_lshl_b32 s{sT1}, s{sW}, 1")
    a(f"s_add_u32 s{sT0}, s{sT0}, s{sT1}")
    a(f"s_lshl_b32 s{sT0}, s{sT0}, {MB_SH}")
    a(f"s_lshl_b32 s{sT1}, s{sJ}, 10")
    a(f"s_add_u32 s{sT0}, s{sT0}, s{sT1}")
    a(f"s_add_u32 s{sT0}, s{sT0}, {MB_OFF + MB_ST}")
    a(f"s_add_u32 s{sT1}, s{sT0}, {MB_SZ}")
    n = 8
    while n > 1:
        n //= 2
        for i in range(n): a(f"v_pk_add_f32 {V(vW+2*i,2)}, {V(vW+2*i,2)}, {V(vW+2*(i+n),2)}")
    a("s_waitcnt lgkmcnt(0)")
    n = 8
    while n > 1:
        n //= 2
        for i in range(n): a(f"v_pk_add_f32 {V(vW+16+2*i,2)}, {V(vW+16+2*i,2)}, {V(vW+16+2*(i+n),2)}")
    a(f"v_pk_add_f32 {V(vW,2)}, {V(vW,2)}, {V(vW+16,2)}")
    a(f"v_mov_b32 v{vW+2}, s{sN}")
    a(f"v_mov_b32 v{vW+3}, s{sN+1}")
    a(f"buffer_store_dwordx4 {V(vW,4)}, v{vA0}, {S4(SWS)}, s{sT0} offen sc1")
    a(f"buffer_store_dwordx4 {V(vW,4)}, v{vA0}, {S4(SWS)}, s{sT1} offen sc1")
    prof(f"p{ph}_pub")
    a(f"s_add_u32 s{sT0}, s{sMB}, {MB_ST}")
    a(f"s_lshl_b32 s{sT1}, s{sW}, 11")
    a(f"s_add_u32 s{sT0}, s{sT0}, s{sT1}")
    L0, L1 = a.newlabel("L_pst"), a.newlabel("L_pst")
    a.flush()
    a(f"s_branch {L1}")
    a.label(L0)
    a("s_sleep 1")
    a.label(L1)
    for i in range(2):
        a(f"buffer_load_dwordx4 {V(vW+4*i,4)}, v{vA0}, {S4(SWS)}, s{sT0} offen offset:{1024*i} sc1")
    a("s_waitcnt vmcnt(0)")
    a(f"v_cmp_ne_u64 vcc, {S2(sN)}, {V(vW+2,2)}")
    a(f"v_cmp_ne_u64 {S2(sEX)}, {S2(sN)}, {V(vW+6,2)}")
    a(f"s_or_b64 vcc, vcc, {S2(sEX)}")
    a(f"s_cbranch_vccnz {L0}")
    a(f"v_pk_add_f32 {V(vW,2)}, {V(vW,2)}, {V(vW+4,2)}")
    a(f"s_lshl_b32 s{sT1}, s{sW}, 9")
    a(f"s_add_u32 s{sT1}, s{sT1}, {MISC + 4096}")
    a(f"v_lshl_add_u32 v{vT1}, v{vLANE}, 3, s{sT1}")
    a(f"ds_write_b64 v{vT1}, {V(vW,2)}")
    if ph == 0:
        poll(32, MB_S3, "s3")
        prof("p0_s3")
        a(f"v_lshrrev_b32 v{vT0}, 3, v{vLANE}")
        a(f"v_lshlrev_b32 v{vT0}, 12, v{vT0}")
        a(f"v_and_b32 v{vT1}, 7, v{vLANE}")
        a(f"v_lshl_add_u32 v{vT0}, v{vT1}, 4, v{vT0}")
        a(f"s_lshl_b32 s{sT0}, s{sJ}, 18")
        a(f"s_lshl_b32 s{sT1}, s{sG}, 7")
        a(f"s_add_u32 s{sT0}, s{sT0}, s{sT1}")
        a(f"s_lshl_b32 s{sT1}, s{sW}, 16")
        a(f"s_add_u32 s{sT0}, s{sT0}, s{sT1}")
        a(f"s_add_u32 s{sT0}, s{sT0}, {YT_OFF}")
        a(f"s_lshl_b32 s{sT1}, s{sW}, 11")
        a(f"s_add_u32 m0, s{sT1}, {YTT}")
        a(f"buffer_load_dwordx4 v{vT0}, {S4(SWS)}, s{sT0} offen sc1 lds")
        a(f"s_add_u32 s{sT0}, s{sT0}, 32768")
        a(f"s_add_u32 m0, s{sT1}, {YTT + 1024}")
        a(f"buffer_load_dwordx4 v{vT0}, {S4(SWS)}, s{sT0} offen sc1 lds")
    a(f"v_lshlrev_b32 v{vT1}, 3, v{vL15}")
    a(f"v_add_u32 v{vT1}, {MISC + 4096}, v{vT1}")
    a("s_waitcnt lgkmcnt(0)")
    barrier()
    prof(f"p{ph}_stats")
    for t in range(4):
        for i in range(4): a(f"ds_read_b64 {V(vW+8*t+2*i,2)}, v{vT1} offset:{512*i + 128*t}")
    a("s_waitcnt lgkmcnt(0)")
    for t in range(4):
        b = vW + 8*t
        a(f"v_pk_add_f32 {V(b,2)}, {V(b,2)}, {V(b+2,2)}")
        a(f"v_pk_add_f32 {V(b+4,2)}, {V(b+4,2)}, {V(b+6,2)}")
    for t in range(4):
        b = vW + 8*t
        a(f"v_pk_add_f32 {V(b,2)}, {V(b,2)}, {V(b+4,2)}")
    ln_math([(vW+8*t, vW+8*t+1, vW+8*t+2, vW+8*t+3, vW+8*t+4, vW+8*t+5) for t in range(4)])
    if ph == 0:
        a(f"v_lshrrev_b32 v{vT1}, 2, v{vLANE}")
        a(f"v_lshlrev_b32 v{vT1}, 7, v{vT1}")
        a(f"v_and_b32 v{vT2}, 3, v{vLANE}")
        a(f"v_lshl_add_u32 v{vT1}, v{vT2}, 3, v{vT1}")
        a(f"s_lshl_b32 s{sT0}, s{sW}, 11")
        a(f"s_add_u32 s{sT0}, s{sT0}, {YTT}")
        a(f"v_add_u32 v{vT1}, s{sT0}, v{vT1}")
        a("s_waitcnt vmcnt(0)")
        for t in range(4): a(f"ds_read_b64_tr_b16 {V(vYY+2*t,2)}, v{vT1} offset:{32*t}")
        a("s_waitcnt lgkmcnt(0)")
    for t in range(4):
        ab = V(vW+8*t+2, 2)
        x, y, u = vPA + 4*t, 32 + 8*t, 36 + 8*t
        a(f"v_lshlrev_b32 v{y}, 16, v{vYY+2*t}")
        a(f"v_and_b32 v{y+1}, 0xffff0000, v{vYY+2*t}")
        a(f"v_lshlrev_b32 v{y+2}, 16, v{vYY+2*t+1}")
        a(f"v_and_b32 v{y+3}, 0xffff0000, v{vYY+2*t+1}")
        for h in range(2):
            a(f"v_pk_fma_f32 {V(u+2*h,2)}, {V(x+2*h,2)}, {ab}, {ab} op_sel:[0,0,1] op_sel_hi:[1,0,1]")
            a(f"v_pk_fma_f32 {V(u+2*h,2)}, {V(u+2*h,2)}, {V(y+2*h,2)}, {V(x+2*h,2)}")
        a(f"v_cvt_pk_bf16_f32 v{vX2+2*t}, v{u}, v{u+1}")
        a(f"v_cvt_pk_bf16_f32 v{vX2+2*t+1}, v{u+2}, v{u+3}")
    tile_to_lds(vX2, vW)
    prof(f"p{ph}_epi")
    a(f"s_add_u32 s{sT1}, s{sTILE}, 32768")
    if ph == 0:
        a(f"buffer_store_dwordx4 {V(vW,4)}, v{vT0}, {S4(SX2)}, s{sTILE} offen sc1")
        a(f"buffer_store_dwordx4 {V(vW+4,4)}, v{vT0}, {S4(SX2)}, s{sT1} offen sc1")
        vm.drain()
        barrier()
        signal(16, group_sig(MB_S5, 16))
        prof("p0_done")
    else:
        a(f"buffer_store_dwordx4 {V(vW,4)}, v{vT0}, {S4(SOUT)}, s{sTILE} offen")
        a(f"buffer_store_dwordx4 {V(vW+4,4)}, v{vT0}, {S4(SOUT)}, s{sT1} offen")
        prof("final")

lg.reset()
vm.wait(("o", 3))
p2(0)
if STAGE <= 3: a("s_branch L_end")

a(f"s_mov_b32 s{sT1}, 0xffff")
a(f"s_cmp_eq_u32 s{sG}, 0")
a(f"s_cselect_b32 exec_lo, 0xff, s{sT1}")
a("s_mov_b32 exec_hi, 0")
poll(16, MB_S5, "x2", exec_set=True)
a(f"s_xor_b32 s{sN}, s{sN}, 1")
prof("p3_wait")
vm.reset(); lg.reset()
k_reset()
for s in range(8):
    for g in dma_x_groups(s, SX2): g()
    k_next()
for s in range(16):
    if s % 4 == 0:
        vm.wait(("x", s + 3), ("h", s // 4))
        barrier()
        for g in x_reads(s, s & 1): g()
    rd = x_reads(s + 1, (s + 1) & 1) if s % 4 != 3 else []
    lg.wait(("xa", s))
    fl = (dma_x_groups(8 + 2*s, SX2) + [k_next] + dma_x_groups(9 + 2*s, SX2) + [k_next]) if s < 4 else []
    mfmas(s, s & 1, False, rd, fl)
prof("p3_gemm")
attention(1, O3_OFF, MB_S6)
poll(8, MB_S6, "o3")
prof("p1_owait")
vm.reset(); lg.reset()
for g in o_groups(O3_OFF): g()
p2(1)
if ENV("XEND", 0):
    a(f"s_mov_b32 s{sT0}, 0")
    a.label("L_xend")
    for i in range(8): a(f"v_mfma_f32_16x16x32_bf16 {V(16+4*i,4)}, {V(84,4)}, {V(88,4)}, {V(16+4*i,4)}")
    a(f"s_add_u32 s{sT0}, s{sT0}, 1")
    a(f"s_cmp_lt_u32 s{sT0}, {ENV('XEND', 0)}")
    a("s_cbranch_scc1 L_xend")
a.label("L_end")
a("s_endpgm")
a.raw('.section .rodata,"a"')
a.raw(kernel_desc(NAME, 512, 102, 256))
out = sys.argv[1] if len(sys.argv) > 1 else "interleave_layers__sliding_local_dilated__ssm_conv_h3__prompt.s"
open(out, "w").write(a.text())
print("wrote", out, "lines", len(a.lines), "pad states", a.npad)
```

```python
import sys, os
sys.path.insert(0, os.path.dirname(os.path.abspath(__file__)))
from asmlib import *

NAME = "interleave_layers__sliding_local_dilated__ssm_conv_h3__prompt_kernel"
STAGE = int(os.environ.get("STAGE", "9"))
PROF = int(os.environ.get("PROF", "0"))
ENV = lambda k, d: int(os.environ.get(k, str(d)))

KVT_OFF = 0
YT_OFF = KVT_OFF
O1_OFF = 4 << 20
X2_OFF = O1_OFF
O3_OFF = 8 << 20
MB_OFF = 16 << 20
MB_SH = 15
MB_SZ = 1 << MB_SH
MB_S1, MB_S2, MB_S3, MB_S6A, MB_S6B, MB_S5 = 64, 0, 16, 32, 48, 80
MB_XS = 12288
MB_XH = 20480
MB_ST = 4096
PROF_OFF = 32 << 20

XIMG = 0
WRING = 81920
NSLOT = 6
WOIMG = 0
UR, URP = 65536, 4608
HC, HCP = 74752, 4160
ACCX = HC
YTT = HC
PS = HC + 8192
OT = PS
MISC = 91392
ABW = MISC + 1024
OIMG = 98304
Y1T = 155648

sB, sW, sG, sJ, sKK0 = 2, 3, 4, 5, 6
SX, SWQ, SWO, SK_, SV_, SH, SOUT, SDBG, SWS, SX2, SSK = 8, 12, 16, 20, 24, 28, 32, 36, 40, 44, 48
sD = 52
sPAR, sMC0, sMC1 = 54, 56, 58
sL = 60
sT0, sT1, sT2, sT3, sT4 = 61, 62, 63, 64, 75
sW1K, sW16K, sW5K, sMB = 65, 66, 67, 68
sTILE = 69
sEX = 72
sN = 78
sXo, sW3K, sW64, sXx = 80, 81, 82, 83
sTP = 84
sB0, sB1 = 70, 71
sPT = 92

def S4(n): return f"s[{n}:{n+3}]"
def S2(n): return f"s[{n}:{n+1}]"
def V(n, k=1): return f"v{n}" if k == 1 else f"v[{n}:{n+k-1}]"
def A(n, k=1): return f"a{n}" if k == 1 else f"a[{n}:{n+k-1}]"

vTID, vLANE, vL15, vQ = 0, 1, 2, 3
vA0, vA1, vS0, vS1, vSH, vTR, vXD, vXDH, vWD = 4, 5, 6, 7, 8, 9, 10, 11, 12
vT0, vT1, vT2 = 13, 14, 15
vQT, vKT, vVV = 16, 32, 52
vXA = 84
vSO = 124
vSHF = 132
vONE = 136
vXDW, vKVD, vL128 = 140, 141, 142
yH = 144
vST = 196
vPL = 214
vNL = 220
vP0 = 222
vCS = 224
vTRW0, vTRW1, vWOD, vFR = 236, 237, 238, 239
vX2, vYY = 240, 248

a = Asm()
vm = Cnt(a, "vmcnt", 63)
lg = Cnt(a, "lgkmcnt", 15)
prof_idx = [0]
PARM, MC = S2(sPAR), [S2(sMC0), S2(sMC1)]

DBGTAGS = ["start", "y1done", "p1gemm", "a0_done", "y2", "p0_pub", "p0_stats", "p0_done", "p3_wait", "p3_gemm", "a1_done", "p1_gemm", "final"]
def prof_dbg(tag):
    if tag not in DBGTAGS: return
    e = a.bg_pause()
    i = DBGTAGS.index(tag)
    L = a.newlabel("L_pd")
    a(f"s_cmp_lg_u32 s{sL}, 37")
    a(f"s_cbranch_scc1 {L}")
    a(f"s_memtime {S2(sPT)}")
    if tag in ("start", "final"): a(f"s_memrealtime {S2(sPT+2)}")
    a("s_waitcnt lgkmcnt(0)")
    if tag == "start":
        a(f"s_mov_b32 s100, s{sPT}")
        a(f"s_mov_b32 s101, s{sPT+2}")
    a(f"s_sub_u32 s{sPT}, s{sPT}, s100")
    a(f"v_mov_b32 v218, s{sPT}")
    a(f"v_mov_b32 v219, {12 + 4*i}")
    a(f"v_cmp_eq_u32 {S2(sPT+6)}, 0, v{vTID}")
    a(f"s_and_saveexec_b64 {S2(sPT+4)}, {S2(sPT+6)}")
    a(f"buffer_store_dword v218, v219, {S4(SDBG)}, 0 offen")
    if tag == "final":
        a(f"s_sub_u32 s{sPT+2}, s{sPT+2}, s101")
        a(f"v_mov_b32 v218, s{sPT+2}")
        a(f"v_mov_b32 v219, 8")
        a(f"buffer_store_dword v218, v219, {S4(SDBG)}, 0 offen")
    a(f"s_mov_b64 exec, {S2(sPT+4)}")
    a.flush()
    a.label(L)
    a("s_waitcnt lgkmcnt(0)")
    lg.reset()
    a.bg_resume(e)

def prof(tag):
    if not PROF: return
    if PROF == 2: return prof_dbg(tag)
    e = a.bg_pause()
    i = prof_idx[0]; prof_idx[0] += 1
    a(f"s_memtime {S2(sPT)}")
    a("s_waitcnt lgkmcnt(0)")
    lg.reset()
    a(f"v_mov_b32 v218, s{sPT}")
    a(f"s_lshl_b32 s{sPT+2}, s{sL}, 9")
    a(f"s_add_u32 s{sPT+2}, s{sPT+2}, {PROF_OFF + 4*i}")
    a(f"v_mov_b32 v219, 0")
    a(f"v_cmp_eq_u32 {S2(sPT+6)}, 0, v{vTID}")
    a(f"s_and_saveexec_b64 {S2(sPT+4)}, {S2(sPT+6)}")
    a(f"buffer_store_dword v218, v219, {S4(SWS)}, s{sPT+2} offen")
    a(f"s_mov_b64 exec, {S2(sPT+4)}")
    vm.issue("prof")
    a.bg_resume(e)

def set_exec(n):
    a(f"s_mov_b32 exec_lo, {hex((1 << min(n,32)) - 1)}")
    a(f"s_mov_b32 exec_hi, {hex((1 << (n-32)) - 1) if n > 32 else 0}")

def barrier(): a("s_barrier")

def poll(n, mboff, name, exec_set=False):
    L = a.newlabel("L_poll_" + name)
    if not exec_set: set_exec(n)
    a(f"s_add_u32 s{sT0}, s{sMB}, {mboff}")
    a.flush()
    a.label(L)
    a(f"buffer_load_dwordx2 {V(vP0,2)}, v{vL128}, {S4(SWS)}, s{sT0} offen sc1")
    a("s_waitcnt vmcnt(0)")
    a(f"v_cmp_ne_u64 vcc, {S2(sN)}, {V(vP0,2)}")
    a(f"s_cbranch_vccnz {L}")
    a("s_mov_b64 exec, -1")
    vm.reset()

def async_poll(mboff):
    def g():
        a(f"s_add_u32 s{sB0}, s{sMB}, {mboff}")
        a(f"buffer_load_dwordx2 {V(vPL,2)}, v{vL128}, {S4(SWS)}, s{sB0} offen sc1"); vm.issue("apoll")
    return g

def async_check(n, mboff, name):
    L = a.newlabel("L_achk")
    vm.wait("apoll")
    set_exec(n)
    a(f"v_cmp_ne_u64 vcc, {S2(sN)}, {V(vPL,2)}")
    a("s_mov_b64 exec, -1")
    a(f"s_cbranch_vccz {L}")
    q = list(vm.q)
    poll(n, mboff, name)
    vm.q = q
    a.flush()
    a.label(L)

def signal(n, addr_code):
    L = a.newlabel("L_sig")
    a(f"s_cmp_lg_u32 s{sW}, 0")
    a(f"s_cbranch_scc1 {L}")
    a(addr_code)
    a(f"v_mov_b32 v{vP0}, s{sN}")
    a(f"v_mov_b32 v{vP0+1}, s{sN+1}")
    set_exec(n)
    a(f"buffer_store_dwordx2 {V(vP0,2)}, v{vT1}, {S4(SWS)}, 0 offen sc1")
    a("s_mov_b64 exec, -1")
    a.flush()
    a.label(L)

def group_sig(mboff, n=8):
    extra = f"v_and_b32 v{vT2}, 8, v{vLANE}\nv_lshl_add_u32 v{vT1}, v{vT2}, 7, v{vT1}\n" if n > 8 else ""
    return f"""s_lshl_b32 s{sT0}, s{sG}, 3
v_add_u32 v{vT1}, s{sT0}, v{vLANE}
v_lshlrev_b32 v{vT1}, {MB_SH}, v{vT1}
{extra}s_lshl_b32 s{sT0}, s{sJ}, 7
s_add_u32 s{sT0}, s{sT0}, {MB_OFF + mboff}
v_add_u32 v{vT1}, s{sT0}, v{vT1}"""

def allreduce(op, regs, tmps):
    for sw in ("v_permlane16_swap_b32", "v_permlane32_swap_b32"):
        for r, t in zip(regs, tmps): a(f"v_mov_b32 v{t}, v{r}")
        for r, t in zip(regs, tmps): a(f"{sw} v{r}, v{t}")
        for r, t in zip(regs, tmps): a(f"{op} v{r}, v{r}, v{t}")

def ln_math(sets):
    steps = [
        "v_mul_f32 v{t0}, 0x3b000000, v{S}", "v_mul_f32 v{t1}, 0x3b000000, v{SS}",
        "v_fma_f32 v{t1}, -v{t0}, v{t0}, v{t1}", "v_max_f32 v{t1}, 0, v{t1}",
        "v_cvt_pk_bf16_f32 v{t0}, v{t0}, v{t1}", "v_and_b32 v{t1}, 0xffff0000, v{t0}",
        "v_lshlrev_b32 v{t0}, 16, v{t0}", "v_add_f32 v{t1}, 0x3727c5ac, v{t1}",
        "v_cvt_pk_bf16_f32 v{t1}, v{t1}, v{t1}", "v_lshlrev_b32 v{t1}, 16, v{t1}",
        "v_sqrt_f32 v{t1}, v{t1}", "v_cvt_pk_bf16_f32 v{t1}, v{t1}, v{t1}",
        "v_lshlrev_b32 v{t1}, 16, v{t1}", "v_rcp_f32 v{A}, v{t1}",
        "v_mul_f32 v{B}, -v{t0}, v{A}"]
    for st in steps:
        for (S, SS, A_, B_, t0, t1) in sets:
            a(st.format(S=S, SS=SS, A=A_, B=B_, t0=t0, t1=t1))

def ldsg(line, tag):
    def g(): a(line); lg.issue(tag)
    return g
def vmg(line, tag):
    def g(): a(line); vm.issue(tag)
    return g

def tile_to_lds(src, tmp, nt=4, mid=None):
    a(f"v_lshrrev_b32 v{vT0}, 1, v{vQ}")
    a(f"s_lshl_b32 s{sT0}, s{sW}, 1")
    a(f"v_add_u32 v{vT0}, s{sT0}, v{vT0}")
    a(f"v_and_b32 v{vT1}, 7, v{vL15}")
    a(f"v_xor_b32 v{vT0}, v{vT0}, v{vT1}")
    a(f"v_lshlrev_b32 v{vT0}, 4, v{vT0}")
    a(f"v_lshl_add_u32 v{vT0}, v{vL15}, 7, v{vT0}")
    a(f"v_and_b32 v{vT1}, 1, v{vQ}")
    a(f"v_lshl_add_u32 v{vT0}, v{vT1}, 3, v{vT0}")
    a(f"v_add_u32 v{vT0}, {OT}, v{vT0}")
    for t in range(nt):
        a(f"ds_write_b64 v{vT0}, {V(src+2*t,2)} offset:{2048*t}")
    if mid: mid()
    a(f"v_lshlrev_b32 v{vT1}, 4, v{vTID}")
    a(f"v_add_u32 v{vT1}, {OT}, v{vT1}")
    a(f"v_lshrrev_b32 v{vT2}, 3, v{vTID}")
    a(f"v_xor_b32 v{vT0}, v{vTID}, v{vT2}")
    a(f"v_and_b32 v{vT0}, 7, v{vT0}")
    a(f"v_lshlrev_b32 v{vT0}, 4, v{vT0}")
    a(f"v_lshl_add_u32 v{vT0}, v{vT2}, 10, v{vT0}")
    a("s_waitcnt lgkmcnt(0)")
    barrier()
    for i in range(nt // 2):
        a(f"ds_read_b128 {V(tmp+4*i,4)}, v{vT1} offset:{4096*i}")
    a("s_waitcnt lgkmcnt(0)")

a.raw("; @launch grid=(256,1,1) block=(256,1,1) lds=163840")
a.raw('.amdgcn_target "amdgcn-amd-amdhsa--gfx950"\n.text')
a.raw(kernel_header(NAME))
a(f"s_cmp_ge_u32 s{sB}, 256")
a("s_cbranch_scc1 L_end")
a("s_load_dwordx16 s[76:91], s[0:1], 0")
a("s_load_dwordx8 s[92:99], s[0:1], 64")
a(f"v_and_b32 v{vLANE}, 63, v{vTID}")
a(f"v_lshrrev_b32 v{vT0}, 6, v{vTID}")
a(f"v_and_b32 v{vL15}, 15, v{vTID}")
a(f"v_readfirstlane_b32 s{sW}, v{vT0}")
a(f"v_bfe_u32 v{vQ}, v{vTID}, 4, 2")
a(f"v_lshlrev_b32 v{vA0}, 4, v{vLANE}")
a(f"v_lshrrev_b32 v{vT0}, 2, v{vL15}")
a(f"v_and_b32 v{vT0}, 2, v{vT0}")
a(f"v_xor_b32 v{vT0}, v{vT0}, v{vQ}")
a(f"v_lshlrev_b32 v{vFR}, 6, v{vL15}")
a(f"v_lshl_add_u32 v{vFR}, v{vT0}, 4, v{vFR}")
a(f"v_add_u32 v{vA1}, 40960, v{vFR}")
a(f"v_lshlrev_b32 v{vL128}, 7, v{vLANE}")
a(f"v_and_b32 v{vL128}, 0xfff, v{vL128}")
MAPNJ = ENV("MAPNJ", 8)
a(f"s_and_b32 s{sT0}, s{sB}, 7")
a(f"s_lshr_b32 s{sT1}, s{sB}, 3")
if MAPNJ == 8:
    a(f"s_lshr_b32 s{sT2}, s{sT1}, 3")
    a(f"s_lshl_b32 s{sG}, s{sT0}, 2")
    a(f"s_add_u32 s{sG}, s{sG}, s{sT2}")
    a(f"s_and_b32 s{sJ}, s{sT1}, 7")
    a(f"s_lshl_b32 s{sKK0}, s{sT2}, 2")
    a(f"s_lshl_b32 s{sT2}, s{sJ}, 1")
    a(f"s_add_u32 s{sKK0}, s{sKK0}, s{sT2}")
    a(f"s_lshr_b32 s{sT2}, s{sT0}, 1")
    a(f"s_add_u32 s{sKK0}, s{sKK0}, s{sT2}")
elif MAPNJ == 4:
    a(f"s_lshr_b32 s{sG}, s{sT0}, 1")
    a(f"s_lshl_b32 s{sG}, s{sG}, 3")
    a(f"s_lshr_b32 s{sT2}, s{sT1}, 2")
    a(f"s_add_u32 s{sG}, s{sG}, s{sT2}")
    a(f"s_and_b32 s{sJ}, s{sT0}, 1")
    a(f"s_lshl_b32 s{sJ}, s{sJ}, 2")
    a(f"s_and_b32 s{sT3}, s{sT1}, 3")
    a(f"s_add_u32 s{sJ}, s{sJ}, s{sT3}")
    a(f"s_lshl_b32 s{sKK0}, s{sT2}, 1")
    a(f"s_lshl_b32 s{sT3}, s{sT3}, 2")
    a(f"s_add_u32 s{sKK0}, s{sKK0}, s{sT3}")
    a(f"s_lshr_b32 s{sT2}, s{sT0}, 2")
    a(f"s_add_u32 s{sKK0}, s{sKK0}, s{sT2}")
elif MAPNJ == 2:
    a(f"s_lshr_b32 s{sG}, s{sT0}, 2")
    a(f"s_lshl_b32 s{sG}, s{sG}, 4")
    a(f"s_lshr_b32 s{sT2}, s{sT1}, 1")
    a(f"s_add_u32 s{sG}, s{sG}, s{sT2}")
    a(f"s_and_b32 s{sJ}, s{sT0}, 3")
    a(f"s_lshl_b32 s{sJ}, s{sJ}, 1")
    a(f"s_and_b32 s{sT3}, s{sT1}, 1")
    a(f"s_add_u32 s{sJ}, s{sJ}, s{sT3}")
    a(f"s_lshl_b32 s{sT3}, s{sJ}, 1")
    a(f"s_add_u32 s{sKK0}, s{sT2}, s{sT3}")
if ENV("NOROT", 0): a(f"s_mov_b32 s{sKK0}, 0")
a(f"s_and_b32 s{sKK0}, s{sKK0}, 15")
a(f"s_lshl_b32 s{sL}, s{sG}, 3")
a(f"s_add_u32 s{sL}, s{sL}, s{sJ}")
a(f"s_lshl_b32 s{sW1K}, s{sW}, 10")
a(f"s_lshl_b32 s{sW16K}, s{sW}, 14")
a(f"s_mul_i32 s{sW5K}, s{sW}, 5120")
a(f"s_lshl_b32 s{sMB}, s{sL}, {MB_SH}")
a(f"s_add_u32 s{sMB}, s{sMB}, {MB_OFF}")
a(f"s_lshl_b32 s{sTILE}, s{sG}, 16")
a(f"s_lshl_b32 s{sT1}, s{sJ}, 7")
a(f"s_add_u32 s{sTILE}, s{sTILE}, s{sT1}")
a(f"v_add_u32 v{vS0}, s{sW1K}, v{vFR}")
a(f"v_add_u32 v{vS0}, 1024, v{vS0}")
a(f"v_add_u32 v{vS1}, 40960, v{vS0}")
a(f"v_add_u32 v{vSH}, s{sW5K}, v{vFR}")
a(f"v_lshrrev_b32 v{vT1}, 5, v{vLANE}")
a(f"v_lshlrev_b32 v{vTR}, 10, v{vT1}")
a(f"v_bfe_u32 v{vT0}, v{vLANE}, 2, 3")
a(f"v_lshl_add_u32 v{vTR}, v{vT0}, 7, v{vTR}")
a(f"v_lshrrev_b32 v{vT0}, 1, v{vT0}")
a(f"v_xor_b32 v{vT0}, s{sW}, v{vT0}")
a(f"v_lshl_add_u32 v{vTR}, v{vT0}, 5, v{vTR}")
a(f"v_and_b32 v{vT0}, 3, v{vLANE}")
a(f"v_lshl_add_u32 v{vTR}, v{vT0}, 3, v{vTR}")
a(f"v_lshl_add_u32 v{vTRW0}, v{vT1}, 11, v{vTR}")
a(f"v_add_u32 v{vTRW1}, {WRING + 36864}, v{vTRW0}")
a(f"v_add_u32 v{vTRW0}, {WRING}, v{vTRW0}")
a(f"v_lshrrev_b32 v{vT0}, 2, v{vLANE}")
a(f"v_lshlrev_b32 v{vXD}, 10, v{vT0}")
a(f"v_lshrrev_b32 v{vT1}, 4, v{vLANE}")
a(f"v_and_b32 v{vT1}, 2, v{vT1}")
a(f"v_and_b32 v{vT0}, 3, v{vLANE}")
a(f"v_xor_b32 v{vT0}, v{vT0}, v{vT1}")
a(f"v_lshl_add_u32 v{vXD}, v{vT0}, 4, v{vXD}")
a(f"s_lshl_b32 s{sT0}, s{sG}, 16")
a(f"v_add_u32 v{vXD}, s{sT0}, v{vXD}")
a(f"v_add_u32 v{vXDH}, {-16384 & 0xffffffff}, v{vXD}")
a(f"v_add_u32 v{vXDW}, s{sW16K}, v{vXD}")
a(f"v_bfe_u32 v{vT0}, v{vLANE}, 3, 2")
a(f"v_lshrrev_b32 v{vT1}, 5, v{vLANE}")
a(f"v_lshl_add_u32 v{vT0}, v{vT1}, 3, v{vT0}")
a(f"s_and_b32 s{sT0}, s{sW}, 1")
a(f"s_lshl_b32 s{sT0}, s{sT0}, 4")
a(f"s_lshr_b32 s{sT1}, s{sW}, 1")
a(f"s_lshl_b32 s{sT1}, s{sT1}, 2")
a(f"s_add_u32 s{sT0}, s{sT0}, s{sT1}")
a(f"v_add_u32 v{vT0}, s{sT0}, v{vT0}")
a(f"v_lshrrev_b32 v{vT1}, 4, v{vLANE}")
a(f"v_lshlrev_b32 v{vT1}, 1, v{vT1}")
a(f"v_and_b32 v{vT2}, 7, v{vLANE}")
a(f"v_xor_b32 v{vT1}, v{vT1}, v{vT2}")
a(f"v_lshlrev_b32 v{vT1}, 4, v{vT1}")
a(f"s_lshl_b32 s{sT0}, s{sJ}, 7")
a(f"v_add_u32 v{vT1}, s{sT0}, v{vT1}")
a(f"v_lshl_add_u32 v{vWOD}, v{vT0}, 10, v{vT1}")
a(f"v_mul_u32_u24 v{vWD}, 3072, v{vT0}")
a(f"v_add_u32 v{vWD}, v{vWD}, v{vT1}")
a(f"v_and_b32 v{vT0}, 1, v{vLANE}")
a(f"v_cmp_eq_u32 {PARM}, 1, v{vT0}")
a(f"v_lshl_add_u32 v{vT1}, v{vQ}, 2, v{vT0}")
a(f"v_cmp_le_u32 {MC[0]}, v{vT1}, v{vL15}")
a(f"v_add_u32 v{vT1}, 2, v{vT1}")
a(f"v_cmp_le_u32 {MC[1]}, v{vT1}, v{vL15}")
for i in range(4):
    a(f"v_mov_b32 v{vONE+i}, 0x3f803f80")
a("s_waitcnt lgkmcnt(0)")
P = lambda i: 76 + 2 * i
srd(a, SX, P(0), 2048 * 1024)
srd(a, SWQ, P(1), 512 * 3072)
srd(a, SWO, P(2), 512 * 1024)
srd(a, SK_, P(4), 2048 * 1024)
srd(a, SV_, P(5), 2048 * 1024)
srd(a, SSK, P(6), 4096)
srd(a, SH, P(7), 512 * 4096)
srd(a, SOUT, P(9), 2048 * 1024)
srd(a, SDBG, P(10), 256)
srd(a, SWS, P(11), 1 << 28)
srd(a, SX2, P(11), 2048 * 1024, off=X2_OFF)
a(f"s_lshl_b32 s{sT0}, s{sL}, 2")
a(f"s_load_dword s{sD}, {S2(P(8))}, s{sT0}")
a("s_waitcnt lgkmcnt(0)") if PROF else None
a(f"s_mul_i32 s{sT3}, s{sW}, 3072")
a(f"s_lshl_b32 s{sT4}, s{sW}, 6")

def k_reset(): a(f"s_lshl_b32 s{sXo}, s{sKK0}, 6")
def k_next():
    a(f"s_add_u32 s{sXo}, s{sXo}, 64")
    a(f"s_and_b32 s{sXo}, s{sXo}, 1023")
def kx_next():
    a(f"s_add_u32 s{sXx}, s{sXx}, 64")
    a(f"s_and_b32 s{sXx}, s{sXx}, 1023")
def dma_x_groups(s, srd_):
    sc = " sc1" if srd_ == SX2 else ""
    def g1():
        a(f"s_add_u32 m0, s{sW1K}, {XIMG + (s*5+1)*1024}")
        a(f"buffer_load_dwordx4 v{vXDW}, {S4(srd_)}, s{sXx} offen{sc} lds"); vm.issue(("x", s))
        if s % 4: kx_next()
    def g2():
        a(f"s_add_u32 s{sB0}, s{sXx}, s{sW64}")
        a(f"s_and_b32 s{sB0}, s{sB0}, 1023")
        a(f"s_add_u32 m0, s{sW5K}, {XIMG + s*5*1024}")
        a(f"buffer_load_dwordx4 v{vXDH}, {S4(srd_)}, s{sB0} offen{sc} lds"); vm.issue(("h", s // 4))
        kx_next()
    return [g1, g2] if s % 4 == 0 else [g1]
def dma_w_groups(s):
    def g():
        a(f"s_mul_i32 s{sB1}, s{sXo}, 1536")
        a(f"s_add_u32 m0, s{sW3K}, {WRING + (s % NSLOT)*12288}")
        for p in range(3):
            a(f"buffer_load_dwordx4 v{vWD}, {S4(SWQ)}, s{sB1} offen offset:{1024*p} lds"); vm.issue(("w", s))
    return [g]
def wo_group(i):
    def g():
        a(f"s_lshl_b32 s{sB1}, s{sXo}, 9")
        a(f"s_add_u32 m0, s{sW1K}, {WOIMG + i*4096}")
        a(f"buffer_load_dwordx4 v{vWOD}, {S4(SWO)}, s{sB1} offen lds"); vm.issue("wo")
        k_next()
    return g
def h_group():
    a(f"v_lshlrev_b32 v{vT0}, 4, v{vTID}")
    a(f"s_lshl_b32 s{sB0}, s{sL}, 13")
    for c in range(2):
        if c: a(f"s_add_u32 s{sB0}, s{sB0}, 4096")
        a(f"buffer_load_dwordx4 {V(yH+8*c,4)}, v{vT0}, {S4(SH)}, s{sB0} offen"); vm.issue("h")
        a(f"buffer_load_dword v{yH+8*c+4}, v{vT0}, {S4(SH)}, s{sB0} offen offset:16"); vm.issue("h")
yK, yV, ySK, yA = 144, 164, 172, 188
def y1_loads():
    a.comment("Y1 loads: thread -> c8 = tid&7 (8 channels), rp = tid>>3 (row pair)")
    a(f"v_and_b32 v{vT0}, 7, v{vTID}")
    a(f"v_lshrrev_b32 v{vT1}, 3, v{vTID}")
    a(f"v_lshlrev_b32 v{vT2}, 11, v{vT1}")
    a(f"v_lshl_add_u32 v{vT2}, v{vT0}, 4, v{vT2}")
    a(f"v_add_u32 v{vT2}, s{sTILE}, v{vT2}")
    for i in range(5): a(f"v_add_u32 v{yA+i}, {(i-3)*1024}, v{vT2}")
    a(f"s_lshl_b32 s{sT1}, s{sJ}, 9")
    a(f"v_lshlrev_b32 v{yA+5}, 6, v{vT0}")
    for i in range(5):
        a(f"buffer_load_dwordx4 {V(yK+4*i,4)}, v{yA+i}, {S4(SK_)}, 0 offen"); vm.issue("y1")
    for i in range(2):
        a(f"buffer_load_dwordx4 {V(yV+4*i,4)}, v{yA+3+i}, {S4(SV_)}, 0 offen"); vm.issue("y1")
    for i in range(4):
        a(f"buffer_load_dwordx4 {V(ySK+4*i,4)}, v{yA+5}, {S4(SSK)}, s{sT1} offen offset:{16*i}"); vm.issue("y1")
def y1_compute():
    a.comment("Y1 compute")
    vm.wait("y1")
    R, TP, VVv, K0, K1 = 240, 188, 250, 254, 212
    yO = lambda i: yK + (i >> 1) + 4 * (i & 1)
    for m in range(4):
        for i in range(5):
            a(f"v_lshlrev_b32 v{R+2*i}, 16, v{yK+4*i+m}")
            a(f"v_and_b32 v{R+2*i+1}, 0xffff0000, v{yK+4*i+m}")
        for c in range(2):
            a(f"v_lshlrev_b32 v{TP+0+c}, 16, v{ySK+4*m+2*c}")
            a(f"v_and_b32 v{TP+2+c}, 0xffff0000, v{ySK+4*m+2*c}")
            a(f"v_lshlrev_b32 v{TP+4+c}, 16, v{ySK+4*m+2*c+1}")
            a(f"v_and_b32 v{TP+6+c}, 0xffff0000, v{ySK+4*m+2*c+1}")
        for i in range(2):
            a(f"v_lshlrev_b32 v{VVv+2*i}, 16, v{yV+4*i+m}")
            a(f"v_and_b32 v{VVv+2*i+1}, 0xffff0000, v{yV+4*i+m}")
        for (Kx, r0) in ((K0, 0), (K1, 1)): a(f"v_pk_mul_f32 {V(Kx,2)}, {V(R+2*r0,2)}, {V(TP+6,2)}")
        for d in (1, 2, 3):
            for (Kx, r0) in ((K0, 0), (K1, 1)):
                a(f"v_pk_fma_f32 {V(Kx,2)}, {V(R+2*(r0+d),2)}, {V(TP+6-2*d,2)}, {V(Kx,2)}")
        for Kx in (K0, K1):
            a(f"v_cvt_pk_bf16_f32 v{Kx+1}, v{Kx}, v{Kx+1}")
            a(f"v_lshlrev_b32 v{Kx}, 16, v{Kx+1}")
            a(f"v_and_b32 v{Kx+1}, 0xffff0000, v{Kx+1}")
        a(f"v_pk_mul_f32 {V(K0,2)}, {V(K0,2)}, {V(VVv,2)}")
        a(f"v_pk_mul_f32 {V(K1,2)}, {V(K1,2)}, {V(VVv+2,2)}")
        a(f"v_cvt_pk_bf16_f32 v{yO(2*m)}, v{K1}, v{K0}")
        a(f"v_cvt_pk_bf16_f32 v{yO(2*m+1)}, v{K1+1}, v{K0+1}")
    a(f"v_and_b32 v{vT0}, 7, v{vTID}")
    a(f"v_lshrrev_b32 v{vT1}, 3, v{vTID}")
    a(f"v_sub_u32 v{vT1}, 31, v{vT1}")
    a(f"v_lshlrev_b32 v{vT2}, 2, v{vT0}")
    a(f"v_xor_b32 v{vT1}, v{vT1}, v{vT2}")
    a(f"v_lshlrev_b32 v{vT1}, 2, v{vT1}")
    a(f"v_lshl_add_u32 v{vT1}, v{vT0}, 10, v{vT1}")
    a(f"v_add_u32 v{vT1}, {Y1T}, v{vT1}")
    for i in range(8): a(f"ds_write_b32 v{vT1}, v{yO(i)} offset:{128*i}")
    a(f"v_lshrrev_b32 v{vT0}, 3, v{vTID}")
    a(f"v_and_b32 v{vT1}, 7, v{vTID}")
    a(f"v_lshrrev_b32 v{vT2}, 3, v{vT0}")
    a(f"v_xor_b32 v{TP}, v{vT1}, v{vT2}")
    a(f"v_lshlrev_b32 v{TP}, 4, v{TP}")
    a(f"v_lshl_add_u32 v{TP}, v{vT0}, 7, v{TP}")
    a(f"v_add_u32 v{TP}, {Y1T}, v{TP}")
    a(f"v_xor_b32 v{TP+1}, 64, v{TP}")
    a(f"v_lshlrev_b32 v{TP+2}, 12, v{vT0}")
    a(f"v_lshl_add_u32 v{TP+2}, v{vT1}, 4, v{TP+2}")
    a(f"s_lshl_b32 s{sT0}, s{sJ}, 18")
    a(f"s_lshl_b32 s{sT1}, s{sG}, 7")
    a(f"s_sub_u32 s{sT0}, s{sT0}, s{sT1}")
    a(f"s_add_u32 s{sT0}, s{sT0}, {KVT_OFF + 3968}")
    a(f"s_add_u32 s{sT1}, s{sT0}, {32*4096}")
    a("s_waitcnt lgkmcnt(0)")
    barrier()
    a(f"ds_read_b128 {V(yV,4)}, v{TP}")
    a(f"ds_read_b128 {V(yV+4,4)}, v{TP+1} offset:4096")
    a("s_waitcnt lgkmcnt(0)")
    a(f"buffer_store_dwordx4 {V(yV,4)}, v{TP+2}, {S4(SWS)}, s{sT0} offen sc1"); vm.issue("y1st")
    a(f"buffer_store_dwordx4 {V(yV+4,4)}, v{TP+2}, {S4(SWS)}, s{sT1} offen sc1"); vm.issue("y1st")
    prof("y1done")
S1SIG = f"""s_lshl_b32 s{sT0}, s{sJ}, 5
v_add_u32 v{vT1}, s{sT0}, v{vLANE}
v_lshlrev_b32 v{vT1}, {MB_SH}, v{vT1}
s_lshl_b32 s{sT0}, s{sG}, 7
s_add_u32 s{sT0}, s{sT0}, {MB_OFF + MB_S1}
v_add_u32 v{vT1}, s{sT0}, v{vT1}"""
def o_groups(ooff):
    def mk(s):
        def g():
            if s == 0: k_reset()
            a(f"s_add_u32 s{sB1}, s{sXo}, {ooff}")
            a(f"s_add_u32 m0, s{sW1K}, {OIMG + s*4096}")
            a(f"buffer_load_dwordx4 v{vXDW}, {S4(SWS)}, s{sB1} offen sc1 lds"); vm.issue(("o", s // 4))
            k_next()
        return g
    return [mk(s) for s in range(16)]

a(f"s_mov_b32 s{sW3K}, s{sT3}")
a(f"s_mov_b32 s{sW64}, s{sT4}")
prof("start")
DEPTH = ENV("WDEPTH", 4)
XDEPTH = ENV("XDEPTH", 4)
k_reset()
a(f"s_mov_b32 s{sXx}, s{sXo}")
for s in range(max(DEPTH, XDEPTH)):
    if s < XDEPTH:
        for g in dma_x_groups(s, SX): g()
    if s < DEPTH:
        for g in dma_w_groups(s): g()
        k_next()
if ENV("CODEPF", 1):
    a(f"s_getpc_b64 {S2(sEX)}")
    a.label("L_pc")
    a(f"s_lshr_b32 s{sT0}, s{sB}, 3")
    a(f"s_lshl_b32 s{sT0}, s{sT0}, 2")
    a(f"s_add_u32 s{sT0}, s{sT0}, s{sW}")
    a(f"s_lshl_b32 s{sT0}, s{sT0}, 8")
    a(f"v_and_b32 v{vT0}, 1, v{vLANE}")
    a(f"v_lshl_add_u32 v{vT0}, v{vT0}, 7, s{sT0}")
    a.raw(f"    v_min_u32 v{vT0}, L_end-L_pc, v{vT0}")
    a(f"global_load_dword v216, v{vT0}, {S2(sEX)}"); vm.issue("cpf")
a(f"s_or_b32 s{sT2}, s{sL}, s{sW}")
a(f"s_cmp_lg_u32 s{sT2}, 0")
a("s_cbranch_scc1 L_nonce_done")
a(f"s_memrealtime {S2(sN)}")
a("s_waitcnt lgkmcnt(0)")
a(f"s_or_b32 s{sN+1}, s{sN+1}, 0x80000000")
a(f"s_andn2_b32 s{sN}, s{sN}, 1")
a(f"v_mov_b32 v{vP0}, s{sN}")
a(f"v_mov_b32 v{vP0+1}, s{sN+1}")
a(f"v_mov_b32 v{vT0}, 0")
a("s_mov_b64 exec, 1")
a(f"buffer_store_dwordx2 {V(vP0,2)}, v{vT0}, {S4(SDBG)}, 0 offen sc1")
a("s_mov_b64 exec, -1")
a.flush()
a.label("L_nonce_done")

def x_reads(s, buf):
    out = []
    base, off = (vFR, s*5*1024) if s < 8 else (vA1, (s-8)*5*1024)
    for t in range(5):
        out.append(ldsg(f"ds_read_b128 {V(vXA+20*buf+4*t,4)}, v{base} offset:{XIMG + off + t*1024}", ("xa", s)))
    base, off = (vS0, s*5120) if s < 8 else (vS1, (s-8)*5120)
    out.append(ldsg(f"ds_read_b128 {V(vSO+4*buf,4)}, v{base} offset:{XIMG + off}", ("xa", s)))
    if s % 4 == 3:
        out.append(ldsg(f"ds_read_b128 {V(vSHF,4)}, v{vSH} offset:{XIMG + (s//4)*20480}", ("xa", s)))
    return out

def mfmas(s, buf, with_cs, early=(), spread=()):
    first = (s == 0)
    def C(r): return "0" if first else V(r, 4)
    wq, wk, wv = A(12*s, 4), A(12*s+4, 4), A(12*s+8, 4)
    xa = lambda t: V(vXA + 20*buf + 4*t, 4)
    M = "v_mfma_f32_16x16x32_bf16"
    seq = []
    for t in range(5):
        seq.append(f"{M} {V(vKT+4*t,4)}, {wk}, {xa(t)}, {C(vKT+4*t)}")
        seq.append(f"{M} {V(vVV+4*t,4)}, {xa(t)}, {wv}, {C(vVV+4*t)}")
        if t: seq.append(f"{M} {V(vQT+4*(t-1),4)}, {wq}, {xa(t)}, {C(vQT+4*(t-1))}")
    if with_cs:
        seq.append(f"{M} {V(vCS,4)}, {wq}, {V(vONE,4)}, {C(vCS)}")
        seq.append(f"{M} {V(vCS+4,4)}, {wk}, {V(vONE,4)}, {C(vCS+4)}")
        seq.append(f"{M} {V(vCS+8,4)}, {V(vONE,4)}, {wv}, {C(vCS+8)}")
    so = V(vSO + 4*buf, 4)
    seq.append(f"{M} {V(vST,4)}, {V(vONE,4)}, {so}, {C(vST)}")
    seq.append(f"{M} {V(vST+4,4)}, {so}, {so}, {C(vST+4)}")
    if s % 4 == 3:
        c0 = "0" if s == 3 else None
        seq.append(f"{M} {V(vST+8,4)}, {V(vONE,4)}, {V(vSHF,4)}, {c0 or V(vST+8,4)}")
        seq.append(f"{M} {V(vST+12,4)}, {V(vSHF,4)}, {V(vSHF,4)}, {c0 or V(vST+12,4)}")
    a.weave(seq, list(early), list(spread))

Y1LD, Y1AT, S1AT = ENV("Y1LD", -1), ENV("Y1AT", 5), ENV("S1AT", 11)
if Y1LD < 0: y1_loads()
for s in range(16):
    vm.wait(("x", s), ("w", s), ("h", s // 4))
    if s == S1AT: vm.wait("y1st", "nonce")
    barrier()
    flx = dma_x_groups(s + XDEPTH, SX) if s + XDEPTH < 16 else []
    fl = (dma_w_groups(s + DEPTH) + [k_next]) if s + DEPTH < 16 else []
    if s == 0:
        for g in flx + fl: g()
    if s == 3:
        a(f"v_mov_b32 v{vT0}, 0")
        a(f"buffer_load_dwordx2 {V(vNL,2)}, v{vT0}, {S4(SDBG)}, 0 offen sc1"); vm.issue("nonce")
    if s == S1AT:
        a(f"v_readfirstlane_b32 s{sN}, v{vNL}")
        a(f"v_readfirstlane_b32 s{sN+1}, v{vNL+1}")
        a(f"s_cmp_eq_u32 s{sN+1}, 0")
        a("s_cbranch_scc1 L_s1_defer")
        signal(32, S1SIG)
        a.label("L_s1_defer")
    if s in (11, 12, 13): fl = fl + [wo_group(4*(s-11) + i) for i in range(4)]
    if s == 13: fl.append(h_group)
    if s == 14: fl = [wo_group(12 + i) for i in range(3)]
    fl = flx + fl
    rd = x_reads(s, s & 1)
    for p in range(3):
        for h in range(2):
            off = (s % NSLOT) * 12288 + p * 1024 + h * 6144
            rd.append(ldsg(f"ds_read_b64_tr_b16 {A(12*s+4*p+2*h,2)}, v{vTRW0 if off < 36864 else vTRW1} offset:{off % 36864}", ("xa", s)))
    if s > 0: mfmas(s - 1, (s - 1) & 1, True, rd, fl)
    else:
        for g in rd: g()
    lg.drain()
    if s == Y1LD: y1_loads()
    if s == Y1AT: y1_compute()
barrier()
wo_group(15)()
mfmas(15, 1, True)
prof("p1gemm")
a(f"s_cmp_lg_u32 s{sN+1}, 0")
a("s_cbranch_scc1 L_nonce_ok")
a(f"v_mov_b32 v{vT0}, 0")
a.flush()
a.label("L_nonce_chk")
a(f"buffer_load_dwordx2 {V(vNL,2)}, v{vT0}, {S4(SDBG)}, 0 offen sc1")
a("s_waitcnt vmcnt(0)")
a(f"v_readfirstlane_b32 s{sN}, v{vNL}")
a(f"v_readfirstlane_b32 s{sN+1}, v{vNL+1}")
a(f"s_cmp_eq_u32 s{sN+1}, 0")
a("s_cbranch_scc1 L_nonce_chk")
signal(32, S1SIG)
a.label("L_nonce_ok")

vQb, vKb, vVb, vU = 160, 168, 178, 188
def ab_addr():
    a(f"s_mul_i32 s{sT0}, s{sW}, 640")
    a(f"s_add_u32 s{sT0}, s{sT0}, {ABW}")
    a(f"v_lshl_add_u32 v{vT0}, v{vLANE}, 2, s{sT0}")
    a(f"v_lshl_add_u32 v{vT1}, v{vL15}, 2, s{sT0}")
    a(f"v_lshl_add_u32 v{vT2}, v{vQ}, 4, s{sT0}")
def ab_write(T):
    ln_math([(T, T+1, T+10, T+11, T+12, T+13), (T+2, T+3, T+14, T+15, T+16, T+17)])
    a(f"ds_write2_b32 v{vT0}, v{T+10}, v{T+11} offset0:16 offset1:96")
    a(f"ds_write2_b32 v{vT1}, v{T+14}, v{T+15} offset0:0 offset1:80")
def stats_p1():
    T = 84
    prof("a0_begin")
    a(f"v_lshlrev_b32 v{vT0}, 3, v{vL15}")
    a(f"s_lshl_b32 s{sT0}, s{sW}, 7")
    a(f"v_add_u32 v{vT0}, s{sT0}, v{vT0}")
    a(f"v_add_u32 v{vT0}, {MISC}, v{vT0}")
    for i, m in ((1, 0x22222222), (2, 0x44444444), (3, 0x88888888)):
        a(f"s_mov_b32 s{sEX}, {hex(m)}")
        a(f"s_mov_b32 s{sEX+1}, {hex(m)}")
        for base in (vST, vST + 8):
            a(f"v_cndmask_b32 v{base+1}, v{base+4 if i == 1 else base+1}, v{base+4+i}, {S2(sEX)}")
    e = a.bg_pause()
    a("s_mov_b32 exec_lo, 0x00f0000f")
    a("s_mov_b32 exec_hi, 0xf0000f00")
    a(f"ds_write_b64 v{vT0}, {V(vST,2)}")
    a(f"ds_write_b64 v{vT0}, {V(vST+8,2)} offset:512")
    a("s_mov_b64 exec, -1")
    a.bg_resume(e)
    a(f"v_lshlrev_b32 v{vT0}, 3, v{vLANE}")
    a(f"v_add_u32 v{vT0}, {MISC}, v{vT0}")
    a(f"v_lshlrev_b32 v{vT1}, 3, v{vL15}")
    a(f"v_add_u32 v{vT1}, {MISC}, v{vT1}")
    a("s_waitcnt lgkmcnt(0)")
    barrier()
    a(f"ds_read_b64 {V(T,2)}, v{vT0}")
    for i in range(4):
        a(f"ds_read_b64 {V(T+2+2*i,2)}, v{vT1} offset:{512 + 128*i}")
    ab_addr()
    a("s_waitcnt lgkmcnt(0)")
    a(f"v_pk_add_f32 {V(T+2,2)}, {V(T+2,2)}, {V(T+4,2)}")
    a(f"v_pk_add_f32 {V(T+6,2)}, {V(T+6,2)}, {V(T+8,2)}")
    a(f"v_pk_add_f32 {V(T+2,2)}, {V(T+2,2)}, {V(T+6,2)}")
    ab_write(T)

def attn_core(name, kvt, qt, after_pv=None):
    ab_addr()
    a("s_waitcnt lgkmcnt(0)")
    vAB, vAV = 84, 94
    for t in kvt:
        a(f"ds_read2_b32 {V(vAB+2*t,2)}, v{vT1} offset0:{16*t} offset1:{80+16*t}")
    for t in kvt:
        a(f"ds_read_b128 {V(vAV+8*t,4)}, v{vT2} offset:{64*t}")
        a(f"ds_read_b128 {V(vAV+8*t+4,4)}, v{vT2} offset:{320+64*t}")
    a(f"s_waitcnt lgkmcnt({2*len(kvt)})")
    def norm_qk(acc, cs, t, dst):
        ab = V(vAB + 2*t, 2)
        for h in range(2):
            a(f"v_pk_mul_f32 {V(vU+2*h,2)}, {V(cs+2*h,2)}, {ab} op_sel:[0,1] op_sel_hi:[1,1]")
            a(f"v_pk_fma_f32 {V(vU+2*h,2)}, {V(acc+2*h,2)}, {ab}, {V(vU+2*h,2)} op_sel:[0,0,0] op_sel_hi:[1,0,1]")
        for h in range(2):
            a(f"v_cvt_pk_bf16_f32 v{dst+h}, v{vU+2*h}, v{vU+2*h+1}")
    for t in kvt:
        norm_qk(vKT + 4*t, vCS + 4, t, vKb + 2*t)
        if t in qt: norm_qk(vQT + 4*(t-1), vCS, t, vQb + 2*(t-1))
    n = len(qt)
    vSc, vSp = 16, 32
    for u, t in enumerate(qt):
        a(f"v_mfma_f32_16x16x16_bf16 {V(vSc+4*u,4)}, {V(vKb+2*t,2)}, {V(vQb+2*(t-1),2)}, 0")
        a(f"v_mfma_f32_16x16x16_bf16 {V(vSp+4*u,4)}, {V(vKb+2*(t-1),2)}, {V(vQb+2*(t-1),2)}, 0")
    a("s_waitcnt lgkmcnt(0)")
    for t in kvt:
        for h in range(2):
            a(f"v_pk_mul_f32 {V(vU+4+2*h,2)}, {V(vAV+8*t+4+2*h,2)}, {V(vCS+8,2)} op_sel:[0,0] op_sel_hi:[1,0]")
            a(f"v_pk_fma_f32 {V(vU+4+2*h,2)}, {V(vVV+4*t+2*h,2)}, {V(vAV+8*t+2*h,2)}, {V(vU+4+2*h,2)}")
        for h in range(2):
            a(f"v_cvt_pk_bf16_f32 v{vVb+2*t+h}, v{vU+4+2*h}, v{vU+4+2*h+1}")
    prof(f"{name}_norm")
    if 1 in qt:
        e = a.bg_pause()
        Ln = a.newlabel("L_nomask")
        a(f"s_cmp_lg_u32 s{sG}, 0")
        a(f"s_cbranch_scc1 {Ln}")
        a.flush()
        for i in range(4): a(f"v_mov_b32 v{vSp+i}, 0xf149f2ca")
        a.flush()
        a.label(Ln)
        a.bg_resume(e)
    vLg, vMx, vTm = 48, 56, 60
    R = range(n)
    for t in R:
        for i in range(2):
            a(f"v_cndmask_b32 v{vSc+4*t+2*i}, v{vSc+4*t+2*i}, v{vSc+4*t+2*i+1}, {PARM}")
            a(f"v_cndmask_b32 v{vSp+4*t+2*i}, v{vSp+4*t+2*i}, v{vSp+4*t+2*i+1}, {PARM}")
            a(f"v_cndmask_b32 v{vLg+2*t+i}, v{vSp+4*t+2*i}, v{vSc+4*t+2*i}, {MC[i]}")
        a(f"v_cvt_pk_bf16_f32 v{vLg+2*t+1}, v{vLg+2*t}, v{vLg+2*t+1}")
        a(f"v_lshlrev_b32 v{vLg+2*t}, 16, v{vLg+2*t+1}")
        a(f"v_and_b32 v{vLg+2*t+1}, 0xffff0000, v{vLg+2*t+1}")
        a(f"v_max_f32 v{vMx+t}, v{vLg+2*t}, v{vLg+2*t+1}")
    allreduce("v_max_f32", [vMx+t for t in R], [vTm+t for t in R])
    a(f"s_mov_b32 s{sT0}, 0x3eb8aa3b")
    for t in R:
        for i in range(2): a(f"v_sub_f32 v{vLg+2*t+i}, v{vLg+2*t+i}, v{vMx+t}")
    for t in R:
        for i in range(2): a(f"v_mul_f32 v{vLg+2*t+i}, s{sT0}, v{vLg+2*t+i}")
    for t in R:
        for i in range(2): a(f"v_exp_f32 v{vLg+2*t+i}, v{vLg+2*t+i}")
    for t in R: a(f"v_add_f32 v{vMx+t}, v{vLg+2*t}, v{vLg+2*t+1}")
    allreduce("v_add_f32", [vMx+t for t in R], [vTm+t for t in R])
    vPc, vPp = 16, 24
    for t in R: a(f"v_rcp_f32 v{vMx+t}, v{vMx+t}")
    for t in R:
        a(f"v_cndmask_b32 v{vTm}, v{vMx+t}, 0, {PARM}")
        a(f"v_cndmask_b32 v{vTm+1}, 0, v{vMx+t}, {PARM}")
        for i in range(2):
            a(f"v_mul_f32 v{vTm+2}, v{vLg+2*t+i}, v{vTm}")
            a(f"v_mul_f32 v{vTm+3}, v{vLg+2*t+i}, v{vTm+1}")
            a(f"v_cvt_pk_bf16_f32 v{vTm+2}, v{vTm+2}, v{vTm+3}")
            a(f"v_cndmask_b32 v{vPc+2*t+i}, 0, v{vTm+2}, {MC[i]}")
            a(f"v_cndmask_b32 v{vPp+2*t+i}, v{vTm+2}, 0, {MC[i]}")
    vO = 32
    for u, t in enumerate(qt):
        a(f"v_mfma_f32_16x16x16_bf16 {V(vO+4*u,4)}, {V(vVb+2*t,2)}, {V(vPc+2*u,2)}, 0")
    for u, t in enumerate(qt):
        a(f"v_mfma_f32_16x16x16_bf16 {V(vO+4*u,4)}, {V(vVb+2*(t-1),2)}, {V(vPp+2*u,2)}, {V(vO+4*u,4)}")
    prof(f"{name}_pv")
    a.bg_flush()
    if after_pv: after_pv()
    for t in R:
        a(f"v_cvt_pk_bf16_f32 v{48+2*t}, v{vO+4*t}, v{vO+4*t+1}")
        a(f"v_cvt_pk_bf16_f32 v{48+2*t+1}, v{vO+4*t+2}, v{vO+4*t+3}")

def kvt_fetch():
    async_check(32, MB_S1, "s1")
    a(f"s_lshl_b32 s{sT0}, s{sL}, 13")
    a(f"s_lshl_b32 s{sT1}, s{sW}, 11")
    a(f"s_add_u32 s{sT0}, s{sT0}, s{sT1}")
    a(f"s_add_u32 s{sT0}, s{sT0}, {KVT_OFF}")
    a(f"s_lshr_b32 s{sT2}, s{sW}, 1")
    a(f"s_mul_i32 s{sT2}, s{sT2}, {URP - 4096}")
    a(f"s_add_u32 s{sT2}, s{sT2}, s{sT1}")
    a(f"s_add_u32 m0, s{sT2}, {UR}")
    a(f"buffer_load_dwordx4 v{vA0}, {S4(SWS)}, s{sT0} offen sc1 lds")
    a(f"buffer_load_dwordx4 v{vA0}, {S4(SWS)}, s{sT0} offen offset:1024 sc1 lds")

def attention0():
    stats_p1()
    attn_core("a0", [0, 1, 2, 3, 4], [1, 2, 3, 4], kvt_fetch)
    tile_to_lds(48, 56)
    a(f"s_add_u32 s{sT0}, s{sTILE}, {O1_OFF}")
    a(f"s_add_u32 s{sT1}, s{sT0}, 32768")
    a(f"buffer_store_dwordx4 {V(56,4)}, v{vT0}, {S4(SWS)}, s{sT0} offen sc1")
    a(f"buffer_store_dwordx4 {V(60,4)}, v{vT0}, {S4(SWS)}, s{sT1} offen sc1")
    vm.drain()
    barrier()
    signal(8, group_sig(MB_S2))
    prof("a0_done")

def pretouch():
    a(f"s_lshl_b32 s{sB0}, s{sW}, 11")
    a(f"s_add_u32 s{sB0}, s{sB0}, s{sMB}")
    a(f"s_add_u32 s{sB0}, s{sB0}, {MB_ST}")
    a(f"v_lshlrev_b32 v217, 7, v{vL15}")
    a(f"buffer_load_dword v216, v217, {S4(SWS)}, s{sB0} offen sc1"); vm.issue("pt")

a.bg_start(([pretouch] if ENV("PRETOUCH", 2) else []) + [async_poll(MB_S1)], ENV("BGEVERY", 8))
attention0()
if STAGE <= 1: a("s_branch L_end")

a(f"v_mov_b32 v160, 0\nv_mov_b32 v161, 0\nv_mov_b32 v162, 0\nv_mov_b32 v163, 0")
a(f"s_mov_b32 exec_lo, -1\ns_mov_b32 exec_hi, 0")
a(f"v_add_u32 v{vT2}, {UR + 4096}, v{vA0}")
a(f"ds_write_b128 v{vT2}, {V(160,4)}")
a(f"ds_write_b128 v{vT2}, {V(160,4)} offset:{URP}")
a(f"s_mov_b64 exec, 3")
a(f"v_add_u32 v{vT2}, {HC}, v{vA0}")
a(f"ds_write_b128 v{vT2}, {V(160,4)}")
a(f"ds_write_b128 v{vT2}, {V(160,4)} offset:{2*HCP}")
a(f"s_mov_b64 exec, 1")
a(f"ds_write_b128 v{vT2}, {V(160,4)} offset:{HCP}")
a(f"ds_write_b128 v{vT2}, {V(160,4)} offset:{3*HCP}")
a(f"s_mov_b64 exec, -1")
a(f"v_lshlrev_b32 v{vT0}, 4, v{vTID}")
a(f"v_add_u32 v{vT0}, {HC + 32}, v{vT0}")
a(f"v_cmp_eq_u32 vcc, 255, v{vTID}")
for c in range(2):
    b = yH + 8*c
    a(f"v_cndmask_b32 v{b+4}, v{b+4}, 0, vcc")
    a(f"ds_write_b128 v{vT0}, {V(b,4)} offset:{2*c*HCP}")
    for i in range(4): a(f"v_alignbit_b32 v{164+4*c+i}, v{b+i+1}, v{b+i}, 16")
    a(f"ds_write_b128 v{vT0}, {V(164+4*c,4)} offset:{(2*c+1)*HCP}")
a(f"v_cmp_eq_u32 vcc, 0, v{vTID}")
a(f"s_and_saveexec_b64 {S2(sEX)}, vcc")
a(f"v_mov_b32 v{vT2}, {HC}")
a(f"v_lshlrev_b32 v163, 16, v{yH}")
a(f"ds_write_b128 v{vT2}, {V(160,4)} offset:{HCP + 16}")
a(f"v_mov_b32 v172, 0\nv_mov_b32 v173, 0\nv_mov_b32 v174, 0")
a(f"v_lshlrev_b32 v175, 16, v{yH+8}")
a(f"ds_write_b128 v{vT2}, {V(172,4)} offset:{3*HCP + 16}")
a(f"s_mov_b64 exec, {S2(sEX)}")
yF, yG, yAcc, yFA, yGA = 16, 48, 84, 116, 120
a(f"v_add_u32 v{vT0}, 1, v{vL15}")
a(f"v_and_b32 v{vT0}, 30, v{vT0}")
a(f"v_lshlrev_b32 v{vT0}, 1, v{vT0}")
a(f"v_lshlrev_b32 v{vT1}, 4, v{vQ}")
a(f"v_sub_u32 v{vT0}, v{vT0}, v{vT1}")
a(f"v_mov_b32 v{vT1}, {HCP}")
a(f"v_cndmask_b32 v{vT1}, v{vT1}, 0, {PARM}")
a(f"v_add_u32 v{vT0}, v{vT0}, v{vT1}")
a(f"s_lshr_b32 s{sT0}, s{sW}, 1")
a(f"s_mul_i32 s{sT1}, s{sT0}, {2*HCP}")
a(f"s_and_b32 s{sT2}, s{sW}, 1")
a(f"s_lshl_b32 s{sT2}, s{sT2}, 8")
a(f"s_sub_u32 s{sT1}, s{sT1}, s{sT2}")
for ap in range(4):
    a(f"s_add_u32 s{sT3}, s{sT1}, {HC + 4080 - 512*(2*ap+1) - 192}")
    a(f"v_add_u32 v{yFA+ap}, s{sT3}, v{vT0}")
a(f"v_lshlrev_b32 v{vT0}, 5, v{vL15}")
a(f"v_lshl_add_u32 v{vT0}, v{vQ}, 4, v{vT0}")
a(f"s_mul_i32 s{sT1}, s{sT0}, {URP}")
a(f"s_sub_u32 s{sT1}, s{sT1}, s{sT2}")
a(f"s_add_u32 s{sT1}, s{sT1}, {UR + 8144 - 512*14 - 192}")
a(f"v_sub_u32 v{yGA}, s{sT1}, v{vT0}")
a("s_waitcnt lgkmcnt(0)")
barrier()
prof("y2start")
vm.reset()
vRA = 122
def res_loads():
    a(f"v_lshlrev_b32 v{vRA}, 10, v{vL15}")
    a(f"v_lshl_add_u32 v{vRA}, v{vQ}, 3, v{vRA}")
    a(f"s_lshl_b32 s{sB1}, s{sW}, 5")
    a(f"s_add_u32 s{sB1}, s{sB1}, s{sTILE}")
    for t in range(4):
        if t: a(f"s_add_u32 s{sB1}, s{sB1}, 16384")
        a(f"buffer_load_dwordx2 {V(vX2+2*t,2)}, v{vRA}, {S4(SX)}, s{sB1} offen"); vm.issue("res")
YB = [(16, 48), (144, 176)]
def y2_reads(rr):
    F, G = YB[rr & 1]
    out = []
    for aa in range(8):
        ap, hi = aa // 2, aa % 2
        off = ((1 - hi) * 512 + (3 - rr) * 64) // 4
        out.append(ldsg(f"ds_read2_b32 {V(F+4*aa,2)}, v{yFA+ap} offset0:{off} offset1:{off+1}", ("y", rr)))
        out.append(ldsg(f"ds_read2_b32 {V(F+4*aa+2,2)}, v{yFA+ap} offset0:{off+2} offset1:{off+3}", ("y", rr)))
    for bb in range(8):
        out.append(ldsg(f"ds_read_b128 {V(G+4*bb,4)}, v{yGA} offset:{(7-bb)*512 + (3-rr)*64}", ("y", rr)))
    return out
def wo_reads(lo, hi):
    return [ldsg(f"ds_read_b64_tr_b16 {A(192+4*s+2*h,2)}, v{vTR} offset:{WOIMG + s*4096 + h*2048}", "wot")
            for s in range(lo, hi) for h in range(2)]
lg.reset()
for g in y2_reads(0): g()
OG = o_groups(O1_OFF)
for rr in range(4):
    a("s_waitcnt lgkmcnt(0)"); lg.reset()
    F, G = YB[rr & 1]
    seq = []; started = set()
    for bb in range(8):
        for aa in range(8):
            c = 7 + bb - aa
            if 0 <= c <= 7:
                first = (rr == 0 and c not in started); started.add(c)
                seq.append(f"v_mfma_f32_16x16x32_bf16 {V(yAcc+4*c,4)}, {V(F+4*aa,4)}, {V(G+4*bb,4)}, {'0' if first else V(yAcc+4*c,4)}")
    if rr == 2: async_check(8, MB_S2, "o1")
    sp = {0: [async_poll(MB_S2), res_loads], 1: [], 2: OG[:8], 3: OG[8:]}[rr]
    early = (y2_reads(rr + 1) + wo_reads(3*rr, 3*rr+3)) if rr < 3 else wo_reads(9, 16)
    a.weave(seq, early, sp)
prof("y2mfma")
a("s_waitcnt lgkmcnt(0)")
barrier()
a(f"s_lshl_b32 s{sT0}, s{sW}, 12")
a(f"s_add_u32 s{sT0}, s{sT0}, {ACCX}")
a(f"v_add_u32 v{vT0}, s{sT0}, v{vA0}")
a(f"s_xor_b32 s{sT1}, s{sW}, 1")
a(f"s_lshl_b32 s{sT1}, s{sT1}, 12")
a(f"s_add_u32 s{sT1}, s{sT1}, {ACCX}")
a(f"v_add_u32 v{vT1}, s{sT1}, v{vA0}")
a(f"s_and_b32 s{sT2}, s{sW}, 1")
a(f"s_cmp_eq_u32 s{sT2}, 0")
a("s_cbranch_scc1 L_y2_even")
a.flush()
for i in range(4):
    a(f"ds_write_b128 v{vT0}, {V(yAcc+8*i,4)} offset:{1024*i}")
    for r in range(4): a(f"v_mov_b32 v{yF+4*i+r}, v{yAcc+8*i+4+r}")
a("s_branch L_y2_x")
a.label("L_y2_even")
a.flush()
for i in range(4):
    a(f"ds_write_b128 v{vT0}, {V(yAcc+8*i+4,4)} offset:{1024*i}")
    for r in range(4): a(f"v_mov_b32 v{yF+4*i+r}, v{yAcc+8*i+r}")
a.label("L_y2_x")
a(f"v_lshlrev_b32 v{vT0}, 5, v{vL15}")
a(f"v_lshl_add_u32 v{vT0}, v{vQ}, 3, v{vT0}")
a(f"s_lshr_b32 s{sT0}, s{sW}, 1")
a(f"s_mul_i32 s{sT1}, s{sT0}, {URP}")
a(f"s_lshl_b32 s{sT3}, s{sT2}, 9")
a(f"s_sub_u32 s{sT1}, s{sT1}, s{sT3}")
a(f"s_add_u32 s{sT1}, s{sT1}, {UR + 4088 - 3*1024}")
a(f"v_sub_u32 v{vT2}, s{sT1}, v{vT0}")
for i in range(4): a(f"ds_read_b64 {V(64+2*i,2)}, v{vT2} offset:{(3-i)*1024}")
a(f"s_lshl_b32 s{sT1}, s{sD}, 16")
a(f"s_and_b32 s{sT3}, s{sD}, 0xffff0000")
a(f"s_cmp_eq_u32 s{sT0}, 0")
a(f"s_cselect_b32 s{sT1}, s{sT1}, s{sT3}")
a(f"s_lshl_b32 s{sT3}, s{sL}, 1")
a(f"s_add_u32 s{sT3}, s{sT3}, s{sT0}")
a(f"s_lshl_b32 s{sT3}, s{sT3}, 12")
a(f"s_lshl_b32 s{sT4}, s{sT2}, 9")
a(f"s_add_u32 s{sT3}, s{sT3}, s{sT4}")
a(f"s_add_u32 s{sT3}, s{sT3}, {YT_OFF}")
a("s_waitcnt lgkmcnt(0)")
barrier()
for i in range(4): a(f"ds_read_b128 {V(yG+4*i,4)}, v{vT1} offset:{1024*i}")
for i in range(4):
    k0, u = 64 + 2*i, 144 + 4*i
    a(f"v_and_b32 v{u}, 0xffff0000, v{k0+1}")
    a(f"v_lshlrev_b32 v{u+1}, 16, v{k0+1}")
    a(f"v_and_b32 v{u+2}, 0xffff0000, v{k0}")
    a(f"v_lshlrev_b32 v{u+3}, 16, v{k0}")
    for r in range(4): a(f"v_mul_f32 v{u+r}, s{sT1}, v{u+r}")
    a(f"v_cvt_pk_bf16_f32 v{u}, v{u}, v{u+1}")
    a(f"v_cvt_pk_bf16_f32 v{u+2}, v{u+2}, v{u+3}")
    a(f"v_and_b32 v{u+1}, 0xffff0000, v{u}")
    a(f"v_lshlrev_b32 v{u}, 16, v{u}")
    a(f"v_and_b32 v{u+3}, 0xffff0000, v{u+2}")
    a(f"v_lshlrev_b32 v{u+2}, 16, v{u+2}")
a("s_waitcnt lgkmcnt(0)")
for i in range(4):
    y, u = yF + 4*i, 144 + 4*i
    a(f"v_pk_add_f32 {V(y,2)}, {V(y,2)}, {V(yG+4*i,2)}")
    a(f"v_pk_add_f32 {V(y+2,2)}, {V(y+2,2)}, {V(yG+4*i+2,2)}")
    a(f"v_cvt_pk_bf16_f32 v{y}, v{y}, v{y+1}")
    a(f"v_cvt_pk_bf16_f32 v{y+2}, v{y+2}, v{y+3}")
    a(f"v_and_b32 v{y+1}, 0xffff0000, v{y}")
    a(f"v_lshlrev_b32 v{y}, 16, v{y}")
    a(f"v_and_b32 v{y+3}, 0xffff0000, v{y+2}")
    a(f"v_lshlrev_b32 v{y+2}, 16, v{y+2}")
    a(f"v_pk_add_f32 {V(y,2)}, {V(y,2)}, {V(u,2)}")
    a(f"v_pk_add_f32 {V(y+2,2)}, {V(y+2,2)}, {V(u+2,2)}")
    a(f"v_cvt_pk_bf16_f32 v{y}, v{y}, v{y+1}")
    a(f"v_cvt_pk_bf16_f32 v{y+1}, v{y+2}, v{y+3}")
    a(f"buffer_store_dwordx2 {V(y,2)}, v{vT0}, {S4(SWS)}, s{sT3} offen offset:{1024*i} sc1"); vm.issue("yst")
S3SIG = f"""s_lshr_b32 s{sT0}, s{sL}, 5
v_lshl_add_u32 v{vT1}, v{vLANE}, 3, s{sT0}
v_lshlrev_b32 v{vT1}, {MB_SH}, v{vT1}
s_and_b32 s{sT0}, s{sL}, 31
s_lshl_b32 s{sT0}, s{sT0}, 7
s_add_u32 s{sT0}, s{sT0}, {MB_OFF + MB_S3}
v_add_u32 v{vT1}, s{sT0}, v{vT1}"""
prof("y2")
if STAGE <= 2:
    vm.drain()
    a("s_branch L_end")

vOB, vPA, vSt, vW = 121, 16, 72, 84
CB = MISC + 4096
MF = "v_mfma_f32_16x16x32_bf16"

def op_gemm(tiles, pre):
    OFB = [32, 48, 144]
    items = [(s, t) for s in range(16) for t in tiles]
    units = [items[i:i+4] for i in range(0, len(items), 4)]
    def rd(u):
        return [ldsg(f"ds_read_b128 {V(OFB[u%3]+4*k,4)}, v{vOB} offset:{s*4096 + t*1024}", ("of", u)) for k, (s, t) in enumerate(units[u])]
    for u in range(len(units)):
        if u in pre: pre[u]()
        if u == 0:
            for g in rd(0) + rd(1): g()
        lg.wait(("of", u))
        nxt = rd(u + 2) if u + 2 < len(units) else []
        seq = [f"{MF} {V(vPA+4*t,4)}, {A(192+4*s,4)}, {V(OFB[u%3]+4*k,4)}, {'0' if s == 0 else V(vPA+4*t,4)}" for k, (s, t) in enumerate(units[u])]
        a.weave(seq, nxt, [])

def sums(c, dst):
    a(f"v_pk_add_f32 {V(vW,2)}, {V(c,2)}, {V(c+2,2)}")
    a(f"v_pk_mul_f32 {V(vW+2,2)}, {V(c,2)}, {V(c,2)}")
    a(f"v_pk_fma_f32 {V(vW+2,2)}, {V(c+2,2)}, {V(c+2,2)}, {V(vW+2,2)}")
    a(f"v_add_f32 v{dst}, v{vW}, v{vW+1}")
    a(f"v_add_f32 v{dst+1}, v{vW+2}, v{vW+3}")

def unpack(src, dst):
    a(f"v_lshlrev_b32 v{dst}, 16, v{src}")
    a(f"v_and_b32 v{dst+1}, 0xffff0000, v{src}")
    a(f"v_lshlrev_b32 v{dst+2}, 16, v{src+1}")
    a(f"v_and_b32 v{dst+3}, 0xffff0000, v{src+1}")

def ps_write(tiles, base):
    a(f"v_lshlrev_b32 v{vT2}, 9, v{vQ}")
    a(f"v_lshl_add_u32 v{vT2}, v{vL15}, 3, v{vT2}")
    a(f"s_lshl_b32 s{sT0}, s{sW}, 11")
    a(f"s_add_u32 s{sT0}, s{sT0}, {base}")
    a(f"v_add_u32 v{vT2}, s{sT0}, v{vT2}")
    for t in tiles: a(f"ds_write_b64 v{vT2}, {V(vSt+2*t,2)} offset:{128*t}")

def x1_stats(tiles, base):
    for t in tiles:
        c = vPA + 4*t
        a(f"v_cvt_pk_bf16_f32 v{c}, v{c}, v{c+1}")
        a(f"v_cvt_pk_bf16_f32 v{c+2}, v{c+2}, v{c+3}")
        a(f"v_and_b32 v{c+1}, 0xffff0000, v{c}")
        a(f"v_lshlrev_b32 v{c}, 16, v{c}")
        a(f"v_and_b32 v{c+3}, 0xffff0000, v{c+2}")
        a(f"v_lshlrev_b32 v{c+2}, 16, v{c+2}")
        unpack(vX2 + 2*t, vW)
        a(f"v_pk_add_f32 {V(c,2)}, {V(c,2)}, {V(vW,2)}")
        a(f"v_pk_add_f32 {V(c+2,2)}, {V(c+2,2)}, {V(vW+2,2)}")
        a(f"v_cvt_pk_bf16_f32 v64, v{c}, v{c+1}")
        a(f"v_cvt_pk_bf16_f32 v65, v{c+2}, v{c+3}")
        unpack(64, c)
        sums(c, vSt + 2*t)
    ps_write(tiles, base)

def tree(b, n):
    while n > 1:
        n //= 2
        for i in range(n): a(f"v_pk_add_f32 {V(b+2*i,2)}, {V(b+2*i,2)}, {V(b+2*(i+n),2)}")

def reduce16(base, R):
    a(f"v_lshlrev_b32 v{vT2}, 3, v{vLANE}")
    a(f"v_add_u32 v{vT2}, {base}, v{vT2}")
    for i in range(8): a(f"ds_read_b64 {V(R+2*i,2)}, v{vT2} offset:{512*i}")
    a("s_waitcnt lgkmcnt(0)")
    for i in range(8): a(f"ds_read_b64 {V(R+16+2*i,2)}, v{vT2} offset:{512*(8+i)}")
    tree(R, 8)
    a("s_waitcnt lgkmcnt(0)")
    tree(R + 16, 8)
    a(f"v_pk_add_f32 {V(R,2)}, {V(R,2)}, {V(R+16,2)}")
    a(f"v_mov_b32 v{R+2}, s{sN}")
    a(f"v_mov_b32 v{R+3}, s{sN+1}")

def peer_base(dst, mboff, slot_sh, nextgrp=False):
    a(f"s_lshl_b32 s{dst}, s{sG}, 3")
    a(f"s_lshl_b32 s{sT3}, s{sW}, 1")
    a(f"s_add_u32 s{dst}, s{dst}, s{sT3}")
    a(f"s_lshl_b32 s{dst}, s{dst}, {MB_SH}")
    a(f"s_lshl_b32 s{sT3}, s{sJ}, {slot_sh}")
    a(f"s_add_u32 s{dst}, s{dst}, s{sT3}")
    a(f"s_add_u32 s{dst}, s{dst}, {MB_OFF + mboff + (8 * MB_SZ if nextgrp else 0)}")

def gate(tiles, AB):
    for t in tiles:
        ab = V(AB(t), 2)
        x, y, u = vPA + 4*t, 32 + 8*t, 36 + 8*t
        unpack(vYY + 2*t, y)
        for h in range(2):
            a(f"v_pk_fma_f32 {V(u+2*h,2)}, {V(x+2*h,2)}, {ab}, {ab} op_sel:[0,0,1] op_sel_hi:[1,0,1]")
            a(f"v_pk_fma_f32 {V(u+2*h,2)}, {V(u+2*h,2)}, {V(y+2*h,2)}, {V(x+2*h,2)}")
        a(f"v_cvt_pk_bf16_f32 v{vX2+2*t}, v{u}, v{u+1}")
        a(f"v_cvt_pk_bf16_f32 v{vX2+2*t+1}, v{u+2}, v{u+3}")

lg.reset()
a(f"v_add_u32 v{vOB}, {OIMG}, v{vFR}")
def pre0():
    vm.wait(("o", 3)); barrier()
def pre10():
    vm.wait("yst"); barrier(); signal(32, S3SIG)
op_gemm([0, 1, 2, 3], {0: pre0, 10: pre10})
prof("p0_gemm")
x1_stats([0, 1, 2, 3], PS)
a("s_waitcnt lgkmcnt(0)")
barrier()
prof("p0_ps")
peer_base(sT0, MB_ST, 10)
a(f"s_add_u32 s{sT1}, s{sT0}, {MB_SZ}")
reduce16(PS, vW)
a(f"buffer_store_dwordx4 {V(vW,4)}, v{vA0}, {S4(SWS)}, s{sT0} offen sc1")
a(f"buffer_store_dwordx4 {V(vW,4)}, v{vA0}, {S4(SWS)}, s{sT1} offen sc1")
prof("p0_pub")
a(f"s_add_u32 s{sT0}, s{sMB}, {MB_ST}")
a(f"s_lshl_b32 s{sT1}, s{sW}, 11")
a(f"s_add_u32 s{sT0}, s{sT0}, s{sT1}")
a.flush()
a("s_branch L_pst0b")
a.label("L_pst0a")
a("s_sleep 1")
a.label("L_pst0b")
for i in range(2):
    a(f"buffer_load_dwordx4 {V(vW+4*i,4)}, v{vA0}, {S4(SWS)}, s{sT0} offen offset:{1024*i} sc1")
a("s_waitcnt vmcnt(0)")
a(f"v_cmp_ne_u64 vcc, {S2(sN)}, {V(vW+2,2)}")
a(f"v_cmp_ne_u64 {S2(sEX)}, {S2(sN)}, {V(vW+6,2)}")
a(f"s_or_b64 vcc, vcc, {S2(sEX)}")
a("s_cbranch_vccnz L_pst0a")
a(f"v_pk_add_f32 {V(vW,2)}, {V(vW,2)}, {V(vW+4,2)}")
a(f"s_lshl_b32 s{sT1}, s{sW}, 9")
a(f"s_add_u32 s{sT1}, s{sT1}, {CB}")
a(f"v_lshl_add_u32 v{vT1}, v{vLANE}, 3, s{sT1}")
a(f"ds_write_b64 v{vT1}, {V(vW,2)}")
poll(32, MB_S3, "s3")
prof("p0_s3")
a(f"v_lshrrev_b32 v{vT0}, 3, v{vLANE}")
a(f"v_lshlrev_b32 v{vT0}, 12, v{vT0}")
a(f"v_and_b32 v{vT1}, 7, v{vLANE}")
a(f"v_lshl_add_u32 v{vT0}, v{vT1}, 4, v{vT0}")
a(f"s_lshl_b32 s{sT0}, s{sJ}, 18")
a(f"s_lshl_b32 s{sT1}, s{sG}, 7")
a(f"s_add_u32 s{sT0}, s{sT0}, s{sT1}")
a(f"s_lshl_b32 s{sT1}, s{sW}, 16")
a(f"s_add_u32 s{sT0}, s{sT0}, s{sT1}")
a(f"s_add_u32 s{sT0}, s{sT0}, {YT_OFF}")
a(f"s_lshl_b32 s{sT1}, s{sW}, 11")
a(f"s_add_u32 m0, s{sT1}, {YTT}")
a(f"buffer_load_dwordx4 v{vT0}, {S4(SWS)}, s{sT0} offen sc1 lds")
a(f"s_add_u32 s{sT0}, s{sT0}, 32768")
a(f"s_add_u32 m0, s{sT1}, {YTT + 1024}")
a(f"buffer_load_dwordx4 v{vT0}, {S4(SWS)}, s{sT0} offen sc1 lds")
a(f"v_lshlrev_b32 v{vT1}, 3, v{vL15}")
a(f"v_add_u32 v{vT1}, {CB}, v{vT1}")
a("s_waitcnt lgkmcnt(0)")
barrier()
prof("p0_stats")
for t in range(4):
    for i in range(4): a(f"ds_read_b64 {V(vW+8*t+2*i,2)}, v{vT1} offset:{512*i + 128*t}")
a("s_waitcnt lgkmcnt(0)")
for t in range(4): tree(vW + 8*t, 4)
ln_math([(vW+8*t, vW+8*t+1, vW+8*t+2, vW+8*t+3, vW+8*t+4, vW+8*t+5) for t in range(4)])
a(f"v_lshrrev_b32 v{vT1}, 2, v{vLANE}")
a(f"v_lshlrev_b32 v{vT1}, 7, v{vT1}")
a(f"v_and_b32 v{vT2}, 3, v{vLANE}")
a(f"v_lshl_add_u32 v{vT1}, v{vT2}, 3, v{vT1}")
a(f"s_lshl_b32 s{sT0}, s{sW}, 11")
a(f"s_add_u32 s{sT0}, s{sT0}, {YTT}")
a(f"v_add_u32 v{vT1}, s{sT0}, v{vT1}")
a("s_waitcnt vmcnt(0)")
for t in range(4): a(f"ds_read_b64_tr_b16 {V(vYY+2*t,2)}, v{vT1} offset:{32*t}")
a("s_waitcnt lgkmcnt(0)")
gate([0, 1, 2, 3], lambda t: vW + 8*t + 2)
def x2_stats():
    for t in range(4):
        unpack(vX2 + 2*t, 32 + 4*t)
        sums(32 + 4*t, vSt + 2*t)
    ps_write([0, 1, 2, 3], YTT)
tile_to_lds(vX2, 144, 4, x2_stats)
prof("p0_epi")
a(f"s_add_u32 s{sT1}, s{sTILE}, 32768")
a(f"buffer_store_dwordx4 {V(144,4)}, v{vT0}, {S4(SX2)}, s{sTILE} offen sc1")
a(f"buffer_store_dwordx4 {V(148,4)}, v{vT0}, {S4(SX2)}, s{sT1} offen sc1")
reduce16(YTT, vW)
peer_base(sT0, MB_XS, 9)
a(f"s_add_u32 s{sT1}, s{sT0}, {MB_SZ}")
peer_base(sT2, MB_XH - 384, 7, True)
a(f"s_add_u32 s{sT4}, s{sT2}, {MB_SZ}")
a(f"v_lshlrev_b32 v{vT0}, 3, v{vLANE}")
a(f"buffer_store_dwordx2 {V(vW,2)}, v{vT0}, {S4(SWS)}, s{sT0} offen sc1")
a(f"buffer_store_dwordx2 {V(vW,2)}, v{vT0}, {S4(SWS)}, s{sT1} offen sc1")
a("s_mov_b32 exec_lo, 0\ns_mov_b32 exec_hi, 0xffff0000")
a(f"buffer_store_dwordx2 {V(vW,2)}, v{vT0}, {S4(SWS)}, s{sT2} offen sc1")
a(f"buffer_store_dwordx2 {V(vW,2)}, v{vT0}, {S4(SWS)}, s{sT4} offen sc1")
a("s_mov_b64 exec, -1")
vXT = [vXDH, vXD, 196, 197, 198]
for t in (2, 3, 4): a(f"v_add_u32 v{vXT[t]}, {16384*(t-1)}, v{vXD}")
vm.drain()
barrier()
signal(16, group_sig(MB_S5, 16))
prof("p0_done")
if STAGE <= 3:
    vm.drain()
    a("s_branch L_end")

a(f"s_mov_b32 s{sT1}, 0xffff")
a(f"s_cmp_eq_u32 s{sG}, 0")
a(f"s_cselect_b32 exec_lo, 0xff, s{sT1}")
a(f"s_cselect_b32 s{sT2}, 0, -1")
a("s_mov_b32 exec_hi, 0")
poll(16, MB_S5, "x2", exec_set=True)
a(f"s_xor_b32 s{sN}, s{sN}, 1")
prof("p3_wait")
vm.reset(); lg.reset()
def dma3(tiles, i, tag):
    def g():
        a(f"s_add_u32 s{sB0}, s{sKK0}, s{sW}")
        if i: a(f"s_add_u32 s{sB0}, s{sB0}, {4*i}")
        a(f"s_and_b32 s{sB0}, s{sB0}, 15")
        a(f"s_lshl_b32 s{sB0}, s{sB0}, 6")
        for t in tiles:
            a(f"s_add_u32 m0, s{sW5K}, {XIMG + (20*i + t)*1024}")
            a(f"buffer_load_dwordx4 v{vXT[t]}, {S4(SX2)}, s{sB0} offen sc1 lds"); vm.issue((tag, i))
    return g
TA, TB = [0, 1, 2], [3, 4]
for i in range(4): dma3(TA, i, "xA")()
a(f"v_lshlrev_b32 v{vT0}, 3, v{vLANE}")
a(f"s_lshl_b32 s{sT1}, s{sW}, 10")
a(f"s_add_u32 s{sT0}, s{sMB}, s{sT1}")
a(f"s_add_u32 s{sT0}, s{sT0}, {MB_XS}")
a(f"s_lshl_b32 s{sT1}, s{sW}, 8")
a(f"s_add_u32 s{sT1}, s{sT1}, s{sMB}")
a(f"s_add_u32 s{sT1}, s{sT1}, {MB_XH}")
for i in range(2):
    a(f"buffer_load_dwordx2 {V(144+2*i,2)}, v{vT0}, {S4(SWS)}, s{sT0} offen offset:{512*i} sc1"); vm.issue("xs")
a(f"buffer_load_dwordx2 {V(148,2)}, v{vT0}, {S4(SWS)}, s{sT1} offen sc1"); vm.issue("xs")
def xs_partial():
    vm.wait("xs")
    a(f"v_add_f32 v144, v144, v146")
    a(f"v_add_f32 v145, v145, v147")
    a(f"v_and_b32 v148, s{sT2}, v148")
    a(f"v_and_b32 v149, s{sT2}, v149")
    a(f"v_mov_b32 v150, v148")
    a(f"v_mov_b32 v151, v149")
    a(f"v_permlane16_swap_b32 v148, v150")
    a(f"v_permlane16_swap_b32 v149, v151")
    a(f"v_add_f32 v148, v148, v150")
    a(f"v_add_f32 v149, v149, v151")
    a(f"s_mul_i32 s{sT1}, s{sW}, 640")
    a(f"s_add_u32 s{sT1}, s{sT1}, {CB}")
    a(f"v_lshl_add_u32 v{vT1}, v{vLANE}, 3, s{sT1}")
    a(f"ds_write_b64 v{vT1}, {V(144,2)} offset:128")
    a("s_mov_b32 exec_lo, 0xffff\ns_mov_b32 exec_hi, 0")
    a(f"ds_write_b64 v{vT1}, {V(148,2)}")
    a("s_mov_b64 exec, -1")
    a("s_waitcnt lgkmcnt(0)"); lg.reset()

def qkv_pass(tiles, qt, pre, fill):
    n = len(tiles)
    B = lambda s: vXA + 4 * n * (s % 3)
    def rd(s):
        base, off = (vFR, s*5*1024) if s < 8 else (vA1, (s-8)*5*1024)
        return [ldsg(f"ds_read_b128 {V(B(s)+4*u,4)}, v{base} offset:{XIMG + off + t*1024}", ("xa", s)) for u, t in enumerate(tiles)]
    restarts = sorted(k for k, v in pre.items() if v[1])
    issued = set()
    can = lambda a_, b_: not any(a_ < r <= b_ for r in restarts)
    for s in range(16):
        if s in pre: pre[s][0]()
        if s in restarts:
            for d in range(2):
                for g in rd(s + d): g()
                issued.add(s + d)
        lg.wait(("xa", s))
        nxt = []
        if s + 2 < 16 and (s + 2) not in issued and can(s, s + 2):
            nxt = rd(s + 2); issued.add(s + 2)
        C = lambda r: "0" if s == 0 else V(r, 4)
        wq, wk, wv = A(12*s, 4), A(12*s+4, 4), A(12*s+8, 4)
        seq = []
        for u, t in enumerate(tiles):
            xa = V(B(s) + 4*u, 4)
            seq.append(f"{MF} {V(vKT+4*t,4)}, {wk}, {xa}, {C(vKT+4*t)}")
            seq.append(f"{MF} {V(vVV+4*t,4)}, {xa}, {wv}, {C(vVV+4*t)}")
            if t in qt: seq.append(f"{MF} {V(vQT+4*(t-1),4)}, {wq}, {xa}, {C(vQT+4*(t-1))}")
        a.weave(seq, nxt, fill.get(s, []))

def wb(tag):
    def f(): vm.wait(tag); barrier()
    return f
def wb12():
    xs_partial(); vm.wait(("xA", 3)); barrier()
preA = {4*i: (wb(("xA", i)), True) for i in range(3)}
preA[12] = (wb12, True)
qkv_pass(TA, [1, 2], preA, {2*i + 1: [dma3(TB, i, "xB")] for i in range(4)})
prof("p3_gemmA")
a(f"v_lshlrev_b32 v{vT0}, 3, v{vLANE}")
a(f"v_add_u32 v{vT0}, {CB}, v{vT0}")
a(f"v_lshlrev_b32 v{vT1}, 3, v{vL15}")
a(f"v_add_u32 v{vT1}, {CB}, v{vT1}")
for i in range(4): a(f"ds_read_b64 {V(144+2*i,2)}, v{vT0} offset:{640*i + 128}")
for i in range(4): a(f"ds_read_b64 {V(152+2*i,2)}, v{vT1} offset:{640*i}")
ab_addr()
a("s_waitcnt lgkmcnt(0)")
tree(144, 4); tree(152, 4)
a(f"v_mov_b32 v146, v152\nv_mov_b32 v147, v153")
ab_write(144)
a("s_waitcnt lgkmcnt(0)")
attn_core("a1A", TA, [1, 2])
def o_store(h):
    tile_to_lds(48, 56, 2)
    a(f"s_add_u32 s{sT0}, s{sTILE}, {O3_OFF + 32768*h}")
    a(f"buffer_store_dwordx4 {V(56,4)}, v{vT0}, {S4(SWS)}, s{sT0} offen sc1"); vm.issue(("ost", h))
vm.wait(("xB", 3))
o_store(0)
prof("a1A_done")
def sigA():
    vm.wait(("ost", 0)); barrier(); signal(8, group_sig(MB_S6A))
qkv_pass(TB, [3, 4], {0: (lambda: None, True), 9: (sigA, False)}, {})
prof("p3_gemmB")
vOD = 199
def oh_groups(h):
    def mk(i):
        def g():
            if i == 0:
                a(f"s_and_b32 s{sB0}, s{sW}, 1")
                a(f"s_lshl_b32 s{sB1}, s{sB0}, 14")
                a(f"s_add_u32 s{sB1}, s{sB1}, {32768*h}")
                a(f"v_add_u32 v{vOD+h}, s{sB1}, v{vXD}")
                a(f"s_lshr_b32 s{sB1}, s{sW}, 1")
                a(f"s_add_u32 s{sXo}, s{sKK0}, s{sB1}")
                a(f"s_lshl_b32 s{sXo}, s{sXo}, 6")
                a(f"s_and_b32 s{sXo}, s{sXo}, 1023")
                a(f"s_lshl_b32 s{sB1}, s{sB1}, 12")
                a(f"s_lshl_b32 s{sB0}, s{sB0}, 10")
                a(f"s_add_u32 s{sB0}, s{sB0}, s{sB1}")
            a(f"s_add_u32 s{sB1}, s{sXo}, {O3_OFF}")
            a(f"s_add_u32 m0, s{sB0}, {OIMG + 8192*i + 2048*h}")
            a(f"buffer_load_dwordx4 v{vOD+h}, {S4(SWS)}, s{sB1} offen sc1 lds"); vm.issue(("o", h))
            a(f"s_add_u32 s{sXo}, s{sXo}, 128")
            a(f"s_and_b32 s{sXo}, s{sXo}, 1023")
        return g
    return [mk(i) for i in range(8)]
a.bg_start([async_poll(MB_S6A)], 60)
def fetch_o0():
    async_check(8, MB_S6A, "o3a")
    for g in oh_groups(0): g()
attn_core("a1B", TB, [3, 4], fetch_o0)
o_store(1)
prof("a1B_done")

PS1 = HC
def publish_half(h):
    a(f"v_and_b32 v{vT2}, 31, v{vLANE}")
    a(f"v_lshlrev_b32 v{vT2}, 3, v{vT2}")
    a(f"v_lshrrev_b32 v{vT1}, 5, v{vLANE}")
    a(f"v_lshl_add_u32 v{vT0}, v{vT1}, 12, v{vT2}")
    a(f"v_add_u32 v{vT0}, {PS1 + 256*h}, v{vT0}")
    for i in range(8): a(f"ds_read_b64 {V(vW+2*i,2)}, v{vT0} offset:{512*i}")
    peer_base(sT0, MB_ST + 512*h, 10)
    a(f"v_lshlrev_b32 v{vT2}, 1, v{vT2}")
    a(f"v_lshl_add_u32 v{vT2}, v{vT1}, {MB_SH}, v{vT2}")
    a("s_waitcnt lgkmcnt(0)")
    tree(vW, 8)
    a(f"v_mov_b32 v{vW+2}, v{vW}")
    a(f"v_mov_b32 v{vW+3}, v{vW+1}")
    a(f"v_permlane32_swap_b32 v{vW}, v{vW+2}")
    a(f"v_permlane32_swap_b32 v{vW+1}, v{vW+3}")
    a(f"v_pk_add_f32 {V(vW,2)}, {V(vW,2)}, {V(vW+2,2)}")
    a(f"v_mov_b32 v{vW+2}, s{sN}")
    a(f"v_mov_b32 v{vW+3}, s{sN+1}")
    a(f"buffer_store_dwordx4 {V(vW,4)}, v{vT2}, {S4(SWS)}, s{sT0} offen sc1")
def poll_half(h):
    a(f"v_and_b32 v{vT2}, 31, v{vLANE}")
    a(f"v_lshlrev_b32 v{vT2}, 4, v{vT2}")
    a(f"v_lshrrev_b32 v{vT1}, 5, v{vLANE}")
    a(f"v_lshl_add_u32 v{vT1}, v{vT1}, 10, v{vT2}")
    a(f"s_lshl_b32 s{sT1}, s{sW}, 11")
    a(f"s_add_u32 s{sT0}, s{sMB}, s{sT1}")
    a(f"s_add_u32 s{sT0}, s{sT0}, {MB_ST + 512*h}")
    L0, L1 = a.newlabel("L_ph"), a.newlabel("L_ph")
    a.flush()
    a(f"s_branch {L1}")
    a.label(L0)
    a("s_sleep 1")
    a.label(L1)
    a(f"buffer_load_dwordx4 {V(vW,4)}, v{vT1}, {S4(SWS)}, s{sT0} offen sc1")
    a("s_waitcnt vmcnt(0)")
    a(f"v_cmp_ne_u64 vcc, {S2(sN)}, {V(vW+2,2)}")
    a(f"s_cbranch_vccnz {L0}")
    vm.reset()
    a(f"v_mov_b32 v{vW+2}, v{vW}")
    a(f"v_mov_b32 v{vW+3}, v{vW+1}")
    a(f"v_permlane32_swap_b32 v{vW}, v{vW+2}")
    a(f"v_permlane32_swap_b32 v{vW+1}, v{vW+3}")
    a(f"v_pk_add_f32 {V(vW,2)}, {V(vW,2)}, {V(vW+2,2)}")
    a(f"s_lshl_b32 s{sT1}, s{sW}, 8")
    a(f"s_add_u32 s{sT1}, s{sT1}, {CB + 1024*h}")
    a(f"v_lshrrev_b32 v{vT2}, 1, v{vT2}")
    a(f"v_add_u32 v{vT2}, s{sT1}, v{vT2}")
    a(f"ds_write_b64 v{vT2}, {V(vW,2)}")
    a("s_waitcnt lgkmcnt(0)")
    barrier()
def finish_half(h):
    T = [2*h, 2*h + 1]
    a(f"v_lshlrev_b32 v{vT1}, 3, v{vL15}")
    a(f"v_add_u32 v{vT1}, {CB + 1024*h}, v{vT1}")
    for u in range(2):
        for i in range(4): a(f"ds_read_b64 {V(vW+8*u+2*i,2)}, v{vT1} offset:{256*i + 128*u}")
    a("s_waitcnt lgkmcnt(0)")
    for u in range(2): tree(vW + 8*u, 4)
    ln_math([(vW+8*u, vW+8*u+1, vW+8*u+2, vW+8*u+3, vW+8*u+4, vW+8*u+5) for u in range(2)])
    gate(T, lambda t: vW + 8*(t - 2*h) + 2)
    tile_to_lds(vX2 + 4*h, 144, 2)
    a(f"s_add_u32 s{sT1}, s{sTILE}, {32768*h}")
    a(f"buffer_store_dwordx4 {V(144,4)}, v{vT0}, {S4(SOUT)}, s{sT1} offen")

lg.reset()
a(f"v_add_u32 v{vOB}, {OIMG}, v{vFR}")
op_gemm([0, 1], {0: wb(("o", 0))})
prof("p4_gemm0")
x1_stats([0, 1], PS1)
a("s_waitcnt lgkmcnt(0)")
vm.wait(("ost", 1))
barrier()
signal(8, group_sig(MB_S6B))
publish_half(0)
prof("p4_pub0")
poll(8, MB_S6B, "o3b")
prof("p4_owait")
for g in oh_groups(1): g()
poll_half(0)
prof("p4_st0")
lg.reset()
op_gemm([2, 3], {})
x1_stats([2, 3], PS1)
a("s_waitcnt lgkmcnt(0)")
barrier()
publish_half(1)
prof("p4_pub1")
finish_half(0)
prof("p4_fin0")
poll_half(1)
prof("p4_st1")
finish_half(1)
prof("final")
a.label("L_end")
a("s_endpgm")
a.raw('.section .rodata,"a"')
a.raw(kernel_desc(NAME, 512, 102, 256))
out = sys.argv[1] if len(sys.argv) > 1 else "interleave_layers__sliding_local_dilated__ssm_conv_h3__prompt.s"
open(out, "w").write(a.text())
print("wrote", out, "lines", len(a.lines), "pad states", a.npad)
```

```python
import sys, os
sys.path.insert(0, os.path.dirname(os.path.abspath(__file__)))
from asmlib import *

NAME = "interleave_layers__sliding_local_dilated__ssm_conv_h3__prompt_kernel"
STAGE = int(os.environ.get("STAGE", "9"))
PROF = int(os.environ.get("PROF", "0"))
ENV = lambda k, d: int(os.environ.get(k, str(d)))

KVT_OFF = 0
YT_OFF = KVT_OFF
O1_OFF = 4 << 20
PLD = int(os.environ.get("PLD", "0"))
LSC = "" if PLD else " sc1"
X2_OFF = (6 << 20) if PLD else O1_OFF
O3_OFF = 8 << 20
MB_OFF = 16 << 20
MB_SH = 15
MB_SZ = 1 << MB_SH
MB_F = 24576
MB_S1, MB_S3, MB_ID = 64, 16, 96
MB_S2, MB_S5, MB_S6A, MB_S6B = MB_F, MB_F + 16, MB_F + 32, MB_F + 48
MB_XS = 12288
MB_XH = 20480
MB_ST = 4096
PROF_OFF = 32 << 20

XIMG = 0
WRING = 81920
NSLOT = 6
WOIMG = 0
UR, URP = 65536, 4608
HC, HCP = 74752, 4160
ACCX = HC
YTT = HC
PS = HC + 8192
OT0 = PS
OT1 = 155648
MISC = 91392
ABW = MISC + 1024
OIMG = 98304
Y1T = 155648

sB, sW, sG, sJ, sKK0, sJY = 2, 3, 4, 5, 6, 7
SX, SWQ, SWO, SK_, SV_, SH, SOUT, SDBG, SWS, SX2, SSK = 8, 12, 16, 20, 24, 28, 32, 36, 40, 44, 48
sD = 52
sPAR, sMC0, sMC1 = 54, 56, 58
sL = 60
sT0, sT1, sT2, sT3, sT4 = 61, 62, 63, 64, 75
sW1K, sW16K, sW5K, sMB = 65, 66, 67, 68
sTILE = 69
sEX = 72
sN = 78
sXo, sW3K, sW64, sXx = 80, 81, 82, 83
sTP = 84
sLOC, sLOC2, sXCC = 74, 76, 77
sB0, sB1 = 70, 71
sPT = 92

def S4(n): return f"s[{n}:{n+3}]"
def S2(n): return f"s[{n}:{n+1}]"
def V(n, k=1): return f"v{n}" if k == 1 else f"v[{n}:{n+k-1}]"
def A(n, k=1): return f"a{n}" if k == 1 else f"a[{n}:{n+k-1}]"

vTID, vLANE, vL15, vQ = 0, 1, 2, 3
vA0, vA1, vS0, vS1, vSH, vTR, vXD, vXDH, vWD = 4, 5, 6, 7, 8, 9, 10, 11, 12
vT0, vT1, vT2 = 13, 14, 15
vQT, vKT, vVV = 16, 32, 52
vXA = 84
vSO = 124
vSHF = 132
vONE = 136
vXDW, vKVD, vL128 = 140, 141, 142
yH = 144
vST = 196
vPL = 214
vNL = 220
vP0 = 222
vCS = 224
vTRW0, vTRW1, vWOD, vFR = 236, 237, 238, 239
vX2, vYY = 240, 248

a = Asm()
vm = Cnt(a, "vmcnt", 63)
lg = Cnt(a, "lgkmcnt", 15)
prof_idx = [0]
PARM, MC = S2(sPAR), [S2(sMC0), S2(sMC1)]

DBGTAGS = ["start", "y1done", "p1gemm", "a0_done", "y2", "p0_pub", "p0_stats", "p0_done", "p3_wait", "p3_gemm", "a1_done", "p1_gemm", "final"]
def prof_dbg(tag):
    if tag not in DBGTAGS: return
    e = a.bg_pause()
    i = DBGTAGS.index(tag)
    L = a.newlabel("L_pd")
    a(f"s_cmp_lg_u32 s{sL}, 37")
    a(f"s_cbranch_scc1 {L}")
    a(f"s_memtime {S2(sPT)}")
    if tag in ("start", "final"): a(f"s_memrealtime {S2(sPT+2)}")
    a("s_waitcnt lgkmcnt(0)")
    if tag == "start":
        a(f"s_mov_b32 s100, s{sPT}")
        a(f"s_mov_b32 s101, s{sPT+2}")
    a(f"s_sub_u32 s{sPT}, s{sPT}, s100")
    a(f"v_mov_b32 v218, s{sPT}")
    a(f"v_mov_b32 v219, {12 + 4*i}")
    a(f"v_cmp_eq_u32 {S2(sPT+6)}, 0, v{vTID}")
    a(f"s_and_saveexec_b64 {S2(sPT+4)}, {S2(sPT+6)}")
    a(f"buffer_store_dword v218, v219, {S4(SDBG)}, 0 offen")
    if tag == "final":
        a(f"s_sub_u32 s{sPT+2}, s{sPT+2}, s101")
        a(f"v_mov_b32 v218, s{sPT+2}")
        a(f"v_mov_b32 v219, 8")
        a(f"buffer_store_dword v218, v219, {S4(SDBG)}, 0 offen")
    a(f"s_mov_b64 exec, {S2(sPT+4)}")
    a.flush()
    a.label(L)
    a("s_waitcnt lgkmcnt(0)")
    lg.reset()
    a.bg_resume(e)

def prof(tag):
    if not PROF: return
    if PROF == 2: return prof_dbg(tag)
    e = a.bg_pause()
    i = prof_idx[0]; prof_idx[0] += 1
    a(f"s_memrealtime {S2(sPT)}" if PROF == 3 else f"s_memtime {S2(sPT)}")
    a("s_waitcnt lgkmcnt(0)")
    lg.reset()
    a(f"v_mov_b32 v218, s{sPT}")
    a(f"s_lshl_b32 s{sPT+2}, s{sL}, 9")
    a(f"s_add_u32 s{sPT+2}, s{sPT+2}, {PROF_OFF + 4*i}")
    a(f"v_mov_b32 v219, 0")
    a(f"v_cmp_eq_u32 {S2(sPT+6)}, 0, v{vTID}")
    a(f"s_and_saveexec_b64 {S2(sPT+4)}, {S2(sPT+6)}")
    a(f"buffer_store_dword v218, v219, {S4(SWS)}, s{sPT+2} offen")
    a(f"s_mov_b64 exec, {S2(sPT+4)}")
    vm.issue("prof")
    a.bg_resume(e)

def set_exec(n):
    a(f"s_mov_b32 exec_lo, {hex((1 << min(n,32)) - 1)}")
    a(f"s_mov_b32 exec_hi, {hex((1 << (n-32)) - 1) if n > 32 else 0}")

def barrier(): a("s_barrier")

FAST = ENV("FAST", 1)
def st2(lines, loc, tags=()):
    e = a.bg_pause()
    if not FAST:
        for l in lines: a(l + " sc1")
    else:
        Lp, Le = a.newlabel("L_sp"), a.newlabel("L_se")
        a(f"s_cmp_lg_u32 s{loc}, 0")
        a(f"s_cbranch_scc1 {Lp}")
        for l in lines: a(l + " sc1")
        a(f"s_branch {Le}")
        a.label(Lp)
        for l in lines: a(l)
        a.label(Le)
    for t in tags: vm.issue(t)
    a.bg_resume(e)

def poll(n, mboff, name, exec_set=False):
    L = a.newlabel("L_poll_" + name)
    if not exec_set: set_exec(n)
    a(f"s_add_u32 s{sT0}, s{sMB}, {mboff}")
    a.flush()
    a.label(L)
    a(f"buffer_load_dwordx2 {V(vP0,2)}, v{vL128}, {S4(SWS)}, s{sT0} offen sc1")
    a("s_waitcnt vmcnt(0)")
    a(f"v_cmp_ne_u64 vcc, {S2(sN)}, {V(vP0,2)}")
    a(f"s_cbranch_vccnz {L}")
    a("s_mov_b64 exec, -1")
    vm.reset()

def async_poll(mboff):
    def g():
        a(f"s_add_u32 s{sB0}, s{sMB}, {mboff}")
        a(f"buffer_load_dwordx2 {V(vPL,2)}, v{vL128}, {S4(SWS)}, s{sB0} offen sc1"); vm.issue("apoll")
    return g

def async_check(n, mboff, name):
    L = a.newlabel("L_achk")
    vm.wait("apoll")
    set_exec(n)
    a(f"v_cmp_ne_u64 vcc, {S2(sN)}, {V(vPL,2)}")
    a("s_mov_b64 exec, -1")
    a(f"s_cbranch_vccz {L}")
    q = list(vm.q)
    poll(n, mboff, name)
    vm.q = q
    a.flush()
    a.label(L)

def signal(n, addr_code, loc=None):
    L = a.newlabel("L_sig")
    a(f"s_cmp_lg_u32 s{sW}, 0")
    a(f"s_cbranch_scc1 {L}")
    a(addr_code)
    a(f"v_mov_b32 v{vP0}, s{sN}")
    a(f"v_mov_b32 v{vP0+1}, s{sN+1}")
    ln = f"buffer_store_dwordx2 {V(vP0,2)}, v{vT1}, {S4(SWS)}, 0 offen"
    if loc is None:
        set_exec(n)
        a(ln + " sc1")
    else:
        set_exec(8)
        st2([ln], sLOC)
        if n > 8:
            a("s_mov_b32 exec_lo, 0xff00")
            st2([ln], sLOC2)
    a("s_mov_b64 exec, -1")
    a.flush()
    a.label(L)

def group_sig(mboff, n=8):
    extra = f"v_and_b32 v{vT2}, 8, v{vLANE}\nv_lshl_add_u32 v{vT1}, v{vT2}, 7, v{vT1}\n" if n > 8 else ""
    return f"""s_lshl_b32 s{sT0}, s{sG}, 3
v_add_u32 v{vT1}, s{sT0}, v{vLANE}
v_lshlrev_b32 v{vT1}, {MB_SH}, v{vT1}
{extra}s_lshl_b32 s{sT0}, s{sJ}, 7
s_add_u32 s{sT0}, s{sT0}, {MB_OFF + mboff}
v_add_u32 v{vT1}, s{sT0}, v{vT1}"""

def allreduce(op, regs, tmps):
    for sw in ("v_permlane16_swap_b32", "v_permlane32_swap_b32"):
        for r, t in zip(regs, tmps): a(f"v_mov_b32 v{t}, v{r}")
        for r, t in zip(regs, tmps): a(f"{sw} v{r}, v{t}")
        for r, t in zip(regs, tmps): a(f"{op} v{r}, v{r}, v{t}")

def ln_math(sets):
    steps = [
        "v_mul_f32 v{t0}, 0x3b000000, v{S}", "v_mul_f32 v{t1}, 0x3b000000, v{SS}",
        "v_fma_f32 v{t1}, -v{t0}, v{t0}, v{t1}", "v_max_f32 v{t1}, 0, v{t1}",
        "v_cvt_pk_bf16_f32 v{t0}, v{t0}, v{t1}", "v_and_b32 v{t1}, 0xffff0000, v{t0}",
        "v_lshlrev_b32 v{t0}, 16, v{t0}", "v_add_f32 v{t1}, 0x3727c5ac, v{t1}",
        "v_cvt_pk_bf16_f32 v{t1}, v{t1}, v{t1}", "v_lshlrev_b32 v{t1}, 16, v{t1}",
        "v_sqrt_f32 v{t1}, v{t1}", "v_cvt_pk_bf16_f32 v{t1}, v{t1}, v{t1}",
        "v_lshlrev_b32 v{t1}, 16, v{t1}", "v_rcp_f32 v{A}, v{t1}",
        "v_mul_f32 v{B}, -v{t0}, v{A}"]
    for st in steps:
        for (S, SS, A_, B_, t0, t1) in sets:
            a(st.format(S=S, SS=SS, A=A_, B=B_, t0=t0, t1=t1))

def ldsg(line, tag):
    def g(): a(line); lg.issue(tag)
    return g
def vmg(line, tag):
    def g(): a(line); vm.issue(tag)
    return g

def tile_to_lds(src, tmp, nt=4, mid=None, OT=OT0):
    a(f"v_lshrrev_b32 v{vT0}, 1, v{vQ}")
    a(f"s_lshl_b32 s{sT0}, s{sW}, 1")
    a(f"v_add_u32 v{vT0}, s{sT0}, v{vT0}")
    a(f"v_and_b32 v{vT1}, 7, v{vL15}")
    a(f"v_xor_b32 v{vT0}, v{vT0}, v{vT1}")
    a(f"v_lshlrev_b32 v{vT0}, 4, v{vT0}")
    a(f"v_lshl_add_u32 v{vT0}, v{vL15}, 7, v{vT0}")
    a(f"v_and_b32 v{vT1}, 1, v{vQ}")
    a(f"v_lshl_add_u32 v{vT0}, v{vT1}, 3, v{vT0}")
    a(f"v_add_u32 v{vT0}, {OT}, v{vT0}")
    for t in range(nt):
        a(f"ds_write_b64 v{vT0}, {V(src+2*t,2)} offset:{2048*t}")
    if mid: mid()
    a(f"v_lshlrev_b32 v{vT1}, 4, v{vTID}")
    a(f"v_add_u32 v{vT1}, {OT}, v{vT1}")
    a(f"v_lshrrev_b32 v{vT2}, 3, v{vTID}")
    a(f"v_xor_b32 v{vT0}, v{vTID}, v{vT2}")
    a(f"v_and_b32 v{vT0}, 7, v{vT0}")
    a(f"v_lshlrev_b32 v{vT0}, 4, v{vT0}")
    a(f"v_lshl_add_u32 v{vT0}, v{vT2}, 10, v{vT0}")
    a("s_waitcnt lgkmcnt(0)")
    barrier()
    for i in range(nt // 2):
        a(f"ds_read_b128 {V(tmp+4*i,4)}, v{vT1} offset:{4096*i}")
    a("s_waitcnt lgkmcnt(0)")

a.raw("; @launch grid=(256,1,1) block=(256,1,1) lds=163840")
a.raw('.amdgcn_target "amdgcn-amd-amdhsa--gfx950"\n.text')
a.raw(kernel_header(NAME))
a(f"s_cmp_ge_u32 s{sB}, 256")
a("s_cbranch_scc1 L_end")
a("s_load_dwordx16 s[76:91], s[0:1], 0")
a("s_load_dwordx8 s[92:99], s[0:1], 64")
a(f"v_and_b32 v{vLANE}, 63, v{vTID}")
a(f"v_lshrrev_b32 v{vT0}, 6, v{vTID}")
a(f"v_and_b32 v{vL15}, 15, v{vTID}")
a(f"v_readfirstlane_b32 s{sW}, v{vT0}")
a(f"v_bfe_u32 v{vQ}, v{vTID}, 4, 2")
a(f"v_lshlrev_b32 v{vA0}, 4, v{vLANE}")
a(f"v_lshrrev_b32 v{vT0}, 2, v{vL15}")
a(f"v_and_b32 v{vT0}, 2, v{vT0}")
a(f"v_xor_b32 v{vT0}, v{vT0}, v{vQ}")
a(f"v_lshlrev_b32 v{vFR}, 6, v{vL15}")
a(f"v_lshl_add_u32 v{vFR}, v{vT0}, 4, v{vFR}")
a(f"v_add_u32 v{vA1}, 40960, v{vFR}")
a(f"v_lshlrev_b32 v{vL128}, 7, v{vLANE}")
a(f"v_and_b32 v{vL128}, 0xfff, v{vL128}")
MAPNJ = ENV("MAPNJ", 8)
a(f"s_and_b32 s{sT0}, s{sB}, 7")
a(f"s_lshr_b32 s{sT1}, s{sB}, 3")
if ENV("SLOTPERM", 0):
    a(f"s_and_b32 s{sT2}, s{sT1}, 3")
    a(f"s_lshl_b32 s{sT2}, s{sT2}, 3")
    a(f"s_lshr_b32 s{sT1}, s{sT1}, 2")
    a(f"s_add_u32 s{sT1}, s{sT1}, s{sT2}")
if MAPNJ == 8:
    a(f"s_lshr_b32 s{sT2}, s{sT1}, 3")
    a(f"s_lshl_b32 s{sG}, s{sT0}, 2")
    a(f"s_add_u32 s{sG}, s{sG}, s{sT2}")
    a(f"s_and_b32 s{sJ}, s{sT1}, 7")
    a(f"s_lshl_b32 s{sKK0}, s{sT2}, 2")
    a(f"s_lshl_b32 s{sT2}, s{sJ}, 1")
    a(f"s_add_u32 s{sKK0}, s{sKK0}, s{sT2}")
    a(f"s_lshr_b32 s{sT2}, s{sT0}, 1")
    a(f"s_add_u32 s{sKK0}, s{sKK0}, s{sT2}")
elif MAPNJ == 4:
    a(f"s_lshr_b32 s{sG}, s{sT0}, 1")
    a(f"s_lshl_b32 s{sG}, s{sG}, 3")
    a(f"s_lshr_b32 s{sT2}, s{sT1}, 2")
    a(f"s_add_u32 s{sG}, s{sG}, s{sT2}")
    a(f"s_and_b32 s{sJ}, s{sT0}, 1")
    a(f"s_lshl_b32 s{sJ}, s{sJ}, 2")
    a(f"s_and_b32 s{sT3}, s{sT1}, 3")
    a(f"s_add_u32 s{sJ}, s{sJ}, s{sT3}")
    a(f"s_lshl_b32 s{sKK0}, s{sT2}, 1")
    a(f"s_lshl_b32 s{sT3}, s{sT3}, 2")
    a(f"s_add_u32 s{sKK0}, s{sKK0}, s{sT3}")
    a(f"s_lshr_b32 s{sT2}, s{sT0}, 2")
    a(f"s_add_u32 s{sKK0}, s{sKK0}, s{sT2}")
elif MAPNJ == 2:
    a(f"s_lshr_b32 s{sG}, s{sT0}, 2")
    a(f"s_lshl_b32 s{sG}, s{sG}, 4")
    a(f"s_lshr_b32 s{sT2}, s{sT1}, 1")
    a(f"s_add_u32 s{sG}, s{sG}, s{sT2}")
    a(f"s_and_b32 s{sJ}, s{sT0}, 3")
    a(f"s_lshl_b32 s{sJ}, s{sJ}, 1")
    a(f"s_and_b32 s{sT3}, s{sT1}, 1")
    a(f"s_add_u32 s{sJ}, s{sJ}, s{sT3}")
    a(f"s_lshl_b32 s{sT3}, s{sJ}, 1")
    a(f"s_add_u32 s{sKK0}, s{sT2}, s{sT3}")
if ENV("NOROT", 0): a(f"s_mov_b32 s{sKK0}, 0")
a(f"s_and_b32 s{sKK0}, s{sKK0}, 15")
a(f"s_lshl_b32 s{sL}, s{sG}, 3")
a(f"s_add_u32 s{sL}, s{sL}, s{sJ}")
a(f"s_add_u32 s{sJY}, s{sJ}, {ENV('JYOFF', 4)}")
a(f"s_and_b32 s{sJY}, s{sJY}, 7")
a(f"s_lshl_b32 s{sW1K}, s{sW}, 10")
a(f"s_lshl_b32 s{sW16K}, s{sW}, 14")
a(f"s_mul_i32 s{sW5K}, s{sW}, 5120")
a(f"s_lshl_b32 s{sMB}, s{sL}, {MB_SH}")
a(f"s_add_u32 s{sMB}, s{sMB}, {MB_OFF}")
a(f"s_lshl_b32 s{sTILE}, s{sG}, 16")
a(f"s_lshl_b32 s{sT1}, s{sJ}, 7")
a(f"s_add_u32 s{sTILE}, s{sTILE}, s{sT1}")
a(f"v_add_u32 v{vS0}, s{sW1K}, v{vFR}")
a(f"v_add_u32 v{vS0}, 1024, v{vS0}")
a(f"v_add_u32 v{vS1}, 40960, v{vS0}")
a(f"v_add_u32 v{vSH}, s{sW5K}, v{vFR}")
a(f"v_lshrrev_b32 v{vT1}, 5, v{vLANE}")
a(f"v_lshlrev_b32 v{vTR}, 10, v{vT1}")
a(f"v_bfe_u32 v{vT0}, v{vLANE}, 2, 3")
a(f"v_lshl_add_u32 v{vTR}, v{vT0}, 7, v{vTR}")
a(f"v_lshrrev_b32 v{vT0}, 1, v{vT0}")
a(f"v_xor_b32 v{vT0}, s{sW}, v{vT0}")
a(f"v_lshl_add_u32 v{vTR}, v{vT0}, 5, v{vTR}")
a(f"v_and_b32 v{vT0}, 3, v{vLANE}")
a(f"v_lshl_add_u32 v{vTR}, v{vT0}, 3, v{vTR}")
a(f"v_lshl_add_u32 v{vTRW0}, v{vT1}, 11, v{vTR}")
a(f"v_add_u32 v{vTRW1}, {WRING + 36864}, v{vTRW0}")
a(f"v_add_u32 v{vTRW0}, {WRING}, v{vTRW0}")
a(f"v_lshrrev_b32 v{vT0}, 2, v{vLANE}")
a(f"v_lshlrev_b32 v{vXD}, 10, v{vT0}")
a(f"v_lshrrev_b32 v{vT1}, 4, v{vLANE}")
a(f"v_and_b32 v{vT1}, 2, v{vT1}")
a(f"v_and_b32 v{vT0}, 3, v{vLANE}")
a(f"v_xor_b32 v{vT0}, v{vT0}, v{vT1}")
a(f"v_lshl_add_u32 v{vXD}, v{vT0}, 4, v{vXD}")
a(f"s_lshl_b32 s{sT0}, s{sG}, 16")
a(f"v_add_u32 v{vXD}, s{sT0}, v{vXD}")
a(f"v_add_u32 v{vXDH}, {-16384 & 0xffffffff}, v{vXD}")
a(f"v_add_u32 v{vXDW}, s{sW16K}, v{vXD}")
a(f"v_bfe_u32 v{vT0}, v{vLANE}, 3, 2")
a(f"v_lshrrev_b32 v{vT1}, 5, v{vLANE}")
a(f"v_lshl_add_u32 v{vT0}, v{vT1}, 3, v{vT0}")
a(f"s_and_b32 s{sT0}, s{sW}, 1")
a(f"s_lshl_b32 s{sT0}, s{sT0}, 4")
a(f"s_lshr_b32 s{sT1}, s{sW}, 1")
a(f"s_lshl_b32 s{sT1}, s{sT1}, 2")
a(f"s_add_u32 s{sT0}, s{sT0}, s{sT1}")
a(f"v_add_u32 v{vT0}, s{sT0}, v{vT0}")
a(f"v_lshrrev_b32 v{vT1}, 4, v{vLANE}")
a(f"v_lshlrev_b32 v{vT1}, 1, v{vT1}")
a(f"v_and_b32 v{vT2}, 7, v{vLANE}")
a(f"v_xor_b32 v{vT1}, v{vT1}, v{vT2}")
a(f"v_lshlrev_b32 v{vT1}, 4, v{vT1}")
a(f"s_lshl_b32 s{sT0}, s{sJ}, 7")
a(f"v_add_u32 v{vT1}, s{sT0}, v{vT1}")
a(f"v_lshl_add_u32 v{vWOD}, v{vT0}, 10, v{vT1}")
a(f"v_mul_u32_u24 v{vWD}, 3072, v{vT0}")
a(f"v_add_u32 v{vWD}, v{vWD}, v{vT1}")
a(f"v_and_b32 v{vT0}, 1, v{vLANE}")
a(f"v_cmp_eq_u32 {PARM}, 1, v{vT0}")
a(f"v_lshl_add_u32 v{vT1}, v{vQ}, 2, v{vT0}")
a(f"v_cmp_le_u32 {MC[0]}, v{vT1}, v{vL15}")
a(f"v_add_u32 v{vT1}, 2, v{vT1}")
a(f"v_cmp_le_u32 {MC[1]}, v{vT1}, v{vL15}")
for i in range(4):
    a(f"v_mov_b32 v{vONE+i}, 0x3f803f80")
a("s_waitcnt lgkmcnt(0)")
P = lambda i: 76 + 2 * i
srd(a, SX, P(0), 2048 * 1024)
srd(a, SWQ, P(1), 512 * 3072)
srd(a, SWO, P(2), 512 * 1024)
srd(a, SK_, P(4), 2048 * 1024)
srd(a, SV_, P(5), 2048 * 1024)
srd(a, SSK, P(6), 4096)
srd(a, SH, P(7), 512 * 4096)
srd(a, SOUT, P(9), 2048 * 1024)
srd(a, SDBG, P(10), 256)
srd(a, SWS, P(11), 1 << 28)
srd(a, SX2, P(11), 2048 * 1024, off=X2_OFF)
a(f"s_lshl_b32 s{sT0}, s{sL}, 2")
a(f"s_load_dword s{sD}, {S2(P(8))}, s{sT0}")
a("s_waitcnt lgkmcnt(0)") if PROF else None
a(f"s_mul_i32 s{sT3}, s{sW}, 3072")
a(f"s_lshl_b32 s{sT4}, s{sW}, 6")

def k_reset(): a(f"s_lshl_b32 s{sXo}, s{sKK0}, 6")
def k_next():
    a(f"s_add_u32 s{sXo}, s{sXo}, 64")
    a(f"s_and_b32 s{sXo}, s{sXo}, 1023")
def kx_next():
    a(f"s_add_u32 s{sXx}, s{sXx}, 64")
    a(f"s_and_b32 s{sXx}, s{sXx}, 1023")
def dma_x_groups(s, srd_):
    sc = " sc1" if srd_ == SX2 else ""
    def g1():
        a(f"s_add_u32 m0, s{sW1K}, {XIMG + (s*5+1)*1024}")
        a(f"buffer_load_dwordx4 v{vXDW}, {S4(srd_)}, s{sXx} offen{sc} lds"); vm.issue(("x", s))
        if s % 4: kx_next()
    def g2():
        a(f"s_add_u32 s{sB0}, s{sXx}, s{sW64}")
        a(f"s_and_b32 s{sB0}, s{sB0}, 1023")
        a(f"s_add_u32 m0, s{sW5K}, {XIMG + s*5*1024}")
        a(f"buffer_load_dwordx4 v{vXDH}, {S4(srd_)}, s{sB0} offen{sc} lds"); vm.issue(("h", s // 4))
        kx_next()
    return [g1, g2] if s % 4 == 0 else [g1]
def dma_w_groups(s):
    def g():
        a(f"s_mul_i32 s{sB1}, s{sXo}, 1536")
        a(f"s_add_u32 m0, s{sW3K}, {WRING + (s % NSLOT)*12288}")
        for p in range(3):
            a(f"buffer_load_dwordx4 v{vWD}, {S4(SWQ)}, s{sB1} offen offset:{1024*p} lds"); vm.issue(("w", s))
    return [g]
def wo_group(i):
    def g():
        a(f"s_lshl_b32 s{sB1}, s{sXo}, 9")
        a(f"s_add_u32 m0, s{sW1K}, {WOIMG + i*4096}")
        a(f"buffer_load_dwordx4 v{vWOD}, {S4(SWO)}, s{sB1} offen lds"); vm.issue("wo")
        k_next()
    return g
def h_group():
    a(f"v_lshlrev_b32 v{vT0}, 4, v{vTID}")
    a(f"s_lshl_b32 s{sB0}, s{sL}, 13")
    for c in range(2):
        if c: a(f"s_add_u32 s{sB0}, s{sB0}, 4096")
        a(f"buffer_load_dwordx4 {V(yH+8*c,4)}, v{vT0}, {S4(SH)}, s{sB0} offen"); vm.issue("h")
        a(f"buffer_load_dword v{yH+8*c+4}, v{vT0}, {S4(SH)}, s{sB0} offen offset:16"); vm.issue("h")
yK, yV, ySK, yA = 144, 164, 172, 188
def y1_loads():
    a.comment("Y1 loads: thread -> c8 = tid&7 (8 channels), rp = tid>>3 (row pair)")
    a(f"v_and_b32 v{vT0}, 7, v{vTID}")
    a(f"v_lshrrev_b32 v{vT1}, 3, v{vTID}")
    a(f"v_lshlrev_b32 v{vT2}, 11, v{vT1}")
    a(f"v_lshl_add_u32 v{vT2}, v{vT0}, 4, v{vT2}")
    a(f"s_lshl_b32 s{sT0}, s{sG}, 16")
    a(f"s_lshl_b32 s{sT1}, s{sJY}, 7")
    a(f"s_add_u32 s{sT0}, s{sT0}, s{sT1}")
    a(f"v_add_u32 v{vT2}, s{sT0}, v{vT2}")
    for i in range(5): a(f"v_add_u32 v{yA+i}, {(i-3)*1024}, v{vT2}")
    a(f"s_lshl_b32 s{sT1}, s{sJY}, 9")
    a(f"v_lshlrev_b32 v{yA+5}, 6, v{vT0}")
    for i in range(5):
        a(f"buffer_load_dwordx4 {V(yK+4*i,4)}, v{yA+i}, {S4(SK_)}, 0 offen"); vm.issue("y1")
    for i in range(2):
        a(f"buffer_load_dwordx4 {V(yV+4*i,4)}, v{yA+3+i}, {S4(SV_)}, 0 offen"); vm.issue("y1")
    for i in range(4):
        a(f"buffer_load_dwordx4 {V(ySK+4*i,4)}, v{yA+5}, {S4(SSK)}, s{sT1} offen offset:{16*i}"); vm.issue("y1")
def y1_compute():
    a.comment("Y1 compute")
    vm.wait("y1")
    R, TP, VVv, K0, K1 = 240, 188, 250, 254, 212
    yO = lambda i: yK + (i >> 1) + 4 * (i & 1)
    for m in range(4):
        for i in range(5):
            a(f"v_lshlrev_b32 v{R+2*i}, 16, v{yK+4*i+m}")
            a(f"v_and_b32 v{R+2*i+1}, 0xffff0000, v{yK+4*i+m}")
        for c in range(2):
            a(f"v_lshlrev_b32 v{TP+0+c}, 16, v{ySK+4*m+2*c}")
            a(f"v_and_b32 v{TP+2+c}, 0xffff0000, v{ySK+4*m+2*c}")
            a(f"v_lshlrev_b32 v{TP+4+c}, 16, v{ySK+4*m+2*c+1}")
            a(f"v_and_b32 v{TP+6+c}, 0xffff0000, v{ySK+4*m+2*c+1}")
        for i in range(2):
            a(f"v_lshlrev_b32 v{VVv+2*i}, 16, v{yV+4*i+m}")
            a(f"v_and_b32 v{VVv+2*i+1}, 0xffff0000, v{yV+4*i+m}")
        for (Kx, r0) in ((K0, 0), (K1, 1)): a(f"v_pk_mul_f32 {V(Kx,2)}, {V(R+2*r0,2)}, {V(TP+6,2)}")
        for d in (1, 2, 3):
            for (Kx, r0) in ((K0, 0), (K1, 1)):
                a(f"v_pk_fma_f32 {V(Kx,2)}, {V(R+2*(r0+d),2)}, {V(TP+6-2*d,2)}, {V(Kx,2)}")
        for Kx in (K0, K1):
            a(f"v_cvt_pk_bf16_f32 v{Kx+1}, v{Kx}, v{Kx+1}")
            a(f"v_lshlrev_b32 v{Kx}, 16, v{Kx+1}")
            a(f"v_and_b32 v{Kx+1}, 0xffff0000, v{Kx+1}")
        a(f"v_pk_mul_f32 {V(K0,2)}, {V(K0,2)}, {V(VVv,2)}")
        a(f"v_pk_mul_f32 {V(K1,2)}, {V(K1,2)}, {V(VVv+2,2)}")
        a(f"v_cvt_pk_bf16_f32 v{yO(2*m)}, v{K1}, v{K0}")
        a(f"v_cvt_pk_bf16_f32 v{yO(2*m+1)}, v{K1+1}, v{K0+1}")
    a(f"v_and_b32 v{vT0}, 7, v{vTID}")
    a(f"v_lshrrev_b32 v{vT1}, 3, v{vTID}")
    a(f"v_sub_u32 v{vT1}, 31, v{vT1}")
    a(f"v_lshlrev_b32 v{vT2}, 2, v{vT0}")
    a(f"v_xor_b32 v{vT1}, v{vT1}, v{vT2}")
    a(f"v_lshlrev_b32 v{vT1}, 2, v{vT1}")
    a(f"v_lshl_add_u32 v{vT1}, v{vT0}, 10, v{vT1}")
    a(f"v_add_u32 v{vT1}, {Y1T}, v{vT1}")
    for i in range(8): a(f"ds_write_b32 v{vT1}, v{yO(i)} offset:{128*i}")
    a(f"v_lshrrev_b32 v{vT0}, 3, v{vTID}")
    a(f"v_and_b32 v{vT1}, 7, v{vTID}")
    a(f"v_lshrrev_b32 v{vT2}, 3, v{vT0}")
    a(f"v_xor_b32 v{TP}, v{vT1}, v{vT2}")
    a(f"v_lshlrev_b32 v{TP}, 4, v{TP}")
    a(f"v_lshl_add_u32 v{TP}, v{vT0}, 7, v{TP}")
    a(f"v_add_u32 v{TP}, {Y1T}, v{TP}")
    a(f"v_xor_b32 v{TP+1}, 64, v{TP}")
    a(f"v_lshlrev_b32 v{TP+2}, 12, v{vT0}")
    a(f"v_lshl_add_u32 v{TP+2}, v{vT1}, 4, v{TP+2}")
    a(f"s_lshl_b32 s{sT0}, s{sJY}, 18")
    a(f"s_lshl_b32 s{sT1}, s{sG}, 7")
    a(f"s_sub_u32 s{sT0}, s{sT0}, s{sT1}")
    a(f"s_add_u32 s{sT0}, s{sT0}, {KVT_OFF + 3968}")
    a(f"s_add_u32 s{sT1}, s{sT0}, {32*4096}")
    a("s_waitcnt lgkmcnt(0)")
    barrier()
    a(f"ds_read_b128 {V(yV,4)}, v{TP}")
    a(f"ds_read_b128 {V(yV+4,4)}, v{TP+1} offset:4096")
    a("s_waitcnt lgkmcnt(0)")
    a(f"buffer_store_dwordx4 {V(yV,4)}, v{TP+2}, {S4(SWS)}, s{sT0} offen sc1"); vm.issue("y1st")
    a(f"buffer_store_dwordx4 {V(yV+4,4)}, v{TP+2}, {S4(SWS)}, s{sT1} offen sc1"); vm.issue("y1st")
    prof("y1done")
def send_id():
    L = a.newlabel("L_id")
    a(f"s_cmp_lg_u32 s{sW}, 0")
    a(f"s_cbranch_scc1 {L}")
    a(f"s_lshl_b32 s{sT0}, s{sG}, 3")
    a(f"v_add_u32 v{vT1}, s{sT0}, v{vLANE}")
    a(f"v_and_b32 v{vT2}, 8, v{vLANE}")
    a(f"v_lshlrev_b32 v{vT0}, 1, v{vT2}")
    a(f"v_sub_u32 v{vT1}, v{vT1}, v{vT0}")
    a(f"v_lshlrev_b32 v{vT1}, {MB_SH}, v{vT1}")
    a(f"v_lshl_add_u32 v{vT1}, v{vT2}, 7, v{vT1}")
    a(f"s_lshl_b32 s{sT0}, s{sJ}, 7")
    a(f"s_add_u32 s{sT0}, s{sT0}, {MB_OFF + MB_ID}")
    a(f"v_add_u32 v{vT1}, s{sT0}, v{vT1}")
    a(f"v_mov_b32 v216, s{sN}")
    a(f"v_mov_b32 v217, s{sN+1}")
    a(f"v_mov_b32 v218, s{sXCC}")
    a(f"v_mov_b32 v219, 0")
    a(f"s_mov_b32 s{sT1}, 0xffff")
    a(f"s_cmp_eq_u32 s{sG}, 0")
    a(f"s_cselect_b32 exec_lo, 0xff, s{sT1}")
    a("s_mov_b32 exec_hi, 0")
    a(f"buffer_store_dwordx4 {V(216,4)}, v{vT1}, {S4(SWS)}, 0 offen sc1")
    a("s_mov_b64 exec, -1")
    a.flush()
    a.label(L)
S1SIG = f"""s_lshl_b32 s{sT0}, s{sJY}, 5
v_add_u32 v{vT1}, s{sT0}, v{vLANE}
v_lshlrev_b32 v{vT1}, {MB_SH}, v{vT1}
s_lshl_b32 s{sT0}, s{sG}, 7
s_add_u32 s{sT0}, s{sT0}, {MB_OFF + MB_S1}
v_add_u32 v{vT1}, s{sT0}, v{vT1}"""
def o_groups(ooff):
    def mk(s):
        def g():
            if s == 0: k_reset()
            a(f"s_add_u32 s{sB1}, s{sXo}, {ooff}")
            a(f"s_add_u32 m0, s{sW1K}, {OIMG + s*4096}")
            a(f"buffer_load_dwordx4 v{vXDW}, {S4(SWS)}, s{sB1} offen{LSC} lds"); vm.issue(("o", s // 4))
            k_next()
        return g
    return [mk(s) for s in range(16)]

a(f"s_mov_b32 s{sW3K}, s{sT3}")
a(f"s_mov_b32 s{sW64}, s{sT4}")
a(f"s_getreg_b32 s{sXCC}, hwreg(HW_REG_XCC_ID)")
a(f"s_and_b32 s{sXCC}, s{sXCC}, 0xff")
a(f"s_mov_b32 s{sLOC}, 0")
a(f"s_mov_b32 s{sLOC2}, 0")
prof("start")
DEPTH = ENV("WDEPTH", 4)
XDEPTH = ENV("XDEPTH", 4)
k_reset()
a(f"s_mov_b32 s{sXx}, s{sXo}")
for s in range(max(DEPTH, XDEPTH)):
    if s < XDEPTH:
        for g in dma_x_groups(s, SX): g()
    if s < DEPTH:
        for g in dma_w_groups(s): g()
        k_next()
if ENV("CODEPF", 1):
    a(f"s_getpc_b64 {S2(sEX)}")
    a.label("L_pc")
    a(f"s_lshr_b32 s{sT0}, s{sB}, 3")
    a(f"s_lshl_b32 s{sT0}, s{sT0}, 2")
    a(f"s_add_u32 s{sT0}, s{sT0}, s{sW}")
    a(f"s_lshl_b32 s{sT0}, s{sT0}, 8")
    a(f"v_and_b32 v{vT0}, 1, v{vLANE}")
    a(f"v_lshl_add_u32 v{vT0}, v{vT0}, 7, s{sT0}")
    a.raw(f"    v_min_u32 v{vT0}, L_end-L_pc, v{vT0}")
    a(f"global_load_dword v216, v{vT0}, {S2(sEX)}"); vm.issue("cpf")
a(f"s_or_b32 s{sT2}, s{sL}, s{sW}")
a(f"s_cmp_lg_u32 s{sT2}, 0")
a("s_cbranch_scc1 L_nonce_done")
a(f"s_memrealtime {S2(sN)}")
a("s_waitcnt lgkmcnt(0)")
a(f"s_or_b32 s{sN+1}, s{sN+1}, 0x80000000")
a(f"s_andn2_b32 s{sN}, s{sN}, 1")
a(f"v_mov_b32 v{vP0}, s{sN}")
a(f"v_mov_b32 v{vP0+1}, s{sN+1}")
a(f"v_mov_b32 v{vT0}, 0")
a("s_mov_b64 exec, 1")
a(f"buffer_store_dwordx2 {V(vP0,2)}, v{vT0}, {S4(SDBG)}, 0 offen sc1")
a("s_mov_b64 exec, -1")
a.flush()
a.label("L_nonce_done")

def x_reads(s, buf):
    out = []
    base, off = (vFR, s*5*1024) if s < 8 else (vA1, (s-8)*5*1024)
    for t in range(5):
        out.append(ldsg(f"ds_read_b128 {V(vXA+20*buf+4*t,4)}, v{base} offset:{XIMG + off + t*1024}", ("xa", s)))
    base, off = (vS0, s*5120) if s < 8 else (vS1, (s-8)*5120)
    out.append(ldsg(f"ds_read_b128 {V(vSO+4*buf,4)}, v{base} offset:{XIMG + off}", ("xa", s)))
    if s % 4 == 3:
        out.append(ldsg(f"ds_read_b128 {V(vSHF,4)}, v{vSH} offset:{XIMG + (s//4)*20480}", ("xa", s)))
    return out

def mfmas(s, buf, with_cs, early=(), spread=()):
    first = (s == 0)
    def C(r): return "0" if first else V(r, 4)
    wq, wk, wv = A(12*s, 4), A(12*s+4, 4), A(12*s+8, 4)
    xa = lambda t: V(vXA + 20*buf + 4*t, 4)
    M = "v_mfma_f32_16x16x32_bf16"
    seq = []
    for t in range(5):
        seq.append(f"{M} {V(vKT+4*t,4)}, {wk}, {xa(t)}, {C(vKT+4*t)}")
        seq.append(f"{M} {V(vVV+4*t,4)}, {xa(t)}, {wv}, {C(vVV+4*t)}")
        if t: seq.append(f"{M} {V(vQT+4*(t-1),4)}, {wq}, {xa(t)}, {C(vQT+4*(t-1))}")
    if with_cs:
        seq.append(f"{M} {V(vCS,4)}, {wq}, {V(vONE,4)}, {C(vCS)}")
        seq.append(f"{M} {V(vCS+4,4)}, {wk}, {V(vONE,4)}, {C(vCS+4)}")
        seq.append(f"{M} {V(vCS+8,4)}, {V(vONE,4)}, {wv}, {C(vCS+8)}")
    so = V(vSO + 4*buf, 4)
    seq.append(f"{M} {V(vST,4)}, {V(vONE,4)}, {so}, {C(vST)}")
    seq.append(f"{M} {V(vST+4,4)}, {so}, {so}, {C(vST+4)}")
    if s % 4 == 3:
        c0 = "0" if s == 3 else None
        seq.append(f"{M} {V(vST+8,4)}, {V(vONE,4)}, {V(vSHF,4)}, {c0 or V(vST+8,4)}")
        seq.append(f"{M} {V(vST+12,4)}, {V(vSHF,4)}, {V(vSHF,4)}, {c0 or V(vST+12,4)}")
    a.weave(seq, list(early), list(spread))

Y1LD, Y1AT, S1AT = ENV("Y1LD", -1), ENV("Y1AT", 5), ENV("S1AT", 11)
if Y1LD < 0: y1_loads()
for s in range(16):
    vm.wait(("x", s), ("w", s), ("h", s // 4))
    if s == S1AT: vm.wait("y1st", "nonce")
    barrier()
    flx = dma_x_groups(s + XDEPTH, SX) if s + XDEPTH < 16 else []
    fl = (dma_w_groups(s + DEPTH) + [k_next]) if s + DEPTH < 16 else []
    if s == 0:
        for g in flx + fl: g()
    if s == 3:
        a(f"v_mov_b32 v{vT0}, 0")
        a(f"buffer_load_dwordx2 {V(vNL,2)}, v{vT0}, {S4(SDBG)}, 0 offen sc1"); vm.issue("nonce")
    if s == S1AT:
        a(f"v_readfirstlane_b32 s{sN}, v{vNL}")
        a(f"v_readfirstlane_b32 s{sN+1}, v{vNL+1}")
        a(f"s_cmp_eq_u32 s{sN+1}, 0")
        a("s_cbranch_scc1 L_s1_defer")
        signal(32, S1SIG)
        send_id()
        a.label("L_s1_defer")
    if s in (11, 12, 13): fl = fl + [wo_group(4*(s-11) + i) for i in range(4)]
    if s == 13: fl.append(h_group)
    if s == 14: fl = [wo_group(12 + i) for i in range(3)]
    fl = flx + fl
    rd = x_reads(s, s & 1)
    for p in range(3):
        for h in range(2):
            off = (s % NSLOT) * 12288 + p * 1024 + h * 6144
            rd.append(ldsg(f"ds_read_b64_tr_b16 {A(12*s+4*p+2*h,2)}, v{vTRW0 if off < 36864 else vTRW1} offset:{off % 36864}", ("xa", s)))
    if s > 0: mfmas(s - 1, (s - 1) & 1, True, rd, fl)
    else:
        for g in rd: g()
    lg.drain()
    if s == Y1LD: y1_loads()
    if s == Y1AT: y1_compute()
barrier()
wo_group(15)()
mfmas(15, 1, True)
prof("p1gemm")
a(f"s_cmp_lg_u32 s{sN+1}, 0")
a("s_cbranch_scc1 L_nonce_ok")
a(f"v_mov_b32 v{vT0}, 0")
a.flush()
a.label("L_nonce_chk")
a(f"buffer_load_dwordx2 {V(vNL,2)}, v{vT0}, {S4(SDBG)}, 0 offen sc1")
a("s_waitcnt vmcnt(0)")
a(f"v_readfirstlane_b32 s{sN}, v{vNL}")
a(f"v_readfirstlane_b32 s{sN+1}, v{vNL+1}")
a(f"s_cmp_eq_u32 s{sN+1}, 0")
a("s_cbranch_scc1 L_nonce_chk")
signal(32, S1SIG)
send_id()
a.label("L_nonce_ok")

vQb, vKb, vVb, vU = 160, 168, 178, 188
def ab_addr():
    a(f"s_mul_i32 s{sT0}, s{sW}, 640")
    a(f"s_add_u32 s{sT0}, s{sT0}, {ABW}")
    a(f"v_lshl_add_u32 v{vT0}, v{vLANE}, 2, s{sT0}")
    a(f"v_lshl_add_u32 v{vT1}, v{vL15}, 2, s{sT0}")
    a(f"v_lshl_add_u32 v{vT2}, v{vQ}, 4, s{sT0}")
def ab_write(T):
    ln_math([(T, T+1, T+10, T+11, T+12, T+13), (T+2, T+3, T+14, T+15, T+16, T+17)])
    a(f"ds_write2_b32 v{vT0}, v{T+10}, v{T+11} offset0:16 offset1:96")
    a(f"ds_write2_b32 v{vT1}, v{T+14}, v{T+15} offset0:0 offset1:80")
def stats_p1():
    T = 84
    prof("a0_begin")
    a(f"v_lshlrev_b32 v{vT0}, 3, v{vL15}")
    a(f"s_lshl_b32 s{sT0}, s{sW}, 7")
    a(f"v_add_u32 v{vT0}, s{sT0}, v{vT0}")
    a(f"v_add_u32 v{vT0}, {MISC}, v{vT0}")
    for i, m in ((1, 0x22222222), (2, 0x44444444), (3, 0x88888888)):
        a(f"s_mov_b32 s{sEX}, {hex(m)}")
        a(f"s_mov_b32 s{sEX+1}, {hex(m)}")
        for base in (vST, vST + 8):
            a(f"v_cndmask_b32 v{base+1}, v{base+4 if i == 1 else base+1}, v{base+4+i}, {S2(sEX)}")
    e = a.bg_pause()
    a("s_mov_b32 exec_lo, 0x00f0000f")
    a("s_mov_b32 exec_hi, 0xf0000f00")
    a(f"ds_write_b64 v{vT0}, {V(vST,2)}")
    a(f"ds_write_b64 v{vT0}, {V(vST+8,2)} offset:512")
    a("s_mov_b64 exec, -1")
    a.bg_resume(e)
    a(f"v_lshlrev_b32 v{vT0}, 3, v{vLANE}")
    a(f"v_add_u32 v{vT0}, {MISC}, v{vT0}")
    a(f"v_lshlrev_b32 v{vT1}, 3, v{vL15}")
    a(f"v_add_u32 v{vT1}, {MISC}, v{vT1}")
    a("s_waitcnt lgkmcnt(0)")
    barrier()
    a(f"ds_read_b64 {V(T,2)}, v{vT0}")
    for i in range(4):
        a(f"ds_read_b64 {V(T+2+2*i,2)}, v{vT1} offset:{512 + 128*i}")
    ab_addr()
    a("s_waitcnt lgkmcnt(0)")
    a(f"v_pk_add_f32 {V(T+2,2)}, {V(T+2,2)}, {V(T+4,2)}")
    a(f"v_pk_add_f32 {V(T+6,2)}, {V(T+6,2)}, {V(T+8,2)}")
    a(f"v_pk_add_f32 {V(T+2,2)}, {V(T+2,2)}, {V(T+6,2)}")
    ab_write(T)

def attn_core(name, kvt, qt, after_pv=None):
    ab_addr()
    a("s_waitcnt lgkmcnt(0)")
    vAB, vAV = 84, 94
    for t in kvt:
        a(f"ds_read2_b32 {V(vAB+2*t,2)}, v{vT1} offset0:{16*t} offset1:{80+16*t}")
    for t in kvt:
        a(f"ds_read_b128 {V(vAV+8*t,4)}, v{vT2} offset:{64*t}")
        a(f"ds_read_b128 {V(vAV+8*t+4,4)}, v{vT2} offset:{320+64*t}")
    a(f"s_waitcnt lgkmcnt({2*len(kvt)})")
    def norm_qk(acc, cs, t, dst):
        ab = V(vAB + 2*t, 2)
        for h in range(2):
            a(f"v_pk_mul_f32 {V(vU+2*h,2)}, {V(cs+2*h,2)}, {ab} op_sel:[0,1] op_sel_hi:[1,1]")
            a(f"v_pk_fma_f32 {V(vU+2*h,2)}, {V(acc+2*h,2)}, {ab}, {V(vU+2*h,2)} op_sel:[0,0,0] op_sel_hi:[1,0,1]")
        for h in range(2):
            a(f"v_cvt_pk_bf16_f32 v{dst+h}, v{vU+2*h}, v{vU+2*h+1}")
    for t in kvt:
        norm_qk(vKT + 4*t, vCS + 4, t, vKb + 2*t)
        if t in qt: norm_qk(vQT + 4*(t-1), vCS, t, vQb + 2*(t-1))
    n = len(qt)
    vSc, vSp = 16, 32
    for u, t in enumerate(qt):
        a(f"v_mfma_f32_16x16x16_bf16 {V(vSc+4*u,4)}, {V(vKb+2*t,2)}, {V(vQb+2*(t-1),2)}, 0")
        a(f"v_mfma_f32_16x16x16_bf16 {V(vSp+4*u,4)}, {V(vKb+2*(t-1),2)}, {V(vQb+2*(t-1),2)}, 0")
    a("s_waitcnt lgkmcnt(0)")
    for t in kvt:
        for h in range(2):
            a(f"v_pk_mul_f32 {V(vU+4+2*h,2)}, {V(vAV+8*t+4+2*h,2)}, {V(vCS+8,2)} op_sel:[0,0] op_sel_hi:[1,0]")
            a(f"v_pk_fma_f32 {V(vU+4+2*h,2)}, {V(vVV+4*t+2*h,2)}, {V(vAV+8*t+2*h,2)}, {V(vU+4+2*h,2)}")
        for h in range(2):
            a(f"v_cvt_pk_bf16_f32 v{vVb+2*t+h}, v{vU+4+2*h}, v{vU+4+2*h+1}")
    prof(f"{name}_norm")
    if 1 in qt:
        e = a.bg_pause()
        Ln = a.newlabel("L_nomask")
        a(f"s_cmp_lg_u32 s{sG}, 0")
        a(f"s_cbranch_scc1 {Ln}")
        a.flush()
        for i in range(4): a(f"v_mov_b32 v{vSp+i}, 0xf149f2ca")
        a.flush()
        a.label(Ln)
        a.bg_resume(e)
    vLg, vMx, vTm = 48, 56, 60
    R = range(n)
    for t in R:
        for i in range(2):
            a(f"v_cndmask_b32 v{vSc+4*t+2*i}, v{vSc+4*t+2*i}, v{vSc+4*t+2*i+1}, {PARM}")
            a(f"v_cndmask_b32 v{vSp+4*t+2*i}, v{vSp+4*t+2*i}, v{vSp+4*t+2*i+1}, {PARM}")
            a(f"v_cndmask_b32 v{vLg+2*t+i}, v{vSp+4*t+2*i}, v{vSc+4*t+2*i}, {MC[i]}")
        a(f"v_cvt_pk_bf16_f32 v{vLg+2*t+1}, v{vLg+2*t}, v{vLg+2*t+1}")
        a(f"v_lshlrev_b32 v{vLg+2*t}, 16, v{vLg+2*t+1}")
        a(f"v_and_b32 v{vLg+2*t+1}, 0xffff0000, v{vLg+2*t+1}")
        a(f"v_max_f32 v{vMx+t}, v{vLg+2*t}, v{vLg+2*t+1}")
    allreduce("v_max_f32", [vMx+t for t in R], [vTm+t for t in R])
    a(f"s_mov_b32 s{sT0}, 0x3eb8aa3b")
    for t in R:
        for i in range(2): a(f"v_sub_f32 v{vLg+2*t+i}, v{vLg+2*t+i}, v{vMx+t}")
    for t in R:
        for i in range(2): a(f"v_mul_f32 v{vLg+2*t+i}, s{sT0}, v{vLg+2*t+i}")
    for t in R:
        for i in range(2): a(f"v_exp_f32 v{vLg+2*t+i}, v{vLg+2*t+i}")
    for t in R: a(f"v_add_f32 v{vMx+t}, v{vLg+2*t}, v{vLg+2*t+1}")
    allreduce("v_add_f32", [vMx+t for t in R], [vTm+t for t in R])
    vPc, vPp = 16, 24
    for t in R: a(f"v_rcp_f32 v{vMx+t}, v{vMx+t}")
    for t in R:
        a(f"v_cndmask_b32 v{vTm}, v{vMx+t}, 0, {PARM}")
        a(f"v_cndmask_b32 v{vTm+1}, 0, v{vMx+t}, {PARM}")
        for i in range(2):
            a(f"v_mul_f32 v{vTm+2}, v{vLg+2*t+i}, v{vTm}")
            a(f"v_mul_f32 v{vTm+3}, v{vLg+2*t+i}, v{vTm+1}")
            a(f"v_cvt_pk_bf16_f32 v{vTm+2}, v{vTm+2}, v{vTm+3}")
            a(f"v_cndmask_b32 v{vPc+2*t+i}, 0, v{vTm+2}, {MC[i]}")
            a(f"v_cndmask_b32 v{vPp+2*t+i}, v{vTm+2}, 0, {MC[i]}")
    vO = 32
    for u, t in enumerate(qt):
        a(f"v_mfma_f32_16x16x16_bf16 {V(vO+4*u,4)}, {V(vVb+2*t,2)}, {V(vPc+2*u,2)}, 0")
    for u, t in enumerate(qt):
        a(f"v_mfma_f32_16x16x16_bf16 {V(vO+4*u,4)}, {V(vVb+2*(t-1),2)}, {V(vPp+2*u,2)}, {V(vO+4*u,4)}")
    prof(f"{name}_pv")
    a.bg_flush()
    if after_pv: after_pv()
    for t in R:
        a(f"v_cvt_pk_bf16_f32 v{48+2*t}, v{vO+4*t}, v{vO+4*t+1}")
        a(f"v_cvt_pk_bf16_f32 v{48+2*t+1}, v{vO+4*t+2}, v{vO+4*t+3}")

def id_load():
    a(f"s_add_u32 s{sB0}, s{sMB}, {MB_ID}")
    a(f"buffer_load_dwordx4 {V(208,4)}, v{vL128}, {S4(SWS)}, s{sB0} offen sc1"); vm.issue("idl")
def id_eval():
    vm.wait("idl")
    a(f"v_cmp_eq_u64 vcc, {S2(sN)}, {V(208,2)}")
    a(f"v_cmp_eq_u32 {S2(sEX)}, s{sXCC}, v210")
    a(f"s_and_b32 s{sT0}, vcc_lo, s{sEX}")
    a(f"s_and_b32 s{sT1}, s{sT0}, 0xff")
    a(f"s_cmp_eq_u32 s{sT1}, 0xff")
    a(f"s_cselect_b32 s{sLOC}, 1, 0")
    a(f"s_cmp_eq_u32 s{sG}, 31")
    a(f"s_cselect_b32 s{sT1}, 0xff00, 0")
    a(f"s_or_b32 s{sT0}, s{sT0}, s{sT1}")
    a(f"s_and_b32 s{sT0}, s{sT0}, 0xffff")
    a(f"s_cmp_eq_u32 s{sT0}, 0xffff")
    a(f"s_cselect_b32 s{sLOC2}, 1, 0")
def kvt_fetch():
    id_eval()
    async_check(32, MB_S1, "s1")
    a(f"s_lshl_b32 s{sT0}, s{sL}, 13")
    a(f"s_lshl_b32 s{sT1}, s{sW}, 11")
    a(f"s_add_u32 s{sT0}, s{sT0}, s{sT1}")
    a(f"s_add_u32 s{sT0}, s{sT0}, {KVT_OFF}")
    a(f"s_lshr_b32 s{sT2}, s{sW}, 1")
    a(f"s_mul_i32 s{sT2}, s{sT2}, {URP - 4096}")
    a(f"s_add_u32 s{sT2}, s{sT2}, s{sT1}")
    a(f"s_add_u32 m0, s{sT2}, {UR}")
    a(f"buffer_load_dwordx4 v{vA0}, {S4(SWS)}, s{sT0} offen sc1 lds")
    a(f"buffer_load_dwordx4 v{vA0}, {S4(SWS)}, s{sT0} offen offset:1024 sc1 lds")

def attention0():
    stats_p1()
    attn_core("a0", [0, 1, 2, 3, 4], [1, 2, 3, 4], kvt_fetch)
    tile_to_lds(48, 56, OT=OT1)
    a(f"s_add_u32 s{sT0}, s{sTILE}, {O1_OFF}")
    a(f"s_add_u32 s{sT1}, s{sT0}, 32768")
    st2([f"buffer_store_dwordx4 {V(56,4)}, v{vT0}, {S4(SWS)}, s{sT0} offen", f"buffer_store_dwordx4 {V(60,4)}, v{vT0}, {S4(SWS)}, s{sT1} offen"], sLOC)
    prof("a0_done")

def pretouch():
    a(f"s_lshl_b32 s{sB0}, s{sW}, 11")
    a(f"s_add_u32 s{sB0}, s{sB0}, s{sMB}")
    a(f"s_add_u32 s{sB0}, s{sB0}, {MB_ST}")
    a(f"v_lshlrev_b32 v217, 7, v{vL15}")
    a(f"buffer_load_dword v216, v217, {S4(SWS)}, s{sB0} offen sc1"); vm.issue("pt")

nopg = lambda: a("s_nop 0")
a.bg_start(([pretouch] if ENV("PRETOUCH", 2) else []) + [nopg] * 14 + [id_load, async_poll(MB_S1)], ENV("BGEVERY", 8))
attention0()
if STAGE <= 1: a("s_branch L_end")

vm.wait("h")
a(f"v_mov_b32 v160, 0\nv_mov_b32 v161, 0\nv_mov_b32 v162, 0\nv_mov_b32 v163, 0")
a(f"s_mov_b32 exec_lo, -1\ns_mov_b32 exec_hi, 0")
a(f"v_add_u32 v{vT2}, {UR + 4096}, v{vA0}")
a(f"ds_write_b128 v{vT2}, {V(160,4)}")
a(f"ds_write_b128 v{vT2}, {V(160,4)} offset:{URP}")
a(f"s_mov_b64 exec, 3")
a(f"v_add_u32 v{vT2}, {HC}, v{vA0}")
a(f"ds_write_b128 v{vT2}, {V(160,4)}")
a(f"ds_write_b128 v{vT2}, {V(160,4)} offset:{2*HCP}")
a(f"s_mov_b64 exec, 1")
a(f"ds_write_b128 v{vT2}, {V(160,4)} offset:{HCP}")
a(f"ds_write_b128 v{vT2}, {V(160,4)} offset:{3*HCP}")
a(f"s_mov_b64 exec, -1")
a(f"v_lshlrev_b32 v{vT0}, 4, v{vTID}")
a(f"v_add_u32 v{vT0}, {HC + 32}, v{vT0}")
a(f"v_cmp_eq_u32 vcc, 255, v{vTID}")
for c in range(2):
    b = yH + 8*c
    a(f"v_cndmask_b32 v{b+4}, v{b+4}, 0, vcc")
    a(f"ds_write_b128 v{vT0}, {V(b,4)} offset:{2*c*HCP}")
    for i in range(4): a(f"v_alignbit_b32 v{164+4*c+i}, v{b+i+1}, v{b+i}, 16")
    a(f"ds_write_b128 v{vT0}, {V(164+4*c,4)} offset:{(2*c+1)*HCP}")
a(f"v_cmp_eq_u32 vcc, 0, v{vTID}")
a(f"s_and_saveexec_b64 {S2(sEX)}, vcc")
a(f"v_mov_b32 v{vT2}, {HC}")
a(f"v_lshlrev_b32 v163, 16, v{yH}")
a(f"ds_write_b128 v{vT2}, {V(160,4)} offset:{HCP + 16}")
a(f"v_mov_b32 v172, 0\nv_mov_b32 v173, 0\nv_mov_b32 v174, 0")
a(f"v_lshlrev_b32 v175, 16, v{yH+8}")
a(f"ds_write_b128 v{vT2}, {V(172,4)} offset:{3*HCP + 16}")
a(f"s_mov_b64 exec, {S2(sEX)}")
yF, yG, yAcc, yFA, yGA = 16, 48, 84, 116, 120
a(f"v_add_u32 v{vT0}, 1, v{vL15}")
a(f"v_and_b32 v{vT0}, 30, v{vT0}")
a(f"v_lshlrev_b32 v{vT0}, 1, v{vT0}")
a(f"v_lshlrev_b32 v{vT1}, 4, v{vQ}")
a(f"v_sub_u32 v{vT0}, v{vT0}, v{vT1}")
a(f"v_mov_b32 v{vT1}, {HCP}")
a(f"v_cndmask_b32 v{vT1}, v{vT1}, 0, {PARM}")
a(f"v_add_u32 v{vT0}, v{vT0}, v{vT1}")
a(f"s_lshr_b32 s{sT0}, s{sW}, 1")
a(f"s_mul_i32 s{sT1}, s{sT0}, {2*HCP}")
a(f"s_and_b32 s{sT2}, s{sW}, 1")
a(f"s_lshl_b32 s{sT2}, s{sT2}, 8")
a(f"s_sub_u32 s{sT1}, s{sT1}, s{sT2}")
for ap in range(4):
    a(f"s_add_u32 s{sT3}, s{sT1}, {HC + 4080 - 512*(2*ap+1) - 192}")
    a(f"v_add_u32 v{yFA+ap}, s{sT3}, v{vT0}")
a(f"v_lshlrev_b32 v{vT0}, 5, v{vL15}")
a(f"v_lshl_add_u32 v{vT0}, v{vQ}, 4, v{vT0}")
a(f"s_mul_i32 s{sT1}, s{sT0}, {URP}")
a(f"s_sub_u32 s{sT1}, s{sT1}, s{sT2}")
a(f"s_add_u32 s{sT1}, s{sT1}, {UR + 8144 - 512*14 - 192}")
a(f"v_sub_u32 v{yGA}, s{sT1}, v{vT0}")
a("s_waitcnt vmcnt(0) lgkmcnt(0)")
barrier()
signal(8, group_sig(MB_S2), True)
prof("y2start")
vm.reset()
vRA = 122
def res_loads():
    a(f"v_lshlrev_b32 v{vRA}, 10, v{vL15}")
    a(f"v_lshl_add_u32 v{vRA}, v{vQ}, 3, v{vRA}")
    a(f"s_lshl_b32 s{sB1}, s{sW}, 5")
    a(f"s_add_u32 s{sB1}, s{sB1}, s{sTILE}")
    for t in range(4):
        if t: a(f"s_add_u32 s{sB1}, s{sB1}, 16384")
        a(f"buffer_load_dwordx2 {V(vX2+2*t,2)}, v{vRA}, {S4(SX)}, s{sB1} offen"); vm.issue("res")
YB = [(16, 48), (144, 176)]
def y2_reads(rr):
    F, G = YB[rr & 1]
    out = []
    for aa in range(8):
        ap, hi = aa // 2, aa % 2
        off = ((1 - hi) * 512 + (3 - rr) * 64) // 4
        out.append(ldsg(f"ds_read2_b32 {V(F+4*aa,2)}, v{yFA+ap} offset0:{off} offset1:{off+1}", ("y", rr)))
        out.append(ldsg(f"ds_read2_b32 {V(F+4*aa+2,2)}, v{yFA+ap} offset0:{off+2} offset1:{off+3}", ("y", rr)))
    for bb in range(8):
        out.append(ldsg(f"ds_read_b128 {V(G+4*bb,4)}, v{yGA} offset:{(7-bb)*512 + (3-rr)*64}", ("y", rr)))
    return out
def wo_reads(lo, hi):
    return [ldsg(f"ds_read_b64_tr_b16 {A(192+4*s+2*h,2)}, v{vTR} offset:{WOIMG + s*4096 + h*2048}", "wot")
            for s in range(lo, hi) for h in range(2)]
lg.reset()
for g in y2_reads(0): g()
OG = o_groups(O1_OFF)
for rr in range(4):
    a("s_waitcnt lgkmcnt(0)"); lg.reset()
    F, G = YB[rr & 1]
    seq = []; started = set()
    for bb in range(8):
        for aa in range(8):
            c = 7 + bb - aa
            if 0 <= c <= 7:
                first = (rr == 0 and c not in started); started.add(c)
                seq.append(f"v_mfma_f32_16x16x32_bf16 {V(yAcc+4*c,4)}, {V(F+4*aa,4)}, {V(G+4*bb,4)}, {'0' if first else V(yAcc+4*c,4)}")
    nop = lambda: a("s_nop 0")
    sp = {0: [res_loads], 1: [], 2: [id_load], 3: [async_poll(MB_S2)] + [nop] * 4}[rr]
    early = (y2_reads(rr + 1) + wo_reads(3*rr, 3*rr+3)) if rr < 3 else wo_reads(9, 16)
    a.weave(seq, early, sp)
prof("y2mfma")
sRDY = 53
id_eval()
vm.wait("apoll")
set_exec(8)
a(f"v_cmp_ne_u64 vcc, {S2(sN)}, {V(vPL,2)}")
a("s_mov_b64 exec, -1")
a(f"s_or_b32 s{sRDY}, vcc_lo, vcc_hi")
def guarded(g):
    units = a.record([g])
    lines = [it for u in units for it in u]
    def f():
        L = a.newlabel("L_g")
        a.rec.append(("l", f"s_cmp_lg_u32 s{sRDY}, 0"))
        a.rec.append(("x", f"s_cbranch_scc1 {L}"))
        for it in lines:
            a.rec.append(("x", it[1]) if it[0] == "l" else it)
        a.rec.append(("lab", L))
    return f
a("s_waitcnt lgkmcnt(0)")
barrier()
a(f"s_lshl_b32 s{sT0}, s{sW}, 12")
a(f"s_add_u32 s{sT0}, s{sT0}, {ACCX}")
a(f"v_add_u32 v{vT0}, s{sT0}, v{vA0}")
a(f"s_xor_b32 s{sT1}, s{sW}, 1")
a(f"s_lshl_b32 s{sT1}, s{sT1}, 12")
a(f"s_add_u32 s{sT1}, s{sT1}, {ACCX}")
a(f"v_add_u32 v{vT1}, s{sT1}, v{vA0}")
a(f"s_and_b32 s{sT2}, s{sW}, 1")
a(f"s_cmp_eq_u32 s{sT2}, 0")
a("s_cbranch_scc1 L_y2_even")
a.flush()
for i in range(4):
    a(f"ds_write_b128 v{vT0}, {V(yAcc+8*i,4)} offset:{1024*i}")
    for r in range(4): a(f"v_mov_b32 v{yF+4*i+r}, v{yAcc+8*i+4+r}")
a("s_branch L_y2_x")
a.label("L_y2_even")
a.flush()
for i in range(4):
    a(f"ds_write_b128 v{vT0}, {V(yAcc+8*i+4,4)} offset:{1024*i}")
    for r in range(4): a(f"v_mov_b32 v{yF+4*i+r}, v{yAcc+8*i+r}")
a.label("L_y2_x")
a.bg_start([guarded(g) for g in OG], 6)
a(f"v_lshlrev_b32 v{vT0}, 5, v{vL15}")
a(f"v_lshl_add_u32 v{vT0}, v{vQ}, 3, v{vT0}")
a(f"s_lshr_b32 s{sT0}, s{sW}, 1")
a(f"s_mul_i32 s{sT1}, s{sT0}, {URP}")
a(f"s_lshl_b32 s{sT3}, s{sT2}, 9")
a(f"s_sub_u32 s{sT1}, s{sT1}, s{sT3}")
a(f"s_add_u32 s{sT1}, s{sT1}, {UR + 4088 - 3*1024}")
a(f"v_sub_u32 v{vT2}, s{sT1}, v{vT0}")
for i in range(4): a(f"ds_read_b64 {V(64+2*i,2)}, v{vT2} offset:{(3-i)*1024}")
a(f"s_lshl_b32 s{sT1}, s{sD}, 16")
a(f"s_and_b32 s{sT3}, s{sD}, 0xffff0000")
a(f"s_cmp_eq_u32 s{sT0}, 0")
a(f"s_cselect_b32 s{sT1}, s{sT1}, s{sT3}")
a(f"s_lshl_b32 s{sT3}, s{sL}, 1")
a(f"s_add_u32 s{sT3}, s{sT3}, s{sT0}")
a(f"s_lshl_b32 s{sT3}, s{sT3}, 12")
a(f"s_lshl_b32 s{sT4}, s{sT2}, 9")
a(f"s_add_u32 s{sT3}, s{sT3}, s{sT4}")
a(f"s_add_u32 s{sT3}, s{sT3}, {YT_OFF}")
a("s_waitcnt lgkmcnt(0)")
barrier()
for i in range(4): a(f"ds_read_b128 {V(yG+4*i,4)}, v{vT1} offset:{1024*i}")
for i in range(4):
    k0, u = 64 + 2*i, 144 + 4*i
    a(f"v_and_b32 v{u}, 0xffff0000, v{k0+1}")
    a(f"v_lshlrev_b32 v{u+1}, 16, v{k0+1}")
    a(f"v_and_b32 v{u+2}, 0xffff0000, v{k0}")
    a(f"v_lshlrev_b32 v{u+3}, 16, v{k0}")
    for r in range(4): a(f"v_mul_f32 v{u+r}, s{sT1}, v{u+r}")
    a(f"v_cvt_pk_bf16_f32 v{u}, v{u}, v{u+1}")
    a(f"v_cvt_pk_bf16_f32 v{u+2}, v{u+2}, v{u+3}")
    a(f"v_and_b32 v{u+1}, 0xffff0000, v{u}")
    a(f"v_lshlrev_b32 v{u}, 16, v{u}")
    a(f"v_and_b32 v{u+3}, 0xffff0000, v{u+2}")
    a(f"v_lshlrev_b32 v{u+2}, 16, v{u+2}")
a("s_waitcnt lgkmcnt(0)")
a.bg_flush()
for i in range(4):
    y, u = yF + 4*i, 144 + 4*i
    a(f"v_pk_add_f32 {V(y,2)}, {V(y,2)}, {V(yG+4*i,2)}")
    a(f"v_pk_add_f32 {V(y+2,2)}, {V(y+2,2)}, {V(yG+4*i+2,2)}")
    a(f"v_cvt_pk_bf16_f32 v{y}, v{y}, v{y+1}")
    a(f"v_cvt_pk_bf16_f32 v{y+2}, v{y+2}, v{y+3}")
    a(f"v_and_b32 v{y+1}, 0xffff0000, v{y}")
    a(f"v_lshlrev_b32 v{y}, 16, v{y}")
    a(f"v_and_b32 v{y+3}, 0xffff0000, v{y+2}")
    a(f"v_lshlrev_b32 v{y+2}, 16, v{y+2}")
    a(f"v_pk_add_f32 {V(y,2)}, {V(y,2)}, {V(u,2)}")
    a(f"v_pk_add_f32 {V(y+2,2)}, {V(y+2,2)}, {V(u+2,2)}")
    a(f"v_cvt_pk_bf16_f32 v{y}, v{y}, v{y+1}")
    a(f"v_cvt_pk_bf16_f32 v{y+1}, v{y+2}, v{y+3}")
    a(f"buffer_store_dwordx2 {V(y,2)}, v{vT0}, {S4(SWS)}, s{sT3} offen offset:{1024*i} sc1"); vm.issue("yst")
S3SIG = f"""s_lshr_b32 s{sT0}, s{sL}, 5
v_lshl_add_u32 v{vT1}, v{vLANE}, 3, s{sT0}
v_lshlrev_b32 v{vT1}, {MB_SH}, v{vT1}
s_and_b32 s{sT0}, s{sL}, 31
s_lshl_b32 s{sT0}, s{sT0}, 7
s_add_u32 s{sT0}, s{sT0}, {MB_OFF + MB_S3}
v_add_u32 v{vT1}, s{sT0}, v{vT1}"""
a(f"s_cmp_eq_u32 s{sRDY}, 0")
a("s_cbranch_scc1 L_o1_ok")
q_ = list(vm.q)
poll(8, MB_S2, "o1")
for g in o_groups(O1_OFF): g()
a("s_waitcnt vmcnt(0)")
vm.q = q_
a.flush()
a.label("L_o1_ok")
prof("y2")
if STAGE <= 2:
    vm.drain()
    a("s_branch L_end")

vOB, vPA, vSt, vW = 121, 16, 72, 84
CB = MISC + 4096
MF = "v_mfma_f32_16x16x32_bf16"

def op_gemm(tiles, pre):
    OFB = [32, 48, 144]
    items = [(s, t) for s in range(16) for t in tiles]
    units = [items[i:i+4] for i in range(0, len(items), 4)]
    def rd(u):
        return [ldsg(f"ds_read_b128 {V(OFB[u%3]+4*k,4)}, v{vOB} offset:{s*4096 + t*1024}", ("of", u)) for k, (s, t) in enumerate(units[u])]
    for u in range(len(units)):
        if u in pre: pre[u]()
        if u == 0:
            for g in rd(0) + rd(1): g()
        lg.wait(("of", u))
        nxt = rd(u + 2) if u + 2 < len(units) else []
        seq = [f"{MF} {V(vPA+4*t,4)}, {A(192+4*s,4)}, {V(OFB[u%3]+4*k,4)}, {'0' if s == 0 else V(vPA+4*t,4)}" for k, (s, t) in enumerate(units[u])]
        a.weave(seq, nxt, [])

def sums(c, dst):
    a(f"v_pk_add_f32 {V(vW,2)}, {V(c,2)}, {V(c+2,2)}")
    a(f"v_pk_mul_f32 {V(vW+2,2)}, {V(c,2)}, {V(c,2)}")
    a(f"v_pk_fma_f32 {V(vW+2,2)}, {V(c+2,2)}, {V(c+2,2)}, {V(vW+2,2)}")
    a(f"v_add_f32 v{dst}, v{vW}, v{vW+1}")
    a(f"v_add_f32 v{dst+1}, v{vW+2}, v{vW+3}")

def unpack(src, dst):
    a(f"v_lshlrev_b32 v{dst}, 16, v{src}")
    a(f"v_and_b32 v{dst+1}, 0xffff0000, v{src}")
    a(f"v_lshlrev_b32 v{dst+2}, 16, v{src+1}")
    a(f"v_and_b32 v{dst+3}, 0xffff0000, v{src+1}")

def ps_write(tiles, base):
    a(f"v_lshlrev_b32 v{vT2}, 9, v{vQ}")
    a(f"v_lshl_add_u32 v{vT2}, v{vL15}, 3, v{vT2}")
    a(f"s_lshl_b32 s{sT0}, s{sW}, 11")
    a(f"s_add_u32 s{sT0}, s{sT0}, {base}")
    a(f"v_add_u32 v{vT2}, s{sT0}, v{vT2}")
    for t in tiles: a(f"ds_write_b64 v{vT2}, {V(vSt+2*t,2)} offset:{128*t}")

def x1_stats(tiles, base):
    for t in tiles:
        c = vPA + 4*t
        a(f"v_cvt_pk_bf16_f32 v{c}, v{c}, v{c+1}")
        a(f"v_cvt_pk_bf16_f32 v{c+2}, v{c+2}, v{c+3}")
        a(f"v_and_b32 v{c+1}, 0xffff0000, v{c}")
        a(f"v_lshlrev_b32 v{c}, 16, v{c}")
        a(f"v_and_b32 v{c+3}, 0xffff0000, v{c+2}")
        a(f"v_lshlrev_b32 v{c+2}, 16, v{c+2}")
        unpack(vX2 + 2*t, vW)
        a(f"v_pk_add_f32 {V(c,2)}, {V(c,2)}, {V(vW,2)}")
        a(f"v_pk_add_f32 {V(c+2,2)}, {V(c+2,2)}, {V(vW+2,2)}")
        a(f"v_cvt_pk_bf16_f32 v64, v{c}, v{c+1}")
        a(f"v_cvt_pk_bf16_f32 v65, v{c+2}, v{c+3}")
        unpack(64, c)
        sums(c, vSt + 2*t)
    ps_write(tiles, base)

def tree(b, n):
    while n > 1:
        n //= 2
        for i in range(n): a(f"v_pk_add_f32 {V(b+2*i,2)}, {V(b+2*i,2)}, {V(b+2*(i+n),2)}")

def reduce16(base, R):
    a(f"v_lshlrev_b32 v{vT2}, 3, v{vLANE}")
    a(f"v_add_u32 v{vT2}, {base}, v{vT2}")
    for i in range(8): a(f"ds_read_b64 {V(R+2*i,2)}, v{vT2} offset:{512*i}")
    a("s_waitcnt lgkmcnt(0)")
    for i in range(8): a(f"ds_read_b64 {V(R+16+2*i,2)}, v{vT2} offset:{512*(8+i)}")
    tree(R, 8)
    a("s_waitcnt lgkmcnt(0)")
    tree(R + 16, 8)
    a(f"v_pk_add_f32 {V(R,2)}, {V(R,2)}, {V(R+16,2)}")
    a(f"v_mov_b32 v{R+2}, s{sN}")
    a(f"v_mov_b32 v{R+3}, s{sN+1}")

def peer_base(dst, mboff, slot_sh, nextgrp=False):
    a(f"s_lshl_b32 s{dst}, s{sG}, 3")
    a(f"s_lshl_b32 s{sT3}, s{sW}, 1")
    a(f"s_add_u32 s{dst}, s{dst}, s{sT3}")
    a(f"s_lshl_b32 s{dst}, s{dst}, {MB_SH}")
    a(f"s_lshl_b32 s{sT3}, s{sJ}, {slot_sh}")
    a(f"s_add_u32 s{dst}, s{dst}, s{sT3}")
    a(f"s_add_u32 s{dst}, s{dst}, {MB_OFF + mboff + (8 * MB_SZ if nextgrp else 0)}")

def gate(tiles, AB):
    for t in tiles:
        ab = V(AB(t), 2)
        x, y, u = vPA + 4*t, 32 + 8*t, 36 + 8*t
        unpack(vYY + 2*t, y)
        for h in range(2):
            a(f"v_pk_fma_f32 {V(u+2*h,2)}, {V(x+2*h,2)}, {ab}, {ab} op_sel:[0,0,1] op_sel_hi:[1,0,1]")
            a(f"v_pk_fma_f32 {V(u+2*h,2)}, {V(u+2*h,2)}, {V(y+2*h,2)}, {V(x+2*h,2)}")
        a(f"v_cvt_pk_bf16_f32 v{vX2+2*t}, v{u}, v{u+1}")
        a(f"v_cvt_pk_bf16_f32 v{vX2+2*t+1}, v{u+2}, v{u+3}")

lg.reset()
a(f"v_add_u32 v{vOB}, {OIMG}, v{vFR}")
def pre0():
    vm.wait(("o", 3)); barrier()
def pre10():
    vm.wait("yst"); barrier(); signal(32, S3SIG)
op_gemm([0, 1, 2, 3], {0: pre0, 10: pre10})
prof("p0_gemm")
x1_stats([0, 1, 2, 3], PS)
a("s_waitcnt lgkmcnt(0)")
barrier()
prof("p0_ps")
peer_base(sT0, MB_ST, 10)
a(f"s_add_u32 s{sT1}, s{sT0}, {MB_SZ}")
reduce16(PS, vW)
st2([f"buffer_store_dwordx4 {V(vW,4)}, v{vA0}, {S4(SWS)}, s{sT0} offen", f"buffer_store_dwordx4 {V(vW,4)}, v{vA0}, {S4(SWS)}, s{sT1} offen"], sLOC)
prof("p0_pub")
a(f"s_add_u32 s{sT0}, s{sMB}, {MB_ST}")
a(f"s_lshl_b32 s{sT1}, s{sW}, 11")
a(f"s_add_u32 s{sT0}, s{sT0}, s{sT1}")
a.flush()
a("s_branch L_pst0b")
a.label("L_pst0a")
a("s_sleep 1")
a.label("L_pst0b")
for i in range(2):
    a(f"buffer_load_dwordx4 {V(vW+4*i,4)}, v{vA0}, {S4(SWS)}, s{sT0} offen offset:{1024*i} sc1")
a("s_waitcnt vmcnt(0)")
a(f"v_cmp_ne_u64 vcc, {S2(sN)}, {V(vW+2,2)}")
a(f"v_cmp_ne_u64 {S2(sEX)}, {S2(sN)}, {V(vW+6,2)}")
a(f"s_or_b64 vcc, vcc, {S2(sEX)}")
a("s_cbranch_vccnz L_pst0a")
a(f"v_pk_add_f32 {V(vW,2)}, {V(vW,2)}, {V(vW+4,2)}")
a(f"s_lshl_b32 s{sT1}, s{sW}, 9")
a(f"s_add_u32 s{sT1}, s{sT1}, {CB}")
a(f"v_lshl_add_u32 v{vT1}, v{vLANE}, 3, s{sT1}")
a(f"ds_write_b64 v{vT1}, {V(vW,2)}")
poll(32, MB_S3, "s3")
prof("p0_s3")
a(f"v_lshrrev_b32 v{vT0}, 3, v{vLANE}")
a(f"v_lshlrev_b32 v{vT0}, 12, v{vT0}")
a(f"v_and_b32 v{vT1}, 7, v{vLANE}")
a(f"v_lshl_add_u32 v{vT0}, v{vT1}, 4, v{vT0}")
a(f"s_lshl_b32 s{sT0}, s{sJ}, 18")
a(f"s_lshl_b32 s{sT1}, s{sG}, 7")
a(f"s_add_u32 s{sT0}, s{sT0}, s{sT1}")
a(f"s_lshl_b32 s{sT1}, s{sW}, 16")
a(f"s_add_u32 s{sT0}, s{sT0}, s{sT1}")
a(f"s_add_u32 s{sT0}, s{sT0}, {YT_OFF}")
a(f"s_lshl_b32 s{sT1}, s{sW}, 11")
a(f"s_add_u32 m0, s{sT1}, {YTT}")
a(f"buffer_load_dwordx4 v{vT0}, {S4(SWS)}, s{sT0} offen sc1 lds")
a(f"s_add_u32 s{sT0}, s{sT0}, 32768")
a(f"s_add_u32 m0, s{sT1}, {YTT + 1024}")
a(f"buffer_load_dwordx4 v{vT0}, {S4(SWS)}, s{sT0} offen sc1 lds")
a(f"v_lshlrev_b32 v{vT1}, 3, v{vL15}")
a(f"v_add_u32 v{vT1}, {CB}, v{vT1}")
a("s_waitcnt lgkmcnt(0)")
barrier()
prof("p0_stats")
for t in range(4):
    for i in range(4): a(f"ds_read_b64 {V(vW+8*t+2*i,2)}, v{vT1} offset:{512*i + 128*t}")
a("s_waitcnt lgkmcnt(0)")
for t in range(4): tree(vW + 8*t, 4)
ln_math([(vW+8*t, vW+8*t+1, vW+8*t+2, vW+8*t+3, vW+8*t+4, vW+8*t+5) for t in range(4)])
a(f"v_lshrrev_b32 v{vT1}, 2, v{vLANE}")
a(f"v_lshlrev_b32 v{vT1}, 7, v{vT1}")
a(f"v_and_b32 v{vT2}, 3, v{vLANE}")
a(f"v_lshl_add_u32 v{vT1}, v{vT2}, 3, v{vT1}")
a(f"s_lshl_b32 s{sT0}, s{sW}, 11")
a(f"s_add_u32 s{sT0}, s{sT0}, {YTT}")
a(f"v_add_u32 v{vT1}, s{sT0}, v{vT1}")
a("s_waitcnt vmcnt(0)")
for t in range(4): a(f"ds_read_b64_tr_b16 {V(vYY+2*t,2)}, v{vT1} offset:{32*t}")
a("s_waitcnt lgkmcnt(0)")
gate([0, 1, 2, 3], lambda t: vW + 8*t + 2)
def x2_stats():
    for t in range(4):
        unpack(vX2 + 2*t, 32 + 4*t)
        sums(32 + 4*t, vSt + 2*t)
    ps_write([0, 1, 2, 3], YTT)
tile_to_lds(vX2, 144, 4, x2_stats)
prof("p0_epi")
a(f"s_add_u32 s{sT1}, s{sTILE}, 32768")
st2([f"buffer_store_dwordx4 {V(144,4)}, v{vT0}, {S4(SX2)}, s{sTILE} offen"], sLOC)
st2([f"buffer_store_dwordx4 {V(148,4)}, v{vT0}, {S4(SX2)}, s{sT1} offen"], sLOC2)
reduce16(YTT, vW)
peer_base(sT0, MB_XS, 9)
a(f"s_add_u32 s{sT1}, s{sT0}, {MB_SZ}")
peer_base(sT2, MB_XH - 384, 7, True)
a(f"s_add_u32 s{sT4}, s{sT2}, {MB_SZ}")
a(f"v_lshlrev_b32 v{vT0}, 3, v{vLANE}")
st2([f"buffer_store_dwordx2 {V(vW,2)}, v{vT0}, {S4(SWS)}, s{sT0} offen", f"buffer_store_dwordx2 {V(vW,2)}, v{vT0}, {S4(SWS)}, s{sT1} offen"], sLOC)
a("s_mov_b32 exec_lo, 0\ns_mov_b32 exec_hi, 0xffff0000")
st2([f"buffer_store_dwordx2 {V(vW,2)}, v{vT0}, {S4(SWS)}, s{sT2} offen", f"buffer_store_dwordx2 {V(vW,2)}, v{vT0}, {S4(SWS)}, s{sT4} offen"], sLOC2)
a("s_mov_b64 exec, -1")
vXT = [vXDH, vXD, 196, 197, 198]
for t in (2, 3, 4): a(f"v_add_u32 v{vXT[t]}, {16384*(t-1)}, v{vXD}")
vm.drain()
barrier()
signal(16, group_sig(MB_S5, 16), True)
prof("p0_done")
if STAGE <= 3:
    vm.drain()
    a("s_branch L_end")

a(f"s_mov_b32 s{sT1}, 0xffff")
a(f"s_cmp_eq_u32 s{sG}, 0")
a(f"s_cselect_b32 exec_lo, 0xff, s{sT1}")
a(f"s_cselect_b32 s{sT2}, 0, -1")
a("s_mov_b32 exec_hi, 0")
poll(16, MB_S5, "x2", exec_set=True)
a(f"s_xor_b32 s{sN}, s{sN}, 1")
prof("p3_wait")
vm.reset(); lg.reset()
def dma3(tiles, i, tag):
    def g():
        a(f"s_add_u32 s{sB0}, s{sKK0}, s{sW}")
        if i: a(f"s_add_u32 s{sB0}, s{sB0}, {4*i}")
        a(f"s_and_b32 s{sB0}, s{sB0}, 15")
        a(f"s_lshl_b32 s{sB0}, s{sB0}, 6")
        for t in tiles:
            a(f"s_add_u32 m0, s{sW5K}, {XIMG + (20*i + t)*1024}")
            a(f"buffer_load_dwordx4 v{vXT[t]}, {S4(SX2)}, s{sB0} offen{LSC} lds"); vm.issue((tag, i))
    return g
TA, TB = [0, 1, 2], [3, 4]
for i in range(2): dma3(TA, i, "xA")()
a(f"v_lshlrev_b32 v{vT0}, 3, v{vLANE}")
a(f"s_lshl_b32 s{sT1}, s{sW}, 10")
a(f"s_add_u32 s{sT0}, s{sMB}, s{sT1}")
a(f"s_add_u32 s{sT0}, s{sT0}, {MB_XS}")
a(f"s_lshl_b32 s{sT1}, s{sW}, 8")
a(f"s_add_u32 s{sT1}, s{sT1}, s{sMB}")
a(f"s_add_u32 s{sT1}, s{sT1}, {MB_XH}")
for i in range(2):
    a(f"buffer_load_dwordx2 {V(144+2*i,2)}, v{vT0}, {S4(SWS)}, s{sT0} offen offset:{512*i} sc1"); vm.issue("xs")
a(f"buffer_load_dwordx2 {V(148,2)}, v{vT0}, {S4(SWS)}, s{sT1} offen sc1"); vm.issue("xs")
def xs_partial():
    vm.wait("xs")
    a(f"v_add_f32 v144, v144, v146")
    a(f"v_add_f32 v145, v145, v147")
    a(f"v_and_b32 v148, s{sT2}, v148")
    a(f"v_and_b32 v149, s{sT2}, v149")
    a(f"v_mov_b32 v150, v148")
    a(f"v_mov_b32 v151, v149")
    a(f"v_permlane16_swap_b32 v148, v150")
    a(f"v_permlane16_swap_b32 v149, v151")
    a(f"v_add_f32 v148, v148, v150")
    a(f"v_add_f32 v149, v149, v151")
    a(f"s_mul_i32 s{sT1}, s{sW}, 640")
    a(f"s_add_u32 s{sT1}, s{sT1}, {CB}")
    a(f"v_lshl_add_u32 v{vT1}, v{vLANE}, 3, s{sT1}")
    a(f"ds_write_b64 v{vT1}, {V(144,2)} offset:128")
    a("s_mov_b32 exec_lo, 0xffff\ns_mov_b32 exec_hi, 0")
    a(f"ds_write_b64 v{vT1}, {V(148,2)}")
    a("s_mov_b64 exec, -1")
    a("s_waitcnt lgkmcnt(0)"); lg.reset()

def qkv_pass(tiles, qt, pre, fill):
    n = len(tiles)
    B = lambda s: vXA + 4 * n * (s % 3)
    def rd(s):
        base, off = (vFR, s*5*1024) if s < 8 else (vA1, (s-8)*5*1024)
        return [ldsg(f"ds_read_b128 {V(B(s)+4*u,4)}, v{base} offset:{XIMG + off + t*1024}", ("xa", s)) for u, t in enumerate(tiles)]
    restarts = sorted(k for k, v in pre.items() if v[1])
    issued = set()
    can = lambda a_, b_: not any(a_ < r <= b_ for r in restarts)
    for s in range(16):
        if s in pre: pre[s][0]()
        if s in restarts:
            for d in range(2):
                for g in rd(s + d): g()
                issued.add(s + d)
        lg.wait(("xa", s))
        nxt = []
        if s + 2 < 16 and (s + 2) not in issued and can(s, s + 2):
            nxt = rd(s + 2); issued.add(s + 2)
        C = lambda r: "0" if s == 0 else V(r, 4)
        wq, wk, wv = A(12*s, 4), A(12*s+4, 4), A(12*s+8, 4)
        seq = []
        for u, t in enumerate(tiles):
            xa = V(B(s) + 4*u, 4)
            seq.append(f"{MF} {V(vKT+4*t,4)}, {wk}, {xa}, {C(vKT+4*t)}")
            seq.append(f"{MF} {V(vVV+4*t,4)}, {xa}, {wv}, {C(vVV+4*t)}")
            if t in qt: seq.append(f"{MF} {V(vQT+4*(t-1),4)}, {wq}, {xa}, {C(vQT+4*(t-1))}")
        a.weave(seq, nxt, fill.get(s, []))

def wb(tag):
    def f():
        prof(f"pre_{tag[0]}{tag[1]}")
        vm.wait(tag); barrier()
        prof(f"wb_{tag[0]}{tag[1]}")
    return f
def wb12():
    prof("pre_xs"); xs_partial(); vm.wait(("xA", 3)); barrier(); prof("wb_xA3")
preA = {0: (wb(("xA", 0)), True), 2: (wb(("xA", 1)), False), 6: (wb(("xA", 2)), False), 10: (wb12, False)}
fillA = {0: [dma3(TA, 2, "xA")], 2: [dma3(TA, 3, "xA")]}
for i in range(4): fillA[4 + 2*i] = [dma3(TB, i, "xB")]
qkv_pass(TA, [1, 2], preA, fillA)
prof("p3_gemmA")
a(f"v_lshlrev_b32 v{vT0}, 3, v{vLANE}")
a(f"v_add_u32 v{vT0}, {CB}, v{vT0}")
a(f"v_lshlrev_b32 v{vT1}, 3, v{vL15}")
a(f"v_add_u32 v{vT1}, {CB}, v{vT1}")
for i in range(4): a(f"ds_read_b64 {V(144+2*i,2)}, v{vT0} offset:{640*i + 128}")
for i in range(4): a(f"ds_read_b64 {V(152+2*i,2)}, v{vT1} offset:{640*i}")
ab_addr()
a("s_waitcnt lgkmcnt(0)")
tree(144, 4); tree(152, 4)
a(f"v_mov_b32 v146, v152\nv_mov_b32 v147, v153")
ab_write(144)
a("s_waitcnt lgkmcnt(0)")
attn_core("a1A", TA, [1, 2])
def o_store(h):
    tile_to_lds(48, 56, 2)
    a(f"s_add_u32 s{sT0}, s{sTILE}, {O3_OFF + 32768*h}")
    st2([f"buffer_store_dwordx4 {V(56,4)}, v{vT0}, {S4(SWS)}, s{sT0} offen"], sLOC, [("ost", h)])
vm.wait(("xB", 3))
o_store(0)
prof("a1A_done")
def sigA():
    vm.wait(("ost", 0)); barrier(); signal(8, group_sig(MB_S6A), True)
qkv_pass(TB, [3, 4], {0: (lambda: None, True), 9: (sigA, False)}, {})
prof("p3_gemmB")
vOD = 199
def oh_groups(h):
    def mk(i):
        def g():
            if i == 0:
                a(f"s_and_b32 s{sB0}, s{sW}, 1")
                a(f"s_lshl_b32 s{sB1}, s{sB0}, 14")
                a(f"s_add_u32 s{sB1}, s{sB1}, {32768*h}")
                a(f"v_add_u32 v{vOD+h}, s{sB1}, v{vXD}")
                a(f"s_lshr_b32 s{sB1}, s{sW}, 1")
                a(f"s_add_u32 s{sXo}, s{sKK0}, s{sB1}")
                a(f"s_lshl_b32 s{sXo}, s{sXo}, 6")
                a(f"s_and_b32 s{sXo}, s{sXo}, 1023")
                a(f"s_lshl_b32 s{sB1}, s{sB1}, 12")
                a(f"s_lshl_b32 s{sB0}, s{sB0}, 10")
                a(f"s_add_u32 s{sB0}, s{sB0}, s{sB1}")
            a(f"s_add_u32 s{sB1}, s{sXo}, {O3_OFF}")
            a(f"s_add_u32 m0, s{sB0}, {OIMG + 8192*i + 2048*h}")
            a(f"buffer_load_dwordx4 v{vOD+h}, {S4(SWS)}, s{sB1} offen{LSC} lds"); vm.issue(("o", h))
            a(f"s_add_u32 s{sXo}, s{sXo}, 128")
            a(f"s_and_b32 s{sXo}, s{sXo}, 1023")
        return g
    return [mk(i) for i in range(8)]
a.bg_start([async_poll(MB_S6A)], 60)
def fetch_o0():
    async_check(8, MB_S6A, "o3a")
    for g in oh_groups(0): g()
attn_core("a1B", TB, [3, 4], fetch_o0)
o_store(1)
prof("a1B_done")

PS1 = HC
def publish_half(h):
    a(f"v_and_b32 v{vT2}, 31, v{vLANE}")
    a(f"v_lshlrev_b32 v{vT2}, 3, v{vT2}")
    a(f"v_lshrrev_b32 v{vT1}, 5, v{vLANE}")
    a(f"v_lshl_add_u32 v{vT0}, v{vT1}, 12, v{vT2}")
    a(f"v_add_u32 v{vT0}, {PS1 + 256*h}, v{vT0}")
    for i in range(8): a(f"ds_read_b64 {V(vW+2*i,2)}, v{vT0} offset:{512*i}")
    peer_base(sT0, MB_ST + 512*h, 10)
    a(f"v_lshlrev_b32 v{vT2}, 1, v{vT2}")
    a(f"v_lshl_add_u32 v{vT2}, v{vT1}, {MB_SH}, v{vT2}")
    a("s_waitcnt lgkmcnt(0)")
    tree(vW, 8)
    a(f"v_mov_b32 v{vW+2}, v{vW}")
    a(f"v_mov_b32 v{vW+3}, v{vW+1}")
    a(f"v_permlane32_swap_b32 v{vW}, v{vW+2}")
    a(f"v_permlane32_swap_b32 v{vW+1}, v{vW+3}")
    a(f"v_pk_add_f32 {V(vW,2)}, {V(vW,2)}, {V(vW+2,2)}")
    a(f"v_mov_b32 v{vW+2}, s{sN}")
    a(f"v_mov_b32 v{vW+3}, s{sN+1}")
    st2([f"buffer_store_dwordx4 {V(vW,4)}, v{vT2}, {S4(SWS)}, s{sT0} offen"], sLOC)
def poll_half(h):
    a(f"v_and_b32 v{vT2}, 31, v{vLANE}")
    a(f"v_lshlrev_b32 v{vT2}, 4, v{vT2}")
    a(f"v_lshrrev_b32 v{vT1}, 5, v{vLANE}")
    a(f"v_lshl_add_u32 v{vT1}, v{vT1}, 10, v{vT2}")
    a(f"s_lshl_b32 s{sT1}, s{sW}, 11")
    a(f"s_add_u32 s{sT0}, s{sMB}, s{sT1}")
    a(f"s_add_u32 s{sT0}, s{sT0}, {MB_ST + 512*h}")
    L0, L1 = a.newlabel("L_ph"), a.newlabel("L_ph")
    a.flush()
    a(f"s_branch {L1}")
    a.label(L0)
    a("s_sleep 1")
    a.label(L1)
    a(f"buffer_load_dwordx4 {V(vW,4)}, v{vT1}, {S4(SWS)}, s{sT0} offen sc1")
    a("s_waitcnt vmcnt(0)")
    a(f"v_cmp_ne_u64 vcc, {S2(sN)}, {V(vW+2,2)}")
    a(f"s_cbranch_vccnz {L0}")
    vm.reset()
    a(f"v_mov_b32 v{vW+2}, v{vW}")
    a(f"v_mov_b32 v{vW+3}, v{vW+1}")
    a(f"v_permlane32_swap_b32 v{vW}, v{vW+2}")
    a(f"v_permlane32_swap_b32 v{vW+1}, v{vW+3}")
    a(f"v_pk_add_f32 {V(vW,2)}, {V(vW,2)}, {V(vW+2,2)}")
    a(f"s_lshl_b32 s{sT1}, s{sW}, 8")
    a(f"s_add_u32 s{sT1}, s{sT1}, {CB + 1024*h}")
    a(f"v_lshrrev_b32 v{vT2}, 1, v{vT2}")
    a(f"v_add_u32 v{vT2}, s{sT1}, v{vT2}")
    a(f"ds_write_b64 v{vT2}, {V(vW,2)}")
    a("s_waitcnt lgkmcnt(0)")
    barrier()
def finish_half(h):
    T = [2*h, 2*h + 1]
    a(f"v_lshlrev_b32 v{vT1}, 3, v{vL15}")
    a(f"v_add_u32 v{vT1}, {CB + 1024*h}, v{vT1}")
    for u in range(2):
        for i in range(4): a(f"ds_read_b64 {V(vW+8*u+2*i,2)}, v{vT1} offset:{256*i + 128*u}")
    a("s_waitcnt lgkmcnt(0)")
    for u in range(2): tree(vW + 8*u, 4)
    ln_math([(vW+8*u, vW+8*u+1, vW+8*u+2, vW+8*u+3, vW+8*u+4, vW+8*u+5) for u in range(2)])
    gate(T, lambda t: vW + 8*(t - 2*h) + 2)
    tile_to_lds(vX2 + 4*h, 144, 2)
    a(f"s_add_u32 s{sT1}, s{sTILE}, {32768*h}")
    a(f"buffer_store_dwordx4 {V(144,4)}, v{vT0}, {S4(SOUT)}, s{sT1} offen")

lg.reset()
a(f"v_add_u32 v{vOB}, {OIMG}, v{vFR}")
def pre40():
    vm.wait(("o", 0), ("ost", 1)); barrier(); signal(8, group_sig(MB_S6B), True)
op_gemm([0, 1], {0: pre40})
prof("p4_gemm0")
x1_stats([0, 1], PS1)
a("s_waitcnt lgkmcnt(0)")
barrier()
publish_half(0)
prof("p4_pub0")
poll(8, MB_S6B, "o3b")
prof("p4_owait")
for g in oh_groups(1): g()
poll_half(0)
prof("p4_st0")
lg.reset()
op_gemm([2, 3], {})
x1_stats([2, 3], PS1)
a("s_waitcnt lgkmcnt(0)")
barrier()
publish_half(1)
prof("p4_pub1")
finish_half(0)
prof("p4_fin0")
poll_half(1)
prof("p4_st1")
finish_half(1)
prof("final")
a.label("L_end")
a("s_endpgm")
a.raw('.section .rodata,"a"')
a.raw(kernel_desc(NAME, 512, 102, 256))
out = sys.argv[1] if len(sys.argv) > 1 else "interleave_layers__sliding_local_dilated__ssm_conv_h3__prompt.s"
open(out, "w").write(a.text())
print("wrote", out, "lines", len(a.lines), "pad states", a.npad)
```

```python
import sys, os
sys.path.insert(0, os.path.dirname(os.path.abspath(__file__)))
from asmlib import *

NAME = "interleave_layers__sliding_local_dilated__ssm_conv_h3__prompt_kernel"
STAGE = int(os.environ.get("STAGE", "9"))
PROF = int(os.environ.get("PROF", "0"))
ENV = lambda k, d: int(os.environ.get(k, str(d)))

KVT_OFF = 0
YT_OFF = KVT_OFF
O1_OFF = 4 << 20
PLD = int(os.environ.get("PLD", "0"))
LSC = "" if PLD else " sc1"
X2_OFF = (6 << 20) if PLD else O1_OFF
O3_OFF = 8 << 20
MB_OFF = 16 << 20
MB_SH = 15
MB_SZ = 1 << MB_SH
MB_F = 24576
MB_S1, MB_S3, MB_ID = 64, 16, 96
MB_S2, MB_S5, MB_S6A, MB_S6B = MB_F, MB_F + 16, MB_F + 32, MB_F + 48
MB_XS = 12288
MB_XH = 20480
MB_ST = 4096
PROF_OFF = 32 << 20

XIMG = 0
WRING = 81920
NSLOT = 6
WOIMG = 0
UR, URP = 65536, 4608
HC, HCP = 74752, 4160
ACCX = HC
YTT = HC
PS = HC + 8192
OT0 = PS
OT1 = 155648
MISC = 91392
ABW = MISC + 1024
OIMG = 98304
Y1T = 155648

sB, sW, sG, sJ, sKK0, sJY = 2, 3, 4, 5, 6, 7
SX, SWQ, SWO, SK_, SV_, SH, SOUT, SDBG, SWS, SX2, SSK = 8, 12, 16, 20, 24, 28, 32, 36, 40, 44, 48
sD = 52
sPAR, sMC0, sMC1 = 54, 56, 58
sL = 60
sT0, sT1, sT2, sT3, sT4 = 61, 62, 63, 64, 75
sW1K, sW16K, sW5K, sMB = 65, 66, 67, 68
sTILE = 69
sEX = 72
sN = 78
sXo, sW3K, sW64, sXx = 80, 81, 82, 83
sL0 = 84
sTP = 86
sLOC, sLOC2, sXCC = 74, 76, 77
sB0, sB1 = 70, 71
sPT = 92

def S4(n): return f"s[{n}:{n+3}]"
def S2(n): return f"s[{n}:{n+1}]"
def V(n, k=1): return f"v{n}" if k == 1 else f"v[{n}:{n+k-1}]"
def A(n, k=1): return f"a{n}" if k == 1 else f"a[{n}:{n+k-1}]"

vTID, vLANE, vL15, vQ = 0, 1, 2, 3
vA0, vA1, vS0, vS1, vSH, vTR, vXD, vXDH, vWD = 4, 5, 6, 7, 8, 9, 10, 11, 12
vT0, vT1, vT2 = 13, 14, 15
vQT, vKT, vVV = 16, 32, 52
vXA = 84
vSO = 124
vSHF = 132
vONE = 136
vXDW, vF2, vL128, vD2 = 140, 141, 142, 143
yH = 144
vST = 196
vPL = 214
vNL = 220
vP0 = 222
vCS = 224
vTRW0, vTRW1, vWOD, vFR = 236, 237, 238, 239
vX2, vYY = 240, 248

a = Asm()
vm = Cnt(a, "vmcnt", 63)
lg = Cnt(a, "lgkmcnt", 15)
prof_idx = [0]
PARM, MC = S2(sPAR), [S2(sMC0), S2(sMC1)]

DBGTAGS = ["start", "y1done", "p1gemm", "a0_done", "y2", "p0_pub", "p0_stats", "p0_done", "p3_wait", "p3_gemm", "a1_done", "p1_gemm", "final"]
def prof_dbg(tag):
    if tag not in DBGTAGS: return
    e = a.bg_pause()
    i = DBGTAGS.index(tag)
    L = a.newlabel("L_pd")
    a(f"s_cmp_lg_u32 s{sL}, 37")
    a(f"s_cbranch_scc1 {L}")
    a(f"s_memtime {S2(sPT)}")
    if tag in ("start", "final"): a(f"s_memrealtime {S2(sPT+2)}")
    a("s_waitcnt lgkmcnt(0)")
    if tag == "start":
        a(f"s_mov_b32 s100, s{sPT}")
        a(f"s_mov_b32 s101, s{sPT+2}")
    a(f"s_sub_u32 s{sPT}, s{sPT}, s100")
    a(f"v_mov_b32 v218, s{sPT}")
    a(f"v_mov_b32 v219, {12 + 4*i}")
    a(f"v_cmp_eq_u32 {S2(sPT+6)}, 0, v{vTID}")
    a(f"s_and_saveexec_b64 {S2(sPT+4)}, {S2(sPT+6)}")
    a(f"buffer_store_dword v218, v219, {S4(SDBG)}, 0 offen")
    if tag == "final":
        a(f"s_sub_u32 s{sPT+2}, s{sPT+2}, s101")
        a(f"v_mov_b32 v218, s{sPT+2}")
        a(f"v_mov_b32 v219, 8")
        a(f"buffer_store_dword v218, v219, {S4(SDBG)}, 0 offen")
    a(f"s_mov_b64 exec, {S2(sPT+4)}")
    a.flush()
    a.label(L)
    a("s_waitcnt lgkmcnt(0)")
    lg.reset()
    a.bg_resume(e)

def prof(tag):
    if not PROF: return
    if PROF == 2: return prof_dbg(tag)
    e = a.bg_pause()
    i = prof_idx[0]; prof_idx[0] += 1
    a(f"s_memrealtime {S2(sPT)}" if PROF == 3 else f"s_memtime {S2(sPT)}")
    a("s_waitcnt lgkmcnt(0)")
    lg.reset()
    a(f"v_mov_b32 v218, s{sPT}")
    a(f"s_lshl_b32 s{sPT+2}, s{sL}, 9")
    a(f"s_add_u32 s{sPT+2}, s{sPT+2}, {PROF_OFF + 4*i}")
    a(f"v_mov_b32 v219, 0")
    a(f"v_cmp_eq_u32 {S2(sPT+6)}, 0, v{vTID}")
    a(f"s_and_saveexec_b64 {S2(sPT+4)}, {S2(sPT+6)}")
    a(f"buffer_store_dword v218, v219, {S4(SWS)}, s{sPT+2} offen")
    a(f"s_mov_b64 exec, {S2(sPT+4)}")
    vm.issue("prof")
    a.bg_resume(e)

def set_exec(n):
    a(f"s_mov_b32 exec_lo, {hex((1 << min(n,32)) - 1)}")
    a(f"s_mov_b32 exec_hi, {hex((1 << (n-32)) - 1) if n > 32 else 0}")

def barrier(): a("s_barrier")

FAST = ENV("FAST", 1)
def st2(lines, loc, tags=()):
    e = a.bg_pause()
    if not FAST:
        for l in lines: a(l + " sc1")
    else:
        Lp, Le = a.newlabel("L_sp"), a.newlabel("L_se")
        a(f"s_cmp_lg_u32 s{loc}, 0")
        a(f"s_cbranch_scc1 {Lp}")
        for l in lines: a(l + " sc1")
        a(f"s_branch {Le}")
        a.label(Lp)
        for l in lines: a(l)
        a.label(Le)
    for t in tags: vm.issue(t)
    a.bg_resume(e)

def poll(n, mboff, name, exec_set=False):
    L = a.newlabel("L_poll_" + name)
    if not exec_set: set_exec(n)
    a(f"s_add_u32 s{sT0}, s{sMB}, {mboff}")
    a.flush()
    a.label(L)
    a(f"buffer_load_dwordx2 {V(vP0,2)}, v{vL128}, {S4(SWS)}, s{sT0} offen sc1")
    a("s_waitcnt vmcnt(0)")
    a(f"v_cmp_ne_u64 vcc, {S2(sN)}, {V(vP0,2)}")
    a(f"s_cbranch_vccnz {L}")
    a("s_mov_b64 exec, -1")
    vm.reset()

def async_poll(mboff):
    def g():
        a(f"s_add_u32 s{sB0}, s{sMB}, {mboff}")
        a(f"buffer_load_dwordx2 {V(vPL,2)}, v{vL128}, {S4(SWS)}, s{sB0} offen sc1"); vm.issue("apoll")
    return g

def async_check(n, mboff, name):
    L = a.newlabel("L_achk")
    vm.wait("apoll")
    set_exec(n)
    a(f"v_cmp_ne_u64 vcc, {S2(sN)}, {V(vPL,2)}")
    a("s_mov_b64 exec, -1")
    a(f"s_cbranch_vccz {L}")
    q = list(vm.q)
    poll(n, mboff, name)
    vm.q = q
    a.flush()
    a.label(L)

def signal(n, addr_code, loc=None):
    L = a.newlabel("L_sig")
    a(f"s_cmp_lg_u32 s{sW}, 0")
    a(f"s_cbranch_scc1 {L}")
    a(addr_code)
    a(f"v_mov_b32 v{vP0}, s{sN}")
    a(f"v_mov_b32 v{vP0+1}, s{sN+1}")
    ln = f"buffer_store_dwordx2 {V(vP0,2)}, v{vT1}, {S4(SWS)}, 0 offen"
    if loc is None:
        set_exec(n)
        a(ln + " sc1")
    else:
        set_exec(8)
        st2([ln], sLOC)
        if n > 8:
            a("s_mov_b32 exec_lo, 0xff00")
            st2([ln], sLOC2)
    a("s_mov_b64 exec, -1")
    a.flush()
    a.label(L)

def group_sig(mboff, n=8):
    extra = f"v_and_b32 v{vT2}, 8, v{vLANE}\nv_lshl_add_u32 v{vT1}, v{vT2}, 7, v{vT1}\n" if n > 8 else ""
    return f"""s_lshl_b32 s{sT0}, s{sG}, 3
v_add_u32 v{vT1}, s{sT0}, v{vLANE}
v_lshlrev_b32 v{vT1}, {MB_SH}, v{vT1}
{extra}s_lshl_b32 s{sT0}, s{sJ}, 7
s_add_u32 s{sT0}, s{sT0}, {MB_OFF + mboff}
v_add_u32 v{vT1}, s{sT0}, v{vT1}"""

def allreduce(op, regs, tmps):
    for sw in ("v_permlane16_swap_b32", "v_permlane32_swap_b32"):
        for r, t in zip(regs, tmps): a(f"v_mov_b32 v{t}, v{r}")
        for r, t in zip(regs, tmps): a(f"{sw} v{r}, v{t}")
        for r, t in zip(regs, tmps): a(f"{op} v{r}, v{r}, v{t}")

def ln_math(sets):
    steps = [
        "v_mul_f32 v{t0}, 0x3b000000, v{S}", "v_mul_f32 v{t1}, 0x3b000000, v{SS}",
        "v_fma_f32 v{t1}, -v{t0}, v{t0}, v{t1}", "v_max_f32 v{t1}, 0, v{t1}",
        "v_cvt_pk_bf16_f32 v{t0}, v{t0}, v{t1}", "v_and_b32 v{t1}, 0xffff0000, v{t0}",
        "v_lshlrev_b32 v{t0}, 16, v{t0}", "v_add_f32 v{t1}, 0x3727c5ac, v{t1}",
        "v_cvt_pk_bf16_f32 v{t1}, v{t1}, v{t1}", "v_lshlrev_b32 v{t1}, 16, v{t1}",
        "v_sqrt_f32 v{t1}, v{t1}", "v_cvt_pk_bf16_f32 v{t1}, v{t1}, v{t1}",
        "v_lshlrev_b32 v{t1}, 16, v{t1}", "v_rcp_f32 v{A}, v{t1}",
        "v_mul_f32 v{B}, -v{t0}, v{A}"]
    for st in steps:
        for (S, SS, A_, B_, t0, t1) in sets:
            a(st.format(S=S, SS=SS, A=A_, B=B_, t0=t0, t1=t1))

def ldsg(line, tag):
    def g(): a(line); lg.issue(tag)
    return g
def vmg(line, tag):
    def g(): a(line); vm.issue(tag)
    return g

def tile_to_lds(src, tmp, nt=4, mid=None, OT=OT0):
    a(f"v_lshrrev_b32 v{vT0}, 1, v{vQ}")
    a(f"s_lshl_b32 s{sT0}, s{sW}, 1")
    a(f"v_add_u32 v{vT0}, s{sT0}, v{vT0}")
    a(f"v_and_b32 v{vT1}, 7, v{vL15}")
    a(f"v_xor_b32 v{vT0}, v{vT0}, v{vT1}")
    a(f"v_lshlrev_b32 v{vT0}, 4, v{vT0}")
    a(f"v_lshl_add_u32 v{vT0}, v{vL15}, 7, v{vT0}")
    a(f"v_and_b32 v{vT1}, 1, v{vQ}")
    a(f"v_lshl_add_u32 v{vT0}, v{vT1}, 3, v{vT0}")
    a(f"v_add_u32 v{vT0}, {OT}, v{vT0}")
    for t in range(nt):
        a(f"ds_write_b64 v{vT0}, {V(src+2*t,2)} offset:{2048*t}")
    if mid: mid()
    a(f"v_lshlrev_b32 v{vT1}, 4, v{vTID}")
    a(f"v_add_u32 v{vT1}, {OT}, v{vT1}")
    a(f"v_lshrrev_b32 v{vT2}, 3, v{vTID}")
    a(f"v_xor_b32 v{vT0}, v{vTID}, v{vT2}")
    a(f"v_and_b32 v{vT0}, 7, v{vT0}")
    a(f"v_lshlrev_b32 v{vT0}, 4, v{vT0}")
    a(f"v_lshl_add_u32 v{vT0}, v{vT2}, 10, v{vT0}")
    a("s_waitcnt lgkmcnt(0)")
    barrier()
    for i in range(nt // 2):
        a(f"ds_read_b128 {V(tmp+4*i,4)}, v{vT1} offset:{4096*i}")
    a("s_waitcnt lgkmcnt(0)")

a.raw("; @launch grid=(256,1,1) block=(256,1,1) lds=163840")
a.raw('.amdgcn_target "amdgcn-amd-amdhsa--gfx950"\n.text')
a.raw(kernel_header(NAME))
a(f"s_cmp_ge_u32 s{sB}, 256")
a("s_cbranch_scc1 L_end")
a("s_load_dwordx16 s[76:91], s[0:1], 0")
a("s_load_dwordx8 s[92:99], s[0:1], 64")
a(f"v_and_b32 v{vLANE}, 63, v{vTID}")
a(f"v_lshrrev_b32 v{vT0}, 6, v{vTID}")
a(f"v_and_b32 v{vL15}, 15, v{vTID}")
a(f"v_readfirstlane_b32 s{sW}, v{vT0}")
a(f"v_bfe_u32 v{vQ}, v{vTID}, 4, 2")
a(f"v_lshlrev_b32 v{vA0}, 4, v{vLANE}")
a(f"v_lshrrev_b32 v{vT0}, 2, v{vL15}")
a(f"v_and_b32 v{vT0}, 2, v{vT0}")
a(f"v_xor_b32 v{vT0}, v{vT0}, v{vQ}")
a(f"v_lshlrev_b32 v{vFR}, 6, v{vL15}")
a(f"v_lshl_add_u32 v{vFR}, v{vT0}, 4, v{vFR}")
a(f"v_add_u32 v{vA1}, 40960, v{vFR}")
a(f"v_lshlrev_b32 v{vL128}, 7, v{vLANE}")
a(f"v_and_b32 v{vL128}, 0xfff, v{vL128}")
MAPNJ = ENV("MAPNJ", 8)
a(f"s_and_b32 s{sT0}, s{sB}, 7")
a(f"s_lshr_b32 s{sT1}, s{sB}, 3")
if ENV("SLOTPERM", 0):
    a(f"s_and_b32 s{sT2}, s{sT1}, 3")
    a(f"s_lshl_b32 s{sT2}, s{sT2}, 3")
    a(f"s_lshr_b32 s{sT1}, s{sT1}, 2")
    a(f"s_add_u32 s{sT1}, s{sT1}, s{sT2}")
if MAPNJ == 8:
    a(f"s_lshr_b32 s{sT2}, s{sT1}, 3")
    a(f"s_lshl_b32 s{sG}, s{sT0}, 2")
    a(f"s_add_u32 s{sG}, s{sG}, s{sT2}")
    a(f"s_and_b32 s{sJ}, s{sT1}, 7")
    a(f"s_lshl_b32 s{sKK0}, s{sT2}, 2")
    a(f"s_lshl_b32 s{sT2}, s{sJ}, 1")
    a(f"s_add_u32 s{sKK0}, s{sKK0}, s{sT2}")
    a(f"s_and_b32 s{sT2}, s{sT0}, 2")
    a(f"s_add_u32 s{sKK0}, s{sKK0}, s{sT2}")
elif MAPNJ == 4:
    a(f"s_lshr_b32 s{sG}, s{sT0}, 1")
    a(f"s_lshl_b32 s{sG}, s{sG}, 3")
    a(f"s_lshr_b32 s{sT2}, s{sT1}, 2")
    a(f"s_add_u32 s{sG}, s{sG}, s{sT2}")
    a(f"s_and_b32 s{sJ}, s{sT0}, 1")
    a(f"s_lshl_b32 s{sJ}, s{sJ}, 2")
    a(f"s_and_b32 s{sT3}, s{sT1}, 3")
    a(f"s_add_u32 s{sJ}, s{sJ}, s{sT3}")
    a(f"s_lshl_b32 s{sKK0}, s{sT2}, 1")
    a(f"s_lshl_b32 s{sT3}, s{sT3}, 2")
    a(f"s_add_u32 s{sKK0}, s{sKK0}, s{sT3}")
    a(f"s_lshr_b32 s{sT2}, s{sT0}, 2")
    a(f"s_add_u32 s{sKK0}, s{sKK0}, s{sT2}")
elif MAPNJ == 2:
    a(f"s_lshr_b32 s{sG}, s{sT0}, 2")
    a(f"s_lshl_b32 s{sG}, s{sG}, 4")
    a(f"s_lshr_b32 s{sT2}, s{sT1}, 1")
    a(f"s_add_u32 s{sG}, s{sG}, s{sT2}")
    a(f"s_and_b32 s{sJ}, s{sT0}, 3")
    a(f"s_lshl_b32 s{sJ}, s{sJ}, 1")
    a(f"s_and_b32 s{sT3}, s{sT1}, 1")
    a(f"s_add_u32 s{sJ}, s{sJ}, s{sT3}")
    a(f"s_lshl_b32 s{sT3}, s{sJ}, 1")
    a(f"s_add_u32 s{sKK0}, s{sT2}, s{sT3}")
if ENV("NOROT", 0): a(f"s_mov_b32 s{sKK0}, 0")
a(f"s_and_b32 s{sKK0}, s{sKK0}, 15")
a(f"s_lshl_b32 s{sL}, s{sG}, 3")
a(f"s_add_u32 s{sL}, s{sL}, s{sJ}")
a(f"s_add_u32 s{sJY}, s{sJ}, {ENV('JYOFF', 4)}")
a(f"s_and_b32 s{sJY}, s{sJY}, 7")
a(f"s_lshl_b32 s{sW1K}, s{sW}, 10")
a(f"s_lshl_b32 s{sW16K}, s{sW}, 14")
a(f"s_mul_i32 s{sW5K}, s{sW}, 5120")
a(f"s_lshl_b32 s{sMB}, s{sL}, {MB_SH}")
a(f"s_add_u32 s{sMB}, s{sMB}, {MB_OFF}")
a(f"s_lshl_b32 s{sTILE}, s{sG}, 16")
a(f"s_lshl_b32 s{sT1}, s{sJ}, 7")
a(f"s_add_u32 s{sTILE}, s{sTILE}, s{sT1}")
a(f"v_add_u32 v{vS0}, s{sW1K}, v{vFR}")
a(f"v_add_u32 v{vS0}, 1024, v{vS0}")
a(f"v_add_u32 v{vS1}, 40960, v{vS0}")
a(f"v_add_u32 v{vSH}, s{sW5K}, v{vFR}")
a(f"v_lshrrev_b32 v{vT1}, 5, v{vLANE}")
a(f"v_lshlrev_b32 v{vTR}, 10, v{vT1}")
a(f"v_bfe_u32 v{vT0}, v{vLANE}, 2, 3")
a(f"v_lshl_add_u32 v{vTR}, v{vT0}, 7, v{vTR}")
a(f"v_lshrrev_b32 v{vT0}, 1, v{vT0}")
a(f"v_xor_b32 v{vT0}, s{sW}, v{vT0}")
a(f"v_lshl_add_u32 v{vTR}, v{vT0}, 5, v{vTR}")
a(f"v_and_b32 v{vT0}, 3, v{vLANE}")
a(f"v_lshl_add_u32 v{vTR}, v{vT0}, 3, v{vTR}")
a(f"v_lshl_add_u32 v{vTRW0}, v{vT1}, 11, v{vTR}")
a(f"v_add_u32 v{vTRW1}, {WRING + 36864}, v{vTRW0}")
a(f"v_add_u32 v{vTRW0}, {WRING}, v{vTRW0}")
a(f"v_lshrrev_b32 v{vT0}, 2, v{vLANE}")
a(f"v_lshlrev_b32 v{vXD}, 10, v{vT0}")
a(f"v_lshrrev_b32 v{vT1}, 4, v{vLANE}")
a(f"v_and_b32 v{vT1}, 2, v{vT1}")
a(f"v_and_b32 v{vT0}, 3, v{vLANE}")
a(f"v_xor_b32 v{vT0}, v{vT0}, v{vT1}")
a(f"v_lshl_add_u32 v{vXD}, v{vT0}, 4, v{vXD}")
a(f"s_lshl_b32 s{sT0}, s{sG}, 16")
a(f"v_add_u32 v{vXD}, s{sT0}, v{vXD}")
a(f"v_add_u32 v{vXDH}, {-16384 & 0xffffffff}, v{vXD}")
a(f"v_add_u32 v{vXDW}, s{sW16K}, v{vXD}")
a(f"v_bfe_u32 v{vT0}, v{vLANE}, 3, 2")
a(f"v_lshrrev_b32 v{vT1}, 5, v{vLANE}")
a(f"v_lshl_add_u32 v{vT0}, v{vT1}, 3, v{vT0}")
a(f"s_and_b32 s{sT0}, s{sW}, 1")
a(f"s_lshl_b32 s{sT0}, s{sT0}, 4")
a(f"s_lshr_b32 s{sT1}, s{sW}, 1")
a(f"s_lshl_b32 s{sT1}, s{sT1}, 2")
a(f"s_add_u32 s{sT0}, s{sT0}, s{sT1}")
a(f"v_add_u32 v{vT0}, s{sT0}, v{vT0}")
a(f"v_lshrrev_b32 v{vT1}, 4, v{vLANE}")
a(f"v_lshlrev_b32 v{vT1}, 1, v{vT1}")
a(f"v_and_b32 v{vT2}, 7, v{vLANE}")
a(f"v_xor_b32 v{vT1}, v{vT1}, v{vT2}")
a(f"v_lshlrev_b32 v{vT1}, 4, v{vT1}")
a(f"s_lshl_b32 s{sT0}, s{sJ}, 7")
a(f"v_add_u32 v{vT1}, s{sT0}, v{vT1}")
a(f"v_lshl_add_u32 v{vWOD}, v{vT0}, 10, v{vT1}")
a(f"v_mul_u32_u24 v{vWD}, 3072, v{vT0}")
a(f"v_add_u32 v{vWD}, v{vWD}, v{vT1}")
a(f"v_lshrrev_b32 v{vT0}, 1, v{vL15}")
a(f"v_xor_b32 v{vT0}, v{vT0}, v{vQ}")
a(f"v_lshlrev_b32 v{vF2}, 7, v{vL15}")
a(f"v_lshl_add_u32 v{vF2}, v{vT0}, 4, v{vF2}")
a(f"v_lshrrev_b32 v{vT0}, 3, v{vLANE}")
a(f"v_lshrrev_b32 v{vT1}, 4, v{vLANE}")
a(f"v_and_b32 v{vT2}, 7, v{vLANE}")
a(f"v_xor_b32 v{vT1}, v{vT1}, v{vT2}")
a(f"v_lshlrev_b32 v{vD2}, 10, v{vT0}")
a(f"v_lshl_add_u32 v{vD2}, v{vT1}, 4, v{vD2}")
a(f"s_lshl_b32 s{sT0}, s{sG}, 16")
a(f"v_add_u32 v{vD2}, s{sT0}, v{vD2}")
a(f"v_and_b32 v{vT0}, 1, v{vLANE}")
a(f"v_cmp_eq_u32 {PARM}, 1, v{vT0}")
a(f"v_lshl_add_u32 v{vT1}, v{vQ}, 2, v{vT0}")
a(f"v_cmp_le_u32 {MC[0]}, v{vT1}, v{vL15}")
a(f"v_add_u32 v{vT1}, 2, v{vT1}")
a(f"v_cmp_le_u32 {MC[1]}, v{vT1}, v{vL15}")
for i in range(4):
    a(f"v_mov_b32 v{vONE+i}, 0x3f803f80")
a("s_waitcnt lgkmcnt(0)")
P = lambda i: 76 + 2 * i
srd(a, SX, P(0), 2048 * 1024)
srd(a, SWQ, P(1), 512 * 3072)
srd(a, SWO, P(2), 512 * 1024)
srd(a, SK_, P(4), 2048 * 1024)
srd(a, SV_, P(5), 2048 * 1024)
srd(a, SSK, P(6), 4096)
srd(a, SH, P(7), 512 * 4096)
srd(a, SOUT, P(9), 2048 * 1024)
srd(a, SDBG, P(10), 256)
srd(a, SWS, P(11), 1 << 28)
srd(a, SX2, P(11), 2048 * 1024, off=X2_OFF)
a(f"s_lshl_b32 s{sT0}, s{sL}, 2")
a(f"s_load_dword s{sD}, {S2(P(8))}, s{sT0}")
a("s_waitcnt lgkmcnt(0)") if PROF else None
a(f"s_mul_i32 s{sT3}, s{sW}, 3072")
a(f"s_lshl_b32 s{sT4}, s{sW}, 6")

def k_reset(): a(f"s_lshl_b32 s{sXo}, s{sKK0}, 6")
def k_next():
    a(f"s_add_u32 s{sXo}, s{sXo}, 64")
    a(f"s_and_b32 s{sXo}, s{sXo}, 1023")
def kx_next():
    a(f"s_add_u32 s{sXx}, s{sXx}, 64")
    a(f"s_and_b32 s{sXx}, s{sXx}, 1023")
def dma_x_groups(s, srd_):
    sc = " sc1" if srd_ == SX2 else ""
    def g1():
        a(f"s_add_u32 m0, s{sW1K}, {XIMG + (s*5+1)*1024}")
        a(f"buffer_load_dwordx4 v{vXDW}, {S4(srd_)}, s{sXx} offen{sc} lds"); vm.issue(("x", s))
        if s % 4: kx_next()
    def g2():
        a(f"s_add_u32 s{sB0}, s{sXx}, s{sW64}")
        a(f"s_and_b32 s{sB0}, s{sB0}, 1023")
        a(f"s_add_u32 m0, s{sW5K}, {XIMG + s*5*1024}")
        a(f"buffer_load_dwordx4 v{vXDH}, {S4(srd_)}, s{sB0} offen{sc} lds"); vm.issue(("h", s // 4))
        kx_next()
    return [g1, g2] if s % 4 == 0 else [g1]
def dma_w_groups(s):
    def g():
        a(f"s_mul_i32 s{sB1}, s{sXo}, 1536")
        a(f"s_add_u32 m0, s{sW3K}, {WRING + (s % NSLOT)*12288}")
        for p in range(3):
            a(f"buffer_load_dwordx4 v{vWD}, {S4(SWQ)}, s{sB1} offen offset:{1024*p} lds"); vm.issue(("w", s))
    return [g]
def wo_group(i):
    def g():
        a(f"s_lshl_b32 s{sB1}, s{sXo}, 9")
        a(f"s_add_u32 m0, s{sW1K}, {WOIMG + i*4096}")
        a(f"buffer_load_dwordx4 v{vWOD}, {S4(SWO)}, s{sB1} offen lds"); vm.issue("wo")
        k_next()
    return g
def touch_tile(off):
    def g():
        a(f"s_add_u32 s{sB0}, s{sTILE}, s{sW16K}")
        a(f"s_add_u32 s{sB0}, s{sB0}, {off}")
        a(f"v_lshlrev_b32 v217, 10, v{vL15}")
        a(f"buffer_load_dword v216, v217, {S4(SWS)}, s{sB0} offen sc1"); vm.issue("pt")
    return g
def touch_xs():
    a(f"s_lshl_b32 s{sB0}, s{sW}, 10")
    a(f"s_add_u32 s{sB0}, s{sB0}, s{sMB}")
    a(f"s_add_u32 s{sB0}, s{sB0}, {MB_XS}")
    a(f"v_and_b32 v217, 7, v{vLANE}")
    a(f"v_lshlrev_b32 v217, 7, v217")
    a(f"buffer_load_dword v216, v217, {S4(SWS)}, s{sB0} offen sc1"); vm.issue("pt")
    a(f"s_add_u32 s{sB0}, s{sMB}, {MB_XH}")
    a(f"buffer_load_dword v216, v217, {S4(SWS)}, s{sB0} offen sc1"); vm.issue("pt")
def h_group():
    a(f"v_lshlrev_b32 v{vT0}, 4, v{vTID}")
    a(f"s_lshl_b32 s{sB0}, s{sL}, 13")
    for c in range(2):
        if c: a(f"s_add_u32 s{sB0}, s{sB0}, 4096")
        a(f"buffer_load_dwordx4 {V(yH+8*c,4)}, v{vT0}, {S4(SH)}, s{sB0} offen"); vm.issue("h")
        a(f"buffer_load_dword v{yH+8*c+4}, v{vT0}, {S4(SH)}, s{sB0} offen offset:16"); vm.issue("h")
yK, yV, ySK, yA = 144, 164, 172, 188
def y1_loads():
    a.comment("Y1 loads: thread -> c8 = tid&7 (8 channels), rp = tid>>3 (row pair)")
    a(f"v_and_b32 v{vT0}, 7, v{vTID}")
    a(f"v_lshrrev_b32 v{vT1}, 3, v{vTID}")
    a(f"v_lshlrev_b32 v{vT2}, 11, v{vT1}")
    a(f"v_lshl_add_u32 v{vT2}, v{vT0}, 4, v{vT2}")
    a(f"s_lshl_b32 s{sT0}, s{sG}, 16")
    a(f"s_lshl_b32 s{sT1}, s{sJY}, 7")
    a(f"s_add_u32 s{sT0}, s{sT0}, s{sT1}")
    a(f"v_add_u32 v{vT2}, s{sT0}, v{vT2}")
    for i in range(5): a(f"v_add_u32 v{yA+i}, {(i-3)*1024}, v{vT2}")
    a(f"s_lshl_b32 s{sT1}, s{sJY}, 9")
    a(f"v_lshlrev_b32 v{yA+5}, 6, v{vT0}")
    for i in range(5):
        a(f"buffer_load_dwordx4 {V(yK+4*i,4)}, v{yA+i}, {S4(SK_)}, 0 offen"); vm.issue("y1")
    for i in range(2):
        a(f"buffer_load_dwordx4 {V(yV+4*i,4)}, v{yA+3+i}, {S4(SV_)}, 0 offen"); vm.issue("y1")
    for i in range(4):
        a(f"buffer_load_dwordx4 {V(ySK+4*i,4)}, v{yA+5}, {S4(SSK)}, s{sT1} offen offset:{16*i}"); vm.issue("y1")
def y1_compute():
    a.comment("Y1 compute")
    vm.wait("y1")
    R, TP, VVv, K0, K1 = 240, 188, 250, 254, 212
    yO = lambda i: yK + (i >> 1) + 4 * (i & 1)
    for m in range(4):
        for i in range(5):
            a(f"v_lshlrev_b32 v{R+2*i}, 16, v{yK+4*i+m}")
            a(f"v_and_b32 v{R+2*i+1}, 0xffff0000, v{yK+4*i+m}")
        for c in range(2):
            a(f"v_lshlrev_b32 v{TP+0+c}, 16, v{ySK+4*m+2*c}")
            a(f"v_and_b32 v{TP+2+c}, 0xffff0000, v{ySK+4*m+2*c}")
            a(f"v_lshlrev_b32 v{TP+4+c}, 16, v{ySK+4*m+2*c+1}")
            a(f"v_and_b32 v{TP+6+c}, 0xffff0000, v{ySK+4*m+2*c+1}")
        for i in range(2):
            a(f"v_lshlrev_b32 v{VVv+2*i}, 16, v{yV+4*i+m}")
            a(f"v_and_b32 v{VVv+2*i+1}, 0xffff0000, v{yV+4*i+m}")
        for (Kx, r0) in ((K0, 0), (K1, 1)): a(f"v_pk_mul_f32 {V(Kx,2)}, {V(R+2*r0,2)}, {V(TP+6,2)}")
        for d in (1, 2, 3):
            for (Kx, r0) in ((K0, 0), (K1, 1)):
                a(f"v_pk_fma_f32 {V(Kx,2)}, {V(R+2*(r0+d),2)}, {V(TP+6-2*d,2)}, {V(Kx,2)}")
        for Kx in (K0, K1):
            a(f"v_cvt_pk_bf16_f32 v{Kx+1}, v{Kx}, v{Kx+1}")
            a(f"v_lshlrev_b32 v{Kx}, 16, v{Kx+1}")
            a(f"v_and_b32 v{Kx+1}, 0xffff0000, v{Kx+1}")
        a(f"v_pk_mul_f32 {V(K0,2)}, {V(K0,2)}, {V(VVv,2)}")
        a(f"v_pk_mul_f32 {V(K1,2)}, {V(K1,2)}, {V(VVv+2,2)}")
        a(f"v_cvt_pk_bf16_f32 v{yO(2*m)}, v{K1}, v{K0}")
        a(f"v_cvt_pk_bf16_f32 v{yO(2*m+1)}, v{K1+1}, v{K0+1}")
    a(f"v_and_b32 v{vT0}, 7, v{vTID}")
    a(f"v_lshrrev_b32 v{vT1}, 3, v{vTID}")
    a(f"v_sub_u32 v{vT1}, 31, v{vT1}")
    a(f"v_lshlrev_b32 v{vT2}, 2, v{vT0}")
    a(f"v_xor_b32 v{vT1}, v{vT1}, v{vT2}")
    a(f"v_lshlrev_b32 v{vT1}, 2, v{vT1}")
    a(f"v_lshl_add_u32 v{vT1}, v{vT0}, 10, v{vT1}")
    a(f"v_add_u32 v{vT1}, {Y1T}, v{vT1}")
    for i in range(8): a(f"ds_write_b32 v{vT1}, v{yO(i)} offset:{128*i}")
    a(f"v_lshrrev_b32 v{vT0}, 3, v{vTID}")
    a(f"v_and_b32 v{vT1}, 7, v{vTID}")
    a(f"v_lshrrev_b32 v{vT2}, 3, v{vT0}")
    a(f"v_xor_b32 v{TP}, v{vT1}, v{vT2}")
    a(f"v_lshlrev_b32 v{TP}, 4, v{TP}")
    a(f"v_lshl_add_u32 v{TP}, v{vT0}, 7, v{TP}")
    a(f"v_add_u32 v{TP}, {Y1T}, v{TP}")
    a(f"v_xor_b32 v{TP+1}, 64, v{TP}")
    a(f"v_lshlrev_b32 v{TP+2}, 12, v{vT0}")
    a(f"v_lshl_add_u32 v{TP+2}, v{vT1}, 4, v{TP+2}")
    a(f"s_lshl_b32 s{sT0}, s{sJY}, 18")
    a(f"s_lshl_b32 s{sT1}, s{sG}, 7")
    a(f"s_sub_u32 s{sT0}, s{sT0}, s{sT1}")
    a(f"s_add_u32 s{sT0}, s{sT0}, {KVT_OFF + 3968}")
    a(f"s_add_u32 s{sT1}, s{sT0}, {32*4096}")
    a("s_waitcnt lgkmcnt(0)")
    barrier()
    a(f"ds_read_b128 {V(yV,4)}, v{TP}")
    a(f"ds_read_b128 {V(yV+4,4)}, v{TP+1} offset:4096")
    a("s_waitcnt lgkmcnt(0)")
    a(f"buffer_store_dwordx4 {V(yV,4)}, v{TP+2}, {S4(SWS)}, s{sT0} offen sc1"); vm.issue("y1st")
    a(f"buffer_store_dwordx4 {V(yV+4,4)}, v{TP+2}, {S4(SWS)}, s{sT1} offen sc1"); vm.issue("y1st")
    prof("y1done")
def send_id():
    L = a.newlabel("L_id")
    a(f"s_cmp_lg_u32 s{sW}, 0")
    a(f"s_cbranch_scc1 {L}")
    a(f"s_lshl_b32 s{sT0}, s{sG}, 3")
    a(f"v_add_u32 v{vT1}, s{sT0}, v{vLANE}")
    a(f"v_and_b32 v{vT2}, 8, v{vLANE}")
    a(f"v_lshlrev_b32 v{vT0}, 1, v{vT2}")
    a(f"v_sub_u32 v{vT1}, v{vT1}, v{vT0}")
    a(f"v_lshlrev_b32 v{vT1}, {MB_SH}, v{vT1}")
    a(f"v_lshl_add_u32 v{vT1}, v{vT2}, 7, v{vT1}")
    a(f"s_lshl_b32 s{sT0}, s{sJ}, 7")
    a(f"s_add_u32 s{sT0}, s{sT0}, {MB_OFF + MB_ID}")
    a(f"v_add_u32 v{vT1}, s{sT0}, v{vT1}")
    a(f"v_mov_b32 v216, s{sN}")
    a(f"v_mov_b32 v217, s{sN+1}")
    a(f"v_mov_b32 v218, s{sXCC}")
    a(f"v_mov_b32 v219, 0")
    a(f"s_mov_b32 s{sT1}, 0xffff")
    a(f"s_cmp_eq_u32 s{sG}, 0")
    a(f"s_cselect_b32 exec_lo, 0xff, s{sT1}")
    a("s_mov_b32 exec_hi, 0")
    a(f"buffer_store_dwordx4 {V(216,4)}, v{vT1}, {S4(SWS)}, 0 offen sc1")
    a("s_mov_b64 exec, -1")
    a.flush()
    a.label(L)
S1SIG = f"""s_lshl_b32 s{sT0}, s{sJY}, 5
v_add_u32 v{vT1}, s{sT0}, v{vLANE}
v_lshlrev_b32 v{vT1}, {MB_SH}, v{vT1}
s_lshl_b32 s{sT0}, s{sG}, 7
s_add_u32 s{sT0}, s{sT0}, {MB_OFF + MB_S1}
v_add_u32 v{vT1}, s{sT0}, v{vT1}"""
vOH = 212
def o_groups(ooff):
    def mk(n):
        pr, h = n // 2, n % 2
        def g():
            if n == 0:
                k_reset()
                a(f"v_add_u32 v{vOH}, s{sW16K}, v{vD2}")
                a(f"v_xor_b32 v{vOH+1}, 64, v{vOH}")
                a(f"v_add_u32 v{vOH+1}, 8192, v{vOH+1}")
                a(f"s_lshl_b32 s{sB0}, s{sW}, 11")
            if h == 0: a(f"s_add_u32 s{sB1}, s{sXo}, {ooff}")
            a(f"s_add_u32 m0, s{sB0}, {OIMG + pr*8192 + h*1024}")
            a(f"buffer_load_dwordx4 v{vOH+h}, {S4(SWS)}, s{sB1} offen{LSC} lds"); vm.issue(("o", n // 4))
            if h == 1:
                a(f"s_add_u32 s{sXo}, s{sXo}, 128")
                a(f"s_and_b32 s{sXo}, s{sXo}, 1023")
        return g
    return [mk(n) for n in range(16)]

a(f"s_mov_b32 s{sW3K}, s{sT3}")
a(f"s_mov_b32 s{sW64}, s{sT4}")
a(f"s_mov_b32 s{sL0}, 0x00010001")
a(f"s_mov_b32 s{sL0+1}, 0x00010001")
a(f"s_getreg_b32 s{sXCC}, hwreg(HW_REG_XCC_ID)")
a(f"s_and_b32 s{sXCC}, s{sXCC}, 0xff")
a(f"s_mov_b32 s{sLOC}, 0")
a(f"s_mov_b32 s{sLOC2}, 0")
prof("start")
DEPTH = ENV("WDEPTH", 4)
XDEPTH = ENV("XDEPTH", 4)
k_reset()
a(f"s_mov_b32 s{sXx}, s{sXo}")
for s in range(max(DEPTH, XDEPTH)):
    if s < XDEPTH:
        for g in dma_x_groups(s, SX): g()
    if s < DEPTH:
        for g in dma_w_groups(s): g()
        k_next()
if ENV("CODEPF", 1):
    a(f"s_getpc_b64 {S2(sEX)}")
    a.label("L_pc")
    a(f"s_lshr_b32 s{sT0}, s{sB}, 3")
    a(f"s_lshl_b32 s{sT0}, s{sT0}, 2")
    a(f"s_add_u32 s{sT0}, s{sT0}, s{sW}")
    a(f"s_lshl_b32 s{sT0}, s{sT0}, 8")
    a(f"v_and_b32 v{vT0}, 1, v{vLANE}")
    a(f"v_lshl_add_u32 v{vT0}, v{vT0}, 7, s{sT0}")
    a.raw(f"    v_min_u32 v{vT0}, L_end-L_pc, v{vT0}")
    a(f"global_load_dword v216, v{vT0}, {S2(sEX)}"); vm.issue("cpf")
a(f"s_or_b32 s{sT2}, s{sL}, s{sW}")
a(f"s_cmp_lg_u32 s{sT2}, 0")
a("s_cbranch_scc1 L_nonce_done")
a(f"s_memrealtime {S2(sN)}")
a("s_waitcnt lgkmcnt(0)")
a(f"s_or_b32 s{sN+1}, s{sN+1}, 0x80000000")
a(f"s_andn2_b32 s{sN}, s{sN}, 1")
a(f"v_mov_b32 v{vP0}, s{sN}")
a(f"v_mov_b32 v{vP0+1}, s{sN+1}")
a(f"v_mov_b32 v{vT0}, 0")
a("s_mov_b64 exec, 1")
a(f"buffer_store_dwordx2 {V(vP0,2)}, v{vT0}, {S4(SDBG)}, 0 offen sc1")
a("s_mov_b64 exec, -1")
a.flush()
a.label("L_nonce_done")

def x_reads(s, buf):
    out = []
    base, off = (vFR, s*5*1024) if s < 8 else (vA1, (s-8)*5*1024)
    for t in range(5):
        out.append(ldsg(f"ds_read_b128 {V(vXA+20*buf+4*t,4)}, v{base} offset:{XIMG + off + t*1024}", ("xa", s)))
    base, off = (vS0, s*5120) if s < 8 else (vS1, (s-8)*5120)
    out.append(ldsg(f"ds_read_b128 {V(vSO+4*buf,4)}, v{base} offset:{XIMG + off}", ("xa", s)))
    if s % 4 == 3:
        out.append(ldsg(f"ds_read_b128 {V(vSHF,4)}, v{vSH} offset:{XIMG + (s//4)*20480}", ("xa", s)))
    return out

def mfmas(s, buf, with_cs, early=(), spread=()):
    first = (s == 0)
    def C(r): return "0" if first else V(r, 4)
    wq, wk, wv = A(12*s, 4), A(12*s+4, 4), A(12*s+8, 4)
    xa = lambda t: V(vXA + 20*buf + 4*t, 4)
    M = "v_mfma_f32_16x16x32_bf16"
    seq = []
    for t in range(5):
        seq.append(f"{M} {V(vKT+4*t,4)}, {wk}, {xa(t)}, {C(vKT+4*t)}")
        seq.append(f"{M} {V(vVV+4*t,4)}, {xa(t)}, {wv}, {C(vVV+4*t)}")
        if t: seq.append(f"{M} {V(vQT+4*(t-1),4)}, {wq}, {xa(t)}, {C(vQT+4*(t-1))}")
    if with_cs:
        seq = seq[2:] + [f"{M} {V(vCS,4)}, {wq}, {V(vONE,4)}, {C(vCS)}"] + seq[:2]
        for i in range(4):
            a(f"v_cndmask_b32 v{vXA+20*buf+i}, v{vXA+20*buf+i}, v{vONE}, {S2(sL0)}")
    so = V(vSO + 4*buf, 4)
    seq.append(f"{M} {V(vST,4)}, {V(vONE,4)}, {so}, {C(vST)}")
    seq.append(f"{M} {V(vST+4,4)}, {so}, {so}, {C(vST+4)}")
    if s % 4 == 3:
        c0 = "0" if s == 3 else None
        seq.append(f"{M} {V(vST+8,4)}, {V(vONE,4)}, {V(vSHF,4)}, {c0 or V(vST+8,4)}")
        seq.append(f"{M} {V(vST+12,4)}, {V(vSHF,4)}, {V(vSHF,4)}, {c0 or V(vST+12,4)}")
    a.weave(seq, list(early), list(spread))

Y1LD, Y1AT, S1AT = ENV("Y1LD", -1), ENV("Y1AT", 5), ENV("S1AT", 11)
if Y1LD < 0: y1_loads()
for s in range(16):
    vm.wait(("x", s), ("w", s), ("h", s // 4))
    if s == S1AT: vm.wait("y1st", "nonce")
    barrier()
    flx = dma_x_groups(s + XDEPTH, SX) if s + XDEPTH < 16 else []
    fl = (dma_w_groups(s + DEPTH) + [k_next]) if s + DEPTH < 16 else []
    if s == 0:
        for g in flx + fl: g()
    if s == 3:
        a(f"v_mov_b32 v{vT0}, 0")
        a(f"buffer_load_dwordx2 {V(vNL,2)}, v{vT0}, {S4(SDBG)}, 0 offen sc1"); vm.issue("nonce")
    if s == S1AT:
        a(f"v_readfirstlane_b32 s{sN}, v{vNL}")
        a(f"v_readfirstlane_b32 s{sN+1}, v{vNL+1}")
        a(f"s_cmp_eq_u32 s{sN+1}, 0")
        a("s_cbranch_scc1 L_s1_defer")
        signal(32, S1SIG)
        send_id()
        a.label("L_s1_defer")
    if s in (11, 12, 13): fl = fl + [wo_group(4*(s-11) + i) for i in range(4)]
    if s == 13: fl.append(h_group)
    TCH = ENV("TOUCH", 4)
    if s == 12 and TCH in (1, 2): fl.append(touch_tile(O1_OFF))
    if s == 14: fl = [wo_group(12 + i) for i in range(3)]
    if s == 15 and TCH in (2, 3): fl = fl + [touch_tile(O3_OFF), touch_xs]
    fl = flx + fl
    rd = x_reads(s, s & 1)
    for p in range(3):
        for h in range(2):
            off = (s % NSLOT) * 12288 + p * 1024 + h * 6144
            rd.append(ldsg(f"ds_read_b64_tr_b16 {A(12*s+4*p+2*h,2)}, v{vTRW0 if off < 36864 else vTRW1} offset:{off % 36864}", ("xa", s)))
    if s > 0: mfmas(s - 1, (s - 1) & 1, True, rd, fl)
    else:
        for g in rd: g()
    lg.drain()
    if s == Y1LD: y1_loads()
    if s == Y1AT: y1_compute()
barrier()
wo_group(15)()
mfmas(15, 1, True)
prof("p1gemm")
a(f"s_cmp_lg_u32 s{sN+1}, 0")
a("s_cbranch_scc1 L_nonce_ok")
a(f"v_mov_b32 v{vT0}, 0")
a.flush()
a.label("L_nonce_chk")
a(f"buffer_load_dwordx2 {V(vNL,2)}, v{vT0}, {S4(SDBG)}, 0 offen sc1")
a("s_waitcnt vmcnt(0)")
a(f"v_readfirstlane_b32 s{sN}, v{vNL}")
a(f"v_readfirstlane_b32 s{sN+1}, v{vNL+1}")
a(f"s_cmp_eq_u32 s{sN+1}, 0")
a("s_cbranch_scc1 L_nonce_chk")
signal(32, S1SIG)
send_id()
a.label("L_nonce_ok")

vQb, vKb, vVb, vU = 160, 168, 178, 188
def ab_addr():
    a(f"s_mul_i32 s{sT0}, s{sW}, 640")
    a(f"s_add_u32 s{sT0}, s{sT0}, {ABW}")
    a(f"v_lshl_add_u32 v{vT0}, v{vLANE}, 2, s{sT0}")
    a(f"v_lshl_add_u32 v{vT1}, v{vL15}, 2, s{sT0}")
    a(f"v_lshl_add_u32 v{vT2}, v{vQ}, 4, s{sT0}")
def ab_write(T):
    ln_math([(T, T+1, T+10, T+11, T+12, T+13), (T+2, T+3, T+14, T+15, T+16, T+17)])
    a(f"ds_write2_b32 v{vT0}, v{T+10}, v{T+11} offset0:16 offset1:96")
    a(f"ds_write2_b32 v{vT1}, v{T+14}, v{T+15} offset0:0 offset1:80")
def stats_p1():
    T = 84
    prof("a0_begin")
    a(f"v_and_b32 v{vT0}, 48, v{vLANE}")
    a(f"v_lshlrev_b32 v{vT0}, 2, v{vT0}")
    a(f"v_lshlrev_b32 v{vT1}, 2, v{vL15}")
    for i in range(4): a(f"ds_bpermute_b32 v{vCS+4+i}, v{vT0}, v{vKT+i}")
    a(f"ds_bpermute_b32 v{vCS+8}, v{vT1}, v{vVV}")
    a(f"v_lshlrev_b32 v{vT0}, 3, v{vL15}")
    a(f"s_lshl_b32 s{sT0}, s{sW}, 7")
    a(f"v_add_u32 v{vT0}, s{sT0}, v{vT0}")
    a(f"v_add_u32 v{vT0}, {MISC}, v{vT0}")
    for i, m in ((1, 0x22222222), (2, 0x44444444), (3, 0x88888888)):
        a(f"s_mov_b32 s{sEX}, {hex(m)}")
        a(f"s_mov_b32 s{sEX+1}, {hex(m)}")
        for base in (vST, vST + 8):
            a(f"v_cndmask_b32 v{base+1}, v{base+4 if i == 1 else base+1}, v{base+4+i}, {S2(sEX)}")
    e = a.bg_pause()
    a("s_mov_b32 exec_lo, 0x00f0000f")
    a("s_mov_b32 exec_hi, 0xf0000f00")
    a(f"ds_write_b64 v{vT0}, {V(vST,2)}")
    a(f"ds_write_b64 v{vT0}, {V(vST+8,2)} offset:512")
    a("s_mov_b64 exec, -1")
    a.bg_resume(e)
    a(f"v_lshlrev_b32 v{vT0}, 3, v{vLANE}")
    a(f"v_add_u32 v{vT0}, {MISC}, v{vT0}")
    a(f"v_lshlrev_b32 v{vT1}, 3, v{vL15}")
    a(f"v_add_u32 v{vT1}, {MISC}, v{vT1}")
    a("s_waitcnt lgkmcnt(0)")
    barrier()
    a(f"ds_read_b64 {V(T,2)}, v{vT0}")
    for i in range(4):
        a(f"ds_read_b64 {V(T+2+2*i,2)}, v{vT1} offset:{512 + 128*i}")
    ab_addr()
    a("s_waitcnt lgkmcnt(0)")
    a(f"v_pk_add_f32 {V(T+2,2)}, {V(T+2,2)}, {V(T+4,2)}")
    a(f"v_pk_add_f32 {V(T+6,2)}, {V(T+6,2)}, {V(T+8,2)}")
    a(f"v_pk_add_f32 {V(T+2,2)}, {V(T+2,2)}, {V(T+6,2)}")
    ab_write(T)

def attn_core(name, kvt, qt, after_pv=None):
    ab_addr()
    a("s_waitcnt lgkmcnt(0)")
    vAB, vAV = 84, 94
    for t in kvt:
        a(f"ds_read2_b32 {V(vAB+2*t,2)}, v{vT1} offset0:{16*t} offset1:{80+16*t}")
    for t in kvt:
        a(f"ds_read_b128 {V(vAV+8*t,4)}, v{vT2} offset:{64*t}")
        a(f"ds_read_b128 {V(vAV+8*t+4,4)}, v{vT2} offset:{320+64*t}")
    a(f"s_waitcnt lgkmcnt({2*len(kvt)})")
    def norm_qk(acc, cs, t, dst):
        ab = V(vAB + 2*t, 2)
        for h in range(2):
            a(f"v_pk_mul_f32 {V(vU+2*h,2)}, {V(cs+2*h,2)}, {ab} op_sel:[0,1] op_sel_hi:[1,1]")
            a(f"v_pk_fma_f32 {V(vU+2*h,2)}, {V(acc+2*h,2)}, {ab}, {V(vU+2*h,2)} op_sel:[0,0,0] op_sel_hi:[1,0,1]")
        for h in range(2):
            a(f"v_cvt_pk_bf16_f32 v{dst+h}, v{vU+2*h}, v{vU+2*h+1}")
    for t in kvt:
        norm_qk(vKT + 4*t, vCS + 4, t, vKb + 2*t)
        if t in qt: norm_qk(vQT + 4*(t-1), vCS, t, vQb + 2*(t-1))
    n = len(qt)
    vSc, vSp = 16, 32
    for u, t in enumerate(qt):
        a(f"v_mfma_f32_16x16x16_bf16 {V(vSc+4*u,4)}, {V(vKb+2*t,2)}, {V(vQb+2*(t-1),2)}, 0")
        a(f"v_mfma_f32_16x16x16_bf16 {V(vSp+4*u,4)}, {V(vKb+2*(t-1),2)}, {V(vQb+2*(t-1),2)}, 0")
    a("s_waitcnt lgkmcnt(0)")
    for t in kvt:
        for h in range(2):
            a(f"v_pk_mul_f32 {V(vU+4+2*h,2)}, {V(vAV+8*t+4+2*h,2)}, {V(vCS+8,2)} op_sel:[0,0] op_sel_hi:[1,0]")
            a(f"v_pk_fma_f32 {V(vU+4+2*h,2)}, {V(vVV+4*t+2*h,2)}, {V(vAV+8*t+2*h,2)}, {V(vU+4+2*h,2)}")
        for h in range(2):
            a(f"v_cvt_pk_bf16_f32 v{vVb+2*t+h}, v{vU+4+2*h}, v{vU+4+2*h+1}")
    prof(f"{name}_norm")
    if 1 in qt:
        e = a.bg_pause()
        Ln = a.newlabel("L_nomask")
        a(f"s_cmp_lg_u32 s{sG}, 0")
        a(f"s_cbranch_scc1 {Ln}")
        a.flush()
        for i in range(4): a(f"v_mov_b32 v{vSp+i}, 0xf149f2ca")
        a.flush()
        a.label(Ln)
        a.bg_resume(e)
    vLg, vMx, vTm = 48, 56, 60
    R = range(n)
    for t in R:
        for i in range(2):
            a(f"v_cndmask_b32 v{vSc+4*t+2*i}, v{vSc+4*t+2*i}, v{vSc+4*t+2*i+1}, {PARM}")
            a(f"v_cndmask_b32 v{vSp+4*t+2*i}, v{vSp+4*t+2*i}, v{vSp+4*t+2*i+1}, {PARM}")
            a(f"v_cndmask_b32 v{vLg+2*t+i}, v{vSp+4*t+2*i}, v{vSc+4*t+2*i}, {MC[i]}")
        a(f"v_cvt_pk_bf16_f32 v{vLg+2*t+1}, v{vLg+2*t}, v{vLg+2*t+1}")
        a(f"v_lshlrev_b32 v{vLg+2*t}, 16, v{vLg+2*t+1}")
        a(f"v_and_b32 v{vLg+2*t+1}, 0xffff0000, v{vLg+2*t+1}")
        a(f"v_max_f32 v{vMx+t}, v{vLg+2*t}, v{vLg+2*t+1}")
    allreduce("v_max_f32", [vMx+t for t in R], [vTm+t for t in R])
    a(f"s_mov_b32 s{sT0}, 0x3eb8aa3b")
    for t in R:
        for i in range(2): a(f"v_sub_f32 v{vLg+2*t+i}, v{vLg+2*t+i}, v{vMx+t}")
    for t in R:
        for i in range(2): a(f"v_mul_f32 v{vLg+2*t+i}, s{sT0}, v{vLg+2*t+i}")
    for t in R:
        for i in range(2): a(f"v_exp_f32 v{vLg+2*t+i}, v{vLg+2*t+i}")
    for t in R: a(f"v_add_f32 v{vMx+t}, v{vLg+2*t}, v{vLg+2*t+1}")
    allreduce("v_add_f32", [vMx+t for t in R], [vTm+t for t in R])
    vPc, vPp = 16, 24
    for t in R: a(f"v_rcp_f32 v{vMx+t}, v{vMx+t}")
    for t in R:
        a(f"v_cndmask_b32 v{vTm}, v{vMx+t}, 0, {PARM}")
        a(f"v_cndmask_b32 v{vTm+1}, 0, v{vMx+t}, {PARM}")
        for i in range(2):
            a(f"v_mul_f32 v{vTm+2}, v{vLg+2*t+i}, v{vTm}")
            a(f"v_mul_f32 v{vTm+3}, v{vLg+2*t+i}, v{vTm+1}")
            a(f"v_cvt_pk_bf16_f32 v{vTm+2}, v{vTm+2}, v{vTm+3}")
            a(f"v_cndmask_b32 v{vPc+2*t+i}, 0, v{vTm+2}, {MC[i]}")
            a(f"v_cndmask_b32 v{vPp+2*t+i}, v{vTm+2}, 0, {MC[i]}")
    vO = 32
    for u, t in enumerate(qt):
        a(f"v_mfma_f32_16x16x16_bf16 {V(vO+4*u,4)}, {V(vVb+2*t,2)}, {V(vPc+2*u,2)}, 0")
    for u, t in enumerate(qt):
        a(f"v_mfma_f32_16x16x16_bf16 {V(vO+4*u,4)}, {V(vVb+2*(t-1),2)}, {V(vPp+2*u,2)}, {V(vO+4*u,4)}")
    prof(f"{name}_pv")
    a.bg_flush()
    if after_pv: after_pv()
    for t in R:
        a(f"v_cvt_pk_bf16_f32 v{48+2*t}, v{vO+4*t}, v{vO+4*t+1}")
        a(f"v_cvt_pk_bf16_f32 v{48+2*t+1}, v{vO+4*t+2}, v{vO+4*t+3}")

def id_load():
    a(f"s_add_u32 s{sB0}, s{sMB}, {MB_ID}")
    a(f"buffer_load_dwordx4 {V(208,4)}, v{vL128}, {S4(SWS)}, s{sB0} offen sc1"); vm.issue("idl")
def id_eval():
    vm.wait("idl")
    a(f"v_cmp_eq_u64 vcc, {S2(sN)}, {V(208,2)}")
    a(f"v_cmp_eq_u32 {S2(sEX)}, s{sXCC}, v210")
    a(f"s_and_b32 s{sT0}, vcc_lo, s{sEX}")
    a(f"s_and_b32 s{sT1}, s{sT0}, 0xff")
    a(f"s_cmp_eq_u32 s{sT1}, 0xff")
    a(f"s_cselect_b32 s{sLOC}, 1, 0")
    a(f"s_cmp_eq_u32 s{sG}, 31")
    a(f"s_cselect_b32 s{sT1}, 0xff00, 0")
    a(f"s_or_b32 s{sT0}, s{sT0}, s{sT1}")
    a(f"s_and_b32 s{sT0}, s{sT0}, 0xffff")
    a(f"s_cmp_eq_u32 s{sT0}, 0xffff")
    a(f"s_cselect_b32 s{sLOC2}, 1, 0")
def kvt_fetch():
    async_check(32, MB_S1, "s1")
    a(f"s_lshl_b32 s{sT0}, s{sL}, 13")
    a(f"s_lshl_b32 s{sT1}, s{sW}, 11")
    a(f"s_add_u32 s{sT0}, s{sT0}, s{sT1}")
    a(f"s_add_u32 s{sT0}, s{sT0}, {KVT_OFF}")
    a(f"s_lshr_b32 s{sT2}, s{sW}, 1")
    a(f"s_mul_i32 s{sT2}, s{sT2}, {URP - 4096}")
    a(f"s_add_u32 s{sT2}, s{sT2}, s{sT1}")
    a(f"s_add_u32 m0, s{sT2}, {UR}")
    a(f"buffer_load_dwordx4 v{vA0}, {S4(SWS)}, s{sT0} offen sc1 lds")
    a(f"buffer_load_dwordx4 v{vA0}, {S4(SWS)}, s{sT0} offen offset:1024 sc1 lds")

def attention0():
    stats_p1()
    attn_core("a0", [0, 1, 2, 3, 4], [1, 2, 3, 4], id_eval)
    tile_to_lds(48, 56, OT=OT1)
    a(f"s_add_u32 s{sT0}, s{sTILE}, {O1_OFF}")
    a(f"s_add_u32 s{sT1}, s{sT0}, 32768")
    o1st = [f"buffer_store_dwordx4 {V(56,4)}, v{vT0}, {S4(SWS)}, s{sT0} offen", f"buffer_store_dwordx4 {V(60,4)}, v{vT0}, {S4(SWS)}, s{sT1} offen"]
    if ENV("O1SC1", 0):
        for l in o1st: a(l + " sc1")
    else: st2(o1st, sLOC)
    a("s_waitcnt vmcnt(0)")
    barrier()
    signal(8, group_sig(MB_S2), True)
    kvt_fetch()
    prof("a0_done")

def pretouch():
    a(f"s_lshl_b32 s{sB0}, s{sW}, 11")
    a(f"s_add_u32 s{sB0}, s{sB0}, s{sMB}")
    a(f"s_add_u32 s{sB0}, s{sB0}, {MB_ST}")
    a(f"v_lshlrev_b32 v217, 7, v{vL15}")
    a(f"buffer_load_dword v216, v217, {S4(SWS)}, s{sB0} offen sc1"); vm.issue("pt")

nopg = lambda: a("s_nop 0")
a.bg_start(([touch_tile(O1_OFF)] if ENV("TO1", 0) else []) + ([pretouch] if ENV("PRETOUCH", 2) else []) + [nopg] * 14 + [id_load, async_poll(MB_S1)], ENV("BGEVERY", 8))
attention0()
if STAGE <= 1: a("s_branch L_end")

vm.wait("h")
a(f"v_mov_b32 v160, 0\nv_mov_b32 v161, 0\nv_mov_b32 v162, 0\nv_mov_b32 v163, 0")
a(f"s_mov_b32 exec_lo, -1\ns_mov_b32 exec_hi, 0")
a(f"v_add_u32 v{vT2}, {UR + 4096}, v{vA0}")
a(f"ds_write_b128 v{vT2}, {V(160,4)}")
a(f"ds_write_b128 v{vT2}, {V(160,4)} offset:{URP}")
a(f"s_mov_b64 exec, 3")
a(f"v_add_u32 v{vT2}, {HC}, v{vA0}")
a(f"ds_write_b128 v{vT2}, {V(160,4)}")
a(f"ds_write_b128 v{vT2}, {V(160,4)} offset:{2*HCP}")
a(f"s_mov_b64 exec, 1")
a(f"ds_write_b128 v{vT2}, {V(160,4)} offset:{HCP}")
a(f"ds_write_b128 v{vT2}, {V(160,4)} offset:{3*HCP}")
a(f"s_mov_b64 exec, -1")
a(f"v_lshlrev_b32 v{vT0}, 4, v{vTID}")
a(f"v_add_u32 v{vT0}, {HC + 32}, v{vT0}")
a(f"v_cmp_eq_u32 vcc, 255, v{vTID}")
for c in range(2):
    b = yH + 8*c
    a(f"v_cndmask_b32 v{b+4}, v{b+4}, 0, vcc")
    a(f"ds_write_b128 v{vT0}, {V(b,4)} offset:{2*c*HCP}")
    for i in range(4): a(f"v_alignbit_b32 v{164+4*c+i}, v{b+i+1}, v{b+i}, 16")
    a(f"ds_write_b128 v{vT0}, {V(164+4*c,4)} offset:{(2*c+1)*HCP}")
a(f"v_cmp_eq_u32 vcc, 0, v{vTID}")
a(f"s_and_saveexec_b64 {S2(sEX)}, vcc")
a(f"v_mov_b32 v{vT2}, {HC}")
a(f"v_lshlrev_b32 v163, 16, v{yH}")
a(f"ds_write_b128 v{vT2}, {V(160,4)} offset:{HCP + 16}")
a(f"v_mov_b32 v172, 0\nv_mov_b32 v173, 0\nv_mov_b32 v174, 0")
a(f"v_lshlrev_b32 v175, 16, v{yH+8}")
a(f"ds_write_b128 v{vT2}, {V(172,4)} offset:{3*HCP + 16}")
a(f"s_mov_b64 exec, {S2(sEX)}")
yF, yG, yAcc, yFA, yGA = 16, 48, 84, 116, 120
a(f"v_add_u32 v{vT0}, 1, v{vL15}")
a(f"v_and_b32 v{vT0}, 30, v{vT0}")
a(f"v_lshlrev_b32 v{vT0}, 1, v{vT0}")
a(f"v_lshlrev_b32 v{vT1}, 4, v{vQ}")
a(f"v_sub_u32 v{vT0}, v{vT0}, v{vT1}")
a(f"v_mov_b32 v{vT1}, {HCP}")
a(f"v_cndmask_b32 v{vT1}, v{vT1}, 0, {PARM}")
a(f"v_add_u32 v{vT0}, v{vT0}, v{vT1}")
a(f"s_lshr_b32 s{sT0}, s{sW}, 1")
a(f"s_mul_i32 s{sT1}, s{sT0}, {2*HCP}")
a(f"s_and_b32 s{sT2}, s{sW}, 1")
a(f"s_lshl_b32 s{sT2}, s{sT2}, 8")
a(f"s_sub_u32 s{sT1}, s{sT1}, s{sT2}")
for ap in range(4):
    a(f"s_add_u32 s{sT3}, s{sT1}, {HC + 4080 - 512*(2*ap+1) - 192}")
    a(f"v_add_u32 v{yFA+ap}, s{sT3}, v{vT0}")
a(f"v_lshlrev_b32 v{vT0}, 5, v{vL15}")
a(f"v_lshl_add_u32 v{vT0}, v{vQ}, 4, v{vT0}")
a(f"s_mul_i32 s{sT1}, s{sT0}, {URP}")
a(f"s_sub_u32 s{sT1}, s{sT1}, s{sT2}")
a(f"s_add_u32 s{sT1}, s{sT1}, {UR + 8144 - 512*14 - 192}")
a(f"v_sub_u32 v{yGA}, s{sT1}, v{vT0}")
a("s_waitcnt vmcnt(0) lgkmcnt(0)")
barrier()
prof("y2start")
vm.reset()
vRA = 122
def res_loads():
    a(f"v_lshlrev_b32 v{vRA}, 10, v{vL15}")
    a(f"v_lshl_add_u32 v{vRA}, v{vQ}, 3, v{vRA}")
    a(f"s_lshl_b32 s{sB1}, s{sW}, 5")
    a(f"s_add_u32 s{sB1}, s{sB1}, s{sTILE}")
    for t in range(4):
        if t: a(f"s_add_u32 s{sB1}, s{sB1}, 16384")
        a(f"buffer_load_dwordx2 {V(vX2+2*t,2)}, v{vRA}, {S4(SX)}, s{sB1} offen"); vm.issue("res")
YB = [(16, 48), (144, 176)]
def y2_reads(rr):
    F, G = YB[rr & 1]
    out = []
    for aa in range(8):
        ap, hi = aa // 2, aa % 2
        off = ((1 - hi) * 512 + (3 - rr) * 64) // 4
        out.append(ldsg(f"ds_read2_b32 {V(F+4*aa,2)}, v{yFA+ap} offset0:{off} offset1:{off+1}", ("y", rr)))
        out.append(ldsg(f"ds_read2_b32 {V(F+4*aa+2,2)}, v{yFA+ap} offset0:{off+2} offset1:{off+3}", ("y", rr)))
    for bb in range(8):
        out.append(ldsg(f"ds_read_b128 {V(G+4*bb,4)}, v{yGA} offset:{(7-bb)*512 + (3-rr)*64}", ("y", rr)))
    return out
def wo_reads(lo, hi):
    return [ldsg(f"ds_read_b64_tr_b16 {A(192+4*s+2*h,2)}, v{vTR} offset:{WOIMG + s*4096 + h*2048}", "wot")
            for s in range(lo, hi) for h in range(2)]
lg.reset()
for g in y2_reads(0): g()
OG = o_groups(O1_OFF)
for rr in range(4):
    a("s_waitcnt lgkmcnt(0)"); lg.reset()
    F, G = YB[rr & 1]
    seq = []; started = set()
    for bb in range(8):
        for aa in range(8):
            c = 7 + bb - aa
            if 0 <= c <= 7:
                first = (rr == 0 and c not in started); started.add(c)
                seq.append(f"v_mfma_f32_16x16x32_bf16 {V(yAcc+4*c,4)}, {V(F+4*aa,4)}, {V(G+4*bb,4)}, {'0' if first else V(yAcc+4*c,4)}")
    nop = lambda: a("s_nop 0")
    sp = {0: ([touch_tile(O3_OFF), touch_xs] if ENV("TOUCH", 4) == 4 else []) + [res_loads], 1: [touch_tile(O3_OFF), touch_xs] if ENV("TOUCH", 4) == 1 else [], 2: [id_load], 3: [async_poll(MB_S2)] + [nop] * 4}[rr]
    early = (y2_reads(rr + 1) + wo_reads(3*rr, 3*rr+3)) if rr < 3 else wo_reads(9, 16)
    a.weave(seq, early, sp)
prof("y2mfma")
a("s_waitcnt lgkmcnt(0)")
barrier()
a(f"s_lshl_b32 s{sT0}, s{sW}, 12")
a(f"s_add_u32 s{sT0}, s{sT0}, {ACCX}")
a(f"v_add_u32 v{vT0}, s{sT0}, v{vA0}")
a(f"s_xor_b32 s{sT1}, s{sW}, 1")
a(f"s_lshl_b32 s{sT1}, s{sT1}, 12")
a(f"s_add_u32 s{sT1}, s{sT1}, {ACCX}")
a(f"v_add_u32 v{vT1}, s{sT1}, v{vA0}")
a(f"s_and_b32 s{sT2}, s{sW}, 1")
a(f"s_cmp_eq_u32 s{sT2}, 0")
a("s_cbranch_scc1 L_y2_even")
a.flush()
for i in range(4):
    a(f"ds_write_b128 v{vT0}, {V(yAcc+8*i,4)} offset:{1024*i}")
    for r in range(4): a(f"v_mov_b32 v{yF+4*i+r}, v{yAcc+8*i+4+r}")
a("s_branch L_y2_x")
a.label("L_y2_even")
a.flush()
for i in range(4):
    a(f"ds_write_b128 v{vT0}, {V(yAcc+8*i+4,4)} offset:{1024*i}")
    for r in range(4): a(f"v_mov_b32 v{yF+4*i+r}, v{yAcc+8*i+r}")
a.label("L_y2_x")
a(f"v_lshlrev_b32 v{vT0}, 5, v{vL15}")
a(f"v_lshl_add_u32 v{vT0}, v{vQ}, 3, v{vT0}")
a(f"s_lshr_b32 s{sT0}, s{sW}, 1")
a(f"s_mul_i32 s{sT1}, s{sT0}, {URP}")
a(f"s_lshl_b32 s{sT3}, s{sT2}, 9")
a(f"s_sub_u32 s{sT1}, s{sT1}, s{sT3}")
a(f"s_add_u32 s{sT1}, s{sT1}, {UR + 4088 - 3*1024}")
a(f"v_sub_u32 v{vT2}, s{sT1}, v{vT0}")
for i in range(4): a(f"ds_read_b64 {V(64+2*i,2)}, v{vT2} offset:{(3-i)*1024}")
a(f"s_lshl_b32 s{sT1}, s{sD}, 16")
a(f"s_and_b32 s{sT3}, s{sD}, 0xffff0000")
a(f"s_cmp_eq_u32 s{sT0}, 0")
a(f"s_cselect_b32 s{sT1}, s{sT1}, s{sT3}")
a(f"s_lshl_b32 s{sT3}, s{sL}, 1")
a(f"s_add_u32 s{sT3}, s{sT3}, s{sT0}")
a(f"s_lshl_b32 s{sT3}, s{sT3}, 12")
a(f"s_lshl_b32 s{sT4}, s{sT2}, 9")
a(f"s_add_u32 s{sT3}, s{sT3}, s{sT4}")
a(f"s_add_u32 s{sT3}, s{sT3}, {YT_OFF}")
a("s_waitcnt lgkmcnt(0)")
barrier()
for i in range(4): a(f"ds_read_b128 {V(yG+4*i,4)}, v{vT1} offset:{1024*i}")
for i in range(4):
    k0, u = 64 + 2*i, 144 + 4*i
    a(f"v_and_b32 v{u}, 0xffff0000, v{k0+1}")
    a(f"v_lshlrev_b32 v{u+1}, 16, v{k0+1}")
    a(f"v_and_b32 v{u+2}, 0xffff0000, v{k0}")
    a(f"v_lshlrev_b32 v{u+3}, 16, v{k0}")
    for r in range(4): a(f"v_mul_f32 v{u+r}, s{sT1}, v{u+r}")
    a(f"v_cvt_pk_bf16_f32 v{u}, v{u}, v{u+1}")
    a(f"v_cvt_pk_bf16_f32 v{u+2}, v{u+2}, v{u+3}")
    a(f"v_and_b32 v{u+1}, 0xffff0000, v{u}")
    a(f"v_lshlrev_b32 v{u}, 16, v{u}")
    a(f"v_and_b32 v{u+3}, 0xffff0000, v{u+2}")
    a(f"v_lshlrev_b32 v{u+2}, 16, v{u+2}")
a("s_waitcnt lgkmcnt(0)")
a.bg_flush()
for i in range(4):
    y, u = yF + 4*i, 144 + 4*i
    a(f"v_pk_add_f32 {V(y,2)}, {V(y,2)}, {V(yG+4*i,2)}")
    a(f"v_pk_add_f32 {V(y+2,2)}, {V(y+2,2)}, {V(yG+4*i+2,2)}")
    a(f"v_cvt_pk_bf16_f32 v{y}, v{y}, v{y+1}")
    a(f"v_cvt_pk_bf16_f32 v{y+2}, v{y+2}, v{y+3}")
    a(f"v_and_b32 v{y+1}, 0xffff0000, v{y}")
    a(f"v_lshlrev_b32 v{y}, 16, v{y}")
    a(f"v_and_b32 v{y+3}, 0xffff0000, v{y+2}")
    a(f"v_lshlrev_b32 v{y+2}, 16, v{y+2}")
    a(f"v_pk_add_f32 {V(y,2)}, {V(y,2)}, {V(u,2)}")
    a(f"v_pk_add_f32 {V(y+2,2)}, {V(y+2,2)}, {V(u+2,2)}")
    a(f"v_cvt_pk_bf16_f32 v{y}, v{y}, v{y+1}")
    a(f"v_cvt_pk_bf16_f32 v{y+1}, v{y+2}, v{y+3}")
    a(f"buffer_store_dwordx2 {V(y,2)}, v{vT0}, {S4(SWS)}, s{sT3} offen offset:{1024*i} sc1"); vm.issue("yst")
S3SIG = f"""s_lshr_b32 s{sT0}, s{sL}, 5
v_lshl_add_u32 v{vT1}, v{vLANE}, 3, s{sT0}
v_lshlrev_b32 v{vT1}, {MB_SH}, v{vT1}
s_and_b32 s{sT0}, s{sL}, 31
s_lshl_b32 s{sT0}, s{sT0}, 7
s_add_u32 s{sT0}, s{sT0}, {MB_OFF + MB_S3}
v_add_u32 v{vT1}, s{sT0}, v{vT1}"""
prof("y2st")
id_eval()
async_check(8, MB_S2, "o1")
for g in OG[:8]: g()
prof("y2")
if STAGE <= 2:
    vm.drain()
    a("s_branch L_end")

vOB, vPA, vSt, vW = 120, 16, 72, 84
CB = MISC + 4096
MF = "v_mfma_f32_16x16x32_bf16"

def op_gemm(tiles, pre, fill={}):
    OFB = [32, 48, 144]
    items = [(s, t) for s in range(16) for t in tiles]
    units = [items[i:i+4] for i in range(0, len(items), 4)]
    def rd(u):
        return [ldsg(f"ds_read_b128 {V(OFB[u%3]+4*k,4)}, v{vOB + (s & 1)} offset:{(s//2)*8192 + t*2048}", ("of", u)) for k, (s, t) in enumerate(units[u])]
    for u in range(len(units)):
        if u in pre: pre[u]()
        if u == 0:
            for g in rd(0) + rd(1): g()
        lg.wait(("of", u))
        nxt = rd(u + 2) if u + 2 < len(units) else []
        seq = [f"{MF} {V(vPA+4*t,4)}, {A(192+4*s,4)}, {V(OFB[u%3]+4*k,4)}, {'0' if s == 0 else V(vPA+4*t,4)}" for k, (s, t) in enumerate(units[u])]
        a.weave(seq, nxt, fill.get(u, []))

def sums(c, dst):
    a(f"v_pk_add_f32 {V(vW,2)}, {V(c,2)}, {V(c+2,2)}")
    a(f"v_pk_mul_f32 {V(vW+2,2)}, {V(c,2)}, {V(c,2)}")
    a(f"v_pk_fma_f32 {V(vW+2,2)}, {V(c+2,2)}, {V(c+2,2)}, {V(vW+2,2)}")
    a(f"v_add_f32 v{dst}, v{vW}, v{vW+1}")
    a(f"v_add_f32 v{dst+1}, v{vW+2}, v{vW+3}")

def unpack(src, dst):
    a(f"v_lshlrev_b32 v{dst}, 16, v{src}")
    a(f"v_and_b32 v{dst+1}, 0xffff0000, v{src}")
    a(f"v_lshlrev_b32 v{dst+2}, 16, v{src+1}")
    a(f"v_and_b32 v{dst+3}, 0xffff0000, v{src+1}")

def ps_write(tiles, base):
    a(f"v_lshlrev_b32 v{vT2}, 9, v{vQ}")
    a(f"v_lshl_add_u32 v{vT2}, v{vL15}, 3, v{vT2}")
    a(f"s_lshl_b32 s{sT0}, s{sW}, 11")
    a(f"s_add_u32 s{sT0}, s{sT0}, {base}")
    a(f"v_add_u32 v{vT2}, s{sT0}, v{vT2}")
    for t in tiles: a(f"ds_write_b64 v{vT2}, {V(vSt+2*t,2)} offset:{128*t}")

def x1_stats(tiles, base):
    for t in tiles:
        c = vPA + 4*t
        a(f"v_cvt_pk_bf16_f32 v{c}, v{c}, v{c+1}")
        a(f"v_cvt_pk_bf16_f32 v{c+2}, v{c+2}, v{c+3}")
        a(f"v_and_b32 v{c+1}, 0xffff0000, v{c}")
        a(f"v_lshlrev_b32 v{c}, 16, v{c}")
        a(f"v_and_b32 v{c+3}, 0xffff0000, v{c+2}")
        a(f"v_lshlrev_b32 v{c+2}, 16, v{c+2}")
        unpack(vX2 + 2*t, vW)
        a(f"v_pk_add_f32 {V(c,2)}, {V(c,2)}, {V(vW,2)}")
        a(f"v_pk_add_f32 {V(c+2,2)}, {V(c+2,2)}, {V(vW+2,2)}")
        a(f"v_cvt_pk_bf16_f32 v64, v{c}, v{c+1}")
        a(f"v_cvt_pk_bf16_f32 v65, v{c+2}, v{c+3}")
        unpack(64, c)
        sums(c, vSt + 2*t)
    ps_write(tiles, base)

def tree(b, n):
    while n > 1:
        n //= 2
        for i in range(n): a(f"v_pk_add_f32 {V(b+2*i,2)}, {V(b+2*i,2)}, {V(b+2*(i+n),2)}")

def reduce16(base, R):
    a(f"v_lshlrev_b32 v{vT2}, 3, v{vLANE}")
    a(f"v_add_u32 v{vT2}, {base}, v{vT2}")
    for i in range(8): a(f"ds_read_b64 {V(R+2*i,2)}, v{vT2} offset:{512*i}")
    a("s_waitcnt lgkmcnt(0)")
    for i in range(8): a(f"ds_read_b64 {V(R+16+2*i,2)}, v{vT2} offset:{512*(8+i)}")
    tree(R, 8)
    a("s_waitcnt lgkmcnt(0)")
    tree(R + 16, 8)
    a(f"v_pk_add_f32 {V(R,2)}, {V(R,2)}, {V(R+16,2)}")
    a(f"v_mov_b32 v{R+2}, s{sN}")
    a(f"v_mov_b32 v{R+3}, s{sN+1}")

def peer_base(dst, mboff, slot_sh, nextgrp=False):
    a(f"s_lshl_b32 s{dst}, s{sG}, 3")
    a(f"s_lshl_b32 s{sT3}, s{sW}, 1")
    a(f"s_add_u32 s{dst}, s{dst}, s{sT3}")
    a(f"s_lshl_b32 s{dst}, s{dst}, {MB_SH}")
    a(f"s_lshl_b32 s{sT3}, s{sJ}, {slot_sh}")
    a(f"s_add_u32 s{dst}, s{dst}, s{sT3}")
    a(f"s_add_u32 s{dst}, s{dst}, {MB_OFF + mboff + (8 * MB_SZ if nextgrp else 0)}")

def gate(tiles, AB):
    for t in tiles:
        ab = V(AB(t), 2)
        x, y, u = vPA + 4*t, 32 + 8*t, 36 + 8*t
        unpack(vYY + 2*t, y)
        for h in range(2):
            a(f"v_pk_fma_f32 {V(u+2*h,2)}, {V(x+2*h,2)}, {ab}, {ab} op_sel:[0,0,1] op_sel_hi:[1,0,1]")
            a(f"v_pk_fma_f32 {V(u+2*h,2)}, {V(u+2*h,2)}, {V(y+2*h,2)}, {V(x+2*h,2)}")
        a(f"v_cvt_pk_bf16_f32 v{vX2+2*t}, v{u}, v{u+1}")
        a(f"v_cvt_pk_bf16_f32 v{vX2+2*t+1}, v{u+2}, v{u+3}")

lg.reset()
a(f"v_add_u32 v{vOB}, {OIMG}, v{vF2}")
a(f"v_xor_b32 v{vOB+1}, 64, v{vOB}")
def preg(i):
    def f():
        vm.wait(("o", i))
        barrier()
        if i == 0: signal(32, S3SIG)
    return f
op_gemm([0, 1, 2, 3], {0: preg(0), 2: preg(1), 6: preg(2), 10: preg(3)}, {0: OG[8:10], 1: OG[10:12], 2: OG[12:14], 3: OG[14:16]})
prof("p0_gemm")
x1_stats([0, 1, 2, 3], PS)
a("s_waitcnt lgkmcnt(0)")
barrier()
prof("p0_ps")
peer_base(sT0, MB_ST, 10)
a(f"s_add_u32 s{sT1}, s{sT0}, {MB_SZ}")
reduce16(PS, vW)
st2([f"buffer_store_dwordx4 {V(vW,4)}, v{vA0}, {S4(SWS)}, s{sT0} offen", f"buffer_store_dwordx4 {V(vW,4)}, v{vA0}, {S4(SWS)}, s{sT1} offen"], sLOC)
prof("p0_pub")
a(f"s_add_u32 s{sT0}, s{sMB}, {MB_ST}")
a(f"s_lshl_b32 s{sT1}, s{sW}, 11")
a(f"s_add_u32 s{sT0}, s{sT0}, s{sT1}")
a.flush()
a("s_branch L_pst0b")
a.label("L_pst0a")
a("s_sleep 1")
a.label("L_pst0b")
for i in range(2):
    a(f"buffer_load_dwordx4 {V(vW+4*i,4)}, v{vA0}, {S4(SWS)}, s{sT0} offen offset:{1024*i} sc1")
a("s_waitcnt vmcnt(0)")
a(f"v_cmp_ne_u64 vcc, {S2(sN)}, {V(vW+2,2)}")
a(f"v_cmp_ne_u64 {S2(sEX)}, {S2(sN)}, {V(vW+6,2)}")
a(f"s_or_b64 vcc, vcc, {S2(sEX)}")
a("s_cbranch_vccnz L_pst0a")
a(f"v_pk_add_f32 {V(vW,2)}, {V(vW,2)}, {V(vW+4,2)}")
a(f"s_lshl_b32 s{sT1}, s{sW}, 9")
a(f"s_add_u32 s{sT1}, s{sT1}, {CB}")
a(f"v_lshl_add_u32 v{vT1}, v{vLANE}, 3, s{sT1}")
a(f"ds_write_b64 v{vT1}, {V(vW,2)}")
poll(32, MB_S3, "s3")
prof("p0_s3")
a(f"v_lshrrev_b32 v{vT0}, 3, v{vLANE}")
a(f"v_lshlrev_b32 v{vT0}, 12, v{vT0}")
a(f"v_and_b32 v{vT1}, 7, v{vLANE}")
a(f"v_lshl_add_u32 v{vT0}, v{vT1}, 4, v{vT0}")
a(f"s_lshl_b32 s{sT0}, s{sJ}, 18")
a(f"s_lshl_b32 s{sT1}, s{sG}, 7")
a(f"s_add_u32 s{sT0}, s{sT0}, s{sT1}")
a(f"s_lshl_b32 s{sT1}, s{sW}, 16")
a(f"s_add_u32 s{sT0}, s{sT0}, s{sT1}")
a(f"s_add_u32 s{sT0}, s{sT0}, {YT_OFF}")
a(f"s_lshl_b32 s{sT1}, s{sW}, 11")
a(f"s_add_u32 m0, s{sT1}, {YTT}")
a(f"buffer_load_dwordx4 v{vT0}, {S4(SWS)}, s{sT0} offen sc1 lds")
a(f"s_add_u32 s{sT0}, s{sT0}, 32768")
a(f"s_add_u32 m0, s{sT1}, {YTT + 1024}")
a(f"buffer_load_dwordx4 v{vT0}, {S4(SWS)}, s{sT0} offen sc1 lds")
a(f"v_lshlrev_b32 v{vT1}, 3, v{vL15}")
a(f"v_add_u32 v{vT1}, {CB}, v{vT1}")
a("s_waitcnt lgkmcnt(0)")
barrier()
prof("p0_stats")
for t in range(4):
    for i in range(4): a(f"ds_read_b64 {V(vW+8*t+2*i,2)}, v{vT1} offset:{512*i + 128*t}")
a("s_waitcnt lgkmcnt(0)")
for t in range(4): tree(vW + 8*t, 4)
ln_math([(vW+8*t, vW+8*t+1, vW+8*t+2, vW+8*t+3, vW+8*t+4, vW+8*t+5) for t in range(4)])
a(f"v_lshrrev_b32 v{vT1}, 2, v{vLANE}")
a(f"v_lshlrev_b32 v{vT1}, 7, v{vT1}")
a(f"v_and_b32 v{vT2}, 3, v{vLANE}")
a(f"v_lshl_add_u32 v{vT1}, v{vT2}, 3, v{vT1}")
a(f"s_lshl_b32 s{sT0}, s{sW}, 11")
a(f"s_add_u32 s{sT0}, s{sT0}, {YTT}")
a(f"v_add_u32 v{vT1}, s{sT0}, v{vT1}")
a("s_waitcnt vmcnt(0)")
for t in range(4): a(f"ds_read_b64_tr_b16 {V(vYY+2*t,2)}, v{vT1} offset:{32*t}")
a("s_waitcnt lgkmcnt(0)")
gate([0, 1, 2, 3], lambda t: vW + 8*t + 2)
def x2_stats():
    for t in range(4):
        unpack(vX2 + 2*t, 32 + 4*t)
        sums(32 + 4*t, vSt + 2*t)
    ps_write([0, 1, 2, 3], YTT)
tile_to_lds(vX2, 144, 4, x2_stats)
prof("p0_epi")
a(f"s_add_u32 s{sT1}, s{sTILE}, 32768")
st2([f"buffer_store_dwordx4 {V(144,4)}, v{vT0}, {S4(SX2)}, s{sTILE} offen"], sLOC)
st2([f"buffer_store_dwordx4 {V(148,4)}, v{vT0}, {S4(SX2)}, s{sT1} offen"], sLOC2)
reduce16(YTT, vW)
peer_base(sT0, MB_XS, 9)
a(f"s_add_u32 s{sT1}, s{sT0}, {MB_SZ}")
peer_base(sT2, MB_XH - 384, 7, True)
a(f"s_add_u32 s{sT4}, s{sT2}, {MB_SZ}")
a(f"v_lshlrev_b32 v{vT0}, 3, v{vLANE}")
st2([f"buffer_store_dwordx2 {V(vW,2)}, v{vT0}, {S4(SWS)}, s{sT0} offen", f"buffer_store_dwordx2 {V(vW,2)}, v{vT0}, {S4(SWS)}, s{sT1} offen"], sLOC)
a("s_mov_b32 exec_lo, 0\ns_mov_b32 exec_hi, 0xffff0000")
st2([f"buffer_store_dwordx2 {V(vW,2)}, v{vT0}, {S4(SWS)}, s{sT2} offen", f"buffer_store_dwordx2 {V(vW,2)}, v{vT0}, {S4(SWS)}, s{sT4} offen"], sLOC2)
a("s_mov_b64 exec, -1")
vXT = [196, 197, 198, 199, 200]
vF3 = 204
sWm = sW3K
a(f"s_and_b32 s{sT3}, s{sW}, 1")
a(f"s_lshl_b32 s{sWm}, s{sT3}, 6")
a(f"v_xor_b32 v{vXT[1]}, s{sWm}, v{vD2}")
a(f"s_lshl_b32 s{sWm}, s{sT3}, 13")
a(f"v_add_u32 v{vXT[1]}, s{sWm}, v{vXT[1]}")
a(f"v_add_u32 v{vXT[0]}, {-16384 & 0xffffffff}, v{vXT[1]}")
for t in (2, 3, 4): a(f"v_add_u32 v{vXT[t]}, {16384*(t-1)}, v{vXT[1]}")
a(f"s_lshr_b32 s{sWm}, s{sW}, 1")
a(f"s_mul_i32 s{sWm}, s{sWm}, 10240")
a(f"s_lshl_b32 s{sT3}, s{sT3}, 10")
a(f"s_add_u32 s{sWm}, s{sWm}, s{sT3}")
a(f"v_mov_b32 v{vF3}, v{vF2}")
a(f"v_xor_b32 v{vF3+1}, 64, v{vF2}")
a(f"v_add_u32 v{vF3+2}, 40960, v{vF3}")
a(f"v_add_u32 v{vF3+3}, 40960, v{vF3+1}")
vm.drain()
barrier()
signal(16, group_sig(MB_S5, 16), True)
prof("p0_done")
if STAGE <= 3:
    vm.drain()
    a("s_branch L_end")

a(f"s_mov_b32 s{sT1}, 0xffff")
a(f"s_cmp_eq_u32 s{sG}, 0")
a(f"s_cselect_b32 exec_lo, 0xff, s{sT1}")
a(f"s_cselect_b32 s{sT2}, 0, -1")
a("s_mov_b32 exec_hi, 0")
poll(16, MB_S5, "x2", exec_set=True)
a(f"s_xor_b32 s{sN}, s{sN}, 1")
prof("p3_wait")
vm.reset(); lg.reset()
def dma3(tiles, i, tag):
    def g():
        a(f"s_and_b32 s{sB0}, s{sW}, 2")
        a(f"s_add_u32 s{sB0}, s{sB0}, s{sKK0}")
        if i: a(f"s_add_u32 s{sB0}, s{sB0}, {4*i}")
        a(f"s_and_b32 s{sB0}, s{sB0}, 15")
        a(f"s_lshl_b32 s{sB0}, s{sB0}, 6")
        for t in tiles:
            a(f"s_add_u32 m0, s{sWm}, {XIMG + (10*i + t)*2048}")
            a(f"buffer_load_dwordx4 v{vXT[t]}, {S4(SX2)}, s{sB0} offen{LSC} lds"); vm.issue((tag, i))
    return g
TA, TB = [0, 1, 2], [3, 4]
for i in range(2): dma3(TA, i, "xA")()
a(f"v_lshlrev_b32 v{vT0}, 3, v{vLANE}")
a(f"s_lshl_b32 s{sT1}, s{sW}, 10")
a(f"s_add_u32 s{sT0}, s{sMB}, s{sT1}")
a(f"s_add_u32 s{sT0}, s{sT0}, {MB_XS}")
a(f"s_lshl_b32 s{sT1}, s{sW}, 8")
a(f"s_add_u32 s{sT1}, s{sT1}, s{sMB}")
a(f"s_add_u32 s{sT1}, s{sT1}, {MB_XH}")
for i in range(2):
    a(f"buffer_load_dwordx2 {V(144+2*i,2)}, v{vT0}, {S4(SWS)}, s{sT0} offen offset:{512*i} sc1"); vm.issue("xs")
a(f"buffer_load_dwordx2 {V(148,2)}, v{vT0}, {S4(SWS)}, s{sT1} offen sc1"); vm.issue("xs")
def xs_partial():
    vm.wait("xs")
    a(f"v_add_f32 v144, v144, v146")
    a(f"v_add_f32 v145, v145, v147")
    a(f"v_and_b32 v148, s{sT2}, v148")
    a(f"v_and_b32 v149, s{sT2}, v149")
    a(f"v_mov_b32 v150, v148")
    a(f"v_mov_b32 v151, v149")
    a(f"v_permlane16_swap_b32 v148, v150")
    a(f"v_permlane16_swap_b32 v149, v151")
    a(f"v_add_f32 v148, v148, v150")
    a(f"v_add_f32 v149, v149, v151")
    a(f"s_mul_i32 s{sT1}, s{sW}, 640")
    a(f"s_add_u32 s{sT1}, s{sT1}, {CB}")
    a(f"v_lshl_add_u32 v{vT1}, v{vLANE}, 3, s{sT1}")
    a(f"ds_write_b64 v{vT1}, {V(144,2)} offset:128")
    a("s_mov_b32 exec_lo, 0xffff\ns_mov_b32 exec_hi, 0")
    a(f"ds_write_b64 v{vT1}, {V(148,2)}")
    a("s_mov_b64 exec, -1")
    a("s_waitcnt lgkmcnt(0)"); lg.reset()

def qkv_pass(tiles, qt, pre, fill):
    n = len(tiles)
    B = lambda s: vXA + 4 * n * (s % 3)
    def rd(s):
        base, off = vF3 + (s & 1) + (2 if s >= 8 else 0), ((s % 8) // 2) * 10240
        return [ldsg(f"ds_read_b128 {V(B(s)+4*u,4)}, v{base} offset:{XIMG + off + t*2048}", ("xa", s)) for u, t in enumerate(tiles)]
    restarts = sorted(k for k, v in pre.items() if v[1])
    issued = set()
    can = lambda a_, b_: not any(a_ < r <= b_ for r in restarts)
    for s in range(16):
        if s in pre: pre[s][0]()
        if s in restarts:
            for d in range(2):
                for g in rd(s + d): g()
                issued.add(s + d)
        lg.wait(("xa", s))
        nxt = []
        if s + 2 < 16 and (s + 2) not in issued and can(s, s + 2):
            nxt = rd(s + 2); issued.add(s + 2)
        C = lambda r: "0" if s == 0 else V(r, 4)
        wq, wk, wv = A(12*s, 4), A(12*s+4, 4), A(12*s+8, 4)
        seq = []
        for u, t in enumerate(tiles):
            xa = V(B(s) + 4*u, 4)
            seq.append(f"{MF} {V(vKT+4*t,4)}, {wk}, {xa}, {C(vKT+4*t)}")
            seq.append(f"{MF} {V(vVV+4*t,4)}, {xa}, {wv}, {C(vVV+4*t)}")
            if t in qt: seq.append(f"{MF} {V(vQT+4*(t-1),4)}, {wq}, {xa}, {C(vQT+4*(t-1))}")
        a.weave(seq, nxt, fill.get(s, []))

def wb(tag):
    def f():
        prof(f"pre_{tag[0]}{tag[1]}")
        vm.wait(tag); barrier()
        prof(f"wb_{tag[0]}{tag[1]}")
    return f
def wb12():
    prof("pre_xs"); xs_partial(); vm.wait(("xA", 3)); barrier(); prof("wb_xA3")
preA = {0: (wb(("xA", 0)), True), 2: (wb(("xA", 1)), False), 6: (wb(("xA", 2)), False), 10: (wb12, False)}
fillA = {0: [dma3(TA, 2, "xA")], 2: [dma3(TA, 3, "xA")]}
for i in range(4): fillA[4 + 2*i] = [dma3(TB, i, "xB")]
qkv_pass(TA, [1, 2], preA, fillA)
prof("p3_gemmA")
a(f"v_lshlrev_b32 v{vT0}, 3, v{vLANE}")
a(f"v_add_u32 v{vT0}, {CB}, v{vT0}")
a(f"v_lshlrev_b32 v{vT1}, 3, v{vL15}")
a(f"v_add_u32 v{vT1}, {CB}, v{vT1}")
for i in range(4): a(f"ds_read_b64 {V(144+2*i,2)}, v{vT0} offset:{640*i + 128}")
for i in range(4): a(f"ds_read_b64 {V(152+2*i,2)}, v{vT1} offset:{640*i}")
ab_addr()
a("s_waitcnt lgkmcnt(0)")
tree(144, 4); tree(152, 4)
a(f"v_mov_b32 v146, v152\nv_mov_b32 v147, v153")
ab_write(144)
a("s_waitcnt lgkmcnt(0)")
attn_core("a1A", TA, [1, 2])
def o_store(h):
    tile_to_lds(48, 56, 2)
    a(f"s_add_u32 s{sT0}, s{sTILE}, {O3_OFF + 32768*h}")
    st2([f"buffer_store_dwordx4 {V(56,4)}, v{vT0}, {S4(SWS)}, s{sT0} offen"], sLOC, [("ost", h)])
vm.wait(("xB", 3))
o_store(0)
prof("a1A_done")
def sigA():
    vm.wait(("ost", 0)); barrier(); signal(8, group_sig(MB_S6A), True)
qkv_pass(TB, [3, 4], {0: (lambda: None, True), 9: (sigA, False)}, {})
prof("p3_gemmB")
vOD = 201
def oh_groups(h):
    def mk(i):
        def g():
            if i == 0:
                a(f"s_lshr_b32 s{sB0}, s{sW}, 1")
                a(f"s_lshl_b32 s{sB1}, s{sB0}, 14")
                a(f"v_add_u32 v{vOD+h}, s{sB1}, v{vXT[1 + 2*h]}")
                k_reset()
            a(f"s_add_u32 s{sB1}, s{sXo}, {O3_OFF}")
            a(f"s_add_u32 m0, s{sW1K}, {OIMG + 8192*i + 4096*h}")
            a(f"buffer_load_dwordx4 v{vOD+h}, {S4(SWS)}, s{sB1} offen{LSC} lds"); vm.issue(("o", h))
            a(f"s_add_u32 s{sXo}, s{sXo}, 128")
            a(f"s_and_b32 s{sXo}, s{sXo}, 1023")
        return g
    return [mk(i) for i in range(8)]
a.bg_start([async_poll(MB_S6A)], 60)
def fetch_o0():
    async_check(8, MB_S6A, "o3a")
    for g in oh_groups(0): g()
attn_core("a1B", TB, [3, 4], fetch_o0)
o_store(1)
prof("a1B_done")

PS1 = HC
def publish_half(h):
    a(f"v_and_b32 v{vT2}, 31, v{vLANE}")
    a(f"v_lshlrev_b32 v{vT2}, 3, v{vT2}")
    a(f"v_lshrrev_b32 v{vT1}, 5, v{vLANE}")
    a(f"v_lshl_add_u32 v{vT0}, v{vT1}, 12, v{vT2}")
    a(f"v_add_u32 v{vT0}, {PS1 + 256*h}, v{vT0}")
    for i in range(8): a(f"ds_read_b64 {V(vW+2*i,2)}, v{vT0} offset:{512*i}")
    peer_base(sT0, MB_ST + 512*h, 10)
    a(f"v_lshlrev_b32 v{vT2}, 1, v{vT2}")
    a(f"v_lshl_add_u32 v{vT2}, v{vT1}, {MB_SH}, v{vT2}")
    a("s_waitcnt lgkmcnt(0)")
    tree(vW, 8)
    a(f"v_mov_b32 v{vW+2}, v{vW}")
    a(f"v_mov_b32 v{vW+3}, v{vW+1}")
    a(f"v_permlane32_swap_b32 v{vW}, v{vW+2}")
    a(f"v_permlane32_swap_b32 v{vW+1}, v{vW+3}")
    a(f"v_pk_add_f32 {V(vW,2)}, {V(vW,2)}, {V(vW+2,2)}")
    a(f"v_mov_b32 v{vW+2}, s{sN}")
    a(f"v_mov_b32 v{vW+3}, s{sN+1}")
    st2([f"buffer_store_dwordx4 {V(vW,4)}, v{vT2}, {S4(SWS)}, s{sT0} offen"], sLOC)
def poll_half(h):
    a(f"v_and_b32 v{vT2}, 31, v{vLANE}")
    a(f"v_lshlrev_b32 v{vT2}, 4, v{vT2}")
    a(f"v_lshrrev_b32 v{vT1}, 5, v{vLANE}")
    a(f"v_lshl_add_u32 v{vT1}, v{vT1}, 10, v{vT2}")
    a(f"s_lshl_b32 s{sT1}, s{sW}, 11")
    a(f"s_add_u32 s{sT0}, s{sMB}, s{sT1}")
    a(f"s_add_u32 s{sT0}, s{sT0}, {MB_ST + 512*h}")
    L0, L1 = a.newlabel("L_ph"), a.newlabel("L_ph")
    a.flush()
    a(f"s_branch {L1}")
    a.label(L0)
    a("s_sleep 1")
    a.label(L1)
    a(f"buffer_load_dwordx4 {V(vW,4)}, v{vT1}, {S4(SWS)}, s{sT0} offen sc1")
    a("s_waitcnt vmcnt(0)")
    a(f"v_cmp_ne_u64 vcc, {S2(sN)}, {V(vW+2,2)}")
    a(f"s_cbranch_vccnz {L0}")
    vm.reset()
    a(f"v_mov_b32 v{vW+2}, v{vW}")
    a(f"v_mov_b32 v{vW+3}, v{vW+1}")
    a(f"v_permlane32_swap_b32 v{vW}, v{vW+2}")
    a(f"v_permlane32_swap_b32 v{vW+1}, v{vW+3}")
    a(f"v_pk_add_f32 {V(vW,2)}, {V(vW,2)}, {V(vW+2,2)}")
    a(f"s_lshl_b32 s{sT1}, s{sW}, 8")
    a(f"s_add_u32 s{sT1}, s{sT1}, {CB + 1024*h}")
    a(f"v_lshrrev_b32 v{vT2}, 1, v{vT2}")
    a(f"v_add_u32 v{vT2}, s{sT1}, v{vT2}")
    a(f"ds_write_b64 v{vT2}, {V(vW,2)}")
    a("s_waitcnt lgkmcnt(0)")
    barrier()
def finish_half(h):
    T = [2*h, 2*h + 1]
    a(f"v_lshlrev_b32 v{vT1}, 3, v{vL15}")
    a(f"v_add_u32 v{vT1}, {CB + 1024*h}, v{vT1}")
    for u in range(2):
        for i in range(4): a(f"ds_read_b64 {V(vW+8*u+2*i,2)}, v{vT1} offset:{256*i + 128*u}")
    a("s_waitcnt lgkmcnt(0)")
    for u in range(2): tree(vW + 8*u, 4)
    ln_math([(vW+8*u, vW+8*u+1, vW+8*u+2, vW+8*u+3, vW+8*u+4, vW+8*u+5) for u in range(2)])
    gate(T, lambda t: vW + 8*(t - 2*h) + 2)
    b = vX2 + 4*h
    a(f"v_permlane16_swap_b32 v{b}, v{b+2}")
    a(f"v_permlane16_swap_b32 v{b+1}, v{b+3}")
    a(f"v_and_b32 v{vT0}, 1, v{vQ}")
    a(f"v_lshl_add_u32 v{vT0}, v{vT0}, 4, v{vL15}")
    a(f"v_lshlrev_b32 v{vT0}, 10, v{vT0}")
    a(f"v_lshrrev_b32 v{vT1}, 1, v{vQ}")
    a(f"v_lshl_add_u32 v{vT0}, v{vT1}, 4, v{vT0}")
    a(f"s_lshl_b32 s{sT1}, s{sW}, 5")
    a(f"s_add_u32 s{sT1}, s{sT1}, s{sTILE}")
    if h: a(f"s_add_u32 s{sT1}, s{sT1}, 32768")
    a(f"buffer_store_dwordx4 {V(b,4)}, v{vT0}, {S4(SOUT)}, s{sT1} offen")

lg.reset()
a(f"v_add_u32 v{vOB}, {OIMG}, v{vF2}")
a(f"v_xor_b32 v{vOB+1}, 64, v{vOB}")
def pre40():
    vm.wait(("o", 0), ("ost", 1)); barrier(); signal(8, group_sig(MB_S6B), True)
op_gemm([0, 1], {0: pre40})
prof("p4_gemm0")
x1_stats([0, 1], PS1)
a("s_waitcnt lgkmcnt(0)")
barrier()
publish_half(0)
prof("p4_pub0")
poll(8, MB_S6B, "o3b")
prof("p4_owait")
for g in oh_groups(1): g()
poll_half(0)
prof("p4_st0")
lg.reset()
op_gemm([2, 3], {})
x1_stats([2, 3], PS1)
a("s_waitcnt lgkmcnt(0)")
barrier()
publish_half(1)
prof("p4_pub1")
finish_half(0)
prof("p4_fin0")
poll_half(1)
prof("p4_st1")
finish_half(1)
prof("final")
a.label("L_end")
a("s_endpgm")
a.raw('.section .rodata,"a"')
a.raw(kernel_desc(NAME, 512, 102, 256))
out = sys.argv[1] if len(sys.argv) > 1 else "interleave_layers__sliding_local_dilated__ssm_conv_h3__prompt.s"
open(out, "w").write(a.text())
print("wrote", out, "lines", len(a.lines), "pad states", a.npad)
```

```python
import sys, os
sys.path.insert(0, os.path.dirname(os.path.abspath(__file__)))
from asmlib import *

NAME = "interleave_layers__sliding_local_dilated__ssm_conv_h3__prompt_kernel"
STAGE = int(os.environ.get("STAGE", "9"))
PROF = int(os.environ.get("PROF", "0"))
ENV = lambda k, d: int(os.environ.get(k, str(d)))

KVT_OFF = 0
YT_OFF = KVT_OFF
O1_OFF = 4 << 20
PLD = int(os.environ.get("PLD", "0"))
LSC = "" if PLD else " sc1"
X2_OFF = (6 << 20) if PLD else O1_OFF
O3_OFF = 8 << 20
HL_OFF = 10 << 20
MB_OFF = 16 << 20
MB_SH = 15
MB_SZ = 1 << MB_SH
MB_F = 24576
MB_S1, MB_S3, MB_ID = 64, 16, 96
MB_S2, MB_S5, MB_S6A, MB_S6B = MB_F, MB_F + 16, MB_F + 32, MB_F + 48
MB_XS = 12288
MB_XH = 20480
MB_ST = 4096
PROF_OFF = 32 << 20

XIMG = 0
WRING = 81920
NSLOT = 6
WOIMG = 0
UR, URP = 65536, 4608
HC, HCP = 74752, 4160
ACCX = HC
YTT = HC
PS = HC + 8192
OT0 = PS
OT1 = 155648
MISC = 91392
ABW = MISC + 1024
OIMG = 98304
Y1T = 155648

sB, sW, sG, sJ, sKK0, sJY = 2, 3, 4, 5, 6, 7
SX, SWQ, SWO, SK_, SV_, SH, SOUT, SDBG, SWS, SX2, SSK = 8, 12, 16, 20, 24, 28, 32, 36, 40, 44, 48
sD = 52
sPAR, sMC0, sMC1 = 54, 56, 58
sL = 60
sT0, sT1, sT2, sT3, sT4 = 61, 62, 63, 64, 75
sW1K, sW16K, sW5K, sMB = 65, 66, 67, 68
sTILE = 69
sEX = 72
sN = 78
sXo, sW3K, sW64, sXx = 80, 81, 82, 83
sL0 = 84
sTP = 86
sLOC, sLOC2, sXCC = 74, 76, 77
sB0, sB1 = 70, 71
sPT = 92

def S4(n): return f"s[{n}:{n+3}]"
def S2(n): return f"s[{n}:{n+1}]"
def V(n, k=1): return f"v{n}" if k == 1 else f"v[{n}:{n+k-1}]"
def A(n, k=1): return f"a{n}" if k == 1 else f"a[{n}:{n+k-1}]"

vTID, vLANE, vL15, vQ = 0, 1, 2, 3
vA0, vA1, vS0, vS1, vSH, vTR, vXD, vXDH, vWD = 4, 5, 6, 7, 8, 9, 10, 11, 12
vT0, vT1, vT2 = 13, 14, 15
vQT, vKT, vVV = 16, 32, 52
vXA = 84
vSO = 124
vSHF = 132
vONE = 136
vXDW, vF2, vL128, vD2 = 140, 141, 142, 143
yH = 144
vST = 196
vPL = 214
vNL = 220
vP0 = 222
vCS = 224
vTRW0, vTRW1, vWOD, vFR = 236, 237, 238, 239
vX2, vYY = 240, 248

a = Asm()
vm = Cnt(a, "vmcnt", 63)
lg = Cnt(a, "lgkmcnt", 15)
prof_idx = [0]
PARM, MC = S2(sPAR), [S2(sMC0), S2(sMC1)]

DBGTAGS = ["start", "y1done", "p1gemm", "a0_done", "y2", "p0_pub", "p0_stats", "p0_done", "p3_wait", "p3_gemm", "a1_done", "p1_gemm", "final"]
def prof_dbg(tag):
    if tag not in DBGTAGS: return
    e = a.bg_pause()
    i = DBGTAGS.index(tag)
    L = a.newlabel("L_pd")
    a(f"s_cmp_lg_u32 s{sL}, 37")
    a(f"s_cbranch_scc1 {L}")
    a(f"s_memtime {S2(sPT)}")
    if tag in ("start", "final"): a(f"s_memrealtime {S2(sPT+2)}")
    a("s_waitcnt lgkmcnt(0)")
    if tag == "start":
        a(f"s_mov_b32 s100, s{sPT}")
        a(f"s_mov_b32 s101, s{sPT+2}")
    a(f"s_sub_u32 s{sPT}, s{sPT}, s100")
    a(f"v_mov_b32 v218, s{sPT}")
    a(f"v_mov_b32 v219, {12 + 4*i}")
    a(f"v_cmp_eq_u32 {S2(sPT+6)}, 0, v{vTID}")
    a(f"s_and_saveexec_b64 {S2(sPT+4)}, {S2(sPT+6)}")
    a(f"buffer_store_dword v218, v219, {S4(SDBG)}, 0 offen")
    if tag == "final":
        a(f"s_sub_u32 s{sPT+2}, s{sPT+2}, s101")
        a(f"v_mov_b32 v218, s{sPT+2}")
        a(f"v_mov_b32 v219, 8")
        a(f"buffer_store_dword v218, v219, {S4(SDBG)}, 0 offen")
    a(f"s_mov_b64 exec, {S2(sPT+4)}")
    a.flush()
    a.label(L)
    a("s_waitcnt lgkmcnt(0)")
    lg.reset()
    a.bg_resume(e)

def prof(tag):
    if not PROF: return
    if PROF == 2: return prof_dbg(tag)
    e = a.bg_pause()
    i = prof_idx[0]; prof_idx[0] += 1
    a(f"s_memrealtime {S2(sPT)}" if PROF == 3 else f"s_memtime {S2(sPT)}")
    a("s_waitcnt lgkmcnt(0)")
    lg.reset()
    a(f"v_mov_b32 v218, s{sPT}")
    a(f"s_lshl_b32 s{sPT+2}, s{sL}, 9")
    a(f"s_add_u32 s{sPT+2}, s{sPT+2}, {PROF_OFF + 4*i}")
    a(f"v_mov_b32 v219, 0")
    a(f"v_cmp_eq_u32 {S2(sPT+6)}, 0, v{vTID}")
    a(f"s_and_saveexec_b64 {S2(sPT+4)}, {S2(sPT+6)}")
    a(f"buffer_store_dword v218, v219, {S4(SWS)}, s{sPT+2} offen")
    a(f"s_mov_b64 exec, {S2(sPT+4)}")
    vm.issue("prof")
    a.bg_resume(e)

def set_exec(n):
    a(f"s_mov_b32 exec_lo, {hex((1 << min(n,32)) - 1)}")
    a(f"s_mov_b32 exec_hi, {hex((1 << (n-32)) - 1) if n > 32 else 0}")

def barrier(): a("s_barrier")

FAST = ENV("FAST", 1)
def st2(lines, loc, tags=()):
    e = a.bg_pause()
    if not FAST:
        for l in lines: a(l + " sc1")
    else:
        Lp, Le = a.newlabel("L_sp"), a.newlabel("L_se")
        a(f"s_cmp_lg_u32 s{loc}, 0")
        a(f"s_cbranch_scc1 {Lp}")
        for l in lines: a(l + " sc1")
        a(f"s_branch {Le}")
        a.label(Lp)
        for l in lines: a(l)
        a.label(Le)
    for t in tags: vm.issue(t)
    a.bg_resume(e)

def poll(n, mboff, name, exec_set=False):
    L = a.newlabel("L_poll_" + name)
    if not exec_set: set_exec(n)
    a(f"s_add_u32 s{sT0}, s{sMB}, {mboff}")
    a.flush()
    a.label(L)
    a(f"buffer_load_dwordx2 {V(vP0,2)}, v{vL128}, {S4(SWS)}, s{sT0} offen sc1")
    a("s_waitcnt vmcnt(0)")
    a(f"v_cmp_ne_u64 vcc, {S2(sN)}, {V(vP0,2)}")
    a(f"s_cbranch_vccnz {L}")
    a("s_mov_b64 exec, -1")
    vm.reset()

def async_poll(mboff):
    def g():
        a(f"s_add_u32 s{sB0}, s{sMB}, {mboff}")
        a(f"buffer_load_dwordx2 {V(vPL,2)}, v{vL128}, {S4(SWS)}, s{sB0} offen sc1"); vm.issue("apoll")
    return g

def async_check(n, mboff, name):
    L = a.newlabel("L_achk")
    vm.wait("apoll")
    set_exec(n)
    a(f"v_cmp_ne_u64 vcc, {S2(sN)}, {V(vPL,2)}")
    a("s_mov_b64 exec, -1")
    a(f"s_cbranch_vccz {L}")
    q = list(vm.q)
    poll(n, mboff, name)
    vm.q = q
    a.flush()
    a.label(L)

def signal(n, addr_code, loc=None):
    L = a.newlabel("L_sig")
    a(f"s_cmp_lg_u32 s{sW}, 0")
    a(f"s_cbranch_scc1 {L}")
    a(addr_code)
    a(f"v_mov_b32 v{vP0}, s{sN}")
    a(f"v_mov_b32 v{vP0+1}, s{sN+1}")
    ln = f"buffer_store_dwordx2 {V(vP0,2)}, v{vT1}, {S4(SWS)}, 0 offen"
    if loc is None:
        set_exec(n)
        a(ln + " sc1")
    else:
        set_exec(8)
        st2([ln], sLOC)
        if n > 8:
            a("s_mov_b32 exec_lo, 0xff00")
            st2([ln], sLOC2)
    a("s_mov_b64 exec, -1")
    a.flush()
    a.label(L)

def group_sig(mboff, n=8):
    extra = f"v_and_b32 v{vT2}, 8, v{vLANE}\nv_lshl_add_u32 v{vT1}, v{vT2}, 7, v{vT1}\n" if n > 8 else ""
    return f"""s_lshl_b32 s{sT0}, s{sG}, 3
v_add_u32 v{vT1}, s{sT0}, v{vLANE}
v_lshlrev_b32 v{vT1}, {MB_SH}, v{vT1}
{extra}s_lshl_b32 s{sT0}, s{sJ}, 7
s_add_u32 s{sT0}, s{sT0}, {MB_OFF + mboff}
v_add_u32 v{vT1}, s{sT0}, v{vT1}"""

def allreduce(op, regs, tmps):
    for sw in ("v_permlane16_swap_b32", "v_permlane32_swap_b32"):
        for r, t in zip(regs, tmps): a(f"v_mov_b32 v{t}, v{r}")
        for r, t in zip(regs, tmps): a(f"{sw} v{r}, v{t}")
        for r, t in zip(regs, tmps): a(f"{op} v{r}, v{r}, v{t}")

def ln_math(sets):
    steps = [
        "v_mul_f32 v{t0}, 0x3b000000, v{S}", "v_mul_f32 v{t1}, 0x3b000000, v{SS}",
        "v_fma_f32 v{t1}, -v{t0}, v{t0}, v{t1}", "v_max_f32 v{t1}, 0, v{t1}",
        "v_cvt_pk_bf16_f32 v{t0}, v{t0}, v{t1}", "v_and_b32 v{t1}, 0xffff0000, v{t0}",
        "v_lshlrev_b32 v{t0}, 16, v{t0}", "v_add_f32 v{t1}, 0x3727c5ac, v{t1}",
        "v_cvt_pk_bf16_f32 v{t1}, v{t1}, v{t1}", "v_lshlrev_b32 v{t1}, 16, v{t1}",
        "v_sqrt_f32 v{t1}, v{t1}", "v_cvt_pk_bf16_f32 v{t1}, v{t1}, v{t1}",
        "v_lshlrev_b32 v{t1}, 16, v{t1}", "v_rcp_f32 v{A}, v{t1}",
        "v_mul_f32 v{B}, -v{t0}, v{A}"]
    for st in steps:
        for (S, SS, A_, B_, t0, t1) in sets:
            a(st.format(S=S, SS=SS, A=A_, B=B_, t0=t0, t1=t1))

def ldsg(line, tag):
    def g(): a(line); lg.issue(tag)
    return g
def vmg(line, tag):
    def g(): a(line); vm.issue(tag)
    return g

def tile_to_lds(src, tmp, nt=4, mid=None, OT=OT0):
    a(f"v_lshrrev_b32 v{vT0}, 1, v{vQ}")
    a(f"s_lshl_b32 s{sT0}, s{sW}, 1")
    a(f"v_add_u32 v{vT0}, s{sT0}, v{vT0}")
    a(f"v_and_b32 v{vT1}, 7, v{vL15}")
    a(f"v_xor_b32 v{vT0}, v{vT0}, v{vT1}")
    a(f"v_lshlrev_b32 v{vT0}, 4, v{vT0}")
    a(f"v_lshl_add_u32 v{vT0}, v{vL15}, 7, v{vT0}")
    a(f"v_and_b32 v{vT1}, 1, v{vQ}")
    a(f"v_lshl_add_u32 v{vT0}, v{vT1}, 3, v{vT0}")
    a(f"v_add_u32 v{vT0}, {OT}, v{vT0}")
    for t in range(nt):
        a(f"ds_write_b64 v{vT0}, {V(src+2*t,2)} offset:{2048*t}")
    if mid: mid()
    a(f"v_lshlrev_b32 v{vT1}, 4, v{vTID}")
    a(f"v_add_u32 v{vT1}, {OT}, v{vT1}")
    a(f"v_lshrrev_b32 v{vT2}, 3, v{vTID}")
    a(f"v_xor_b32 v{vT0}, v{vTID}, v{vT2}")
    a(f"v_and_b32 v{vT0}, 7, v{vT0}")
    a(f"v_lshlrev_b32 v{vT0}, 4, v{vT0}")
    a(f"v_lshl_add_u32 v{vT0}, v{vT2}, 10, v{vT0}")
    a("s_waitcnt lgkmcnt(0)")
    barrier()
    for i in range(nt // 2):
        a(f"ds_read_b128 {V(tmp+4*i,4)}, v{vT1} offset:{4096*i}")
    a("s_waitcnt lgkmcnt(0)")

a.raw("; @launch grid=(256,1,1) block=(256,1,1) lds=163840")
a.raw('.amdgcn_target "amdgcn-amd-amdhsa--gfx950"\n.text')
a.raw(kernel_header(NAME))
a(f"s_cmp_ge_u32 s{sB}, 256")
a("s_cbranch_scc1 L_end")
a("s_load_dwordx16 s[76:91], s[0:1], 0")
a("s_load_dwordx8 s[92:99], s[0:1], 64")
a(f"v_and_b32 v{vLANE}, 63, v{vTID}")
a(f"v_lshrrev_b32 v{vT0}, 6, v{vTID}")
a(f"v_and_b32 v{vL15}, 15, v{vTID}")
a(f"v_readfirstlane_b32 s{sW}, v{vT0}")
a(f"v_bfe_u32 v{vQ}, v{vTID}, 4, 2")
a(f"v_lshlrev_b32 v{vA0}, 4, v{vLANE}")
a(f"v_lshrrev_b32 v{vT0}, 2, v{vL15}")
a(f"v_and_b32 v{vT0}, 2, v{vT0}")
a(f"v_xor_b32 v{vT0}, v{vT0}, v{vQ}")
a(f"v_lshlrev_b32 v{vFR}, 6, v{vL15}")
a(f"v_lshl_add_u32 v{vFR}, v{vT0}, 4, v{vFR}")
a(f"v_add_u32 v{vA1}, 40960, v{vFR}")
a(f"v_lshlrev_b32 v{vL128}, 7, v{vLANE}")
a(f"v_and_b32 v{vL128}, 0xfff, v{vL128}")
MAPNJ = ENV("MAPNJ", 8)
a(f"s_and_b32 s{sT0}, s{sB}, 7")
a(f"s_lshr_b32 s{sT1}, s{sB}, 3")
if ENV("SLOTPERM", 0):
    a(f"s_and_b32 s{sT2}, s{sT1}, 3")
    a(f"s_lshl_b32 s{sT2}, s{sT2}, 3")
    a(f"s_lshr_b32 s{sT1}, s{sT1}, 2")
    a(f"s_add_u32 s{sT1}, s{sT1}, s{sT2}")
if MAPNJ == 8:
    a(f"s_lshr_b32 s{sT2}, s{sT1}, 3")
    a(f"s_lshl_b32 s{sG}, s{sT0}, 2")
    a(f"s_add_u32 s{sG}, s{sG}, s{sT2}")
    a(f"s_and_b32 s{sJ}, s{sT1}, 7")
    a(f"s_lshl_b32 s{sKK0}, s{sT2}, 2")
    a(f"s_lshl_b32 s{sT2}, s{sJ}, 1")
    a(f"s_add_u32 s{sKK0}, s{sKK0}, s{sT2}")
    a(f"s_and_b32 s{sT2}, s{sT0}, 2")
    a(f"s_add_u32 s{sKK0}, s{sKK0}, s{sT2}")
elif MAPNJ == 4:
    a(f"s_lshr_b32 s{sG}, s{sT0}, 1")
    a(f"s_lshl_b32 s{sG}, s{sG}, 3")
    a(f"s_lshr_b32 s{sT2}, s{sT1}, 2")
    a(f"s_add_u32 s{sG}, s{sG}, s{sT2}")
    a(f"s_and_b32 s{sJ}, s{sT0}, 1")
    a(f"s_lshl_b32 s{sJ}, s{sJ}, 2")
    a(f"s_and_b32 s{sT3}, s{sT1}, 3")
    a(f"s_add_u32 s{sJ}, s{sJ}, s{sT3}")
    a(f"s_lshl_b32 s{sKK0}, s{sT2}, 1")
    a(f"s_lshl_b32 s{sT3}, s{sT3}, 2")
    a(f"s_add_u32 s{sKK0}, s{sKK0}, s{sT3}")
    a(f"s_lshr_b32 s{sT2}, s{sT0}, 2")
    a(f"s_add_u32 s{sKK0}, s{sKK0}, s{sT2}")
elif MAPNJ == 2:
    a(f"s_lshr_b32 s{sG}, s{sT0}, 2")
    a(f"s_lshl_b32 s{sG}, s{sG}, 4")
    a(f"s_lshr_b32 s{sT2}, s{sT1}, 1")
    a(f"s_add_u32 s{sG}, s{sG}, s{sT2}")
    a(f"s_and_b32 s{sJ}, s{sT0}, 3")
    a(f"s_lshl_b32 s{sJ}, s{sJ}, 1")
    a(f"s_and_b32 s{sT3}, s{sT1}, 1")
    a(f"s_add_u32 s{sJ}, s{sJ}, s{sT3}")
    a(f"s_lshl_b32 s{sT3}, s{sJ}, 1")
    a(f"s_add_u32 s{sKK0}, s{sT2}, s{sT3}")
if ENV("NOROT", 0): a(f"s_mov_b32 s{sKK0}, 0")
a(f"s_and_b32 s{sKK0}, s{sKK0}, 15")
a(f"s_lshl_b32 s{sL}, s{sG}, 3")
a(f"s_add_u32 s{sL}, s{sL}, s{sJ}")
a(f"s_add_u32 s{sJY}, s{sJ}, {ENV('JYOFF', 4)}")
a(f"s_and_b32 s{sJY}, s{sJY}, 7")
a(f"s_lshl_b32 s{sW1K}, s{sW}, 10")
a(f"s_lshl_b32 s{sW16K}, s{sW}, 14")
a(f"s_mul_i32 s{sW5K}, s{sW}, 5120")
a(f"s_lshl_b32 s{sMB}, s{sL}, {MB_SH}")
a(f"s_add_u32 s{sMB}, s{sMB}, {MB_OFF}")
a(f"s_lshl_b32 s{sTILE}, s{sG}, 16")
a(f"s_lshl_b32 s{sT1}, s{sJ}, 7")
a(f"s_add_u32 s{sTILE}, s{sTILE}, s{sT1}")
a(f"v_add_u32 v{vS0}, s{sW1K}, v{vFR}")
a(f"v_add_u32 v{vS0}, 1024, v{vS0}")
a(f"v_add_u32 v{vS1}, 40960, v{vS0}")
a(f"v_add_u32 v{vSH}, s{sW5K}, v{vFR}")
a(f"v_lshrrev_b32 v{vT1}, 5, v{vLANE}")
a(f"v_lshlrev_b32 v{vTR}, 10, v{vT1}")
a(f"v_bfe_u32 v{vT0}, v{vLANE}, 2, 3")
a(f"v_lshl_add_u32 v{vTR}, v{vT0}, 7, v{vTR}")
a(f"v_lshrrev_b32 v{vT0}, 1, v{vT0}")
a(f"v_xor_b32 v{vT0}, s{sW}, v{vT0}")
a(f"v_lshl_add_u32 v{vTR}, v{vT0}, 5, v{vTR}")
a(f"v_and_b32 v{vT0}, 3, v{vLANE}")
a(f"v_lshl_add_u32 v{vTR}, v{vT0}, 3, v{vTR}")
a(f"v_lshl_add_u32 v{vTRW0}, v{vT1}, 11, v{vTR}")
a(f"v_add_u32 v{vTRW1}, {WRING + 36864}, v{vTRW0}")
a(f"v_add_u32 v{vTRW0}, {WRING}, v{vTRW0}")
a(f"v_lshrrev_b32 v{vT0}, 2, v{vLANE}")
a(f"v_lshlrev_b32 v{vXD}, 10, v{vT0}")
a(f"v_lshrrev_b32 v{vT1}, 4, v{vLANE}")
a(f"v_and_b32 v{vT1}, 2, v{vT1}")
a(f"v_and_b32 v{vT0}, 3, v{vLANE}")
a(f"v_xor_b32 v{vT0}, v{vT0}, v{vT1}")
a(f"v_lshl_add_u32 v{vXD}, v{vT0}, 4, v{vXD}")
a(f"s_lshl_b32 s{sT0}, s{sG}, 16")
a(f"v_add_u32 v{vXD}, s{sT0}, v{vXD}")
a(f"v_add_u32 v{vXDH}, {-16384 & 0xffffffff}, v{vXD}")
a(f"v_add_u32 v{vXDW}, s{sW16K}, v{vXD}")
a(f"v_bfe_u32 v{vT0}, v{vLANE}, 3, 2")
a(f"v_lshrrev_b32 v{vT1}, 5, v{vLANE}")
a(f"v_lshl_add_u32 v{vT0}, v{vT1}, 3, v{vT0}")
a(f"s_and_b32 s{sT0}, s{sW}, 1")
a(f"s_lshl_b32 s{sT0}, s{sT0}, 4")
a(f"s_lshr_b32 s{sT1}, s{sW}, 1")
a(f"s_lshl_b32 s{sT1}, s{sT1}, 2")
a(f"s_add_u32 s{sT0}, s{sT0}, s{sT1}")
a(f"v_add_u32 v{vT0}, s{sT0}, v{vT0}")
a(f"v_lshrrev_b32 v{vT1}, 4, v{vLANE}")
a(f"v_lshlrev_b32 v{vT1}, 1, v{vT1}")
a(f"v_and_b32 v{vT2}, 7, v{vLANE}")
a(f"v_xor_b32 v{vT1}, v{vT1}, v{vT2}")
a(f"v_lshlrev_b32 v{vT1}, 4, v{vT1}")
a(f"s_lshl_b32 s{sT0}, s{sJ}, 7")
a(f"v_add_u32 v{vT1}, s{sT0}, v{vT1}")
a(f"v_lshl_add_u32 v{vWOD}, v{vT0}, 10, v{vT1}")
a(f"v_mul_u32_u24 v{vWD}, 3072, v{vT0}")
a(f"v_add_u32 v{vWD}, v{vWD}, v{vT1}")
a(f"v_lshrrev_b32 v{vT0}, 1, v{vL15}")
a(f"v_xor_b32 v{vT0}, v{vT0}, v{vQ}")
a(f"v_lshlrev_b32 v{vF2}, 7, v{vL15}")
a(f"v_lshl_add_u32 v{vF2}, v{vT0}, 4, v{vF2}")
a(f"v_lshrrev_b32 v{vT0}, 3, v{vLANE}")
a(f"v_lshrrev_b32 v{vT1}, 4, v{vLANE}")
a(f"v_and_b32 v{vT2}, 7, v{vLANE}")
a(f"v_xor_b32 v{vT1}, v{vT1}, v{vT2}")
a(f"v_lshlrev_b32 v{vD2}, 10, v{vT0}")
a(f"v_lshl_add_u32 v{vD2}, v{vT1}, 4, v{vD2}")
a(f"s_lshl_b32 s{sT0}, s{sG}, 16")
a(f"v_add_u32 v{vD2}, s{sT0}, v{vD2}")
a(f"v_and_b32 v{vT0}, 1, v{vLANE}")
a(f"v_cmp_eq_u32 {PARM}, 1, v{vT0}")
a(f"v_lshl_add_u32 v{vT1}, v{vQ}, 2, v{vT0}")
a(f"v_cmp_le_u32 {MC[0]}, v{vT1}, v{vL15}")
a(f"v_add_u32 v{vT1}, 2, v{vT1}")
a(f"v_cmp_le_u32 {MC[1]}, v{vT1}, v{vL15}")
for i in range(4):
    a(f"v_mov_b32 v{vONE+i}, 0x3f803f80")
a("s_waitcnt lgkmcnt(0)")
P = lambda i: 76 + 2 * i
srd(a, SX, P(0), 2048 * 1024)
srd(a, SWQ, P(1), 512 * 3072)
srd(a, SWO, P(2), 512 * 1024)
srd(a, SK_, P(4), 2048 * 1024)
srd(a, SV_, P(5), 2048 * 1024)
srd(a, SSK, P(6), 4096)
srd(a, SH, P(7), 512 * 4096)
srd(a, SOUT, P(9), 2048 * 1024)
srd(a, SDBG, P(10), 256)
srd(a, SWS, P(11), 1 << 28)
srd(a, SX2, P(11), 2048 * 1024, off=X2_OFF)
a(f"s_lshl_b32 s{sT0}, s{sL}, 2")
a(f"s_load_dword s{sD}, {S2(P(8))}, s{sT0}")
a("s_waitcnt lgkmcnt(0)") if PROF else None
a(f"s_mul_i32 s{sT3}, s{sW}, 3072")
a(f"s_lshl_b32 s{sT4}, s{sW}, 6")

def k_reset(): a(f"s_lshl_b32 s{sXo}, s{sKK0}, 6")
def k_next():
    a(f"s_add_u32 s{sXo}, s{sXo}, 64")
    a(f"s_and_b32 s{sXo}, s{sXo}, 1023")
def kx_next():
    a(f"s_add_u32 s{sXx}, s{sXx}, 64")
    a(f"s_and_b32 s{sXx}, s{sXx}, 1023")
def dma_x_groups(s, srd_):
    sc = " sc1" if srd_ == SX2 else ""
    def g1():
        a(f"s_add_u32 m0, s{sW1K}, {XIMG + (s*5+1)*1024}")
        a(f"buffer_load_dwordx4 v{vXDW}, {S4(srd_)}, s{sXx} offen{sc} lds"); vm.issue(("x", s))
        if s % 4: kx_next()
    def g2():
        a(f"s_add_u32 s{sB0}, s{sXx}, s{sW64}")
        a(f"s_and_b32 s{sB0}, s{sB0}, 1023")
        a(f"s_add_u32 m0, s{sW5K}, {XIMG + s*5*1024}")
        a(f"buffer_load_dwordx4 v{vXDH}, {S4(srd_)}, s{sB0} offen{sc} lds"); vm.issue(("h", s // 4))
        kx_next()
    return [g1, g2] if s % 4 == 0 else [g1]
def dma_w_groups(s):
    def g():
        a(f"s_mul_i32 s{sB1}, s{sXo}, 1536")
        a(f"s_add_u32 m0, s{sW3K}, {WRING + (s % NSLOT)*12288}")
        for p in range(3):
            a(f"buffer_load_dwordx4 v{vWD}, {S4(SWQ)}, s{sB1} offen offset:{1024*p} lds"); vm.issue(("w", s))
    return [g]
def wo_group(i):
    def g():
        a(f"s_lshl_b32 s{sB1}, s{sXo}, 9")
        a(f"s_add_u32 m0, s{sW1K}, {WOIMG + i*4096}")
        a(f"buffer_load_dwordx4 v{vWOD}, {S4(SWO)}, s{sB1} offen lds"); vm.issue("wo")
        k_next()
    return g
def touch_tile(off):
    def g():
        a(f"s_add_u32 s{sB0}, s{sTILE}, s{sW16K}")
        a(f"s_add_u32 s{sB0}, s{sB0}, {off}")
        a(f"v_lshlrev_b32 v217, 10, v{vL15}")
        a(f"buffer_load_dword v216, v217, {S4(SWS)}, s{sB0} offen sc1"); vm.issue("pt")
    return g
def touch_xs():
    a(f"s_lshl_b32 s{sB0}, s{sW}, 10")
    a(f"s_add_u32 s{sB0}, s{sB0}, s{sMB}")
    a(f"s_add_u32 s{sB0}, s{sB0}, {MB_XS}")
    a(f"v_and_b32 v217, 7, v{vLANE}")
    a(f"v_lshlrev_b32 v217, 7, v217")
    a(f"buffer_load_dword v216, v217, {S4(SWS)}, s{sB0} offen sc1"); vm.issue("pt")
    a(f"s_add_u32 s{sB0}, s{sMB}, {MB_XH}")
    a(f"buffer_load_dword v216, v217, {S4(SWS)}, s{sB0} offen sc1"); vm.issue("pt")
def h_group():
    a(f"v_lshlrev_b32 v{vT0}, 4, v{vTID}")
    a(f"s_lshl_b32 s{sB0}, s{sL}, 13")
    for c in range(2):
        if c: a(f"s_add_u32 s{sB0}, s{sB0}, 4096")
        a(f"buffer_load_dwordx4 {V(yH+8*c,4)}, v{vT0}, {S4(SH)}, s{sB0} offen"); vm.issue("h")
        a(f"buffer_load_dword v{yH+8*c+4}, v{vT0}, {S4(SH)}, s{sB0} offen offset:16"); vm.issue("h")
yK, yV, ySK, yA = 144, 164, 172, 188
def y1_loads():
    a.comment("Y1 loads: thread -> c8 = tid&7 (8 channels), rp = tid>>3 (row pair)")
    a(f"v_and_b32 v{vT0}, 7, v{vTID}")
    a(f"v_lshrrev_b32 v{vT1}, 3, v{vTID}")
    a(f"v_lshlrev_b32 v{vT2}, 11, v{vT1}")
    a(f"v_lshl_add_u32 v{vT2}, v{vT0}, 4, v{vT2}")
    a(f"s_lshl_b32 s{sT0}, s{sG}, 16")
    a(f"s_lshl_b32 s{sT1}, s{sJY}, 7")
    a(f"s_add_u32 s{sT0}, s{sT0}, s{sT1}")
    a(f"v_add_u32 v{vT2}, s{sT0}, v{vT2}")
    for i in range(5): a(f"v_add_u32 v{yA+i}, {(i-3)*1024}, v{vT2}")
    a(f"s_lshl_b32 s{sT1}, s{sJY}, 9")
    a(f"v_lshlrev_b32 v{yA+5}, 6, v{vT0}")
    for i in range(5):
        a(f"buffer_load_dwordx4 {V(yK+4*i,4)}, v{yA+i}, {S4(SK_)}, 0 offen"); vm.issue("y1")
    for i in range(2):
        a(f"buffer_load_dwordx4 {V(yV+4*i,4)}, v{yA+3+i}, {S4(SV_)}, 0 offen"); vm.issue("y1")
    for i in range(4):
        a(f"buffer_load_dwordx4 {V(ySK+4*i,4)}, v{yA+5}, {S4(SSK)}, s{sT1} offen offset:{16*i}"); vm.issue("y1")
def y1_compute():
    a.comment("Y1 compute")
    vm.wait("y1")
    R, TP, VVv, K0, K1 = 240, 188, 250, 254, 212
    yO = lambda i: yK + (i >> 1) + 4 * (i & 1)
    for m in range(4):
        for i in range(5):
            a(f"v_lshlrev_b32 v{R+2*i}, 16, v{yK+4*i+m}")
            a(f"v_and_b32 v{R+2*i+1}, 0xffff0000, v{yK+4*i+m}")
        for c in range(2):
            a(f"v_lshlrev_b32 v{TP+0+c}, 16, v{ySK+4*m+2*c}")
            a(f"v_and_b32 v{TP+2+c}, 0xffff0000, v{ySK+4*m+2*c}")
            a(f"v_lshlrev_b32 v{TP+4+c}, 16, v{ySK+4*m+2*c+1}")
            a(f"v_and_b32 v{TP+6+c}, 0xffff0000, v{ySK+4*m+2*c+1}")
        for i in range(2):
            a(f"v_lshlrev_b32 v{VVv+2*i}, 16, v{yV+4*i+m}")
            a(f"v_and_b32 v{VVv+2*i+1}, 0xffff0000, v{yV+4*i+m}")
        for (Kx, r0) in ((K0, 0), (K1, 1)): a(f"v_pk_mul_f32 {V(Kx,2)}, {V(R+2*r0,2)}, {V(TP+6,2)}")
        for d in (1, 2, 3):
            for (Kx, r0) in ((K0, 0), (K1, 1)):
                a(f"v_pk_fma_f32 {V(Kx,2)}, {V(R+2*(r0+d),2)}, {V(TP+6-2*d,2)}, {V(Kx,2)}")
        for Kx in (K0, K1):
            a(f"v_cvt_pk_bf16_f32 v{Kx+1}, v{Kx}, v{Kx+1}")
            a(f"v_lshlrev_b32 v{Kx}, 16, v{Kx+1}")
            a(f"v_and_b32 v{Kx+1}, 0xffff0000, v{Kx+1}")
        a(f"v_pk_mul_f32 {V(K0,2)}, {V(K0,2)}, {V(VVv,2)}")
        a(f"v_pk_mul_f32 {V(K1,2)}, {V(K1,2)}, {V(VVv+2,2)}")
        a(f"v_cvt_pk_bf16_f32 v{yO(2*m)}, v{K1}, v{K0}")
        a(f"v_cvt_pk_bf16_f32 v{yO(2*m+1)}, v{K1+1}, v{K0+1}")
    a(f"v_and_b32 v{vT0}, 7, v{vTID}")
    a(f"v_lshrrev_b32 v{vT1}, 3, v{vTID}")
    a(f"v_sub_u32 v{vT1}, 31, v{vT1}")
    a(f"v_lshlrev_b32 v{vT2}, 2, v{vT0}")
    a(f"v_xor_b32 v{vT1}, v{vT1}, v{vT2}")
    a(f"v_lshlrev_b32 v{vT1}, 2, v{vT1}")
    a(f"v_lshl_add_u32 v{vT1}, v{vT0}, 10, v{vT1}")
    a(f"v_add_u32 v{vT1}, {Y1T}, v{vT1}")
    for i in range(8): a(f"ds_write_b32 v{vT1}, v{yO(i)} offset:{128*i}")
    a(f"v_lshrrev_b32 v{vT0}, 3, v{vTID}")
    a(f"v_and_b32 v{vT1}, 7, v{vTID}")
    a(f"v_lshrrev_b32 v{vT2}, 3, v{vT0}")
    a(f"v_xor_b32 v{TP}, v{vT1}, v{vT2}")
    a(f"v_lshlrev_b32 v{TP}, 4, v{TP}")
    a(f"v_lshl_add_u32 v{TP}, v{vT0}, 7, v{TP}")
    a(f"v_add_u32 v{TP}, {Y1T}, v{TP}")
    a(f"v_xor_b32 v{TP+1}, 64, v{TP}")
    a(f"v_lshlrev_b32 v{TP+2}, 12, v{vT0}")
    a(f"v_lshl_add_u32 v{TP+2}, v{vT1}, 4, v{TP+2}")
    a(f"s_lshl_b32 s{sT0}, s{sJY}, 18")
    a(f"s_lshl_b32 s{sT1}, s{sG}, 7")
    a(f"s_sub_u32 s{sT0}, s{sT0}, s{sT1}")
    a(f"s_add_u32 s{sT0}, s{sT0}, {KVT_OFF + 3968}")
    a(f"s_add_u32 s{sT1}, s{sT0}, {32*4096}")
    a("s_waitcnt lgkmcnt(0)")
    barrier()
    a(f"ds_read_b128 {V(yV,4)}, v{TP}")
    a(f"ds_read_b128 {V(yV+4,4)}, v{TP+1} offset:4096")
    a("s_waitcnt lgkmcnt(0)")
    a(f"buffer_store_dwordx4 {V(yV,4)}, v{TP+2}, {S4(SWS)}, s{sT0} offen sc1"); vm.issue("y1st")
    a(f"buffer_store_dwordx4 {V(yV+4,4)}, v{TP+2}, {S4(SWS)}, s{sT1} offen sc1"); vm.issue("y1st")
    prof("y1done")
def send_id():
    L = a.newlabel("L_id")
    a(f"s_cmp_lg_u32 s{sW}, 0")
    a(f"s_cbranch_scc1 {L}")
    a(f"s_lshl_b32 s{sT0}, s{sG}, 3")
    a(f"v_add_u32 v{vT1}, s{sT0}, v{vLANE}")
    a(f"v_and_b32 v{vT2}, 8, v{vLANE}")
    a(f"v_lshlrev_b32 v{vT0}, 1, v{vT2}")
    a(f"v_sub_u32 v{vT1}, v{vT1}, v{vT0}")
    a(f"v_lshlrev_b32 v{vT1}, {MB_SH}, v{vT1}")
    a(f"v_lshl_add_u32 v{vT1}, v{vT2}, 7, v{vT1}")
    a(f"s_lshl_b32 s{sT0}, s{sJ}, 7")
    a(f"s_add_u32 s{sT0}, s{sT0}, {MB_OFF + MB_ID}")
    a(f"v_add_u32 v{vT1}, s{sT0}, v{vT1}")
    a(f"v_mov_b32 v216, s{sN}")
    a(f"v_mov_b32 v217, s{sN+1}")
    a(f"v_mov_b32 v218, s{sXCC}")
    a(f"v_mov_b32 v219, 0")
    a(f"s_mov_b32 s{sT1}, 0xffff")
    a(f"s_cmp_eq_u32 s{sG}, 0")
    a(f"s_cselect_b32 exec_lo, 0xff, s{sT1}")
    a("s_mov_b32 exec_hi, 0")
    a(f"buffer_store_dwordx4 {V(216,4)}, v{vT1}, {S4(SWS)}, 0 offen sc1")
    a("s_mov_b64 exec, -1")
    a.flush()
    a.label(L)
S1SIG = f"""s_lshl_b32 s{sT0}, s{sJY}, 5
v_add_u32 v{vT1}, s{sT0}, v{vLANE}
v_lshlrev_b32 v{vT1}, {MB_SH}, v{vT1}
s_lshl_b32 s{sT0}, s{sG}, 7
s_add_u32 s{sT0}, s{sT0}, {MB_OFF + MB_S1}
v_add_u32 v{vT1}, s{sT0}, v{vT1}"""
vOH = 212
def o_groups(ooff):
    def mk(n):
        pr, h = n // 2, n % 2
        def g():
            if n == 0:
                k_reset()
                a(f"v_add_u32 v{vOH}, s{sW16K}, v{vD2}")
                a(f"v_xor_b32 v{vOH+1}, 64, v{vOH}")
                a(f"v_add_u32 v{vOH+1}, 8192, v{vOH+1}")
                a(f"s_lshl_b32 s{sB0}, s{sW}, 11")
            if h == 0: a(f"s_add_u32 s{sB1}, s{sXo}, {ooff}")
            a(f"s_add_u32 m0, s{sB0}, {OIMG + pr*8192 + h*1024}")
            a(f"buffer_load_dwordx4 v{vOH+h}, {S4(SWS)}, s{sB1} offen{LSC} lds"); vm.issue(("o", n // 4))
            if h == 1:
                a(f"s_add_u32 s{sXo}, s{sXo}, 128")
                a(f"s_and_b32 s{sXo}, s{sXo}, 1023")
        return g
    return [mk(n) for n in range(16)]

a(f"s_mov_b32 s{sW3K}, s{sT3}")
a(f"s_mov_b32 s{sW64}, s{sT4}")
a(f"s_mov_b32 s{sL0}, 0x00010001")
a(f"s_mov_b32 s{sL0+1}, 0x00010001")
a(f"s_getreg_b32 s{sXCC}, hwreg(HW_REG_XCC_ID)")
a(f"s_and_b32 s{sXCC}, s{sXCC}, 0xff")
a(f"s_mov_b32 s{sLOC}, 0")
a(f"s_mov_b32 s{sLOC2}, 0")
prof("start")
DEPTH = ENV("WDEPTH", 4)
XDEPTH = ENV("XDEPTH", 4)
k_reset()
a(f"s_mov_b32 s{sXx}, s{sXo}")
for s in range(max(DEPTH, XDEPTH)):
    if s < XDEPTH:
        for g in dma_x_groups(s, SX): g()
    if s < DEPTH:
        for g in dma_w_groups(s): g()
        k_next()
if ENV("CODEPF", 1):
    a(f"s_getpc_b64 {S2(sEX)}")
    a.label("L_pc")
    a(f"s_lshr_b32 s{sT0}, s{sB}, 3")
    a(f"s_lshl_b32 s{sT0}, s{sT0}, 2")
    a(f"s_add_u32 s{sT0}, s{sT0}, s{sW}")
    a(f"s_lshl_b32 s{sT0}, s{sT0}, 8")
    a(f"v_and_b32 v{vT0}, 1, v{vLANE}")
    a(f"v_lshl_add_u32 v{vT0}, v{vT0}, 7, s{sT0}")
    a.raw(f"    v_min_u32 v{vT0}, L_end-L_pc, v{vT0}")
    a(f"global_load_dword v216, v{vT0}, {S2(sEX)}"); vm.issue("cpf")
a(f"s_or_b32 s{sT2}, s{sL}, s{sW}")
a(f"s_cmp_lg_u32 s{sT2}, 0")
a("s_cbranch_scc1 L_nonce_done")
a(f"s_memrealtime {S2(sN)}")
a("s_waitcnt lgkmcnt(0)")
a(f"s_or_b32 s{sN+1}, s{sN+1}, 0x80000000")
a(f"s_andn2_b32 s{sN}, s{sN}, 1")
a(f"v_mov_b32 v{vP0}, s{sN}")
a(f"v_mov_b32 v{vP0+1}, s{sN+1}")
a(f"v_mov_b32 v{vT0}, 0")
a("s_mov_b64 exec, 1")
a(f"buffer_store_dwordx2 {V(vP0,2)}, v{vT0}, {S4(SDBG)}, 0 offen sc1")
a("s_mov_b64 exec, -1")
a.flush()
a.label("L_nonce_done")

def x_reads(s, buf):
    out = []
    base, off = (vFR, s*5*1024) if s < 8 else (vA1, (s-8)*5*1024)
    for t in range(5):
        out.append(ldsg(f"ds_read_b128 {V(vXA+20*buf+4*t,4)}, v{base} offset:{XIMG + off + t*1024}", ("xa", s)))
    base, off = (vS0, s*5120) if s < 8 else (vS1, (s-8)*5120)
    out.append(ldsg(f"ds_read_b128 {V(vSO+4*buf,4)}, v{base} offset:{XIMG + off}", ("xa", s)))
    if s % 4 == 3:
        out.append(ldsg(f"ds_read_b128 {V(vSHF,4)}, v{vSH} offset:{XIMG + (s//4)*20480}", ("xa", s)))
    return out

def mfmas(s, buf, with_cs, early=(), spread=()):
    first = (s == 0)
    def C(r): return "0" if first else V(r, 4)
    wq, wk, wv = A(12*s, 4), A(12*s+4, 4), A(12*s+8, 4)
    xa = lambda t: V(vXA + 20*buf + 4*t, 4)
    M = "v_mfma_f32_16x16x32_bf16"
    seq = []
    for t in range(5):
        seq.append(f"{M} {V(vKT+4*t,4)}, {wk}, {xa(t)}, {C(vKT+4*t)}")
        seq.append(f"{M} {V(vVV+4*t,4)}, {xa(t)}, {wv}, {C(vVV+4*t)}")
        if t: seq.append(f"{M} {V(vQT+4*(t-1),4)}, {wq}, {xa(t)}, {C(vQT+4*(t-1))}")
    if with_cs:
        seq = seq[2:] + [f"{M} {V(vCS,4)}, {wq}, {V(vONE,4)}, {C(vCS)}"] + seq[:2]
        for i in range(4):
            a(f"v_cndmask_b32 v{vXA+20*buf+i}, v{vXA+20*buf+i}, v{vONE}, {S2(sL0)}")
    so = V(vSO + 4*buf, 4)
    seq.append(f"{M} {V(vST,4)}, {V(vONE,4)}, {so}, {C(vST)}")
    seq.append(f"{M} {V(vST+4,4)}, {so}, {so}, {C(vST+4)}")
    if s % 4 == 3:
        c0 = "0" if s == 3 else None
        seq.append(f"{M} {V(vST+8,4)}, {V(vONE,4)}, {V(vSHF,4)}, {c0 or V(vST+8,4)}")
        seq.append(f"{M} {V(vST+12,4)}, {V(vSHF,4)}, {V(vSHF,4)}, {c0 or V(vST+12,4)}")
    a.weave(seq, list(early), list(spread))

Y1LD, Y1AT, S1AT = ENV("Y1LD", -1), ENV("Y1AT", 5), ENV("S1AT", 11)
if Y1LD < 0: y1_loads()
for s in range(16):
    vm.wait(("x", s), ("w", s), ("h", s // 4))
    if s == S1AT: vm.wait("y1st", "nonce")
    barrier()
    flx = dma_x_groups(s + XDEPTH, SX) if s + XDEPTH < 16 else []
    fl = (dma_w_groups(s + DEPTH) + [k_next]) if s + DEPTH < 16 else []
    if s == 0:
        for g in flx + fl: g()
    if s == 3:
        a(f"v_mov_b32 v{vT0}, 0")
        a(f"buffer_load_dwordx2 {V(vNL,2)}, v{vT0}, {S4(SDBG)}, 0 offen sc1"); vm.issue("nonce")
    if s == S1AT:
        a(f"v_readfirstlane_b32 s{sN}, v{vNL}")
        a(f"v_readfirstlane_b32 s{sN+1}, v{vNL+1}")
        a(f"s_cmp_eq_u32 s{sN+1}, 0")
        a("s_cbranch_scc1 L_s1_defer")
        signal(32, S1SIG)
        send_id()
        a.label("L_s1_defer")
    if s in (11, 12, 13): fl = fl + [wo_group(4*(s-11) + i) for i in range(4)]
    if s == 13: fl.append(h_group)
    TCH = ENV("TOUCH", 4)
    if s == 12 and TCH in (1, 2): fl.append(touch_tile(O1_OFF))
    if s == 14: fl = [wo_group(12 + i) for i in range(3)]
    if s == ENV("TO1AT", -1): fl = fl + [touch_tile(O1_OFF)]
    if s == 15 and TCH in (2, 3): fl = fl + [touch_tile(O3_OFF), touch_xs]
    fl = flx + fl
    rd = x_reads(s, s & 1)
    for p in range(3):
        for h in range(2):
            off = (s % NSLOT) * 12288 + p * 1024 + h * 6144
            rd.append(ldsg(f"ds_read_b64_tr_b16 {A(12*s+4*p+2*h,2)}, v{vTRW0 if off < 36864 else vTRW1} offset:{off % 36864}", ("xa", s)))
    if s > 0: mfmas(s - 1, (s - 1) & 1, True, rd, fl)
    else:
        for g in rd: g()
    lg.drain()
    if s == Y1LD: y1_loads()
    if s == Y1AT: y1_compute()
barrier()
wo_group(15)()
mfmas(15, 1, True)
prof("p1gemm")
a(f"s_cmp_lg_u32 s{sN+1}, 0")
a("s_cbranch_scc1 L_nonce_ok")
a(f"v_mov_b32 v{vT0}, 0")
a.flush()
a.label("L_nonce_chk")
a(f"buffer_load_dwordx2 {V(vNL,2)}, v{vT0}, {S4(SDBG)}, 0 offen sc1")
a("s_waitcnt vmcnt(0)")
a(f"v_readfirstlane_b32 s{sN}, v{vNL}")
a(f"v_readfirstlane_b32 s{sN+1}, v{vNL+1}")
a(f"s_cmp_eq_u32 s{sN+1}, 0")
a("s_cbranch_scc1 L_nonce_chk")
signal(32, S1SIG)
send_id()
a.label("L_nonce_ok")

vQb, vKb, vVb, vU = 160, 168, 178, 188
def ab_addr():
    a(f"s_mul_i32 s{sT0}, s{sW}, 640")
    a(f"s_add_u32 s{sT0}, s{sT0}, {ABW}")
    a(f"v_lshl_add_u32 v{vT0}, v{vLANE}, 2, s{sT0}")
    a(f"v_lshl_add_u32 v{vT1}, v{vL15}, 2, s{sT0}")
    a(f"v_lshl_add_u32 v{vT2}, v{vQ}, 4, s{sT0}")
def ab_write(T):
    ln_math([(T, T+1, T+10, T+11, T+12, T+13), (T+2, T+3, T+14, T+15, T+16, T+17)])
    a(f"ds_write2_b32 v{vT0}, v{T+10}, v{T+11} offset0:16 offset1:96")
    a(f"ds_write2_b32 v{vT1}, v{T+14}, v{T+15} offset0:0 offset1:80")
def stats_p1():
    T = 84
    prof("a0_begin")
    a(f"v_and_b32 v{vT0}, 48, v{vLANE}")
    a(f"v_lshlrev_b32 v{vT0}, 2, v{vT0}")
    a(f"v_lshlrev_b32 v{vT1}, 2, v{vL15}")
    for i in range(4): a(f"ds_bpermute_b32 v{vCS+4+i}, v{vT0}, v{vKT+i}")
    a(f"ds_bpermute_b32 v{vCS+8}, v{vT1}, v{vVV}")
    a(f"v_lshlrev_b32 v{vT0}, 3, v{vL15}")
    a(f"s_lshl_b32 s{sT0}, s{sW}, 7")
    a(f"v_add_u32 v{vT0}, s{sT0}, v{vT0}")
    a(f"v_add_u32 v{vT0}, {MISC}, v{vT0}")
    for i, m in ((1, 0x22222222), (2, 0x44444444), (3, 0x88888888)):
        a(f"s_mov_b32 s{sEX}, {hex(m)}")
        a(f"s_mov_b32 s{sEX+1}, {hex(m)}")
        for base in (vST, vST + 8):
            a(f"v_cndmask_b32 v{base+1}, v{base+4 if i == 1 else base+1}, v{base+4+i}, {S2(sEX)}")
    e = a.bg_pause()
    a("s_mov_b32 exec_lo, 0x00f0000f")
    a("s_mov_b32 exec_hi, 0xf0000f00")
    a(f"ds_write_b64 v{vT0}, {V(vST,2)}")
    a(f"ds_write_b64 v{vT0}, {V(vST+8,2)} offset:512")
    a("s_mov_b64 exec, -1")
    a.bg_resume(e)
    a(f"v_lshlrev_b32 v{vT0}, 3, v{vLANE}")
    a(f"v_add_u32 v{vT0}, {MISC}, v{vT0}")
    a(f"v_lshlrev_b32 v{vT1}, 3, v{vL15}")
    a(f"v_add_u32 v{vT1}, {MISC}, v{vT1}")
    a("s_waitcnt lgkmcnt(0)")
    barrier()
    a(f"ds_read_b64 {V(T,2)}, v{vT0}")
    for i in range(4):
        a(f"ds_read_b64 {V(T+2+2*i,2)}, v{vT1} offset:{512 + 128*i}")
    ab_addr()
    a("s_waitcnt lgkmcnt(0)")
    a(f"v_pk_add_f32 {V(T+2,2)}, {V(T+2,2)}, {V(T+4,2)}")
    a(f"v_pk_add_f32 {V(T+6,2)}, {V(T+6,2)}, {V(T+8,2)}")
    a(f"v_pk_add_f32 {V(T+2,2)}, {V(T+2,2)}, {V(T+6,2)}")
    ab_write(T)

def attn_core(name, kvt, qt, after_pv=None, qn=None):
    ab_addr()
    a("s_waitcnt lgkmcnt(0)")
    vAB, vAV = 84, 94
    for t in kvt:
        a(f"ds_read2_b32 {V(vAB+2*t,2)}, v{vT1} offset0:{16*t} offset1:{80+16*t}")
    for t in kvt:
        a(f"ds_read_b128 {V(vAV+8*t,4)}, v{vT2} offset:{64*t}")
        a(f"ds_read_b128 {V(vAV+8*t+4,4)}, v{vT2} offset:{320+64*t}")
    a(f"s_waitcnt lgkmcnt({2*len(kvt)})")
    def norm_qk(acc, cs, t, dst):
        ab = V(vAB + 2*t, 2)
        for h in range(2):
            a(f"v_pk_mul_f32 {V(vU+2*h,2)}, {V(cs+2*h,2)}, {ab} op_sel:[0,1] op_sel_hi:[1,1]")
            a(f"v_pk_fma_f32 {V(vU+2*h,2)}, {V(acc+2*h,2)}, {ab}, {V(vU+2*h,2)} op_sel:[0,0,0] op_sel_hi:[1,0,1]")
        for h in range(2):
            a(f"v_cvt_pk_bf16_f32 v{dst+h}, v{vU+2*h}, v{vU+2*h+1}")
    for t in kvt:
        norm_qk(vKT + 4*t, vCS + 4, t, vKb + 2*t)
        if t in (qt if qn is None else qn): norm_qk(vQT + 4*(t-1), vCS, t, vQb + 2*(t-1))
    n = len(qt)
    vSc, vSp = 16, 32
    for u, t in enumerate(qt):
        a(f"v_mfma_f32_16x16x16_bf16 {V(vSc+4*u,4)}, {V(vKb+2*t,2)}, {V(vQb+2*(t-1),2)}, 0")
        a(f"v_mfma_f32_16x16x16_bf16 {V(vSp+4*u,4)}, {V(vKb+2*(t-1),2)}, {V(vQb+2*(t-1),2)}, 0")
    a("s_waitcnt lgkmcnt(0)")
    for t in kvt:
        for h in range(2):
            a(f"v_pk_mul_f32 {V(vU+4+2*h,2)}, {V(vAV+8*t+4+2*h,2)}, {V(vCS+8,2)} op_sel:[0,0] op_sel_hi:[1,0]")
            a(f"v_pk_fma_f32 {V(vU+4+2*h,2)}, {V(vVV+4*t+2*h,2)}, {V(vAV+8*t+2*h,2)}, {V(vU+4+2*h,2)}")
        for h in range(2):
            a(f"v_cvt_pk_bf16_f32 v{vVb+2*t+h}, v{vU+4+2*h}, v{vU+4+2*h+1}")
    prof(f"{name}_norm")
    if 1 in qt:
        e = a.bg_pause()
        Ln = a.newlabel("L_nomask")
        a(f"s_cmp_lg_u32 s{sG}, 0")
        a(f"s_cbranch_scc1 {Ln}")
        a.flush()
        for i in range(4): a(f"v_mov_b32 v{vSp+i}, 0xf149f2ca")
        a.flush()
        a.label(Ln)
        a.bg_resume(e)
    vLg, vMx, vTm = 48, 56, 60
    R = range(n)
    for t in R:
        for i in range(2):
            a(f"v_cndmask_b32 v{vSc+4*t+2*i}, v{vSc+4*t+2*i}, v{vSc+4*t+2*i+1}, {PARM}")
            a(f"v_cndmask_b32 v{vSp+4*t+2*i}, v{vSp+4*t+2*i}, v{vSp+4*t+2*i+1}, {PARM}")
            a(f"v_cndmask_b32 v{vLg+2*t+i}, v{vSp+4*t+2*i}, v{vSc+4*t+2*i}, {MC[i]}")
        a(f"v_cvt_pk_bf16_f32 v{vLg+2*t+1}, v{vLg+2*t}, v{vLg+2*t+1}")
        a(f"v_lshlrev_b32 v{vLg+2*t}, 16, v{vLg+2*t+1}")
        a(f"v_and_b32 v{vLg+2*t+1}, 0xffff0000, v{vLg+2*t+1}")
        a(f"v_max_f32 v{vMx+t}, v{vLg+2*t}, v{vLg+2*t+1}")
    allreduce("v_max_f32", [vMx+t for t in R], [vTm+t for t in R])
    a(f"s_mov_b32 s{sT0}, 0x3eb8aa3b")
    for t in R:
        for i in range(2): a(f"v_sub_f32 v{vLg+2*t+i}, v{vLg+2*t+i}, v{vMx+t}")
    for t in R:
        for i in range(2): a(f"v_mul_f32 v{vLg+2*t+i}, s{sT0}, v{vLg+2*t+i}")
    for t in R:
        for i in range(2): a(f"v_exp_f32 v{vLg+2*t+i}, v{vLg+2*t+i}")
    for t in R: a(f"v_add_f32 v{vMx+t}, v{vLg+2*t}, v{vLg+2*t+1}")
    allreduce("v_add_f32", [vMx+t for t in R], [vTm+t for t in R])
    vPc, vPp = 16, 24
    for t in R: a(f"v_rcp_f32 v{vMx+t}, v{vMx+t}")
    for t in R:
        a(f"v_cndmask_b32 v{vTm}, v{vMx+t}, 0, {PARM}")
        a(f"v_cndmask_b32 v{vTm+1}, 0, v{vMx+t}, {PARM}")
        for i in range(2):
            a(f"v_mul_f32 v{vTm+2}, v{vLg+2*t+i}, v{vTm}")
            a(f"v_mul_f32 v{vTm+3}, v{vLg+2*t+i}, v{vTm+1}")
            a(f"v_cvt_pk_bf16_f32 v{vTm+2}, v{vTm+2}, v{vTm+3}")
            a(f"v_cndmask_b32 v{vPc+2*t+i}, 0, v{vTm+2}, {MC[i]}")
            a(f"v_cndmask_b32 v{vPp+2*t+i}, v{vTm+2}, 0, {MC[i]}")
    vO = 32
    for u, t in enumerate(qt):
        a(f"v_mfma_f32_16x16x16_bf16 {V(vO+4*u,4)}, {V(vVb+2*t,2)}, {V(vPc+2*u,2)}, 0")
    for u, t in enumerate(qt):
        a(f"v_mfma_f32_16x16x16_bf16 {V(vO+4*u,4)}, {V(vVb+2*(t-1),2)}, {V(vPp+2*u,2)}, {V(vO+4*u,4)}")
    prof(f"{name}_pv")
    a.bg_flush()
    if after_pv: after_pv()
    for t in R:
        a(f"v_cvt_pk_bf16_f32 v{48+2*t}, v{vO+4*t}, v{vO+4*t+1}")
        a(f"v_cvt_pk_bf16_f32 v{48+2*t+1}, v{vO+4*t+2}, v{vO+4*t+3}")

def id_load():
    a(f"s_add_u32 s{sB0}, s{sMB}, {MB_ID}")
    a(f"buffer_load_dwordx4 {V(208,4)}, v{vL128}, {S4(SWS)}, s{sB0} offen sc1"); vm.issue("idl")
def id_eval():
    vm.wait("idl")
    a(f"v_cmp_eq_u64 vcc, {S2(sN)}, {V(208,2)}")
    a(f"v_cmp_eq_u32 {S2(sEX)}, s{sXCC}, v210")
    a(f"s_and_b32 s{sT0}, vcc_lo, s{sEX}")
    a(f"s_and_b32 s{sT1}, s{sT0}, 0xff")
    a(f"s_cmp_eq_u32 s{sT1}, 0xff")
    a(f"s_cselect_b32 s{sLOC}, 1, 0")
    a(f"s_cmp_eq_u32 s{sG}, 31")
    a(f"s_cselect_b32 s{sT1}, 0xff00, 0")
    a(f"s_or_b32 s{sT0}, s{sT0}, s{sT1}")
    a(f"s_and_b32 s{sT0}, s{sT0}, 0xffff")
    a(f"s_cmp_eq_u32 s{sT0}, 0xffff")
    a(f"s_cselect_b32 s{sLOC2}, 1, 0")
def kvt_fetch():
    async_check(32, MB_S1, "s1")
    a(f"s_lshl_b32 s{sT0}, s{sL}, 13")
    a(f"s_lshl_b32 s{sT1}, s{sW}, 11")
    a(f"s_add_u32 s{sT0}, s{sT0}, s{sT1}")
    a(f"s_add_u32 s{sT0}, s{sT0}, {KVT_OFF}")
    a(f"s_lshr_b32 s{sT2}, s{sW}, 1")
    a(f"s_mul_i32 s{sT2}, s{sT2}, {URP - 4096}")
    a(f"s_add_u32 s{sT2}, s{sT2}, s{sT1}")
    a(f"s_add_u32 m0, s{sT2}, {UR}")
    a(f"buffer_load_dwordx4 v{vA0}, {S4(SWS)}, s{sT0} offen sc1 lds")
    a(f"buffer_load_dwordx4 v{vA0}, {S4(SWS)}, s{sT0} offen offset:1024 sc1 lds")

def attention0():
    stats_p1()
    attn_core("a0", [0, 1, 2, 3, 4], [1, 2, 3, 4], id_eval)
    tile_to_lds(48, 56, OT=OT1)
    a(f"s_add_u32 s{sT0}, s{sTILE}, {O1_OFF}")
    a(f"s_add_u32 s{sT1}, s{sT0}, 32768")
    o1st = [f"buffer_store_dwordx4 {V(56,4)}, v{vT0}, {S4(SWS)}, s{sT0} offen", f"buffer_store_dwordx4 {V(60,4)}, v{vT0}, {S4(SWS)}, s{sT1} offen"]
    if ENV("O1SC1", 0):
        for l in o1st: a(l + " sc1")
    else: st2(o1st, sLOC)
    a("s_waitcnt vmcnt(0)")
    barrier()
    signal(8, group_sig(MB_S2), True)
    kvt_fetch()
    prof("a0_done")

def pretouch():
    a(f"s_lshl_b32 s{sB0}, s{sW}, 11")
    a(f"s_add_u32 s{sB0}, s{sB0}, s{sMB}")
    a(f"s_add_u32 s{sB0}, s{sB0}, {MB_ST}")
    a(f"v_lshlrev_b32 v217, 7, v{vL15}")
    a(f"buffer_load_dword v216, v217, {S4(SWS)}, s{sB0} offen sc1"); vm.issue("pt")

nopg = lambda: a("s_nop 0")
a.bg_start(([touch_tile(O1_OFF)] if ENV("TO1", 0) else []) + ([pretouch] if ENV("PRETOUCH", 2) else []) + [nopg] * 14 + [id_load, async_poll(MB_S1)], ENV("BGEVERY", 8))
attention0()
if STAGE <= 1: a("s_branch L_end")

vm.wait("h")
a(f"v_mov_b32 v160, 0\nv_mov_b32 v161, 0\nv_mov_b32 v162, 0\nv_mov_b32 v163, 0")
a(f"s_mov_b32 exec_lo, -1\ns_mov_b32 exec_hi, 0")
a(f"v_add_u32 v{vT2}, {UR + 4096}, v{vA0}")
a(f"ds_write_b128 v{vT2}, {V(160,4)}")
a(f"ds_write_b128 v{vT2}, {V(160,4)} offset:{URP}")
a(f"s_mov_b64 exec, 3")
a(f"v_add_u32 v{vT2}, {HC}, v{vA0}")
a(f"ds_write_b128 v{vT2}, {V(160,4)}")
a(f"ds_write_b128 v{vT2}, {V(160,4)} offset:{2*HCP}")
a(f"s_mov_b64 exec, 1")
a(f"ds_write_b128 v{vT2}, {V(160,4)} offset:{HCP}")
a(f"ds_write_b128 v{vT2}, {V(160,4)} offset:{3*HCP}")
a(f"s_mov_b64 exec, -1")
a(f"v_lshlrev_b32 v{vT0}, 4, v{vTID}")
a(f"v_add_u32 v{vT0}, {HC + 32}, v{vT0}")
a(f"v_cmp_eq_u32 vcc, 255, v{vTID}")
for c in range(2):
    b = yH + 8*c
    a(f"v_cndmask_b32 v{b+4}, v{b+4}, 0, vcc")
    a(f"ds_write_b128 v{vT0}, {V(b,4)} offset:{2*c*HCP}")
    for i in range(4): a(f"v_alignbit_b32 v{164+4*c+i}, v{b+i+1}, v{b+i}, 16")
    a(f"ds_write_b128 v{vT0}, {V(164+4*c,4)} offset:{(2*c+1)*HCP}")
a(f"v_cmp_eq_u32 vcc, 0, v{vTID}")
a(f"s_and_saveexec_b64 {S2(sEX)}, vcc")
a(f"v_mov_b32 v{vT2}, {HC}")
a(f"v_lshlrev_b32 v163, 16, v{yH}")
a(f"ds_write_b128 v{vT2}, {V(160,4)} offset:{HCP + 16}")
a(f"v_mov_b32 v172, 0\nv_mov_b32 v173, 0\nv_mov_b32 v174, 0")
a(f"v_lshlrev_b32 v175, 16, v{yH+8}")
a(f"ds_write_b128 v{vT2}, {V(172,4)} offset:{3*HCP + 16}")
a(f"s_mov_b64 exec, {S2(sEX)}")
yF, yG, yAcc, yFA, yGA = 16, 48, 84, 116, 120
a(f"v_add_u32 v{vT0}, 1, v{vL15}")
a(f"v_and_b32 v{vT0}, 30, v{vT0}")
a(f"v_lshlrev_b32 v{vT0}, 1, v{vT0}")
a(f"v_lshlrev_b32 v{vT1}, 4, v{vQ}")
a(f"v_sub_u32 v{vT0}, v{vT0}, v{vT1}")
a(f"v_mov_b32 v{vT1}, {HCP}")
a(f"v_cndmask_b32 v{vT1}, v{vT1}, 0, {PARM}")
a(f"v_add_u32 v{vT0}, v{vT0}, v{vT1}")
a(f"s_lshr_b32 s{sT0}, s{sW}, 1")
a(f"s_mul_i32 s{sT1}, s{sT0}, {2*HCP}")
a(f"s_and_b32 s{sT2}, s{sW}, 1")
a(f"s_lshl_b32 s{sT2}, s{sT2}, 8")
a(f"s_sub_u32 s{sT1}, s{sT1}, s{sT2}")
for ap in range(4):
    a(f"s_add_u32 s{sT3}, s{sT1}, {HC + 4080 - 512*(2*ap+1) - 192}")
    a(f"v_add_u32 v{yFA+ap}, s{sT3}, v{vT0}")
a(f"v_lshlrev_b32 v{vT0}, 5, v{vL15}")
a(f"v_lshl_add_u32 v{vT0}, v{vQ}, 4, v{vT0}")
a(f"s_mul_i32 s{sT1}, s{sT0}, {URP}")
a(f"s_sub_u32 s{sT1}, s{sT1}, s{sT2}")
a(f"s_add_u32 s{sT1}, s{sT1}, {UR + 8144 - 512*14 - 192}")
a(f"v_sub_u32 v{yGA}, s{sT1}, v{vT0}")
a("s_waitcnt vmcnt(0) lgkmcnt(0)")
barrier()
prof("y2start")
vm.reset()
vRA = 122
def res_loads():
    a(f"v_lshlrev_b32 v{vRA}, 10, v{vL15}")
    a(f"v_lshl_add_u32 v{vRA}, v{vQ}, 3, v{vRA}")
    a(f"s_lshl_b32 s{sB1}, s{sW}, 5")
    a(f"s_add_u32 s{sB1}, s{sB1}, s{sTILE}")
    for t in range(4):
        if t: a(f"s_add_u32 s{sB1}, s{sB1}, 16384")
        a(f"buffer_load_dwordx2 {V(vX2+2*t,2)}, v{vRA}, {S4(SX)}, s{sB1} offen"); vm.issue("res")
YB = [(16, 48), (144, 176)]
def y2_reads(rr):
    F, G = YB[rr & 1]
    out = []
    for aa in range(8):
        ap, hi = aa // 2, aa % 2
        off = ((1 - hi) * 512 + (3 - rr) * 64) // 4
        out.append(ldsg(f"ds_read2_b32 {V(F+4*aa,2)}, v{yFA+ap} offset0:{off} offset1:{off+1}", ("y", rr)))
        out.append(ldsg(f"ds_read2_b32 {V(F+4*aa+2,2)}, v{yFA+ap} offset0:{off+2} offset1:{off+3}", ("y", rr)))
    for bb in range(8):
        out.append(ldsg(f"ds_read_b128 {V(G+4*bb,4)}, v{yGA} offset:{(7-bb)*512 + (3-rr)*64}", ("y", rr)))
    return out
def wo_reads(lo, hi):
    return [ldsg(f"ds_read_b64_tr_b16 {A(192+4*s+2*h,2)}, v{vTR} offset:{WOIMG + s*4096 + h*2048}", "wot")
            for s in range(lo, hi) for h in range(2)]
lg.reset()
for g in y2_reads(0): g()
OG = o_groups(O1_OFF)
for rr in range(4):
    a("s_waitcnt lgkmcnt(0)"); lg.reset()
    F, G = YB[rr & 1]
    seq = []; started = set()
    for bb in range(8):
        for aa in range(8):
            c = 7 + bb - aa
            if 0 <= c <= 7:
                first = (rr == 0 and c not in started); started.add(c)
                seq.append(f"v_mfma_f32_16x16x32_bf16 {V(yAcc+4*c,4)}, {V(F+4*aa,4)}, {V(G+4*bb,4)}, {'0' if first else V(yAcc+4*c,4)}")
    nop = lambda: a("s_nop 0")
    OEARLY = ENV("OEARLY", 16)
    tch = [touch_tile(O3_OFF), touch_xs]
    if OEARLY:
        sp = {0: (tch if ENV("TPOS", 2) == 0 else []) + [res_loads, id_load], 1: [], 2: [async_poll(MB_S2)] + [nop] * 4, 3: OG[:OEARLY]}[rr]
        if rr == 3:
            id_eval()
            async_check(8, MB_S2, "o1")
    else:
        sp = {0: tch + [res_loads], 1: [], 2: [id_load], 3: [async_poll(MB_S2)] + [nop] * 4}[rr]
    early = (y2_reads(rr + 1) + wo_reads(3*rr, 3*rr+3)) if rr < 3 else wo_reads(9, 16)
    a.weave(seq, early, sp)
prof("y2mfma")
a("s_waitcnt lgkmcnt(0)")
barrier()
a(f"s_lshl_b32 s{sT0}, s{sW}, 12")
a(f"s_add_u32 s{sT0}, s{sT0}, {ACCX}")
a(f"v_add_u32 v{vT0}, s{sT0}, v{vA0}")
a(f"s_xor_b32 s{sT1}, s{sW}, 1")
a(f"s_lshl_b32 s{sT1}, s{sT1}, 12")
a(f"s_add_u32 s{sT1}, s{sT1}, {ACCX}")
a(f"v_add_u32 v{vT1}, s{sT1}, v{vA0}")
a(f"s_and_b32 s{sT2}, s{sW}, 1")
a(f"s_cmp_eq_u32 s{sT2}, 0")
a("s_cbranch_scc1 L_y2_even")
a.flush()
for i in range(4):
    a(f"ds_write_b128 v{vT0}, {V(yAcc+8*i,4)} offset:{1024*i}")
    for r in range(4): a(f"v_mov_b32 v{yF+4*i+r}, v{yAcc+8*i+4+r}")
a("s_branch L_y2_x")
a.label("L_y2_even")
a.flush()
for i in range(4):
    a(f"ds_write_b128 v{vT0}, {V(yAcc+8*i+4,4)} offset:{1024*i}")
    for r in range(4): a(f"v_mov_b32 v{yF+4*i+r}, v{yAcc+8*i+r}")
a.label("L_y2_x")
a(f"v_lshlrev_b32 v{vT0}, 5, v{vL15}")
a(f"v_lshl_add_u32 v{vT0}, v{vQ}, 3, v{vT0}")
a(f"s_lshr_b32 s{sT0}, s{sW}, 1")
a(f"s_mul_i32 s{sT1}, s{sT0}, {URP}")
a(f"s_lshl_b32 s{sT3}, s{sT2}, 9")
a(f"s_sub_u32 s{sT1}, s{sT1}, s{sT3}")
a(f"s_add_u32 s{sT1}, s{sT1}, {UR + 4088 - 3*1024}")
a(f"v_sub_u32 v{vT2}, s{sT1}, v{vT0}")
for i in range(4): a(f"ds_read_b64 {V(64+2*i,2)}, v{vT2} offset:{(3-i)*1024}")
a(f"s_lshl_b32 s{sT1}, s{sD}, 16")
a(f"s_and_b32 s{sT3}, s{sD}, 0xffff0000")
a(f"s_cmp_eq_u32 s{sT0}, 0")
a(f"s_cselect_b32 s{sT1}, s{sT1}, s{sT3}")
a(f"s_lshl_b32 s{sT3}, s{sL}, 1")
a(f"s_add_u32 s{sT3}, s{sT3}, s{sT0}")
a(f"s_lshl_b32 s{sT3}, s{sT3}, 12")
a(f"s_lshl_b32 s{sT4}, s{sT2}, 9")
a(f"s_add_u32 s{sT3}, s{sT3}, s{sT4}")
a(f"s_add_u32 s{sT3}, s{sT3}, {YT_OFF}")
a("s_waitcnt lgkmcnt(0)")
barrier()
for i in range(4): a(f"ds_read_b128 {V(yG+4*i,4)}, v{vT1} offset:{1024*i}")
for i in range(4):
    k0, u = 64 + 2*i, 144 + 4*i
    a(f"v_and_b32 v{u}, 0xffff0000, v{k0+1}")
    a(f"v_lshlrev_b32 v{u+1}, 16, v{k0+1}")
    a(f"v_and_b32 v{u+2}, 0xffff0000, v{k0}")
    a(f"v_lshlrev_b32 v{u+3}, 16, v{k0}")
    for r in range(4): a(f"v_mul_f32 v{u+r}, s{sT1}, v{u+r}")
    a(f"v_cvt_pk_bf16_f32 v{u}, v{u}, v{u+1}")
    a(f"v_cvt_pk_bf16_f32 v{u+2}, v{u+2}, v{u+3}")
    a(f"v_and_b32 v{u+1}, 0xffff0000, v{u}")
    a(f"v_lshlrev_b32 v{u}, 16, v{u}")
    a(f"v_and_b32 v{u+3}, 0xffff0000, v{u+2}")
    a(f"v_lshlrev_b32 v{u+2}, 16, v{u+2}")
a("s_waitcnt lgkmcnt(0)")
a.bg_flush()
for i in range(4):
    y, u = yF + 4*i, 144 + 4*i
    a(f"v_pk_add_f32 {V(y,2)}, {V(y,2)}, {V(yG+4*i,2)}")
    a(f"v_pk_add_f32 {V(y+2,2)}, {V(y+2,2)}, {V(yG+4*i+2,2)}")
    a(f"v_cvt_pk_bf16_f32 v{y}, v{y}, v{y+1}")
    a(f"v_cvt_pk_bf16_f32 v{y+2}, v{y+2}, v{y+3}")
    a(f"v_and_b32 v{y+1}, 0xffff0000, v{y}")
    a(f"v_lshlrev_b32 v{y}, 16, v{y}")
    a(f"v_and_b32 v{y+3}, 0xffff0000, v{y+2}")
    a(f"v_lshlrev_b32 v{y+2}, 16, v{y+2}")
    a(f"v_pk_add_f32 {V(y,2)}, {V(y,2)}, {V(u,2)}")
    a(f"v_pk_add_f32 {V(y+2,2)}, {V(y+2,2)}, {V(u+2,2)}")
    a(f"v_cvt_pk_bf16_f32 v{y}, v{y}, v{y+1}")
    a(f"v_cvt_pk_bf16_f32 v{y+1}, v{y+2}, v{y+3}")
    a(f"buffer_store_dwordx2 {V(y,2)}, v{vT0}, {S4(SWS)}, s{sT3} offen offset:{1024*i} sc1"); vm.issue("yst")
S3SIG = f"""s_lshr_b32 s{sT0}, s{sL}, 5
v_lshl_add_u32 v{vT1}, v{vLANE}, 3, s{sT0}
v_lshlrev_b32 v{vT1}, {MB_SH}, v{vT1}
s_and_b32 s{sT0}, s{sL}, 31
s_lshl_b32 s{sT0}, s{sT0}, 7
s_add_u32 s{sT0}, s{sT0}, {MB_OFF + MB_S3}
v_add_u32 v{vT1}, s{sT0}, v{vT1}"""
prof("y2st")
if ENV("TPOS", 2) == 2:
    touch_tile(O3_OFF)(); touch_xs()
if not OEARLY:
    id_eval()
    async_check(8, MB_S2, "o1")
for g in OG[OEARLY:max(8, OEARLY)]: g()
OREST = OG[max(8, OEARLY):]
prof("y2")
if STAGE <= 2:
    vm.drain()
    a("s_branch L_end")

vOB, vPA, vSt, vW = 120, 16, 72, 84
CB = MISC + 4096
MF = "v_mfma_f32_16x16x32_bf16"

def op_gemm(tiles, pre, fill={}):
    OFB = [32, 48, 144]
    items = [(s, t) for s in range(16) for t in tiles]
    units = [items[i:i+4] for i in range(0, len(items), 4)]
    def rd(u):
        return [ldsg(f"ds_read_b128 {V(OFB[u%3]+4*k,4)}, v{vOB + (s & 1)} offset:{(s//2)*8192 + t*2048}", ("of", u)) for k, (s, t) in enumerate(units[u])]
    for u in range(len(units)):
        if u in pre: pre[u]()
        if u == 0:
            for g in rd(0) + rd(1): g()
        lg.wait(("of", u))
        nxt = rd(u + 2) if u + 2 < len(units) else []
        seq = [f"{MF} {V(vPA+4*t,4)}, {A(192+4*s,4)}, {V(OFB[u%3]+4*k,4)}, {'0' if s == 0 else V(vPA+4*t,4)}" for k, (s, t) in enumerate(units[u])]
        a.weave(seq, nxt, fill.get(u, []))

def sums(c, dst):
    a(f"v_pk_add_f32 {V(vW,2)}, {V(c,2)}, {V(c+2,2)}")
    a(f"v_pk_mul_f32 {V(vW+2,2)}, {V(c,2)}, {V(c,2)}")
    a(f"v_pk_fma_f32 {V(vW+2,2)}, {V(c+2,2)}, {V(c+2,2)}, {V(vW+2,2)}")
    a(f"v_add_f32 v{dst}, v{vW}, v{vW+1}")
    a(f"v_add_f32 v{dst+1}, v{vW+2}, v{vW+3}")

def unpack(src, dst):
    a(f"v_lshlrev_b32 v{dst}, 16, v{src}")
    a(f"v_and_b32 v{dst+1}, 0xffff0000, v{src}")
    a(f"v_lshlrev_b32 v{dst+2}, 16, v{src+1}")
    a(f"v_and_b32 v{dst+3}, 0xffff0000, v{src+1}")

def ps_write(tiles, base):
    a(f"v_lshlrev_b32 v{vT2}, 9, v{vQ}")
    a(f"v_lshl_add_u32 v{vT2}, v{vL15}, 3, v{vT2}")
    a(f"s_lshl_b32 s{sT0}, s{sW}, 11")
    a(f"s_add_u32 s{sT0}, s{sT0}, {base}")
    a(f"v_add_u32 v{vT2}, s{sT0}, v{vT2}")
    for t in tiles: a(f"ds_write_b64 v{vT2}, {V(vSt+2*t,2)} offset:{128*t}")

def x1_stats(tiles, base):
    for t in tiles:
        c = vPA + 4*t
        a(f"v_cvt_pk_bf16_f32 v{c}, v{c}, v{c+1}")
        a(f"v_cvt_pk_bf16_f32 v{c+2}, v{c+2}, v{c+3}")
        a(f"v_and_b32 v{c+1}, 0xffff0000, v{c}")
        a(f"v_lshlrev_b32 v{c}, 16, v{c}")
        a(f"v_and_b32 v{c+3}, 0xffff0000, v{c+2}")
        a(f"v_lshlrev_b32 v{c+2}, 16, v{c+2}")
        unpack(vX2 + 2*t, vW)
        a(f"v_pk_add_f32 {V(c,2)}, {V(c,2)}, {V(vW,2)}")
        a(f"v_pk_add_f32 {V(c+2,2)}, {V(c+2,2)}, {V(vW+2,2)}")
        a(f"v_cvt_pk_bf16_f32 v64, v{c}, v{c+1}")
        a(f"v_cvt_pk_bf16_f32 v65, v{c+2}, v{c+3}")
        unpack(64, c)
        sums(c, vSt + 2*t)
    ps_write(tiles, base)

def tree(b, n):
    while n > 1:
        n //= 2
        for i in range(n): a(f"v_pk_add_f32 {V(b+2*i,2)}, {V(b+2*i,2)}, {V(b+2*(i+n),2)}")

def reduce16(base, R):
    a(f"v_lshlrev_b32 v{vT2}, 3, v{vLANE}")
    a(f"v_add_u32 v{vT2}, {base}, v{vT2}")
    for i in range(8): a(f"ds_read_b64 {V(R+2*i,2)}, v{vT2} offset:{512*i}")
    a("s_waitcnt lgkmcnt(0)")
    for i in range(8): a(f"ds_read_b64 {V(R+16+2*i,2)}, v{vT2} offset:{512*(8+i)}")
    tree(R, 8)
    a("s_waitcnt lgkmcnt(0)")
    tree(R + 16, 8)
    a(f"v_pk_add_f32 {V(R,2)}, {V(R,2)}, {V(R+16,2)}")
    a(f"v_mov_b32 v{R+2}, s{sN}")
    a(f"v_mov_b32 v{R+3}, s{sN+1}")

def peer_base(dst, mboff, slot_sh, nextgrp=False):
    a(f"s_lshl_b32 s{dst}, s{sG}, 3")
    a(f"s_lshl_b32 s{sT3}, s{sW}, 1")
    a(f"s_add_u32 s{dst}, s{dst}, s{sT3}")
    a(f"s_lshl_b32 s{dst}, s{dst}, {MB_SH}")
    a(f"s_lshl_b32 s{sT3}, s{sJ}, {slot_sh}")
    a(f"s_add_u32 s{dst}, s{dst}, s{sT3}")
    a(f"s_add_u32 s{dst}, s{dst}, {MB_OFF + mboff + (8 * MB_SZ if nextgrp else 0)}")

def gate(tiles, AB):
    for t in tiles:
        ab = V(AB(t), 2)
        x, y, u = vPA + 4*t, 32 + 8*t, 36 + 8*t
        unpack(vYY + 2*t, y)
        for h in range(2):
            a(f"v_pk_fma_f32 {V(u+2*h,2)}, {V(x+2*h,2)}, {ab}, {ab} op_sel:[0,0,1] op_sel_hi:[1,0,1]")
            a(f"v_pk_fma_f32 {V(u+2*h,2)}, {V(u+2*h,2)}, {V(y+2*h,2)}, {V(x+2*h,2)}")
        a(f"v_cvt_pk_bf16_f32 v{vX2+2*t}, v{u}, v{u+1}")
        a(f"v_cvt_pk_bf16_f32 v{vX2+2*t+1}, v{u+2}, v{u+3}")

lg.reset()
a(f"v_add_u32 v{vOB}, {OIMG}, v{vF2}")
a(f"v_xor_b32 v{vOB+1}, 64, v{vOB}")
def preg(i):
    def f():
        vm.wait(("o", i))
        if i == S3I: vm.wait("yst")
        barrier()
        if i == S3I: signal(32, S3SIG)
    return f
S3I = 0 if OEARLY < 4 else (2 if OEARLY < 16 else 3)
fl0 = {u: OREST[2*u:2*u+2] for u in range(4)}
if OEARLY and ENV("TPOS", 2) == 1: fl0[12] = [touch_tile(O3_OFF)]; fl0[14] = [touch_xs]
op_gemm([0, 1, 2, 3], {0: preg(0), 2: preg(1), 6: preg(2), 10: preg(3)}, fl0)
prof("p0_gemm")
x1_stats([0, 1, 2, 3], PS)
a("s_waitcnt lgkmcnt(0)")
barrier()
prof("p0_ps")
peer_base(sT0, MB_ST, 10)
a(f"s_add_u32 s{sT1}, s{sT0}, {MB_SZ}")
reduce16(PS, vW)
st2([f"buffer_store_dwordx4 {V(vW,4)}, v{vA0}, {S4(SWS)}, s{sT0} offen", f"buffer_store_dwordx4 {V(vW,4)}, v{vA0}, {S4(SWS)}, s{sT1} offen"], sLOC)
prof("p0_pub")
a(f"s_add_u32 s{sT0}, s{sMB}, {MB_ST}")
a(f"s_lshl_b32 s{sT1}, s{sW}, 11")
a(f"s_add_u32 s{sT0}, s{sT0}, s{sT1}")
a.flush()
a("s_branch L_pst0b")
a.label("L_pst0a")
a("s_sleep 1")
a.label("L_pst0b")
for i in range(2):
    a(f"buffer_load_dwordx4 {V(vW+4*i,4)}, v{vA0}, {S4(SWS)}, s{sT0} offen offset:{1024*i} sc1")
a("s_waitcnt vmcnt(0)")
a(f"v_cmp_ne_u64 vcc, {S2(sN)}, {V(vW+2,2)}")
a(f"v_cmp_ne_u64 {S2(sEX)}, {S2(sN)}, {V(vW+6,2)}")
a(f"s_or_b64 vcc, vcc, {S2(sEX)}")
a("s_cbranch_vccnz L_pst0a")
a(f"v_pk_add_f32 {V(vW,2)}, {V(vW,2)}, {V(vW+4,2)}")
a(f"s_lshl_b32 s{sT1}, s{sW}, 9")
a(f"s_add_u32 s{sT1}, s{sT1}, {CB}")
a(f"v_lshl_add_u32 v{vT1}, v{vLANE}, 3, s{sT1}")
a(f"ds_write_b64 v{vT1}, {V(vW,2)}")
poll(32, MB_S3, "s3")
prof("p0_s3")
a(f"v_lshrrev_b32 v{vT0}, 3, v{vLANE}")
a(f"v_lshlrev_b32 v{vT0}, 12, v{vT0}")
a(f"v_and_b32 v{vT1}, 7, v{vLANE}")
a(f"v_lshl_add_u32 v{vT0}, v{vT1}, 4, v{vT0}")
a(f"s_lshl_b32 s{sT0}, s{sJ}, 18")
a(f"s_lshl_b32 s{sT1}, s{sG}, 7")
a(f"s_add_u32 s{sT0}, s{sT0}, s{sT1}")
a(f"s_lshl_b32 s{sT1}, s{sW}, 16")
a(f"s_add_u32 s{sT0}, s{sT0}, s{sT1}")
a(f"s_add_u32 s{sT0}, s{sT0}, {YT_OFF}")
a(f"s_lshl_b32 s{sT1}, s{sW}, 11")
a(f"s_add_u32 m0, s{sT1}, {YTT}")
a(f"buffer_load_dwordx4 v{vT0}, {S4(SWS)}, s{sT0} offen sc1 lds")
a(f"s_add_u32 s{sT0}, s{sT0}, 32768")
a(f"s_add_u32 m0, s{sT1}, {YTT + 1024}")
a(f"buffer_load_dwordx4 v{vT0}, {S4(SWS)}, s{sT0} offen sc1 lds")
a(f"v_lshlrev_b32 v{vT1}, 3, v{vL15}")
a(f"v_add_u32 v{vT1}, {CB}, v{vT1}")
a("s_waitcnt lgkmcnt(0)")
barrier()
prof("p0_stats")
if ENV("TPOS", 2) == 3: touch_xs()
for t in range(4):
    for i in range(4): a(f"ds_read_b64 {V(vW+8*t+2*i,2)}, v{vT1} offset:{512*i + 128*t}")
a("s_waitcnt lgkmcnt(0)")
for t in range(4): tree(vW + 8*t, 4)
ln_math([(vW+8*t, vW+8*t+1, vW+8*t+2, vW+8*t+3, vW+8*t+4, vW+8*t+5) for t in range(4)])
a(f"v_lshrrev_b32 v{vT1}, 2, v{vLANE}")
a(f"v_lshlrev_b32 v{vT1}, 7, v{vT1}")
a(f"v_and_b32 v{vT2}, 3, v{vLANE}")
a(f"v_lshl_add_u32 v{vT1}, v{vT2}, 3, v{vT1}")
a(f"s_lshl_b32 s{sT0}, s{sW}, 11")
a(f"s_add_u32 s{sT0}, s{sT0}, {YTT}")
a(f"v_add_u32 v{vT1}, s{sT0}, v{vT1}")
a("s_waitcnt vmcnt(0)")
for t in range(4): a(f"ds_read_b64_tr_b16 {V(vYY+2*t,2)}, v{vT1} offset:{32*t}")
a("s_waitcnt lgkmcnt(0)")
gate([0, 1, 2, 3], lambda t: vW + 8*t + 2)
def x2_stats():
    for t in range(4):
        unpack(vX2 + 2*t, 32 + 4*t)
        sums(32 + 4*t, vSt + 2*t)
    ps_write([0, 1, 2, 3], YTT)
tile_to_lds(vX2, 144, 4, x2_stats)
prof("p0_epi")
a(f"s_add_u32 s{sT1}, s{sTILE}, 32768")
st2([f"buffer_store_dwordx4 {V(144,4)}, v{vT0}, {S4(SX2)}, s{sTILE} offen", f"buffer_store_dwordx4 {V(148,4)}, v{vT0}, {S4(SX2)}, s{sT1} offen"], sLOC)
a(f"s_lshl_b32 s{sB0}, s{sG}, 14")
a(f"s_lshl_b32 s{sB1}, s{sJ}, 7")
a(f"s_add_u32 s{sB0}, s{sB0}, s{sB1}")
a(f"s_add_u32 s{sB0}, s{sB0}, {HL_OFF}")
a(f"s_cmp_ge_u32 s{sW}, 2")
a(f"s_cselect_b32 s{sB1}, {-16384 & 0xffffffff}, 0x40000000")
a(f"v_add_u32 v152, s{sB1}, v{vT0}")
reduce16(YTT, vW)
peer_base(sT0, MB_XS, 9)
a(f"s_add_u32 s{sT1}, s{sT0}, {MB_SZ}")
peer_base(sT2, MB_XH - 384, 7, True)
a(f"s_add_u32 s{sT4}, s{sT2}, {MB_SZ}")
a(f"v_lshlrev_b32 v{vT0}, 3, v{vLANE}")
st2([f"buffer_store_dwordx2 {V(vW,2)}, v{vT0}, {S4(SWS)}, s{sT0} offen", f"buffer_store_dwordx2 {V(vW,2)}, v{vT0}, {S4(SWS)}, s{sT1} offen"], sLOC)
a(f"buffer_store_dwordx4 {V(148,4)}, v152, {S4(SWS)}, s{sB0} offen sc1")
a("s_mov_b32 exec_lo, 0\ns_mov_b32 exec_hi, 0xffff0000")
a(f"buffer_store_dwordx2 {V(vW,2)}, v{vT0}, {S4(SWS)}, s{sT2} offen sc1")
a(f"buffer_store_dwordx2 {V(vW,2)}, v{vT0}, {S4(SWS)}, s{sT4} offen sc1")
a("s_mov_b64 exec, -1")
vXT = [196, 197, 198, 199, 200]
vF3 = 204
sWm = sW3K
a(f"s_and_b32 s{sT3}, s{sW}, 1")
a(f"s_lshl_b32 s{sWm}, s{sT3}, 6")
a(f"v_xor_b32 v{vXT[1]}, s{sWm}, v{vD2}")
a(f"s_lshl_b32 s{sWm}, s{sT3}, 13")
a(f"v_add_u32 v{vXT[1]}, s{sWm}, v{vXT[1]}")
a(f"s_mul_i32 s{sB0}, s{sG}, {-49152 & 0xffffffff}")
a(f"s_add_u32 s{sB0}, s{sB0}, {HL_OFF - 16384}")
a(f"s_cmp_eq_u32 s{sG}, 0")
a(f"s_cselect_b32 s{sB0}, 0x40000000, s{sB0}")
a(f"v_add_u32 v{vXT[0]}, s{sB0}, v{vXT[1]}")
for t in (2, 3, 4): a(f"v_add_u32 v{vXT[t]}, {16384*(t-1)}, v{vXT[1]}")
a(f"s_lshr_b32 s{sWm}, s{sW}, 1")
a(f"s_mul_i32 s{sWm}, s{sWm}, 10240")
a(f"s_lshl_b32 s{sT3}, s{sT3}, 10")
a(f"s_add_u32 s{sWm}, s{sWm}, s{sT3}")
a(f"v_mov_b32 v{vF3}, v{vF2}")
a(f"v_xor_b32 v{vF3+1}, 64, v{vF2}")
a(f"v_add_u32 v{vF3+2}, 40960, v{vF3}")
a(f"v_add_u32 v{vF3+3}, 40960, v{vF3+1}")
a("s_waitcnt vmcnt(3)")
barrier()
signal(8, group_sig(MB_S5), True)
prof("p0_done")
if STAGE <= 3:
    vm.drain()
    a("s_branch L_end")

a(f"s_cmp_eq_u32 s{sG}, 0")
a(f"s_cselect_b32 s{sT2}, 0, -1")
poll(8, MB_S5, "x2")
prof("p3_wait")
vm.reset(); lg.reset()
def dma3(tiles, i, tag):
    def g():
        a(f"s_and_b32 s{sB0}, s{sW}, 2")
        a(f"s_add_u32 s{sB0}, s{sB0}, s{sKK0}")
        if i: a(f"s_add_u32 s{sB0}, s{sB0}, {4*i}")
        a(f"s_and_b32 s{sB0}, s{sB0}, 15")
        a(f"s_lshl_b32 s{sB0}, s{sB0}, 6")
        for t in tiles:
            a(f"s_add_u32 m0, s{sWm}, {XIMG + (10*i + t)*2048}")
            a(f"buffer_load_dwordx4 v{vXT[t]}, {S4(SX2 if t else SWS)}, s{sB0} offen{LSC} lds"); vm.issue((tag, i))
    return g
TA, TB = [2, 3, 4], [0, 1]
for i in range(2): dma3(TA, i, "xA")()
a(f"v_lshlrev_b32 v{vT0}, 3, v{vLANE}")
a(f"s_lshl_b32 s{sT1}, s{sW}, 10")
a(f"s_add_u32 s{sT0}, s{sMB}, s{sT1}")
a(f"s_add_u32 s{sT0}, s{sT0}, {MB_XS}")
for i in range(2):
    a(f"buffer_load_dwordx2 {V(144+2*i,2)}, v{vT0}, {S4(SWS)}, s{sT0} offen offset:{512*i} sc1"); vm.issue("xs")
def cb_addr():
    a(f"s_mul_i32 s{sT1}, s{sW}, 640")
    a(f"s_add_u32 s{sT1}, s{sT1}, {CB}")
    a(f"v_lshl_add_u32 v{vT1}, v{vLANE}, 3, s{sT1}")
def xs_partial():
    vm.wait("xs")
    a(f"v_add_f32 v144, v144, v146")
    a(f"v_add_f32 v145, v145, v147")
    cb_addr()
    a(f"ds_write_b64 v{vT1}, {V(144,2)} offset:128")
    a("s_waitcnt lgkmcnt(0)"); lg.reset()
def xh_load():
    a(f"v_lshlrev_b32 v217, 3, v{vLANE}")
    a(f"s_lshl_b32 s{sB0}, s{sW}, 8")
    a(f"s_add_u32 s{sB0}, s{sB0}, s{sMB}")
    a(f"s_add_u32 s{sB0}, s{sB0}, {MB_XH}")
    a(f"buffer_load_dwordx2 {V(208,2)}, v217, {S4(SWS)}, s{sB0} offen sc1"); vm.issue("xh")
def xh_partial():
    vm.wait("xh")
    a(f"v_and_b32 v208, s{sT2}, v208")
    a(f"v_and_b32 v209, s{sT2}, v209")
    a(f"v_mov_b32 v210, v208")
    a(f"v_mov_b32 v211, v209")
    a(f"v_permlane16_swap_b32 v208, v210")
    a(f"v_permlane16_swap_b32 v209, v211")
    a(f"v_add_f32 v208, v208, v210")
    a(f"v_add_f32 v209, v209, v211")
    cb_addr()
    a("s_mov_b32 exec_lo, 0xffff\ns_mov_b32 exec_hi, 0")
    a(f"ds_write_b64 v{vT1}, {V(208,2)}")
    a("s_mov_b64 exec, -1")

def qkv_pass(tiles, qt, pre, fill):
    n = len(tiles)
    B = lambda s: vXA + 4 * n * (s % 3)
    def rd(s):
        base, off = vF3 + (s & 1) + (2 if s >= 8 else 0), ((s % 8) // 2) * 10240
        return [ldsg(f"ds_read_b128 {V(B(s)+4*u,4)}, v{base} offset:{XIMG + off + t*2048}", ("xa", s)) for u, t in enumerate(tiles)]
    restarts = sorted(k for k, v in pre.items() if v[1])
    issued = set()
    can = lambda a_, b_: not any(a_ < r <= b_ for r in restarts)
    for s in range(16):
        if s in pre: pre[s][0]()
        if s in restarts:
            for d in range(2):
                for g in rd(s + d): g()
                issued.add(s + d)
        lg.wait(("xa", s))
        nxt = []
        if s + 2 < 16 and (s + 2) not in issued and can(s, s + 2):
            nxt = rd(s + 2); issued.add(s + 2)
        C = lambda r: "0" if s == 0 else V(r, 4)
        wq, wk, wv = A(12*s, 4), A(12*s+4, 4), A(12*s+8, 4)
        seq = []
        for u, t in enumerate(tiles):
            xa = V(B(s) + 4*u, 4)
            seq.append(f"{MF} {V(vKT+4*t,4)}, {wk}, {xa}, {C(vKT+4*t)}")
            seq.append(f"{MF} {V(vVV+4*t,4)}, {xa}, {wv}, {C(vVV+4*t)}")
            if t in qt: seq.append(f"{MF} {V(vQT+4*(t-1),4)}, {wq}, {xa}, {C(vQT+4*(t-1))}")
        a.weave(seq, nxt, fill.get(s, []))

def wb(tag):
    def f():
        prof(f"pre_{tag[0]}{tag[1]}")
        vm.wait(tag); barrier()
        prof(f"wb_{tag[0]}{tag[1]}")
    return f
HALOSIG = f"""s_lshl_b32 s{sT0}, s{sG}, 3
s_add_u32 s{sT0}, s{sT0}, 8
v_add_u32 v{vT1}, s{sT0}, v{vLANE}
v_lshlrev_b32 v{vT1}, {MB_SH}, v{vT1}
s_lshl_b32 s{sT0}, s{sJ}, 7
s_add_u32 s{sT0}, s{sT0}, {MB_OFF + MB_S5 + 1024}
v_add_u32 v{vT1}, s{sT0}, v{vT1}"""
def wb0():
    vm.wait(("xA", 0)); barrier()
    signal(8, HALOSIG)
def wb10():
    xs_partial(); vm.wait(("xA", 3)); barrier()
def halo_ready():
    L = a.newlabel("L_h0")
    vm.wait("apoll")
    a(f"s_cmp_eq_u32 s{sG}, 0")
    a(f"s_cbranch_scc1 {L}")
    async_check(8, MB_S5 + 1024, "halo")
    a.label(L)
    a(f"s_xor_b32 s{sN}, s{sN}, 1")
preA = {0: (wb0, True), 2: (wb(("xA", 1)), False), 6: (wb(("xA", 2)), False), 10: (wb10, False)}
fillA = {0: [dma3(TA, 2, "xA")], 2: [dma3(TA, 3, "xA")]}
for i in range(4): fillA[4 + 2*i] = [dma3([1], i, "xB")]
fillA[13] = [async_poll(MB_S5 + 1024)]
qkv_pass(TA, [2, 3, 4], preA, fillA)
prof("p3_gemmA")
a(f"v_lshlrev_b32 v{vT0}, 3, v{vLANE}")
a(f"v_add_u32 v{vT0}, {CB}, v{vT0}")
for i in range(4): a(f"ds_read_b64 {V(144+2*i,2)}, v{vT0} offset:{640*i + 128}")
halo_ready()
a.bg_start([dma3([0], i, "xH") for i in range(4)] + [xh_load], 3)
ab_addr()
a("s_waitcnt lgkmcnt(0)")
tree(144, 4)
ln_math([(144, 145, 154, 155, 156, 157)])
a(f"ds_write2_b32 v{vT0}, v154, v155 offset0:16 offset1:96")
attn_core("a1A", TA, [3, 4], qn=[2, 3, 4])
def o_store(h):
    tile_to_lds(48, 56, 2)
    a(f"s_add_u32 s{sT0}, s{sTILE}, {O3_OFF + 32768*h}")
    st2([f"buffer_store_dwordx4 {V(56,4)}, v{vT0}, {S4(SWS)}, s{sT0} offen"], sLOC, [("ost", h)])
xh_partial()
H1, H2 = 1, 0
o_store(H1)
prof("a1A_done")
a(f"v_lshlrev_b32 v{vT1}, 3, v{vL15}")
a(f"v_add_u32 v{vT1}, {CB}, v{vT1}")
for i in range(4): a(f"ds_read_b64 {V(144+2*i,2)}, v{vT1} offset:{640*i}")
ab_addr()
a("s_waitcnt lgkmcnt(0)")
tree(144, 4)
ln_math([(144, 145, 154, 155, 156, 157)])
a(f"ds_write2_b32 v{vT1}, v154, v155 offset0:0 offset1:80")
a("s_waitcnt lgkmcnt(0)")
def sigA():
    vm.wait(("ost", H1)); barrier(); signal(8, group_sig(MB_S6A), True)
qkv_pass(TB, [1], {0: (lambda: None, True), 6: (sigA, False)}, {})
prof("p3_gemmB")
vOD = 201
def oh_groups(h):
    def mk(i):
        def g():
            if i == 0:
                a(f"s_lshr_b32 s{sB0}, s{sW}, 1")
                a(f"s_lshl_b32 s{sB1}, s{sB0}, 14")
                a(f"v_add_u32 v{vOD+h}, s{sB1}, v{vXT[1 + 2*h]}")
                k_reset()
            a(f"s_add_u32 s{sB1}, s{sXo}, {O3_OFF}")
            a(f"s_add_u32 m0, s{sW1K}, {OIMG + 8192*i + 4096*h}")
            a(f"buffer_load_dwordx4 v{vOD+h}, {S4(SWS)}, s{sB1} offen{LSC} lds"); vm.issue(("o", h))
            a(f"s_add_u32 s{sXo}, s{sXo}, 128")
            a(f"s_and_b32 s{sXo}, s{sXo}, 1023")
        return g
    return [mk(i) for i in range(8)]
a.bg_start([async_poll(MB_S6A)], 60)
def fetch_o0():
    async_check(8, MB_S6A, "o3a")
    for g in oh_groups(H1): g()
attn_core("a1B", TB, [1, 2], fetch_o0, qn=[1])
o_store(H2)
prof("a1B_done")

PS1 = HC
def publish_half(h):
    a(f"v_and_b32 v{vT2}, 31, v{vLANE}")
    a(f"v_lshlrev_b32 v{vT2}, 3, v{vT2}")
    a(f"v_lshrrev_b32 v{vT1}, 5, v{vLANE}")
    a(f"v_lshl_add_u32 v{vT0}, v{vT1}, 12, v{vT2}")
    a(f"v_add_u32 v{vT0}, {PS1 + 256*h}, v{vT0}")
    for i in range(8): a(f"ds_read_b64 {V(vW+2*i,2)}, v{vT0} offset:{512*i}")
    peer_base(sT0, MB_ST + 512*h, 10)
    a(f"v_lshlrev_b32 v{vT2}, 1, v{vT2}")
    a(f"v_lshl_add_u32 v{vT2}, v{vT1}, {MB_SH}, v{vT2}")
    a("s_waitcnt lgkmcnt(0)")
    tree(vW, 8)
    a(f"v_mov_b32 v{vW+2}, v{vW}")
    a(f"v_mov_b32 v{vW+3}, v{vW+1}")
    a(f"v_permlane32_swap_b32 v{vW}, v{vW+2}")
    a(f"v_permlane32_swap_b32 v{vW+1}, v{vW+3}")
    a(f"v_pk_add_f32 {V(vW,2)}, {V(vW,2)}, {V(vW+2,2)}")
    a(f"v_mov_b32 v{vW+2}, s{sN}")
    a(f"v_mov_b32 v{vW+3}, s{sN+1}")
    st2([f"buffer_store_dwordx4 {V(vW,4)}, v{vT2}, {S4(SWS)}, s{sT0} offen"], sLOC)
def poll_half(h):
    a(f"v_and_b32 v{vT2}, 31, v{vLANE}")
    a(f"v_lshlrev_b32 v{vT2}, 4, v{vT2}")
    a(f"v_lshrrev_b32 v{vT1}, 5, v{vLANE}")
    a(f"v_lshl_add_u32 v{vT1}, v{vT1}, 10, v{vT2}")
    a(f"s_lshl_b32 s{sT1}, s{sW}, 11")
    a(f"s_add_u32 s{sT0}, s{sMB}, s{sT1}")
    a(f"s_add_u32 s{sT0}, s{sT0}, {MB_ST + 512*h}")
    L0, L1 = a.newlabel("L_ph"), a.newlabel("L_ph")
    a.flush()
    a(f"s_branch {L1}")
    a.label(L0)
    a("s_sleep 1")
    a.label(L1)
    a(f"buffer_load_dwordx4 {V(vW,4)}, v{vT1}, {S4(SWS)}, s{sT0} offen sc1")
    a("s_waitcnt vmcnt(0)")
    a(f"v_cmp_ne_u64 vcc, {S2(sN)}, {V(vW+2,2)}")
    a(f"s_cbranch_vccnz {L0}")
    vm.reset()
    a(f"v_mov_b32 v{vW+2}, v{vW}")
    a(f"v_mov_b32 v{vW+3}, v{vW+1}")
    a(f"v_permlane32_swap_b32 v{vW}, v{vW+2}")
    a(f"v_permlane32_swap_b32 v{vW+1}, v{vW+3}")
    a(f"v_pk_add_f32 {V(vW,2)}, {V(vW,2)}, {V(vW+2,2)}")
    a(f"s_lshl_b32 s{sT1}, s{sW}, 8")
    a(f"s_add_u32 s{sT1}, s{sT1}, {CB + 1024*h}")
    a(f"v_lshrrev_b32 v{vT2}, 1, v{vT2}")
    a(f"v_add_u32 v{vT2}, s{sT1}, v{vT2}")
    a(f"ds_write_b64 v{vT2}, {V(vW,2)}")
    a("s_waitcnt lgkmcnt(0)")
    barrier()
def finish_half(h):
    T = [2*h, 2*h + 1]
    a(f"v_lshlrev_b32 v{vT1}, 3, v{vL15}")
    a(f"v_add_u32 v{vT1}, {CB + 1024*h}, v{vT1}")
    for u in range(2):
        for i in range(4): a(f"ds_read_b64 {V(vW+8*u+2*i,2)}, v{vT1} offset:{256*i + 128*u}")
    a("s_waitcnt lgkmcnt(0)")
    for u in range(2): tree(vW + 8*u, 4)
    ln_math([(vW+8*u, vW+8*u+1, vW+8*u+2, vW+8*u+3, vW+8*u+4, vW+8*u+5) for u in range(2)])
    gate(T, lambda t: vW + 8*(t - 2*h) + 2)
    b = vX2 + 4*h
    a(f"v_permlane16_swap_b32 v{b}, v{b+2}")
    a(f"v_permlane16_swap_b32 v{b+1}, v{b+3}")
    a(f"v_and_b32 v{vT0}, 1, v{vQ}")
    a(f"v_lshl_add_u32 v{vT0}, v{vT0}, 4, v{vL15}")
    a(f"v_lshlrev_b32 v{vT0}, 10, v{vT0}")
    a(f"v_lshrrev_b32 v{vT1}, 1, v{vQ}")
    a(f"v_lshl_add_u32 v{vT0}, v{vT1}, 4, v{vT0}")
    a(f"s_lshl_b32 s{sT1}, s{sW}, 5")
    a(f"s_add_u32 s{sT1}, s{sT1}, s{sTILE}")
    if h: a(f"s_add_u32 s{sT1}, s{sT1}, 32768")
    a(f"buffer_store_dwordx4 {V(b,4)}, v{vT0}, {S4(SOUT)}, s{sT1} offen")

lg.reset()
a(f"v_add_u32 v{vOB}, {OIMG}, v{vF2}")
a(f"v_xor_b32 v{vOB+1}, 64, v{vOB}")
def pre40():
    vm.wait(("o", H1), ("ost", H2)); barrier(); signal(8, group_sig(MB_S6B), True)
TH = lambda h: [2*h, 2*h + 1]
op_gemm(TH(H1), {0: pre40})
prof("p4_gemm0")
x1_stats(TH(H1), PS1)
a("s_waitcnt lgkmcnt(0)")
barrier()
publish_half(H1)
prof("p4_pub0")
poll(8, MB_S6B, "o3b")
prof("p4_owait")
for g in oh_groups(H2): g()
poll_half(H1)
prof("p4_st0")
lg.reset()
op_gemm(TH(H2), {})
x1_stats(TH(H2), PS1)
a("s_waitcnt lgkmcnt(0)")
barrier()
publish_half(H2)
prof("p4_pub1")
finish_half(H1)
prof("p4_fin0")
poll_half(H2)
prof("p4_st1")
finish_half(H2)
prof("final")
a.label("L_end")
a("s_endpgm")
a.raw('.section .rodata,"a"')
a.raw(kernel_desc(NAME, 512, 102, 256))
out = sys.argv[1] if len(sys.argv) > 1 else "interleave_layers__sliding_local_dilated__ssm_conv_h3__prompt.s"
open(out, "w").write(a.text())
print("wrote", out, "lines", len(a.lines), "pad states", a.npad)
```

```python
import sys, os
sys.path.insert(0, os.path.dirname(os.path.abspath(__file__)))
from asmlib import *

NAME = "interleave_layers__sliding_local_dilated__ssm_conv_h3__prompt_kernel"
STAGE = int(os.environ.get("STAGE", "9"))
PROF = int(os.environ.get("PROF", "0"))
ENV = lambda k, d: int(os.environ.get(k, str(d)))

KVT_OFF = 0
YT_OFF = KVT_OFF
O1_OFF = 4 << 20
PLD = int(os.environ.get("PLD", "0"))
LSC = "" if PLD else " sc1"
X2_OFF = (6 << 20) if PLD else O1_OFF
O3_OFF = 8 << 20
HL_OFF = 10 << 20
MB_OFF = 16 << 20
MB_SH = 15
MB_SZ = 1 << MB_SH
MB_F = 24576
MB_S1, MB_S3, MB_ID = 64, 16, 96
MB_S2, MB_S5, MB_S6A, MB_S6B = MB_F, MB_F + 16, MB_F + 32, MB_F + 48
MB_XS = 12288
MB_XH = 20480
MB_ST = 4096
PROF_OFF = 32 << 20

XIMG = 0
WRING = 81920
NSLOT = 6
WOIMG = 0
UR, URP = 65536, 4608
HC, HCP = 74752, 4160
ACCX = HC
YTT = HC
PS = HC + 8192
OT0 = PS
OT1 = 155648
MISC = 91392
ABW = MISC + 1024
OIMG = 98304
Y1T = 155648

sB, sW, sG, sJ, sKK0, sJY = 2, 3, 4, 5, 6, 7
SX, SWQ, SWO, SK_, SV_, SH, SOUT, SDBG, SWS, SX2, SSK = 8, 12, 16, 20, 24, 28, 32, 36, 40, 44, 48
sD = 52
sPAR, sMC0, sMC1 = 54, 56, 58
sL = 60
sT0, sT1, sT2, sT3, sT4 = 61, 62, 63, 64, 75
sW1K, sW16K, sW5K, sMB = 65, 66, 67, 68
sTILE = 69
sEX = 72
sN = 78
sXo, sW3K, sW64, sXx = 80, 81, 82, 83
sL0 = 84
sTP = 86
sLOC, sLOC2, sXCC = 74, 76, 77
sB0, sB1 = 70, 71
sPT = 92

def S4(n): return f"s[{n}:{n+3}]"
def S2(n): return f"s[{n}:{n+1}]"
def V(n, k=1): return f"v{n}" if k == 1 else f"v[{n}:{n+k-1}]"
def A(n, k=1): return f"a{n}" if k == 1 else f"a[{n}:{n+k-1}]"

vTID, vLANE, vL15, vQ = 0, 1, 2, 3
vA0, vA1, vS0, vS1, vSH, vTR, vXD, vXDH, vWD = 4, 5, 6, 7, 8, 9, 10, 11, 12
vT0, vT1, vT2 = 13, 14, 15
vQT, vKT, vVV = 16, 32, 52
vXA = 84
vSO = 124
vSHF = 132
vONE = 136
vXDW, vF2, vL128, vD2 = 140, 141, 142, 143
yH = 144
vST = 196
vPL = 214
vNL = 220
vP0 = 222
vCS = 224
vTRW0, vTRW1, vWOD, vFR = 236, 237, 238, 239
vX2, vYY = 240, 248

a = Asm()
vm = Cnt(a, "vmcnt", 63)
lg = Cnt(a, "lgkmcnt", 15)
prof_idx = [0]
PARM, MC = S2(sPAR), [S2(sMC0), S2(sMC1)]

DBGTAGS = ["start", "y1done", "p1gemm", "a0_done", "y2", "p0_pub", "p0_stats", "p0_done", "p3_wait", "p3_gemm", "a1_done", "p1_gemm", "final"]
def prof_dbg(tag):
    if tag not in DBGTAGS: return
    e = a.bg_pause()
    i = DBGTAGS.index(tag)
    L = a.newlabel("L_pd")
    a(f"s_cmp_lg_u32 s{sL}, 37")
    a(f"s_cbranch_scc1 {L}")
    a(f"s_memtime {S2(sPT)}")
    if tag in ("start", "final"): a(f"s_memrealtime {S2(sPT+2)}")
    a("s_waitcnt lgkmcnt(0)")
    if tag == "start":
        a(f"s_mov_b32 s100, s{sPT}")
        a(f"s_mov_b32 s101, s{sPT+2}")
    a(f"s_sub_u32 s{sPT}, s{sPT}, s100")
    a(f"v_mov_b32 v218, s{sPT}")
    a(f"v_mov_b32 v219, {12 + 4*i}")
    a(f"v_cmp_eq_u32 {S2(sPT+6)}, 0, v{vTID}")
    a(f"s_and_saveexec_b64 {S2(sPT+4)}, {S2(sPT+6)}")
    a(f"buffer_store_dword v218, v219, {S4(SDBG)}, 0 offen")
    if tag == "final":
        a(f"s_sub_u32 s{sPT+2}, s{sPT+2}, s101")
        a(f"v_mov_b32 v218, s{sPT+2}")
        a(f"v_mov_b32 v219, 8")
        a(f"buffer_store_dword v218, v219, {S4(SDBG)}, 0 offen")
    a(f"s_mov_b64 exec, {S2(sPT+4)}")
    a.flush()
    a.label(L)
    a("s_waitcnt lgkmcnt(0)")
    lg.reset()
    a.bg_resume(e)

def prof(tag):
    if not PROF: return
    if PROF == 2: return prof_dbg(tag)
    e = a.bg_pause()
    i = prof_idx[0]; prof_idx[0] += 1
    a(f"s_memrealtime {S2(sPT)}" if PROF == 3 else f"s_memtime {S2(sPT)}")
    a("s_waitcnt lgkmcnt(0)")
    lg.reset()
    a(f"v_mov_b32 v218, s{sPT}")
    a(f"s_lshl_b32 s{sPT+2}, s{sL}, 9")
    a(f"s_add_u32 s{sPT+2}, s{sPT+2}, {PROF_OFF + 4*i}")
    a(f"v_mov_b32 v219, 0")
    a(f"v_cmp_eq_u32 {S2(sPT+6)}, 0, v{vTID}")
    a(f"s_and_saveexec_b64 {S2(sPT+4)}, {S2(sPT+6)}")
    a(f"buffer_store_dword v218, v219, {S4(SWS)}, s{sPT+2} offen")
    a(f"s_mov_b64 exec, {S2(sPT+4)}")
    vm.issue("prof")
    a.bg_resume(e)

def set_exec(n):
    a(f"s_mov_b32 exec_lo, {hex((1 << min(n,32)) - 1)}")
    a(f"s_mov_b32 exec_hi, {hex((1 << (n-32)) - 1) if n > 32 else 0}")

def barrier(): a("s_barrier")

FAST = ENV("FAST", 1)
def st2(lines, loc, tags=()):
    e = a.bg_pause()
    if not FAST:
        for l in lines: a(l + " sc1")
    else:
        Lp, Le = a.newlabel("L_sp"), a.newlabel("L_se")
        a(f"s_cmp_lg_u32 s{loc}, 0")
        a(f"s_cbranch_scc1 {Lp}")
        for l in lines: a(l + " sc1")
        a(f"s_branch {Le}")
        a.label(Lp)
        for l in lines: a(l)
        a.label(Le)
    for t in tags: vm.issue(t)
    a.bg_resume(e)

def poll(n, mboff, name, exec_set=False):
    L = a.newlabel("L_poll_" + name)
    if not exec_set: set_exec(n)
    a(f"s_add_u32 s{sT0}, s{sMB}, {mboff}")
    a.flush()
    a.label(L)
    a(f"buffer_load_dwordx2 {V(vP0,2)}, v{vL128}, {S4(SWS)}, s{sT0} offen sc1")
    a("s_waitcnt vmcnt(0)")
    a(f"v_cmp_ne_u64 vcc, {S2(sN)}, {V(vP0,2)}")
    a(f"s_cbranch_vccnz {L}")
    a("s_mov_b64 exec, -1")
    vm.reset()

def async_poll(mboff):
    def g():
        a(f"s_add_u32 s{sB0}, s{sMB}, {mboff}")
        a(f"buffer_load_dwordx2 {V(vPL,2)}, v{vL128}, {S4(SWS)}, s{sB0} offen sc1"); vm.issue("apoll")
    return g

def async_check(n, mboff, name):
    L = a.newlabel("L_achk")
    vm.wait("apoll")
    set_exec(n)
    a(f"v_cmp_ne_u64 vcc, {S2(sN)}, {V(vPL,2)}")
    a("s_mov_b64 exec, -1")
    a(f"s_cbranch_vccz {L}")
    q = list(vm.q)
    poll(n, mboff, name)
    vm.q = q
    a.flush()
    a.label(L)

def signal(n, addr_code, loc=None):
    L = a.newlabel("L_sig")
    a(f"s_cmp_lg_u32 s{sW}, 0")
    a(f"s_cbranch_scc1 {L}")
    a(addr_code)
    a(f"v_mov_b32 v{vP0}, s{sN}")
    a(f"v_mov_b32 v{vP0+1}, s{sN+1}")
    ln = f"buffer_store_dwordx2 {V(vP0,2)}, v{vT1}, {S4(SWS)}, 0 offen"
    if loc is None:
        set_exec(n)
        a(ln + " sc1")
    else:
        set_exec(8)
        st2([ln], sLOC)
        if n > 8:
            a("s_mov_b32 exec_lo, 0xff00")
            st2([ln], sLOC2)
    a("s_mov_b64 exec, -1")
    a.flush()
    a.label(L)

def group_sig(mboff, n=8):
    extra = f"v_and_b32 v{vT2}, 8, v{vLANE}\nv_lshl_add_u32 v{vT1}, v{vT2}, 7, v{vT1}\n" if n > 8 else ""
    return f"""s_lshl_b32 s{sT0}, s{sG}, 3
v_add_u32 v{vT1}, s{sT0}, v{vLANE}
v_lshlrev_b32 v{vT1}, {MB_SH}, v{vT1}
{extra}s_lshl_b32 s{sT0}, s{sJ}, 7
s_add_u32 s{sT0}, s{sT0}, {MB_OFF + mboff}
v_add_u32 v{vT1}, s{sT0}, v{vT1}"""

def allreduce(op, regs, tmps):
    for sw in ("v_permlane16_swap_b32", "v_permlane32_swap_b32"):
        for r, t in zip(regs, tmps): a(f"v_mov_b32 v{t}, v{r}")
        for r, t in zip(regs, tmps): a(f"{sw} v{r}, v{t}")
        for r, t in zip(regs, tmps): a(f"{op} v{r}, v{r}, v{t}")

def ln_math(sets):
    steps = [
        "v_mul_f32 v{t0}, 0x3b000000, v{S}", "v_mul_f32 v{t1}, 0x3b000000, v{SS}",
        "v_fma_f32 v{t1}, -v{t0}, v{t0}, v{t1}", "v_max_f32 v{t1}, 0, v{t1}",
        "v_cvt_pk_bf16_f32 v{t0}, v{t0}, v{t1}", "v_and_b32 v{t1}, 0xffff0000, v{t0}",
        "v_lshlrev_b32 v{t0}, 16, v{t0}", "v_add_f32 v{t1}, 0x3727c5ac, v{t1}",
        "v_cvt_pk_bf16_f32 v{t1}, v{t1}, v{t1}", "v_lshlrev_b32 v{t1}, 16, v{t1}",
        "v_sqrt_f32 v{t1}, v{t1}", "v_cvt_pk_bf16_f32 v{t1}, v{t1}, v{t1}",
        "v_lshlrev_b32 v{t1}, 16, v{t1}", "v_rcp_f32 v{A}, v{t1}",
        "v_mul_f32 v{B}, -v{t0}, v{A}"]
    for st in steps:
        for (S, SS, A_, B_, t0, t1) in sets:
            a(st.format(S=S, SS=SS, A=A_, B=B_, t0=t0, t1=t1))

def ldsg(line, tag):
    def g(): a(line); lg.issue(tag)
    return g
def vmg(line, tag):
    def g(): a(line); vm.issue(tag)
    return g

def tile_to_lds(src, tmp, nt=4, mid=None, OT=OT0):
    a(f"v_lshrrev_b32 v{vT0}, 1, v{vQ}")
    a(f"s_lshl_b32 s{sT0}, s{sW}, 1")
    a(f"v_add_u32 v{vT0}, s{sT0}, v{vT0}")
    a(f"v_and_b32 v{vT1}, 7, v{vL15}")
    a(f"v_xor_b32 v{vT0}, v{vT0}, v{vT1}")
    a(f"v_lshlrev_b32 v{vT0}, 4, v{vT0}")
    a(f"v_lshl_add_u32 v{vT0}, v{vL15}, 7, v{vT0}")
    a(f"v_and_b32 v{vT1}, 1, v{vQ}")
    a(f"v_lshl_add_u32 v{vT0}, v{vT1}, 3, v{vT0}")
    a(f"v_add_u32 v{vT0}, {OT}, v{vT0}")
    for t in range(nt):
        a(f"ds_write_b64 v{vT0}, {V(src+2*t,2)} offset:{2048*t}")
    if mid: mid()
    a(f"v_lshlrev_b32 v{vT1}, 4, v{vTID}")
    a(f"v_add_u32 v{vT1}, {OT}, v{vT1}")
    a(f"v_lshrrev_b32 v{vT2}, 3, v{vTID}")
    a(f"v_xor_b32 v{vT0}, v{vTID}, v{vT2}")
    a(f"v_and_b32 v{vT0}, 7, v{vT0}")
    a(f"v_lshlrev_b32 v{vT0}, 4, v{vT0}")
    a(f"v_lshl_add_u32 v{vT0}, v{vT2}, 10, v{vT0}")
    a("s_waitcnt lgkmcnt(0)")
    barrier()
    for i in range(nt // 2):
        a(f"ds_read_b128 {V(tmp+4*i,4)}, v{vT1} offset:{4096*i}")
    a("s_waitcnt lgkmcnt(0)")

a.raw("; @launch grid=(256,1,1) block=(256,1,1) lds=163840")
a.raw('.amdgcn_target "amdgcn-amd-amdhsa--gfx950"\n.text')
a.raw(kernel_header(NAME))
a(f"s_cmp_ge_u32 s{sB}, 256")
a("s_cbranch_scc1 L_end")
a("s_load_dwordx16 s[76:91], s[0:1], 0")
a("s_load_dwordx8 s[92:99], s[0:1], 64")
a(f"v_and_b32 v{vLANE}, 63, v{vTID}")
a(f"v_lshrrev_b32 v{vT0}, 6, v{vTID}")
a(f"v_and_b32 v{vL15}, 15, v{vTID}")
a(f"v_readfirstlane_b32 s{sW}, v{vT0}")
a(f"v_bfe_u32 v{vQ}, v{vTID}, 4, 2")
a(f"v_lshlrev_b32 v{vA0}, 4, v{vLANE}")
a(f"v_lshrrev_b32 v{vT0}, 2, v{vL15}")
a(f"v_and_b32 v{vT0}, 2, v{vT0}")
a(f"v_xor_b32 v{vT0}, v{vT0}, v{vQ}")
a(f"v_lshlrev_b32 v{vFR}, 6, v{vL15}")
a(f"v_lshl_add_u32 v{vFR}, v{vT0}, 4, v{vFR}")
a(f"v_add_u32 v{vA1}, 40960, v{vFR}")
a(f"v_lshlrev_b32 v{vL128}, 7, v{vLANE}")
a(f"v_and_b32 v{vL128}, 0xfff, v{vL128}")
MAPNJ = ENV("MAPNJ", 8)
a(f"s_and_b32 s{sT0}, s{sB}, 7")
a(f"s_lshr_b32 s{sT1}, s{sB}, 3")
if ENV("SLOTPERM", 0):
    a(f"s_and_b32 s{sT2}, s{sT1}, 3")
    a(f"s_lshl_b32 s{sT2}, s{sT2}, 3")
    a(f"s_lshr_b32 s{sT1}, s{sT1}, 2")
    a(f"s_add_u32 s{sT1}, s{sT1}, s{sT2}")
if MAPNJ == 8:
    a(f"s_lshr_b32 s{sT2}, s{sT1}, 3")
    a(f"s_lshl_b32 s{sG}, s{sT0}, 2")
    a(f"s_add_u32 s{sG}, s{sG}, s{sT2}")
    a(f"s_and_b32 s{sJ}, s{sT1}, 7")
    a(f"s_lshl_b32 s{sKK0}, s{sT2}, 2")
    a(f"s_lshl_b32 s{sT2}, s{sJ}, 1")
    a(f"s_add_u32 s{sKK0}, s{sKK0}, s{sT2}")
    a(f"s_and_b32 s{sT2}, s{sT0}, 2")
    a(f"s_add_u32 s{sKK0}, s{sKK0}, s{sT2}")
elif MAPNJ == 4:
    a(f"s_lshr_b32 s{sG}, s{sT0}, 1")
    a(f"s_lshl_b32 s{sG}, s{sG}, 3")
    a(f"s_lshr_b32 s{sT2}, s{sT1}, 2")
    a(f"s_add_u32 s{sG}, s{sG}, s{sT2}")
    a(f"s_and_b32 s{sJ}, s{sT0}, 1")
    a(f"s_lshl_b32 s{sJ}, s{sJ}, 2")
    a(f"s_and_b32 s{sT3}, s{sT1}, 3")
    a(f"s_add_u32 s{sJ}, s{sJ}, s{sT3}")
    a(f"s_lshl_b32 s{sKK0}, s{sT2}, 1")
    a(f"s_lshl_b32 s{sT3}, s{sT3}, 2")
    a(f"s_add_u32 s{sKK0}, s{sKK0}, s{sT3}")
    a(f"s_lshr_b32 s{sT2}, s{sT0}, 2")
    a(f"s_add_u32 s{sKK0}, s{sKK0}, s{sT2}")
elif MAPNJ == 2:
    a(f"s_lshr_b32 s{sG}, s{sT0}, 2")
    a(f"s_lshl_b32 s{sG}, s{sG}, 4")
    a(f"s_lshr_b32 s{sT2}, s{sT1}, 1")
    a(f"s_add_u32 s{sG}, s{sG}, s{sT2}")
    a(f"s_and_b32 s{sJ}, s{sT0}, 3")
    a(f"s_lshl_b32 s{sJ}, s{sJ}, 1")
    a(f"s_and_b32 s{sT3}, s{sT1}, 1")
    a(f"s_add_u32 s{sJ}, s{sJ}, s{sT3}")
    a(f"s_lshl_b32 s{sT3}, s{sJ}, 1")
    a(f"s_add_u32 s{sKK0}, s{sT2}, s{sT3}")
if ENV("NOROT", 0): a(f"s_mov_b32 s{sKK0}, 0")
a(f"s_and_b32 s{sKK0}, s{sKK0}, 15")
a(f"s_lshl_b32 s{sL}, s{sG}, 3")
a(f"s_add_u32 s{sL}, s{sL}, s{sJ}")
a(f"s_add_u32 s{sJY}, s{sJ}, {ENV('JYOFF', 4)}")
a(f"s_and_b32 s{sJY}, s{sJY}, 7")
a(f"s_lshl_b32 s{sW1K}, s{sW}, 10")
a(f"s_lshl_b32 s{sW16K}, s{sW}, 14")
a(f"s_mul_i32 s{sW5K}, s{sW}, 5120")
a(f"s_lshl_b32 s{sMB}, s{sL}, {MB_SH}")
a(f"s_add_u32 s{sMB}, s{sMB}, {MB_OFF}")
a(f"s_lshl_b32 s{sTILE}, s{sG}, 16")
a(f"s_lshl_b32 s{sT1}, s{sJ}, 7")
a(f"s_add_u32 s{sTILE}, s{sTILE}, s{sT1}")
a(f"v_add_u32 v{vS0}, s{sW1K}, v{vFR}")
a(f"v_add_u32 v{vS0}, 1024, v{vS0}")
a(f"v_add_u32 v{vS1}, 40960, v{vS0}")
a(f"v_add_u32 v{vSH}, s{sW5K}, v{vFR}")
a(f"v_lshrrev_b32 v{vT1}, 5, v{vLANE}")
a(f"v_lshlrev_b32 v{vTR}, 10, v{vT1}")
a(f"v_bfe_u32 v{vT0}, v{vLANE}, 2, 3")
a(f"v_lshl_add_u32 v{vTR}, v{vT0}, 7, v{vTR}")
a(f"v_lshrrev_b32 v{vT0}, 1, v{vT0}")
a(f"v_xor_b32 v{vT0}, s{sW}, v{vT0}")
a(f"v_lshl_add_u32 v{vTR}, v{vT0}, 5, v{vTR}")
a(f"v_and_b32 v{vT0}, 3, v{vLANE}")
a(f"v_lshl_add_u32 v{vTR}, v{vT0}, 3, v{vTR}")
a(f"v_lshl_add_u32 v{vTRW0}, v{vT1}, 11, v{vTR}")
a(f"v_add_u32 v{vTRW1}, {WRING + 36864}, v{vTRW0}")
a(f"v_add_u32 v{vTRW0}, {WRING}, v{vTRW0}")
a(f"v_lshrrev_b32 v{vT0}, 2, v{vLANE}")
a(f"v_lshlrev_b32 v{vXD}, 10, v{vT0}")
a(f"v_lshrrev_b32 v{vT1}, 4, v{vLANE}")
a(f"v_and_b32 v{vT1}, 2, v{vT1}")
a(f"v_and_b32 v{vT0}, 3, v{vLANE}")
a(f"v_xor_b32 v{vT0}, v{vT0}, v{vT1}")
a(f"v_lshl_add_u32 v{vXD}, v{vT0}, 4, v{vXD}")
a(f"s_lshl_b32 s{sT0}, s{sG}, 16")
a(f"v_add_u32 v{vXD}, s{sT0}, v{vXD}")
a(f"v_add_u32 v{vXDH}, {-16384 & 0xffffffff}, v{vXD}")
a(f"v_add_u32 v{vXDW}, s{sW16K}, v{vXD}")
a(f"v_bfe_u32 v{vT0}, v{vLANE}, 3, 2")
a(f"v_lshrrev_b32 v{vT1}, 5, v{vLANE}")
a(f"v_lshl_add_u32 v{vT0}, v{vT1}, 3, v{vT0}")
a(f"s_and_b32 s{sT0}, s{sW}, 1")
a(f"s_lshl_b32 s{sT0}, s{sT0}, 4")
a(f"s_lshr_b32 s{sT1}, s{sW}, 1")
a(f"s_lshl_b32 s{sT1}, s{sT1}, 2")
a(f"s_add_u32 s{sT0}, s{sT0}, s{sT1}")
a(f"v_add_u32 v{vT0}, s{sT0}, v{vT0}")
a(f"v_lshrrev_b32 v{vT1}, 4, v{vLANE}")
a(f"v_lshlrev_b32 v{vT1}, 1, v{vT1}")
a(f"v_and_b32 v{vT2}, 7, v{vLANE}")
a(f"v_xor_b32 v{vT1}, v{vT1}, v{vT2}")
a(f"v_lshlrev_b32 v{vT1}, 4, v{vT1}")
a(f"s_lshl_b32 s{sT0}, s{sJ}, 7")
a(f"v_add_u32 v{vT1}, s{sT0}, v{vT1}")
a(f"v_lshl_add_u32 v{vWOD}, v{vT0}, 10, v{vT1}")
a(f"v_mul_u32_u24 v{vWD}, 3072, v{vT0}")
a(f"v_add_u32 v{vWD}, v{vWD}, v{vT1}")
a(f"v_lshrrev_b32 v{vT0}, 1, v{vL15}")
a(f"v_xor_b32 v{vT0}, v{vT0}, v{vQ}")
a(f"v_lshlrev_b32 v{vF2}, 7, v{vL15}")
a(f"v_lshl_add_u32 v{vF2}, v{vT0}, 4, v{vF2}")
a(f"v_lshrrev_b32 v{vT0}, 3, v{vLANE}")
a(f"v_lshrrev_b32 v{vT1}, 4, v{vLANE}")
a(f"v_and_b32 v{vT2}, 7, v{vLANE}")
a(f"v_xor_b32 v{vT1}, v{vT1}, v{vT2}")
a(f"v_lshlrev_b32 v{vD2}, 10, v{vT0}")
a(f"v_lshl_add_u32 v{vD2}, v{vT1}, 4, v{vD2}")
a(f"s_lshl_b32 s{sT0}, s{sG}, 16")
a(f"v_add_u32 v{vD2}, s{sT0}, v{vD2}")
a(f"v_and_b32 v{vT0}, 1, v{vLANE}")
a(f"v_cmp_eq_u32 {PARM}, 1, v{vT0}")
a(f"v_lshl_add_u32 v{vT1}, v{vQ}, 2, v{vT0}")
a(f"v_cmp_le_u32 {MC[0]}, v{vT1}, v{vL15}")
a(f"v_add_u32 v{vT1}, 2, v{vT1}")
a(f"v_cmp_le_u32 {MC[1]}, v{vT1}, v{vL15}")
for i in range(4):
    a(f"v_mov_b32 v{vONE+i}, 0x3f803f80")
a("s_waitcnt lgkmcnt(0)")
P = lambda i: 76 + 2 * i
srd(a, SX, P(0), 2048 * 1024)
srd(a, SWQ, P(1), 512 * 3072)
srd(a, SWO, P(2), 512 * 1024)
srd(a, SK_, P(4), 2048 * 1024)
srd(a, SV_, P(5), 2048 * 1024)
srd(a, SSK, P(6), 4096)
srd(a, SH, P(7), 512 * 4096)
srd(a, SOUT, P(9), 2048 * 1024)
srd(a, SDBG, P(10), 256)
srd(a, SWS, P(11), 1 << 28)
srd(a, SX2, P(11), 2048 * 1024, off=X2_OFF)
a(f"s_lshl_b32 s{sT0}, s{sL}, 2")
a(f"s_load_dword s{sD}, {S2(P(8))}, s{sT0}")
a("s_waitcnt lgkmcnt(0)") if PROF else None
a(f"s_mul_i32 s{sT3}, s{sW}, 3072")
a(f"s_lshl_b32 s{sT4}, s{sW}, 6")

def k_reset(): a(f"s_lshl_b32 s{sXo}, s{sKK0}, 6")
def k_next():
    a(f"s_add_u32 s{sXo}, s{sXo}, 64")
    a(f"s_and_b32 s{sXo}, s{sXo}, 1023")
def kx_next():
    a(f"s_add_u32 s{sXx}, s{sXx}, 64")
    a(f"s_and_b32 s{sXx}, s{sXx}, 1023")
def dma_x_groups(s, srd_):
    sc = " sc1" if srd_ == SX2 else ""
    def g1():
        a(f"s_add_u32 m0, s{sW1K}, {XIMG + (s*5+1)*1024}")
        a(f"buffer_load_dwordx4 v{vXDW}, {S4(srd_)}, s{sXx} offen{sc} lds"); vm.issue(("x", s))
        if s % 4: kx_next()
    def g2():
        a(f"s_add_u32 s{sB0}, s{sXx}, s{sW64}")
        a(f"s_and_b32 s{sB0}, s{sB0}, 1023")
        a(f"s_add_u32 m0, s{sW5K}, {XIMG + s*5*1024}")
        a(f"buffer_load_dwordx4 v{vXDH}, {S4(srd_)}, s{sB0} offen{sc} lds"); vm.issue(("h", s // 4))
        kx_next()
    return [g1, g2] if s % 4 == 0 else [g1]
def dma_w_groups(s):
    def g():
        a(f"s_mul_i32 s{sB1}, s{sXo}, 1536")
        a(f"s_add_u32 m0, s{sW3K}, {WRING + (s % NSLOT)*12288}")
        for p in range(3):
            a(f"buffer_load_dwordx4 v{vWD}, {S4(SWQ)}, s{sB1} offen offset:{1024*p} lds"); vm.issue(("w", s))
    return [g]
def wo_group(i):
    def g():
        a(f"s_lshl_b32 s{sB1}, s{sXo}, 9")
        a(f"s_add_u32 m0, s{sW1K}, {WOIMG + i*4096}")
        a(f"buffer_load_dwordx4 v{vWOD}, {S4(SWO)}, s{sB1} offen lds"); vm.issue("wo")
        k_next()
    return g
def touch_tile(off):
    def g():
        a(f"s_add_u32 s{sB0}, s{sTILE}, s{sW16K}")
        a(f"s_add_u32 s{sB0}, s{sB0}, {off}")
        a(f"v_lshlrev_b32 v217, 10, v{vL15}")
        a(f"buffer_load_dword v216, v217, {S4(SWS)}, s{sB0} offen sc1"); vm.issue("pt")
    return g
def touch_xs():
    a(f"s_lshl_b32 s{sB0}, s{sW}, 10")
    a(f"s_add_u32 s{sB0}, s{sB0}, s{sMB}")
    a(f"s_add_u32 s{sB0}, s{sB0}, {MB_XS}")
    a(f"v_and_b32 v217, 7, v{vLANE}")
    a(f"v_lshlrev_b32 v217, 7, v217")
    a(f"buffer_load_dword v216, v217, {S4(SWS)}, s{sB0} offen sc1"); vm.issue("pt")
    a(f"s_add_u32 s{sB0}, s{sMB}, {MB_XH}")
    a(f"buffer_load_dword v216, v217, {S4(SWS)}, s{sB0} offen sc1"); vm.issue("pt")
def h_group():
    a(f"v_lshlrev_b32 v{vT0}, 4, v{vTID}")
    a(f"s_lshl_b32 s{sB0}, s{sL}, 13")
    for c in range(2):
        if c: a(f"s_add_u32 s{sB0}, s{sB0}, 4096")
        a(f"buffer_load_dwordx4 {V(yH+8*c,4)}, v{vT0}, {S4(SH)}, s{sB0} offen"); vm.issue("h")
        a(f"buffer_load_dword v{yH+8*c+4}, v{vT0}, {S4(SH)}, s{sB0} offen offset:16"); vm.issue("h")
yK, yV, ySK, yA = 144, 164, 172, 188
def y1_loads():
    a.comment("Y1 loads: thread -> c8 = tid&7 (8 channels), rp = tid>>3 (row pair)")
    a(f"v_and_b32 v{vT0}, 7, v{vTID}")
    a(f"v_lshrrev_b32 v{vT1}, 3, v{vTID}")
    a(f"v_lshlrev_b32 v{vT2}, 11, v{vT1}")
    a(f"v_lshl_add_u32 v{vT2}, v{vT0}, 4, v{vT2}")
    a(f"s_lshl_b32 s{sT0}, s{sG}, 16")
    a(f"s_lshl_b32 s{sT1}, s{sJY}, 7")
    a(f"s_add_u32 s{sT0}, s{sT0}, s{sT1}")
    a(f"v_add_u32 v{vT2}, s{sT0}, v{vT2}")
    for i in range(5): a(f"v_add_u32 v{yA+i}, {(i-3)*1024}, v{vT2}")
    a(f"s_lshl_b32 s{sT1}, s{sJY}, 9")
    a(f"v_lshlrev_b32 v{yA+5}, 6, v{vT0}")
    for i in range(5):
        a(f"buffer_load_dwordx4 {V(yK+4*i,4)}, v{yA+i}, {S4(SK_)}, 0 offen"); vm.issue("y1")
    for i in range(2):
        a(f"buffer_load_dwordx4 {V(yV+4*i,4)}, v{yA+3+i}, {S4(SV_)}, 0 offen"); vm.issue("y1")
    for i in range(4):
        a(f"buffer_load_dwordx4 {V(ySK+4*i,4)}, v{yA+5}, {S4(SSK)}, s{sT1} offen offset:{16*i}"); vm.issue("y1")
def y1_compute():
    a.comment("Y1 compute")
    vm.wait("y1")
    R, TP, VVv, K0, K1 = 240, 188, 250, 254, 212
    yO = lambda i: yK + (i >> 1) + 4 * (i & 1)
    for m in range(4):
        for i in range(5):
            a(f"v_lshlrev_b32 v{R+2*i}, 16, v{yK+4*i+m}")
            a(f"v_and_b32 v{R+2*i+1}, 0xffff0000, v{yK+4*i+m}")
        for c in range(2):
            a(f"v_lshlrev_b32 v{TP+0+c}, 16, v{ySK+4*m+2*c}")
            a(f"v_and_b32 v{TP+2+c}, 0xffff0000, v{ySK+4*m+2*c}")
            a(f"v_lshlrev_b32 v{TP+4+c}, 16, v{ySK+4*m+2*c+1}")
            a(f"v_and_b32 v{TP+6+c}, 0xffff0000, v{ySK+4*m+2*c+1}")
        for i in range(2):
            a(f"v_lshlrev_b32 v{VVv+2*i}, 16, v{yV+4*i+m}")
            a(f"v_and_b32 v{VVv+2*i+1}, 0xffff0000, v{yV+4*i+m}")
        for (Kx, r0) in ((K0, 0), (K1, 1)): a(f"v_pk_mul_f32 {V(Kx,2)}, {V(R+2*r0,2)}, {V(TP+6,2)}")
        for d in (1, 2, 3):
            for (Kx, r0) in ((K0, 0), (K1, 1)):
                a(f"v_pk_fma_f32 {V(Kx,2)}, {V(R+2*(r0+d),2)}, {V(TP+6-2*d,2)}, {V(Kx,2)}")
        for Kx in (K0, K1):
            a(f"v_cvt_pk_bf16_f32 v{Kx+1}, v{Kx}, v{Kx+1}")
            a(f"v_lshlrev_b32 v{Kx}, 16, v{Kx+1}")
            a(f"v_and_b32 v{Kx+1}, 0xffff0000, v{Kx+1}")
        a(f"v_pk_mul_f32 {V(K0,2)}, {V(K0,2)}, {V(VVv,2)}")
        a(f"v_pk_mul_f32 {V(K1,2)}, {V(K1,2)}, {V(VVv+2,2)}")
        a(f"v_cvt_pk_bf16_f32 v{yO(2*m)}, v{K1}, v{K0}")
        a(f"v_cvt_pk_bf16_f32 v{yO(2*m+1)}, v{K1+1}, v{K0+1}")
    a(f"v_and_b32 v{vT0}, 7, v{vTID}")
    a(f"v_lshrrev_b32 v{vT1}, 3, v{vTID}")
    a(f"v_sub_u32 v{vT1}, 31, v{vT1}")
    a(f"v_lshlrev_b32 v{vT2}, 2, v{vT0}")
    a(f"v_xor_b32 v{vT1}, v{vT1}, v{vT2}")
    a(f"v_lshlrev_b32 v{vT1}, 2, v{vT1}")
    a(f"v_lshl_add_u32 v{vT1}, v{vT0}, 10, v{vT1}")
    a(f"v_add_u32 v{vT1}, {Y1T}, v{vT1}")
    for i in range(8): a(f"ds_write_b32 v{vT1}, v{yO(i)} offset:{128*i}")
    a(f"v_lshrrev_b32 v{vT0}, 3, v{vTID}")
    a(f"v_and_b32 v{vT1}, 7, v{vTID}")
    a(f"v_lshrrev_b32 v{vT2}, 3, v{vT0}")
    a(f"v_xor_b32 v{TP}, v{vT1}, v{vT2}")
    a(f"v_lshlrev_b32 v{TP}, 4, v{TP}")
    a(f"v_lshl_add_u32 v{TP}, v{vT0}, 7, v{TP}")
    a(f"v_add_u32 v{TP}, {Y1T}, v{TP}")
    a(f"v_xor_b32 v{TP+1}, 64, v{TP}")
    a(f"v_lshlrev_b32 v{TP+2}, 12, v{vT0}")
    a(f"v_lshl_add_u32 v{TP+2}, v{vT1}, 4, v{TP+2}")
    a(f"s_lshl_b32 s{sT0}, s{sJY}, 18")
    a(f"s_lshl_b32 s{sT1}, s{sG}, 7")
    a(f"s_sub_u32 s{sT0}, s{sT0}, s{sT1}")
    a(f"s_add_u32 s{sT0}, s{sT0}, {KVT_OFF + 3968}")
    a(f"s_add_u32 s{sT1}, s{sT0}, {32*4096}")
    a("s_waitcnt lgkmcnt(0)")
    barrier()
    a(f"ds_read_b128 {V(yV,4)}, v{TP}")
    a(f"ds_read_b128 {V(yV+4,4)}, v{TP+1} offset:4096")
    a("s_waitcnt lgkmcnt(0)")
    a(f"buffer_store_dwordx4 {V(yV,4)}, v{TP+2}, {S4(SWS)}, s{sT0} offen sc1"); vm.issue("y1st")
    a(f"buffer_store_dwordx4 {V(yV+4,4)}, v{TP+2}, {S4(SWS)}, s{sT1} offen sc1"); vm.issue("y1st")
    prof("y1done")
def send_id():
    L = a.newlabel("L_id")
    a(f"s_cmp_lg_u32 s{sW}, 0")
    a(f"s_cbranch_scc1 {L}")
    a(f"s_lshl_b32 s{sT0}, s{sG}, 3")
    a(f"v_add_u32 v{vT1}, s{sT0}, v{vLANE}")
    a(f"v_and_b32 v{vT2}, 8, v{vLANE}")
    a(f"v_lshlrev_b32 v{vT0}, 1, v{vT2}")
    a(f"v_sub_u32 v{vT1}, v{vT1}, v{vT0}")
    a(f"v_lshlrev_b32 v{vT1}, {MB_SH}, v{vT1}")
    a(f"v_lshl_add_u32 v{vT1}, v{vT2}, 7, v{vT1}")
    a(f"s_lshl_b32 s{sT0}, s{sJ}, 7")
    a(f"s_add_u32 s{sT0}, s{sT0}, {MB_OFF + MB_ID}")
    a(f"v_add_u32 v{vT1}, s{sT0}, v{vT1}")
    a(f"v_mov_b32 v216, s{sN}")
    a(f"v_mov_b32 v217, s{sN+1}")
    a(f"v_mov_b32 v218, s{sXCC}")
    a(f"v_mov_b32 v219, 0")
    a(f"s_mov_b32 s{sT1}, 0xffff")
    a(f"s_cmp_eq_u32 s{sG}, 0")
    a(f"s_cselect_b32 exec_lo, 0xff, s{sT1}")
    a("s_mov_b32 exec_hi, 0")
    a(f"buffer_store_dwordx4 {V(216,4)}, v{vT1}, {S4(SWS)}, 0 offen sc1")
    a("s_mov_b64 exec, -1")
    a.flush()
    a.label(L)
S1SIG = f"""s_lshl_b32 s{sT0}, s{sJY}, 5
v_add_u32 v{vT1}, s{sT0}, v{vLANE}
v_lshlrev_b32 v{vT1}, {MB_SH}, v{vT1}
s_lshl_b32 s{sT0}, s{sG}, 7
s_add_u32 s{sT0}, s{sT0}, {MB_OFF + MB_S1}
v_add_u32 v{vT1}, s{sT0}, v{vT1}"""
vOH = 212
def o_groups(ooff):
    def mk(n):
        pr, h = n // 2, n % 2
        def g():
            if n == 0:
                k_reset()
                a(f"v_add_u32 v{vOH}, s{sW16K}, v{vD2}")
                a(f"v_xor_b32 v{vOH+1}, 64, v{vOH}")
                a(f"v_add_u32 v{vOH+1}, 8192, v{vOH+1}")
                a(f"s_lshl_b32 s{sB0}, s{sW}, 11")
            if h == 0: a(f"s_add_u32 s{sB1}, s{sXo}, {ooff}")
            a(f"s_add_u32 m0, s{sB0}, {OIMG + pr*8192 + h*1024}")
            a(f"buffer_load_dwordx4 v{vOH+h}, {S4(SWS)}, s{sB1} offen{LSC} lds"); vm.issue(("o", n // 4))
            if h == 1:
                a(f"s_add_u32 s{sXo}, s{sXo}, 128")
                a(f"s_and_b32 s{sXo}, s{sXo}, 1023")
        return g
    return [mk(n) for n in range(16)]

a(f"s_mov_b32 s{sW3K}, s{sT3}")
a(f"s_mov_b32 s{sW64}, s{sT4}")
a(f"s_mov_b32 s{sL0}, 0x00010001")
a(f"s_mov_b32 s{sL0+1}, 0x00010001")
a(f"s_getreg_b32 s{sXCC}, hwreg(HW_REG_XCC_ID)")
a(f"s_and_b32 s{sXCC}, s{sXCC}, 0xff")
a(f"s_mov_b32 s{sLOC}, 0")
a(f"s_mov_b32 s{sLOC2}, 0")
prof("start")
DEPTH = ENV("WDEPTH", 4)
XDEPTH = ENV("XDEPTH", 4)
k_reset()
a(f"s_mov_b32 s{sXx}, s{sXo}")
for s in range(max(DEPTH, XDEPTH)):
    if s < XDEPTH:
        for g in dma_x_groups(s, SX): g()
    if s < DEPTH:
        for g in dma_w_groups(s): g()
        k_next()
if ENV("CODEPF", 1):
    a(f"s_getpc_b64 {S2(sEX)}")
    a.label("L_pc")
    a(f"s_lshr_b32 s{sT0}, s{sB}, 3")
    a(f"s_lshl_b32 s{sT0}, s{sT0}, 2")
    a(f"s_add_u32 s{sT0}, s{sT0}, s{sW}")
    a(f"s_lshl_b32 s{sT0}, s{sT0}, 8")
    a(f"v_and_b32 v{vT0}, 1, v{vLANE}")
    a(f"v_lshl_add_u32 v{vT0}, v{vT0}, 7, s{sT0}")
    a.raw(f"    v_min_u32 v{vT0}, L_end-L_pc, v{vT0}")
    a(f"global_load_dword v216, v{vT0}, {S2(sEX)}"); vm.issue("cpf")
a(f"s_or_b32 s{sT2}, s{sL}, s{sW}")
a(f"s_cmp_lg_u32 s{sT2}, 0")
a("s_cbranch_scc1 L_nonce_done")
a(f"s_memrealtime {S2(sN)}")
a("s_waitcnt lgkmcnt(0)")
a(f"s_or_b32 s{sN+1}, s{sN+1}, 0x80000000")
a(f"s_andn2_b32 s{sN}, s{sN}, 1")
a(f"v_mov_b32 v{vP0}, s{sN}")
a(f"v_mov_b32 v{vP0+1}, s{sN+1}")
a(f"v_mov_b32 v{vT0}, 0")
a("s_mov_b64 exec, 1")
a(f"buffer_store_dwordx2 {V(vP0,2)}, v{vT0}, {S4(SDBG)}, 0 offen sc1")
a("s_mov_b64 exec, -1")
a.flush()
a.label("L_nonce_done")

def x_reads(s, buf):
    out = []
    base, off = (vFR, s*5*1024) if s < 8 else (vA1, (s-8)*5*1024)
    for t in range(5):
        out.append(ldsg(f"ds_read_b128 {V(vXA+20*buf+4*t,4)}, v{base} offset:{XIMG + off + t*1024}", ("xa", s)))
    base, off = (vS0, s*5120) if s < 8 else (vS1, (s-8)*5120)
    out.append(ldsg(f"ds_read_b128 {V(vSO+4*buf,4)}, v{base} offset:{XIMG + off}", ("xa", s)))
    if s % 4 == 3:
        out.append(ldsg(f"ds_read_b128 {V(vSHF,4)}, v{vSH} offset:{XIMG + (s//4)*20480}", ("xa", s)))
    return out

def mfmas(s, buf, with_cs, early=(), spread=()):
    first = (s == 0)
    def C(r): return "0" if first else V(r, 4)
    wq, wk, wv = A(12*s, 4), A(12*s+4, 4), A(12*s+8, 4)
    xa = lambda t: V(vXA + 20*buf + 4*t, 4)
    M = "v_mfma_f32_16x16x32_bf16"
    seq = []
    for t in range(5):
        seq.append(f"{M} {V(vKT+4*t,4)}, {wk}, {xa(t)}, {C(vKT+4*t)}")
        seq.append(f"{M} {V(vVV+4*t,4)}, {xa(t)}, {wv}, {C(vVV+4*t)}")
        if t: seq.append(f"{M} {V(vQT+4*(t-1),4)}, {wq}, {xa(t)}, {C(vQT+4*(t-1))}")
    if with_cs:
        seq = seq[2:] + [f"{M} {V(vCS,4)}, {wq}, {V(vONE,4)}, {C(vCS)}"] + seq[:2]
        for i in range(4):
            a(f"v_cndmask_b32 v{vXA+20*buf+i}, v{vXA+20*buf+i}, v{vONE}, {S2(sL0)}")
    so = V(vSO + 4*buf, 4)
    seq.append(f"{M} {V(vST,4)}, {V(vONE,4)}, {so}, {C(vST)}")
    seq.append(f"{M} {V(vST+4,4)}, {so}, {so}, {C(vST+4)}")
    if s % 4 == 3:
        c0 = "0" if s == 3 else None
        seq.append(f"{M} {V(vST+8,4)}, {V(vONE,4)}, {V(vSHF,4)}, {c0 or V(vST+8,4)}")
        seq.append(f"{M} {V(vST+12,4)}, {V(vSHF,4)}, {V(vSHF,4)}, {c0 or V(vST+12,4)}")
    a.weave(seq, list(early), list(spread))

Y1LD, Y1AT, S1AT = ENV("Y1LD", -1), ENV("Y1AT", 5), ENV("S1AT", 11)
if Y1LD < 0: y1_loads()
for s in range(16):
    vm.wait(("x", s), ("w", s), ("h", s // 4))
    if s == S1AT: vm.wait("y1st", "nonce")
    barrier()
    flx = dma_x_groups(s + XDEPTH, SX) if s + XDEPTH < 16 else []
    fl = (dma_w_groups(s + DEPTH) + [k_next]) if s + DEPTH < 16 else []
    if s == 0:
        for g in flx + fl: g()
    if s == 3:
        a(f"v_mov_b32 v{vT0}, 0")
        a(f"buffer_load_dwordx2 {V(vNL,2)}, v{vT0}, {S4(SDBG)}, 0 offen sc1"); vm.issue("nonce")
    if s == S1AT:
        a(f"v_readfirstlane_b32 s{sN}, v{vNL}")
        a(f"v_readfirstlane_b32 s{sN+1}, v{vNL+1}")
        a(f"s_cmp_eq_u32 s{sN+1}, 0")
        a("s_cbranch_scc1 L_s1_defer")
        signal(32, S1SIG)
        send_id()
        a.label("L_s1_defer")
    if s in (11, 12, 13): fl = fl + [wo_group(4*(s-11) + i) for i in range(4)]
    if s == 13: fl.append(h_group)
    TCH = ENV("TOUCH", 4)
    if s == 12 and TCH in (1, 2): fl.append(touch_tile(O1_OFF))
    if s == 14: fl = [wo_group(12 + i) for i in range(3)]
    if s == ENV("TO1AT", -1): fl = fl + [touch_tile(O1_OFF)]
    if s == 15 and TCH in (2, 3): fl = fl + [touch_tile(O3_OFF), touch_xs]
    fl = flx + fl
    rd = x_reads(s, s & 1)
    for p in range(3):
        for h in range(2):
            off = (s % NSLOT) * 12288 + p * 1024 + h * 6144
            rd.append(ldsg(f"ds_read_b64_tr_b16 {A(12*s+4*p+2*h,2)}, v{vTRW0 if off < 36864 else vTRW1} offset:{off % 36864}", ("xa", s)))
    if s > 0: mfmas(s - 1, (s - 1) & 1, True, rd, fl)
    else:
        for g in rd: g()
    lg.drain()
    if s == Y1LD: y1_loads()
    if s == Y1AT: y1_compute()
barrier()
wo_group(15)()
mfmas(15, 1, True)
prof("p1gemm")
a(f"s_cmp_lg_u32 s{sN+1}, 0")
a("s_cbranch_scc1 L_nonce_ok")
a(f"v_mov_b32 v{vT0}, 0")
a.flush()
a.label("L_nonce_chk")
a(f"buffer_load_dwordx2 {V(vNL,2)}, v{vT0}, {S4(SDBG)}, 0 offen sc1")
a("s_waitcnt vmcnt(0)")
a(f"v_readfirstlane_b32 s{sN}, v{vNL}")
a(f"v_readfirstlane_b32 s{sN+1}, v{vNL+1}")
a(f"s_cmp_eq_u32 s{sN+1}, 0")
a("s_cbranch_scc1 L_nonce_chk")
signal(32, S1SIG)
send_id()
a.label("L_nonce_ok")

vQb, vKb, vVb, vU = 160, 168, 178, 188
def ab_addr():
    a(f"s_mul_i32 s{sT0}, s{sW}, 640")
    a(f"s_add_u32 s{sT0}, s{sT0}, {ABW}")
    a(f"v_lshl_add_u32 v{vT0}, v{vLANE}, 2, s{sT0}")
    a(f"v_lshl_add_u32 v{vT1}, v{vL15}, 2, s{sT0}")
    a(f"v_lshl_add_u32 v{vT2}, v{vQ}, 4, s{sT0}")
def ab_write(T):
    ln_math([(T, T+1, T+10, T+11, T+12, T+13), (T+2, T+3, T+14, T+15, T+16, T+17)])
    a(f"ds_write2_b32 v{vT0}, v{T+10}, v{T+11} offset0:16 offset1:96")
    a(f"ds_write2_b32 v{vT1}, v{T+14}, v{T+15} offset0:0 offset1:80")
def stats_p1():
    T = 84
    prof("a0_begin")
    a(f"v_and_b32 v{vT0}, 48, v{vLANE}")
    a(f"v_lshlrev_b32 v{vT0}, 2, v{vT0}")
    a(f"v_lshlrev_b32 v{vT1}, 2, v{vL15}")
    for i in range(4): a(f"ds_bpermute_b32 v{vCS+4+i}, v{vT0}, v{vKT+i}")
    a(f"ds_bpermute_b32 v{vCS+8}, v{vT1}, v{vVV}")
    a(f"v_lshlrev_b32 v{vT0}, 3, v{vL15}")
    a(f"s_lshl_b32 s{sT0}, s{sW}, 7")
    a(f"v_add_u32 v{vT0}, s{sT0}, v{vT0}")
    a(f"v_add_u32 v{vT0}, {MISC}, v{vT0}")
    for i, m in ((1, 0x22222222), (2, 0x44444444), (3, 0x88888888)):
        a(f"s_mov_b32 s{sEX}, {hex(m)}")
        a(f"s_mov_b32 s{sEX+1}, {hex(m)}")
        for base in (vST, vST + 8):
            a(f"v_cndmask_b32 v{base+1}, v{base+4 if i == 1 else base+1}, v{base+4+i}, {S2(sEX)}")
    e = a.bg_pause()
    a("s_mov_b32 exec_lo, 0x00f0000f")
    a("s_mov_b32 exec_hi, 0xf0000f00")
    a(f"ds_write_b64 v{vT0}, {V(vST,2)}")
    a(f"ds_write_b64 v{vT0}, {V(vST+8,2)} offset:512")
    a("s_mov_b64 exec, -1")
    a.bg_resume(e)
    a(f"v_lshlrev_b32 v{vT0}, 3, v{vLANE}")
    a(f"v_add_u32 v{vT0}, {MISC}, v{vT0}")
    a(f"v_lshlrev_b32 v{vT1}, 3, v{vL15}")
    a(f"v_add_u32 v{vT1}, {MISC}, v{vT1}")
    a("s_waitcnt lgkmcnt(0)")
    barrier()
    a(f"ds_read_b64 {V(T,2)}, v{vT0}")
    for i in range(4):
        a(f"ds_read_b64 {V(T+2+2*i,2)}, v{vT1} offset:{512 + 128*i}")
    ab_addr()
    a("s_waitcnt lgkmcnt(0)")
    a(f"v_pk_add_f32 {V(T+2,2)}, {V(T+2,2)}, {V(T+4,2)}")
    a(f"v_pk_add_f32 {V(T+6,2)}, {V(T+6,2)}, {V(T+8,2)}")
    a(f"v_pk_add_f32 {V(T+2,2)}, {V(T+2,2)}, {V(T+6,2)}")
    ab_write(T)

def attn_core(name, kvt, qt, after_pv=None, qn=None):
    ab_addr()
    a("s_waitcnt lgkmcnt(0)")
    vAB, vAV = 84, 94
    for t in kvt:
        a(f"ds_read2_b32 {V(vAB+2*t,2)}, v{vT1} offset0:{16*t} offset1:{80+16*t}")
    for t in kvt:
        a(f"ds_read_b128 {V(vAV+8*t,4)}, v{vT2} offset:{64*t}")
        a(f"ds_read_b128 {V(vAV+8*t+4,4)}, v{vT2} offset:{320+64*t}")
    a(f"s_waitcnt lgkmcnt({2*len(kvt)})")
    def norm_qk(acc, cs, t, dst):
        ab = V(vAB + 2*t, 2)
        for h in range(2):
            a(f"v_pk_mul_f32 {V(vU+2*h,2)}, {V(cs+2*h,2)}, {ab} op_sel:[0,1] op_sel_hi:[1,1]")
            a(f"v_pk_fma_f32 {V(vU+2*h,2)}, {V(acc+2*h,2)}, {ab}, {V(vU+2*h,2)} op_sel:[0,0,0] op_sel_hi:[1,0,1]")
        for h in range(2):
            a(f"v_cvt_pk_bf16_f32 v{dst+h}, v{vU+2*h}, v{vU+2*h+1}")
    for t in kvt:
        norm_qk(vKT + 4*t, vCS + 4, t, vKb + 2*t)
        if t in (qt if qn is None else qn): norm_qk(vQT + 4*(t-1), vCS, t, vQb + 2*(t-1))
    n = len(qt)
    vSc, vSp = 16, 32
    for u, t in enumerate(qt):
        a(f"v_mfma_f32_16x16x16_bf16 {V(vSc+4*u,4)}, {V(vKb+2*t,2)}, {V(vQb+2*(t-1),2)}, 0")
        a(f"v_mfma_f32_16x16x16_bf16 {V(vSp+4*u,4)}, {V(vKb+2*(t-1),2)}, {V(vQb+2*(t-1),2)}, 0")
    a("s_waitcnt lgkmcnt(0)")
    for t in kvt:
        for h in range(2):
            a(f"v_pk_mul_f32 {V(vU+4+2*h,2)}, {V(vAV+8*t+4+2*h,2)}, {V(vCS+8,2)} op_sel:[0,0] op_sel_hi:[1,0]")
            a(f"v_pk_fma_f32 {V(vU+4+2*h,2)}, {V(vVV+4*t+2*h,2)}, {V(vAV+8*t+2*h,2)}, {V(vU+4+2*h,2)}")
        for h in range(2):
            a(f"v_cvt_pk_bf16_f32 v{vVb+2*t+h}, v{vU+4+2*h}, v{vU+4+2*h+1}")
    prof(f"{name}_norm")
    if 1 in qt:
        e = a.bg_pause()
        Ln = a.newlabel("L_nomask")
        a(f"s_cmp_lg_u32 s{sG}, 0")
        a(f"s_cbranch_scc1 {Ln}")
        a.flush()
        for i in range(4): a(f"v_mov_b32 v{vSp+i}, 0xf149f2ca")
        a.flush()
        a.label(Ln)
        a.bg_resume(e)
    vLg, vMx, vTm = 48, 56, 60
    R = range(n)
    for t in R:
        for i in range(2):
            a(f"v_cndmask_b32 v{vSc+4*t+2*i}, v{vSc+4*t+2*i}, v{vSc+4*t+2*i+1}, {PARM}")
            a(f"v_cndmask_b32 v{vSp+4*t+2*i}, v{vSp+4*t+2*i}, v{vSp+4*t+2*i+1}, {PARM}")
            a(f"v_cndmask_b32 v{vLg+2*t+i}, v{vSp+4*t+2*i}, v{vSc+4*t+2*i}, {MC[i]}")
        a(f"v_cvt_pk_bf16_f32 v{vLg+2*t+1}, v{vLg+2*t}, v{vLg+2*t+1}")
        a(f"v_lshlrev_b32 v{vLg+2*t}, 16, v{vLg+2*t+1}")
        a(f"v_and_b32 v{vLg+2*t+1}, 0xffff0000, v{vLg+2*t+1}")
        a(f"v_max_f32 v{vMx+t}, v{vLg+2*t}, v{vLg+2*t+1}")
    allreduce("v_max_f32", [vMx+t for t in R], [vTm+t for t in R])
    a(f"s_mov_b32 s{sT0}, 0x3eb8aa3b")
    for t in R:
        for i in range(2): a(f"v_sub_f32 v{vLg+2*t+i}, v{vLg+2*t+i}, v{vMx+t}")
    for t in R:
        for i in range(2): a(f"v_mul_f32 v{vLg+2*t+i}, s{sT0}, v{vLg+2*t+i}")
    for t in R:
        for i in range(2): a(f"v_exp_f32 v{vLg+2*t+i}, v{vLg+2*t+i}")
    for t in R: a(f"v_add_f32 v{vMx+t}, v{vLg+2*t}, v{vLg+2*t+1}")
    allreduce("v_add_f32", [vMx+t for t in R], [vTm+t for t in R])
    vPc, vPp = 16, 24
    for t in R: a(f"v_rcp_f32 v{vMx+t}, v{vMx+t}")
    for t in R:
        a(f"v_cndmask_b32 v{vTm}, v{vMx+t}, 0, {PARM}")
        a(f"v_cndmask_b32 v{vTm+1}, 0, v{vMx+t}, {PARM}")
        for i in range(2):
            a(f"v_mul_f32 v{vTm+2}, v{vLg+2*t+i}, v{vTm}")
            a(f"v_mul_f32 v{vTm+3}, v{vLg+2*t+i}, v{vTm+1}")
            a(f"v_cvt_pk_bf16_f32 v{vTm+2}, v{vTm+2}, v{vTm+3}")
            a(f"v_cndmask_b32 v{vPc+2*t+i}, 0, v{vTm+2}, {MC[i]}")
            a(f"v_cndmask_b32 v{vPp+2*t+i}, v{vTm+2}, 0, {MC[i]}")
    vO = 32
    for u, t in enumerate(qt):
        a(f"v_mfma_f32_16x16x16_bf16 {V(vO+4*u,4)}, {V(vVb+2*t,2)}, {V(vPc+2*u,2)}, 0")
    for u, t in enumerate(qt):
        a(f"v_mfma_f32_16x16x16_bf16 {V(vO+4*u,4)}, {V(vVb+2*(t-1),2)}, {V(vPp+2*u,2)}, {V(vO+4*u,4)}")
    prof(f"{name}_pv")
    a.bg_flush()
    if after_pv: after_pv()
    for t in R:
        a(f"v_cvt_pk_bf16_f32 v{48+2*t}, v{vO+4*t}, v{vO+4*t+1}")
        a(f"v_cvt_pk_bf16_f32 v{48+2*t+1}, v{vO+4*t+2}, v{vO+4*t+3}")

def id_load():
    a(f"s_add_u32 s{sB0}, s{sMB}, {MB_ID}")
    a(f"buffer_load_dwordx4 {V(208,4)}, v{vL128}, {S4(SWS)}, s{sB0} offen sc1"); vm.issue("idl")
def id_eval():
    vm.wait("idl")
    a(f"v_cmp_eq_u64 vcc, {S2(sN)}, {V(208,2)}")
    a(f"v_cmp_eq_u32 {S2(sEX)}, s{sXCC}, v210")
    a(f"s_and_b32 s{sT0}, vcc_lo, s{sEX}")
    a(f"s_and_b32 s{sT1}, s{sT0}, 0xff")
    a(f"s_cmp_eq_u32 s{sT1}, 0xff")
    a(f"s_cselect_b32 s{sLOC}, 1, 0")
    a(f"s_cmp_eq_u32 s{sG}, 31")
    a(f"s_cselect_b32 s{sT1}, 0xff00, 0")
    a(f"s_or_b32 s{sT0}, s{sT0}, s{sT1}")
    a(f"s_and_b32 s{sT0}, s{sT0}, 0xffff")
    a(f"s_cmp_eq_u32 s{sT0}, 0xffff")
    a(f"s_cselect_b32 s{sLOC2}, 1, 0")
def kvt_fetch():
    async_check(32, MB_S1, "s1")
    a(f"s_lshl_b32 s{sT0}, s{sL}, 13")
    a(f"s_lshl_b32 s{sT1}, s{sW}, 11")
    a(f"s_add_u32 s{sT0}, s{sT0}, s{sT1}")
    a(f"s_add_u32 s{sT0}, s{sT0}, {KVT_OFF}")
    a(f"s_lshr_b32 s{sT2}, s{sW}, 1")
    a(f"s_mul_i32 s{sT2}, s{sT2}, {URP - 4096}")
    a(f"s_add_u32 s{sT2}, s{sT2}, s{sT1}")
    a(f"s_add_u32 m0, s{sT2}, {UR}")
    a(f"buffer_load_dwordx4 v{vA0}, {S4(SWS)}, s{sT0} offen sc1 lds")
    a(f"buffer_load_dwordx4 v{vA0}, {S4(SWS)}, s{sT0} offen offset:1024 sc1 lds")

def attention0():
    stats_p1()
    attn_core("a0", [0, 1, 2, 3, 4], [1, 2, 3, 4], id_eval)
    tile_to_lds(48, 56, OT=OT1)
    a(f"s_add_u32 s{sT0}, s{sTILE}, {O1_OFF}")
    a(f"s_add_u32 s{sT1}, s{sT0}, 32768")
    o1st = [f"buffer_store_dwordx4 {V(56,4)}, v{vT0}, {S4(SWS)}, s{sT0} offen", f"buffer_store_dwordx4 {V(60,4)}, v{vT0}, {S4(SWS)}, s{sT1} offen"]
    if ENV("O1SC1", 0):
        for l in o1st: a(l + " sc1")
    else: st2(o1st, sLOC)
    a("s_waitcnt vmcnt(0)")
    barrier()
    signal(8, group_sig(MB_S2), True)
    kvt_fetch()
    prof("a0_done")

def pretouch():
    a(f"s_lshl_b32 s{sB0}, s{sW}, 11")
    a(f"s_add_u32 s{sB0}, s{sB0}, s{sMB}")
    a(f"s_add_u32 s{sB0}, s{sB0}, {MB_ST}")
    a(f"v_lshlrev_b32 v217, 7, v{vL15}")
    a(f"buffer_load_dword v216, v217, {S4(SWS)}, s{sB0} offen sc1"); vm.issue("pt")

nopg = lambda: a.rec.append(("l", None))
a.bg_start(([touch_tile(O1_OFF)] if ENV("TO1", 0) else []) + ([pretouch] if ENV("PRETOUCH", 2) else []) + [nopg] * 14 + [id_load, async_poll(MB_S1)], ENV("BGEVERY", 8))
attention0()
if STAGE <= 1: a("s_branch L_end")

vm.wait("h")
a(f"v_mov_b32 v160, 0\nv_mov_b32 v161, 0\nv_mov_b32 v162, 0\nv_mov_b32 v163, 0")
a(f"s_mov_b32 exec_lo, -1\ns_mov_b32 exec_hi, 0")
a(f"v_add_u32 v{vT2}, {UR + 4096}, v{vA0}")
a(f"ds_write_b128 v{vT2}, {V(160,4)}")
a(f"ds_write_b128 v{vT2}, {V(160,4)} offset:{URP}")
a(f"s_mov_b64 exec, 3")
a(f"v_add_u32 v{vT2}, {HC}, v{vA0}")
a(f"ds_write_b128 v{vT2}, {V(160,4)}")
a(f"ds_write_b128 v{vT2}, {V(160,4)} offset:{2*HCP}")
a(f"s_mov_b64 exec, 1")
a(f"ds_write_b128 v{vT2}, {V(160,4)} offset:{HCP}")
a(f"ds_write_b128 v{vT2}, {V(160,4)} offset:{3*HCP}")
a(f"s_mov_b64 exec, -1")
a(f"v_lshlrev_b32 v{vT0}, 4, v{vTID}")
a(f"v_add_u32 v{vT0}, {HC + 32}, v{vT0}")
a(f"v_cmp_eq_u32 vcc, 255, v{vTID}")
for c in range(2):
    b = yH + 8*c
    a(f"v_cndmask_b32 v{b+4}, v{b+4}, 0, vcc")
    a(f"ds_write_b128 v{vT0}, {V(b,4)} offset:{2*c*HCP}")
    for i in range(4): a(f"v_alignbit_b32 v{164+4*c+i}, v{b+i+1}, v{b+i}, 16")
    a(f"ds_write_b128 v{vT0}, {V(164+4*c,4)} offset:{(2*c+1)*HCP}")
a(f"v_cmp_eq_u32 vcc, 0, v{vTID}")
a(f"s_and_saveexec_b64 {S2(sEX)}, vcc")
a(f"v_mov_b32 v{vT2}, {HC}")
a(f"v_lshlrev_b32 v163, 16, v{yH}")
a(f"ds_write_b128 v{vT2}, {V(160,4)} offset:{HCP + 16}")
a(f"v_mov_b32 v172, 0\nv_mov_b32 v173, 0\nv_mov_b32 v174, 0")
a(f"v_lshlrev_b32 v175, 16, v{yH+8}")
a(f"ds_write_b128 v{vT2}, {V(172,4)} offset:{3*HCP + 16}")
a(f"s_mov_b64 exec, {S2(sEX)}")
yF, yG, yAcc, yFA, yGA = 16, 48, 84, 116, 120
a(f"v_add_u32 v{vT0}, 1, v{vL15}")
a(f"v_and_b32 v{vT0}, 30, v{vT0}")
a(f"v_lshlrev_b32 v{vT0}, 1, v{vT0}")
a(f"v_lshlrev_b32 v{vT1}, 4, v{vQ}")
a(f"v_sub_u32 v{vT0}, v{vT0}, v{vT1}")
a(f"v_mov_b32 v{vT1}, {HCP}")
a(f"v_cndmask_b32 v{vT1}, v{vT1}, 0, {PARM}")
a(f"v_add_u32 v{vT0}, v{vT0}, v{vT1}")
a(f"s_lshr_b32 s{sT0}, s{sW}, 1")
a(f"s_mul_i32 s{sT1}, s{sT0}, {2*HCP}")
a(f"s_and_b32 s{sT2}, s{sW}, 1")
a(f"s_lshl_b32 s{sT2}, s{sT2}, 8")
a(f"s_sub_u32 s{sT1}, s{sT1}, s{sT2}")
for ap in range(4):
    a(f"s_add_u32 s{sT3}, s{sT1}, {HC + 4080 - 512*(2*ap+1) - 192}")
    a(f"v_add_u32 v{yFA+ap}, s{sT3}, v{vT0}")
a(f"v_lshlrev_b32 v{vT0}, 5, v{vL15}")
a(f"v_lshl_add_u32 v{vT0}, v{vQ}, 4, v{vT0}")
a(f"s_mul_i32 s{sT1}, s{sT0}, {URP}")
a(f"s_sub_u32 s{sT1}, s{sT1}, s{sT2}")
a(f"s_add_u32 s{sT1}, s{sT1}, {UR + 8144 - 512*14 - 192}")
a(f"v_sub_u32 v{yGA}, s{sT1}, v{vT0}")
a("s_waitcnt vmcnt(0) lgkmcnt(0)")
barrier()
prof("y2start")
vm.reset()
vRA = 122
def res_loads():
    a(f"v_lshlrev_b32 v{vRA}, 10, v{vL15}")
    a(f"v_lshl_add_u32 v{vRA}, v{vQ}, 3, v{vRA}")
    a(f"s_lshl_b32 s{sB1}, s{sW}, 5")
    a(f"s_add_u32 s{sB1}, s{sB1}, s{sTILE}")
    for t in range(4):
        if t: a(f"s_add_u32 s{sB1}, s{sB1}, 16384")
        a(f"buffer_load_dwordx2 {V(vX2+2*t,2)}, v{vRA}, {S4(SX)}, s{sB1} offen"); vm.issue("res")
YB = [(16, 48), (144, 176)]
def y2_reads(rr):
    F, G = YB[rr & 1]
    out = []
    for aa in range(8):
        ap, hi = aa // 2, aa % 2
        off = ((1 - hi) * 512 + (3 - rr) * 64) // 4
        out.append(ldsg(f"ds_read2_b32 {V(F+4*aa,2)}, v{yFA+ap} offset0:{off} offset1:{off+1}", ("y", rr)))
        out.append(ldsg(f"ds_read2_b32 {V(F+4*aa+2,2)}, v{yFA+ap} offset0:{off+2} offset1:{off+3}", ("y", rr)))
    for bb in range(8):
        out.append(ldsg(f"ds_read_b128 {V(G+4*bb,4)}, v{yGA} offset:{(7-bb)*512 + (3-rr)*64}", ("y", rr)))
    return out
def wo_reads(lo, hi):
    return [ldsg(f"ds_read_b64_tr_b16 {A(192+4*s+2*h,2)}, v{vTR} offset:{WOIMG + s*4096 + h*2048}", "wot")
            for s in range(lo, hi) for h in range(2)]
lg.reset()
for g in y2_reads(0): g()
OG = o_groups(O1_OFF)
for rr in range(4):
    a("s_waitcnt lgkmcnt(0)"); lg.reset()
    F, G = YB[rr & 1]
    seq = []; started = set()
    for bb in range(8):
        for aa in range(8):
            c = 7 + bb - aa
            if 0 <= c <= 7:
                first = (rr == 0 and c not in started); started.add(c)
                seq.append(f"v_mfma_f32_16x16x32_bf16 {V(yAcc+4*c,4)}, {V(F+4*aa,4)}, {V(G+4*bb,4)}, {'0' if first else V(yAcc+4*c,4)}")
    nop = nopg
    OEARLY = ENV("OEARLY", 16)
    tch = [touch_tile(O3_OFF), touch_xs]
    if OEARLY:
        sp = {0: (tch if ENV("TPOS", 2) == 0 else []) + [res_loads, id_load], 1: [], 2: [async_poll(MB_S2)] + [nop] * 4, 3: OG[:OEARLY]}[rr]
        if rr == 3:
            id_eval()
            async_check(8, MB_S2, "o1")
    else:
        sp = {0: tch + [res_loads], 1: [], 2: [id_load], 3: [async_poll(MB_S2)] + [nop] * 4}[rr]
    early = (y2_reads(rr + 1) + wo_reads(3*rr, 3*rr+3)) if rr < 3 else wo_reads(9, 16)
    a.weave(seq, early, sp)
prof("y2mfma")
a("s_waitcnt lgkmcnt(0)")
barrier()
a(f"s_lshl_b32 s{sT0}, s{sW}, 12")
a(f"s_add_u32 s{sT0}, s{sT0}, {ACCX}")
a(f"v_add_u32 v{vT0}, s{sT0}, v{vA0}")
a(f"s_xor_b32 s{sT1}, s{sW}, 1")
a(f"s_lshl_b32 s{sT1}, s{sT1}, 12")
a(f"s_add_u32 s{sT1}, s{sT1}, {ACCX}")
a(f"v_add_u32 v{vT1}, s{sT1}, v{vA0}")
a(f"s_and_b32 s{sT2}, s{sW}, 1")
a(f"s_cmp_eq_u32 s{sT2}, 0")
a("s_cbranch_scc1 L_y2_even")
a.flush()
for i in range(4):
    a(f"ds_write_b128 v{vT0}, {V(yAcc+8*i,4)} offset:{1024*i}")
    for r in range(4): a(f"v_mov_b32 v{yF+4*i+r}, v{yAcc+8*i+4+r}")
a("s_branch L_y2_x")
a.label("L_y2_even")
a.flush()
for i in range(4):
    a(f"ds_write_b128 v{vT0}, {V(yAcc+8*i+4,4)} offset:{1024*i}")
    for r in range(4): a(f"v_mov_b32 v{yF+4*i+r}, v{yAcc+8*i+r}")
a.label("L_y2_x")
a(f"v_lshlrev_b32 v{vT0}, 5, v{vL15}")
a(f"v_lshl_add_u32 v{vT0}, v{vQ}, 3, v{vT0}")
a(f"s_lshr_b32 s{sT0}, s{sW}, 1")
a(f"s_mul_i32 s{sT1}, s{sT0}, {URP}")
a(f"s_lshl_b32 s{sT3}, s{sT2}, 9")
a(f"s_sub_u32 s{sT1}, s{sT1}, s{sT3}")
a(f"s_add_u32 s{sT1}, s{sT1}, {UR + 4088 - 3*1024}")
a(f"v_sub_u32 v{vT2}, s{sT1}, v{vT0}")
for i in range(4): a(f"ds_read_b64 {V(64+2*i,2)}, v{vT2} offset:{(3-i)*1024}")
a(f"s_lshl_b32 s{sT1}, s{sD}, 16")
a(f"s_and_b32 s{sT3}, s{sD}, 0xffff0000")
a(f"s_cmp_eq_u32 s{sT0}, 0")
a(f"s_cselect_b32 s{sT1}, s{sT1}, s{sT3}")
a(f"s_lshl_b32 s{sT3}, s{sL}, 1")
a(f"s_add_u32 s{sT3}, s{sT3}, s{sT0}")
a(f"s_lshl_b32 s{sT3}, s{sT3}, 12")
a(f"s_lshl_b32 s{sT4}, s{sT2}, 9")
a(f"s_add_u32 s{sT3}, s{sT3}, s{sT4}")
a(f"s_add_u32 s{sT3}, s{sT3}, {YT_OFF}")
a("s_waitcnt lgkmcnt(0)")
barrier()
for i in range(4): a(f"ds_read_b128 {V(yG+4*i,4)}, v{vT1} offset:{1024*i}")
for i in range(4):
    k0, u = 64 + 2*i, 144 + 4*i
    a(f"v_and_b32 v{u}, 0xffff0000, v{k0+1}")
    a(f"v_lshlrev_b32 v{u+1}, 16, v{k0+1}")
    a(f"v_and_b32 v{u+2}, 0xffff0000, v{k0}")
    a(f"v_lshlrev_b32 v{u+3}, 16, v{k0}")
    for r in range(4): a(f"v_mul_f32 v{u+r}, s{sT1}, v{u+r}")
    a(f"v_cvt_pk_bf16_f32 v{u}, v{u}, v{u+1}")
    a(f"v_cvt_pk_bf16_f32 v{u+2}, v{u+2}, v{u+3}")
    a(f"v_and_b32 v{u+1}, 0xffff0000, v{u}")
    a(f"v_lshlrev_b32 v{u}, 16, v{u}")
    a(f"v_and_b32 v{u+3}, 0xffff0000, v{u+2}")
    a(f"v_lshlrev_b32 v{u+2}, 16, v{u+2}")
a("s_waitcnt lgkmcnt(0)")
a.bg_flush()
for i in range(4):
    y, u = yF + 4*i, 144 + 4*i
    a(f"v_pk_add_f32 {V(y,2)}, {V(y,2)}, {V(yG+4*i,2)}")
    a(f"v_pk_add_f32 {V(y+2,2)}, {V(y+2,2)}, {V(yG+4*i+2,2)}")
    a(f"v_cvt_pk_bf16_f32 v{y}, v{y}, v{y+1}")
    a(f"v_cvt_pk_bf16_f32 v{y+2}, v{y+2}, v{y+3}")
    a(f"v_and_b32 v{y+1}, 0xffff0000, v{y}")
    a(f"v_lshlrev_b32 v{y}, 16, v{y}")
    a(f"v_and_b32 v{y+3}, 0xffff0000, v{y+2}")
    a(f"v_lshlrev_b32 v{y+2}, 16, v{y+2}")
    a(f"v_pk_add_f32 {V(y,2)}, {V(y,2)}, {V(u,2)}")
    a(f"v_pk_add_f32 {V(y+2,2)}, {V(y+2,2)}, {V(u+2,2)}")
    a(f"v_cvt_pk_bf16_f32 v{y}, v{y}, v{y+1}")
    a(f"v_cvt_pk_bf16_f32 v{y+1}, v{y+2}, v{y+3}")
    a(f"buffer_store_dwordx2 {V(y,2)}, v{vT0}, {S4(SWS)}, s{sT3} offen offset:{1024*i} sc1"); vm.issue("yst")
S3SIG = f"""s_lshr_b32 s{sT0}, s{sL}, 5
v_lshl_add_u32 v{vT1}, v{vLANE}, 3, s{sT0}
v_lshlrev_b32 v{vT1}, {MB_SH}, v{vT1}
s_and_b32 s{sT0}, s{sL}, 31
s_lshl_b32 s{sT0}, s{sT0}, 7
s_add_u32 s{sT0}, s{sT0}, {MB_OFF + MB_S3}
v_add_u32 v{vT1}, s{sT0}, v{vT1}"""
prof("y2st")
if ENV("TPOS", 2) == 2:
    touch_tile(O3_OFF)(); touch_xs()
if not OEARLY:
    id_eval()
    async_check(8, MB_S2, "o1")
for g in OG[OEARLY:max(8, OEARLY)]: g()
OREST = OG[max(8, OEARLY):]
prof("y2")
if STAGE <= 2:
    vm.drain()
    a("s_branch L_end")

vOB, vPA, vSt, vW = 120, 16, 72, 84
CB = MISC + 4096
MF = "v_mfma_f32_16x16x32_bf16"

def op_gemm(tiles, pre, fill={}):
    OFB = [32, 48, 144]
    items = [(s, t) for s in range(16) for t in tiles]
    units = [items[i:i+4] for i in range(0, len(items), 4)]
    def rd(u):
        return [ldsg(f"ds_read_b128 {V(OFB[u%3]+4*k,4)}, v{vOB + (s & 1)} offset:{(s//2)*8192 + t*2048}", ("of", u)) for k, (s, t) in enumerate(units[u])]
    for u in range(len(units)):
        if u in pre: pre[u]()
        if u == 0:
            for g in rd(0) + rd(1): g()
        lg.wait(("of", u))
        nxt = rd(u + 2) if u + 2 < len(units) else []
        seq = [f"{MF} {V(vPA+4*t,4)}, {A(192+4*s,4)}, {V(OFB[u%3]+4*k,4)}, {'0' if s == 0 else V(vPA+4*t,4)}" for k, (s, t) in enumerate(units[u])]
        a.weave(seq, nxt, fill.get(u, []))

def sums(c, dst):
    a(f"v_pk_add_f32 {V(vW,2)}, {V(c,2)}, {V(c+2,2)}")
    a(f"v_pk_mul_f32 {V(vW+2,2)}, {V(c,2)}, {V(c,2)}")
    a(f"v_pk_fma_f32 {V(vW+2,2)}, {V(c+2,2)}, {V(c+2,2)}, {V(vW+2,2)}")
    a(f"v_add_f32 v{dst}, v{vW}, v{vW+1}")
    a(f"v_add_f32 v{dst+1}, v{vW+2}, v{vW+3}")

def unpack(src, dst):
    a(f"v_lshlrev_b32 v{dst}, 16, v{src}")
    a(f"v_and_b32 v{dst+1}, 0xffff0000, v{src}")
    a(f"v_lshlrev_b32 v{dst+2}, 16, v{src+1}")
    a(f"v_and_b32 v{dst+3}, 0xffff0000, v{src+1}")

def ps_write(tiles, base):
    a(f"v_lshlrev_b32 v{vT2}, 9, v{vQ}")
    a(f"v_lshl_add_u32 v{vT2}, v{vL15}, 3, v{vT2}")
    a(f"s_lshl_b32 s{sT0}, s{sW}, 11")
    a(f"s_add_u32 s{sT0}, s{sT0}, {base}")
    a(f"v_add_u32 v{vT2}, s{sT0}, v{vT2}")
    for t in tiles: a(f"ds_write_b64 v{vT2}, {V(vSt+2*t,2)} offset:{128*t}")

def x1_stats(tiles, base):
    for t in tiles:
        c = vPA + 4*t
        a(f"v_cvt_pk_bf16_f32 v{c}, v{c}, v{c+1}")
        a(f"v_cvt_pk_bf16_f32 v{c+2}, v{c+2}, v{c+3}")
        a(f"v_and_b32 v{c+1}, 0xffff0000, v{c}")
        a(f"v_lshlrev_b32 v{c}, 16, v{c}")
        a(f"v_and_b32 v{c+3}, 0xffff0000, v{c+2}")
        a(f"v_lshlrev_b32 v{c+2}, 16, v{c+2}")
        unpack(vX2 + 2*t, vW)
        a(f"v_pk_add_f32 {V(c,2)}, {V(c,2)}, {V(vW,2)}")
        a(f"v_pk_add_f32 {V(c+2,2)}, {V(c+2,2)}, {V(vW+2,2)}")
        a(f"v_cvt_pk_bf16_f32 v64, v{c}, v{c+1}")
        a(f"v_cvt_pk_bf16_f32 v65, v{c+2}, v{c+3}")
        unpack(64, c)
        sums(c, vSt + 2*t)
    ps_write(tiles, base)

def tree(b, n):
    while n > 1:
        n //= 2
        for i in range(n): a(f"v_pk_add_f32 {V(b+2*i,2)}, {V(b+2*i,2)}, {V(b+2*(i+n),2)}")

def reduce16(base, R):
    a(f"v_lshlrev_b32 v{vT2}, 3, v{vLANE}")
    a(f"v_add_u32 v{vT2}, {base}, v{vT2}")
    for i in range(8): a(f"ds_read_b64 {V(R+2*i,2)}, v{vT2} offset:{512*i}")
    a("s_waitcnt lgkmcnt(0)")
    for i in range(8): a(f"ds_read_b64 {V(R+16+2*i,2)}, v{vT2} offset:{512*(8+i)}")
    tree(R, 8)
    a("s_waitcnt lgkmcnt(0)")
    tree(R + 16, 8)
    a(f"v_pk_add_f32 {V(R,2)}, {V(R,2)}, {V(R+16,2)}")
    a(f"v_mov_b32 v{R+2}, s{sN}")
    a(f"v_mov_b32 v{R+3}, s{sN+1}")

def peer_base(dst, mboff, slot_sh, nextgrp=False):
    a(f"s_lshl_b32 s{dst}, s{sG}, 3")
    a(f"s_lshl_b32 s{sT3}, s{sW}, 1")
    a(f"s_add_u32 s{dst}, s{dst}, s{sT3}")
    a(f"s_lshl_b32 s{dst}, s{dst}, {MB_SH}")
    a(f"s_lshl_b32 s{sT3}, s{sJ}, {slot_sh}")
    a(f"s_add_u32 s{dst}, s{dst}, s{sT3}")
    a(f"s_add_u32 s{dst}, s{dst}, {MB_OFF + mboff + (8 * MB_SZ if nextgrp else 0)}")

def gate(tiles, AB):
    for t in tiles:
        ab = V(AB(t), 2)
        x, y, u = vPA + 4*t, 32 + 8*t, 36 + 8*t
        unpack(vYY + 2*t, y)
        for h in range(2):
            a(f"v_pk_fma_f32 {V(u+2*h,2)}, {V(x+2*h,2)}, {ab}, {ab} op_sel:[0,0,1] op_sel_hi:[1,0,1]")
            a(f"v_pk_fma_f32 {V(u+2*h,2)}, {V(u+2*h,2)}, {V(y+2*h,2)}, {V(x+2*h,2)}")
        a(f"v_cvt_pk_bf16_f32 v{vX2+2*t}, v{u}, v{u+1}")
        a(f"v_cvt_pk_bf16_f32 v{vX2+2*t+1}, v{u+2}, v{u+3}")

lg.reset()
a(f"v_add_u32 v{vOB}, {OIMG}, v{vF2}")
a(f"v_xor_b32 v{vOB+1}, 64, v{vOB}")
def preg(i):
    def f():
        vm.wait(("o", i))
        if i == S3I: vm.wait("yst")
        barrier()
        if i == S3I: signal(32, S3SIG)
    return f
S3I = 0 if OEARLY < 4 else (2 if OEARLY < 16 else 3)
fl0 = {u: OREST[2*u:2*u+2] for u in range(4)}
if OEARLY and ENV("TPOS", 2) == 1: fl0[12] = [touch_tile(O3_OFF)]; fl0[14] = [touch_xs]
op_gemm([0, 1, 2, 3], {0: preg(0), 2: preg(1), 6: preg(2), 10: preg(3)}, fl0)
prof("p0_gemm")
x1_stats([0, 1, 2, 3], PS)
a("s_waitcnt lgkmcnt(0)")
barrier()
prof("p0_ps")
peer_base(sT0, MB_ST, 10)
a(f"s_add_u32 s{sT1}, s{sT0}, {MB_SZ}")
reduce16(PS, vW)
st2([f"buffer_store_dwordx4 {V(vW,4)}, v{vA0}, {S4(SWS)}, s{sT0} offen", f"buffer_store_dwordx4 {V(vW,4)}, v{vA0}, {S4(SWS)}, s{sT1} offen"], sLOC)
prof("p0_pub")
a(f"s_add_u32 s{sT0}, s{sMB}, {MB_ST}")
a(f"s_lshl_b32 s{sT1}, s{sW}, 11")
a(f"s_add_u32 s{sT0}, s{sT0}, s{sT1}")
a.flush()
a("s_branch L_pst0b")
a.label("L_pst0a")
a("s_sleep 1")
a.label("L_pst0b")
for i in range(2):
    a(f"buffer_load_dwordx4 {V(vW+4*i,4)}, v{vA0}, {S4(SWS)}, s{sT0} offen offset:{1024*i} sc1")
a("s_waitcnt vmcnt(0)")
a(f"v_cmp_ne_u64 vcc, {S2(sN)}, {V(vW+2,2)}")
a(f"v_cmp_ne_u64 {S2(sEX)}, {S2(sN)}, {V(vW+6,2)}")
a(f"s_or_b64 vcc, vcc, {S2(sEX)}")
a("s_cbranch_vccnz L_pst0a")
a(f"v_pk_add_f32 {V(vW,2)}, {V(vW,2)}, {V(vW+4,2)}")
a(f"s_lshl_b32 s{sT1}, s{sW}, 9")
a(f"s_add_u32 s{sT1}, s{sT1}, {CB}")
a(f"v_lshl_add_u32 v{vT1}, v{vLANE}, 3, s{sT1}")
a(f"ds_write_b64 v{vT1}, {V(vW,2)}")
poll(32, MB_S3, "s3")
prof("p0_s3")
a(f"v_lshrrev_b32 v{vT0}, 3, v{vLANE}")
a(f"v_lshlrev_b32 v{vT0}, 12, v{vT0}")
a(f"v_and_b32 v{vT1}, 7, v{vLANE}")
a(f"v_lshl_add_u32 v{vT0}, v{vT1}, 4, v{vT0}")
a(f"s_lshl_b32 s{sT0}, s{sJ}, 18")
a(f"s_lshl_b32 s{sT1}, s{sG}, 7")
a(f"s_add_u32 s{sT0}, s{sT0}, s{sT1}")
a(f"s_lshl_b32 s{sT1}, s{sW}, 16")
a(f"s_add_u32 s{sT0}, s{sT0}, s{sT1}")
a(f"s_add_u32 s{sT0}, s{sT0}, {YT_OFF}")
a(f"s_lshl_b32 s{sT1}, s{sW}, 11")
a(f"s_add_u32 m0, s{sT1}, {YTT}")
a(f"buffer_load_dwordx4 v{vT0}, {S4(SWS)}, s{sT0} offen sc1 lds")
a(f"s_add_u32 s{sT0}, s{sT0}, 32768")
a(f"s_add_u32 m0, s{sT1}, {YTT + 1024}")
a(f"buffer_load_dwordx4 v{vT0}, {S4(SWS)}, s{sT0} offen sc1 lds")
a(f"v_lshlrev_b32 v{vT1}, 3, v{vL15}")
a(f"v_add_u32 v{vT1}, {CB}, v{vT1}")
a("s_waitcnt lgkmcnt(0)")
barrier()
prof("p0_stats")
if ENV("TPOS", 2) == 3: touch_xs()
for t in range(4):
    for i in range(4): a(f"ds_read_b64 {V(vW+8*t+2*i,2)}, v{vT1} offset:{512*i + 128*t}")
a("s_waitcnt lgkmcnt(0)")
for t in range(4): tree(vW + 8*t, 4)
ln_math([(vW+8*t, vW+8*t+1, vW+8*t+2, vW+8*t+3, vW+8*t+4, vW+8*t+5) for t in range(4)])
a(f"v_lshrrev_b32 v{vT1}, 2, v{vLANE}")
a(f"v_lshlrev_b32 v{vT1}, 7, v{vT1}")
a(f"v_and_b32 v{vT2}, 3, v{vLANE}")
a(f"v_lshl_add_u32 v{vT1}, v{vT2}, 3, v{vT1}")
a(f"s_lshl_b32 s{sT0}, s{sW}, 11")
a(f"s_add_u32 s{sT0}, s{sT0}, {YTT}")
a(f"v_add_u32 v{vT1}, s{sT0}, v{vT1}")
a("s_waitcnt vmcnt(0)")
for t in range(4): a(f"ds_read_b64_tr_b16 {V(vYY+2*t,2)}, v{vT1} offset:{32*t}")
a("s_waitcnt lgkmcnt(0)")
gate([0, 1, 2, 3], lambda t: vW + 8*t + 2)
def x2_stats():
    for t in range(4):
        unpack(vX2 + 2*t, 32 + 4*t)
        sums(32 + 4*t, vSt + 2*t)
    ps_write([0, 1, 2, 3], YTT)
tile_to_lds(vX2, 144, 4, x2_stats)
prof("p0_epi")
a(f"s_add_u32 s{sT1}, s{sTILE}, 32768")
st2([f"buffer_store_dwordx4 {V(144,4)}, v{vT0}, {S4(SX2)}, s{sTILE} offen", f"buffer_store_dwordx4 {V(148,4)}, v{vT0}, {S4(SX2)}, s{sT1} offen"], sLOC)
a(f"s_lshl_b32 s{sB0}, s{sG}, 14")
a(f"s_lshl_b32 s{sB1}, s{sJ}, 7")
a(f"s_add_u32 s{sB0}, s{sB0}, s{sB1}")
a(f"s_add_u32 s{sB0}, s{sB0}, {HL_OFF}")
a(f"s_cmp_ge_u32 s{sW}, 2")
a(f"s_cselect_b32 s{sB1}, {-16384 & 0xffffffff}, 0x40000000")
a(f"v_add_u32 v152, s{sB1}, v{vT0}")
reduce16(YTT, vW)
peer_base(sT0, MB_XS, 9)
a(f"s_add_u32 s{sT1}, s{sT0}, {MB_SZ}")
peer_base(sT2, MB_XH - 384, 7, True)
a(f"s_add_u32 s{sT4}, s{sT2}, {MB_SZ}")
a(f"v_lshlrev_b32 v{vT0}, 3, v{vLANE}")
st2([f"buffer_store_dwordx2 {V(vW,2)}, v{vT0}, {S4(SWS)}, s{sT0} offen", f"buffer_store_dwordx2 {V(vW,2)}, v{vT0}, {S4(SWS)}, s{sT1} offen"], sLOC)
a(f"buffer_store_dwordx4 {V(148,4)}, v152, {S4(SWS)}, s{sB0} offen sc1")
a("s_mov_b32 exec_lo, 0\ns_mov_b32 exec_hi, 0xffff0000")
a(f"buffer_store_dwordx2 {V(vW,2)}, v{vT0}, {S4(SWS)}, s{sT2} offen sc1")
a(f"buffer_store_dwordx2 {V(vW,2)}, v{vT0}, {S4(SWS)}, s{sT4} offen sc1")
a("s_mov_b64 exec, -1")
vXT = [196, 197, 198, 199, 200]
vF3 = 204
sWm = sW3K
a(f"s_and_b32 s{sT3}, s{sW}, 1")
a(f"s_lshl_b32 s{sWm}, s{sT3}, 6")
a(f"v_xor_b32 v{vXT[1]}, s{sWm}, v{vD2}")
a(f"s_lshl_b32 s{sWm}, s{sT3}, 13")
a(f"v_add_u32 v{vXT[1]}, s{sWm}, v{vXT[1]}")
a(f"s_mul_i32 s{sB0}, s{sG}, {-49152 & 0xffffffff}")
a(f"s_add_u32 s{sB0}, s{sB0}, {HL_OFF - 16384}")
a(f"s_cmp_eq_u32 s{sG}, 0")
a(f"s_cselect_b32 s{sB0}, 0x40000000, s{sB0}")
a(f"v_add_u32 v{vXT[0]}, s{sB0}, v{vXT[1]}")
for t in (2, 3, 4): a(f"v_add_u32 v{vXT[t]}, {16384*(t-1)}, v{vXT[1]}")
a(f"s_lshr_b32 s{sWm}, s{sW}, 1")
a(f"s_mul_i32 s{sWm}, s{sWm}, 10240")
a(f"s_lshl_b32 s{sT3}, s{sT3}, 10")
a(f"s_add_u32 s{sWm}, s{sWm}, s{sT3}")
a(f"v_mov_b32 v{vF3}, v{vF2}")
a(f"v_xor_b32 v{vF3+1}, 64, v{vF2}")
a(f"v_add_u32 v{vF3+2}, 40960, v{vF3}")
a(f"v_add_u32 v{vF3+3}, 40960, v{vF3+1}")
a("s_waitcnt vmcnt(3)")
barrier()
signal(8, group_sig(MB_S5), True)
prof("p0_done")
if STAGE <= 3:
    vm.drain()
    a("s_branch L_end")

a(f"s_cmp_eq_u32 s{sG}, 0")
a(f"s_cselect_b32 s{sT2}, 0, -1")
poll(8, MB_S5, "x2")
prof("p3_wait")
vm.reset(); lg.reset()
def dma3(tiles, i, tag):
    def g():
        a(f"s_and_b32 s{sB0}, s{sW}, 2")
        a(f"s_add_u32 s{sB0}, s{sB0}, s{sKK0}")
        if i: a(f"s_add_u32 s{sB0}, s{sB0}, {4*i}")
        a(f"s_and_b32 s{sB0}, s{sB0}, 15")
        a(f"s_lshl_b32 s{sB0}, s{sB0}, 6")
        for t in tiles:
            a(f"s_add_u32 m0, s{sWm}, {XIMG + (10*i + t)*2048}")
            a(f"buffer_load_dwordx4 v{vXT[t]}, {S4(SX2 if t else SWS)}, s{sB0} offen{LSC} lds"); vm.issue((tag, i))
    return g
TA, TB = ([1, 2, 3, 4], [0]) if ENV("MONO", 1) else ([2, 3, 4], [0, 1])
for i in range(2): dma3(TA, i, "xA")()
a(f"v_lshlrev_b32 v{vT0}, 3, v{vLANE}")
a(f"s_lshl_b32 s{sT1}, s{sW}, 10")
a(f"s_add_u32 s{sT0}, s{sMB}, s{sT1}")
a(f"s_add_u32 s{sT0}, s{sT0}, {MB_XS}")
for i in range(2):
    a(f"buffer_load_dwordx2 {V(144+2*i,2)}, v{vT0}, {S4(SWS)}, s{sT0} offen offset:{512*i} sc1"); vm.issue("xs")
def cb_addr():
    a(f"s_mul_i32 s{sT1}, s{sW}, 640")
    a(f"s_add_u32 s{sT1}, s{sT1}, {CB}")
    a(f"v_lshl_add_u32 v{vT1}, v{vLANE}, 3, s{sT1}")
def xs_partial():
    vm.wait("xs")
    a(f"v_add_f32 v144, v144, v146")
    a(f"v_add_f32 v145, v145, v147")
    cb_addr()
    a(f"ds_write_b64 v{vT1}, {V(144,2)} offset:128")
    a("s_waitcnt lgkmcnt(0)"); lg.reset()
def xh_load():
    a(f"v_lshlrev_b32 v217, 3, v{vLANE}")
    a(f"s_lshl_b32 s{sB0}, s{sW}, 8")
    a(f"s_add_u32 s{sB0}, s{sB0}, s{sMB}")
    a(f"s_add_u32 s{sB0}, s{sB0}, {MB_XH}")
    a(f"buffer_load_dwordx2 {V(208,2)}, v217, {S4(SWS)}, s{sB0} offen sc1"); vm.issue("xh")
def xh_partial():
    vm.wait("xh")
    a(f"v_and_b32 v208, s{sT2}, v208")
    a(f"v_and_b32 v209, s{sT2}, v209")
    a(f"v_mov_b32 v210, v208")
    a(f"v_mov_b32 v211, v209")
    a(f"v_permlane16_swap_b32 v208, v210")
    a(f"v_permlane16_swap_b32 v209, v211")
    a(f"v_add_f32 v208, v208, v210")
    a(f"v_add_f32 v209, v209, v211")
    cb_addr()
    a("s_mov_b32 exec_lo, 0xffff\ns_mov_b32 exec_hi, 0")
    a(f"ds_write_b64 v{vT1}, {V(208,2)}")
    a("s_mov_b64 exec, -1")

def qkv_pass(tiles, qt, pre, fill, depth=2):
    n = len(tiles)
    B = lambda s: vXA + 4 * n * (s % (depth + 1))
    def rd(s):
        base, off = vF3 + (s & 1) + (2 if s >= 8 else 0), ((s % 8) // 2) * 10240
        return [ldsg(f"ds_read_b128 {V(B(s)+4*u,4)}, v{base} offset:{XIMG + off + t*2048}", ("xa", s)) for u, t in enumerate(tiles)]
    restarts = sorted(k for k, v in pre.items() if v[1])
    issued = set()
    can = lambda a_, b_: not any(a_ < r <= b_ for r in restarts)
    for s in range(16):
        if s in pre: pre[s][0]()
        if s in restarts:
            for d in range(depth):
                for g in rd(s + d): g()
                issued.add(s + d)
        lg.wait(("xa", s))
        nxt = []
        if s + depth < 16 and (s + depth) not in issued and can(s, s + depth):
            nxt = rd(s + depth); issued.add(s + depth)
        C = lambda r: "0" if s == 0 else V(r, 4)
        wq, wk, wv = A(12*s, 4), A(12*s+4, 4), A(12*s+8, 4)
        seq = []
        for u, t in enumerate(tiles):
            xa = V(B(s) + 4*u, 4)
            seq.append(f"{MF} {V(vKT+4*t,4)}, {wk}, {xa}, {C(vKT+4*t)}")
            seq.append(f"{MF} {V(vVV+4*t,4)}, {xa}, {wv}, {C(vVV+4*t)}")
            if t in qt: seq.append(f"{MF} {V(vQT+4*(t-1),4)}, {wq}, {xa}, {C(vQT+4*(t-1))}")
        a.weave(seq, nxt, fill.get(s, []))

def wb(tag):
    def f():
        prof(f"pre_{tag[0]}{tag[1]}")
        vm.wait(tag); barrier()
        prof(f"wb_{tag[0]}{tag[1]}")
    return f
def ab_fill(halo):
    R, AD = 144, 158
    def rd():
        a(f"v_lshlrev_b32 v{AD}, 3, v{vL15 if halo else vLANE}")
        a(f"v_add_u32 v{AD}, {CB}, v{AD}")
        for i in range(4):
            a(f"ds_read_b64 {V(R+2*i,2)}, v{AD} offset:{640*i + (0 if halo else 128)}"); lg.issue("abr")
    def math():
        for (d, s_) in ((0, 2), (1, 3), (4, 6), (5, 7), (0, 4), (1, 5)):
            a(f"v_add_f32 v{R+d}, v{R+d}, v{R+s_}")
        ln_math([(R, R+1, R+10, R+11, R+12, R+13)])
        a(f"s_mul_i32 s{sB1}, s{sW}, 640")
        a(f"s_add_u32 s{sB1}, s{sB1}, {ABW}")
        a(f"v_lshl_add_u32 v{AD}, v{vL15 if halo else vLANE}, 2, s{sB1}")
        a(f"ds_write2_b32 v{AD}, v{R+10}, v{R+11} offset0:{0 if halo else 16} offset1:{80 if halo else 96}"); lg.issue("abw")
    return rd, math
HALOSIG = f"""s_lshl_b32 s{sT0}, s{sG}, 3
s_add_u32 s{sT0}, s{sT0}, 8
v_add_u32 v{vT1}, s{sT0}, v{vLANE}
v_lshlrev_b32 v{vT1}, {MB_SH}, v{vT1}
s_lshl_b32 s{sT0}, s{sJ}, 7
s_add_u32 s{sT0}, s{sT0}, {MB_OFF + MB_S5 + 1024}
v_add_u32 v{vT1}, s{sT0}, v{vT1}"""
def wb0():
    vm.wait(("xA", 0)); barrier()
    signal(8, HALOSIG)
def wb10():
    xs_partial(); vm.wait(("xA", 3)); barrier()
def halo_ready():
    L = a.newlabel("L_h0")
    vm.wait("apoll")
    a(f"s_cmp_eq_u32 s{sG}, 0")
    a(f"s_cbranch_scc1 {L}")
    async_check(8, MB_S5 + 1024, "halo")
    a.label(L)
    a(f"s_xor_b32 s{sN}, s{sN}, 1")
preA = {0: (wb0, True), 2: (wb(("xA", 1)), False), 6: (wb(("xA", 2)), False), 10: (wb10, False)}
fillA = {0: [dma3(TA, 2, "xA")], 2: [dma3(TA, 3, "xA")]}
if 1 not in TA:
    for i in range(4): fillA[4 + 2*i] = [dma3([1], i, "xB")]
if ENV("MONO", 1):

    abr, abm = ab_fill(False)
    mu = a.record([abm])
    HCHK = ENV("HCHK", 11)
    fillA[HCHK - 2] = fillA.get(HCHK - 2, []) + [async_poll(MB_S5 + 1024)]
    preA[HCHK] = (halo_ready, False)
    for i in range(4): fillA[HCHK + i] = fillA.get(HCHK + i, []) + [dma3([0], i, "xH")]
    fillA[HCHK + 3] += [xh_load]
    fillA[11] = fillA.get(11, []) + [abr]
    fillA[14] = fillA.get(14, []) + [lambda: a.rec.extend(it for u in mu[:13] for it in u)]
    fillA[15] = fillA.get(15, []) + [lambda: a.rec.extend(it for u in mu[13:] for it in u)]
    qkv_pass(TA, [1, 2, 3, 4], preA, fillA)
    prof("p3_gemmA")
    abr2, abm2 = ab_fill(True)
    mu2 = a.record([abm2])
    fillB = {0: [abr2]}
    for k in range(9):
        fillB[7 + k] = [lambda k=k: a.rec.extend(it for u in mu2[3*k:3*k+3] for it in u)]
    def preB():
        xh_partial()
        a("s_waitcnt lgkmcnt(0)"); lg.reset()
        barrier()
    qkv_pass(TB, [], {0: (preB, True)}, fillB, depth=6)
    prof("p3_gemmB")
    attn_core("a1", [0, 1, 2, 3, 4], [1, 2, 3, 4])
    tile_to_lds(48, 56)
    a(f"s_add_u32 s{sT0}, s{sTILE}, {O3_OFF}")
    a(f"s_add_u32 s{sT1}, s{sT0}, 32768")
    st2([f"buffer_store_dwordx4 {V(56,4)}, v{vT0}, {S4(SWS)}, s{sT0} offen", f"buffer_store_dwordx4 {V(60,4)}, v{vT0}, {S4(SWS)}, s{sT1} offen"], sLOC)
    a(f"v_add_u32 v{vOB}, {OIMG}, v{vF2}")
    a(f"v_xor_b32 v{vOB+1}, 64, v{vOB}")
    vm.drain()
    barrier()
    signal(8, group_sig(MB_S6A), True)
    prof("a1_done")
    poll(8, MB_S6A, "o3")
    prof("p4_owait")
    vm.reset(); lg.reset()
    OG3 = o_groups(O3_OFF)
    for g in OG3[:8]: g()
    op_gemm([0, 1, 2, 3], {0: wb(("o", 0)), 2: wb(("o", 1)), 6: wb(("o", 2)), 10: wb(("o", 3))}, {u: OG3[8+2*u:10+2*u] for u in range(4)})
    prof("p4_gemm")
    x1_stats([0, 1, 2, 3], HC)
    a("s_waitcnt lgkmcnt(0)")
    barrier()
    peer_base(sT0, MB_ST, 10)
    a(f"s_add_u32 s{sT1}, s{sT0}, {MB_SZ}")
    reduce16(HC, vW)
    st2([f"buffer_store_dwordx4 {V(vW,4)}, v{vA0}, {S4(SWS)}, s{sT0} offen", f"buffer_store_dwordx4 {V(vW,4)}, v{vA0}, {S4(SWS)}, s{sT1} offen"], sLOC)
    prof("p4_pub")
    a(f"s_add_u32 s{sT0}, s{sMB}, {MB_ST}")
    a(f"s_lshl_b32 s{sT1}, s{sW}, 11")
    a(f"s_add_u32 s{sT0}, s{sT0}, s{sT1}")
    a.flush()
    a("s_branch L_pst1b")
    a.label("L_pst1a")
    a("s_sleep 1")
    a.label("L_pst1b")
    for i in range(2):
        a(f"buffer_load_dwordx4 {V(vW+4*i,4)}, v{vA0}, {S4(SWS)}, s{sT0} offen offset:{1024*i} sc1")
    a("s_waitcnt vmcnt(0)")
    a(f"v_cmp_ne_u64 vcc, {S2(sN)}, {V(vW+2,2)}")
    a(f"v_cmp_ne_u64 {S2(sEX)}, {S2(sN)}, {V(vW+6,2)}")
    a(f"s_or_b64 vcc, vcc, {S2(sEX)}")
    a("s_cbranch_vccnz L_pst1a")
    a(f"v_pk_add_f32 {V(vW,2)}, {V(vW,2)}, {V(vW+4,2)}")
    a(f"s_lshl_b32 s{sT1}, s{sW}, 9")
    a(f"s_add_u32 s{sT1}, s{sT1}, {CB}")
    a(f"v_lshl_add_u32 v{vT1}, v{vLANE}, 3, s{sT1}")
    a(f"ds_write_b64 v{vT1}, {V(vW,2)}")
    a(f"v_lshlrev_b32 v{vT1}, 3, v{vL15}")
    a(f"v_add_u32 v{vT1}, {CB}, v{vT1}")
    a("s_waitcnt lgkmcnt(0)")
    barrier()
    prof("p4_stats")
    for t in range(4):
        for i in range(4): a(f"ds_read_b64 {V(vW+8*t+2*i,2)}, v{vT1} offset:{512*i + 128*t}")
    a(f"v_and_b32 v{vT0}, 1, v{vQ}")
    a(f"v_lshl_add_u32 v{vT0}, v{vT0}, 4, v{vL15}")
    a(f"v_lshlrev_b32 v{vT0}, 10, v{vT0}")
    a(f"v_lshrrev_b32 v{vT2}, 1, v{vQ}")
    a(f"v_lshl_add_u32 v{vT0}, v{vT2}, 4, v{vT0}")
    a(f"s_lshl_b32 s{sT1}, s{sW}, 5")
    a(f"s_add_u32 s{sT1}, s{sT1}, s{sTILE}")
    a(f"s_add_u32 s{sT2}, s{sT1}, 32768")
    a("s_waitcnt lgkmcnt(0)")
    for t in range(4): tree(vW + 8*t, 4)
    ln_math([(vW+8*t, vW+8*t+1, vW+8*t+2, vW+8*t+3, vW+8*t+4, vW+8*t+5) for t in range(4)])
    gate([0, 1, 2, 3], lambda t: vW + 8*t + 2)
    for h in range(2):
        b = vX2 + 4*h
        a(f"v_permlane16_swap_b32 v{b}, v{b+2}")
        a(f"v_permlane16_swap_b32 v{b+1}, v{b+3}")
        a(f"buffer_store_dwordx4 {V(b,4)}, v{vT0}, {S4(SOUT)}, s{sT2 if h else sT1} offen")
    prof("final")
else:
    fillA[12] = [async_poll(MB_S5 + 1024)]
    abr, abm = ab_fill(False)
    fillA[11] = [abr]
    mu = a.record([abm])
    fillA[14] = [lambda: a.rec.extend(it for u in mu[:13] for it in u)]
    fillA[15] = [lambda: a.rec.extend(it for u in mu[13:] for it in u)]
    qkv_pass(TA, [2, 3, 4], preA, fillA)
    prof("p3_gemmA")
    halo_ready()
    a.bg_start([dma3([0], i, "xH") for i in range(4)] + [xh_load], 3)
    attn_core("a1A", TA, [3, 4], qn=[2, 3, 4])
    def o_store(h):
        tile_to_lds(48, 56, 2)
        a(f"s_add_u32 s{sT0}, s{sTILE}, {O3_OFF + 32768*h}")
        st2([f"buffer_store_dwordx4 {V(56,4)}, v{vT0}, {S4(SWS)}, s{sT0} offen"], sLOC, [("ost", h)])
    xh_partial()
    H1, H2 = 1, 0
    o_store(H1)
    prof("a1A_done")
    def sigA():
        vm.wait(("ost", H1)); barrier(); signal(8, group_sig(MB_S6A), True)
    abr, abm = ab_fill(True)
    mu2 = a.record([abm])
    fillB = {1: [abr]}
    for k in range(4):
        fillB[8 + k] = [lambda k=k: a.rec.extend(it for u in mu2[7*k:7*k+7] for it in u)]
    lg.reset()
    qkv_pass(TB, [1], {0: (lambda: None, True), 6: (sigA, False)}, fillB)
    prof("p3_gemmB")
    vOD = 201
    def oh_groups(h):
        def mk(i):
            def g():
                if i == 0:
                    a(f"s_lshr_b32 s{sB0}, s{sW}, 1")
                    a(f"s_lshl_b32 s{sB1}, s{sB0}, 14")
                    a(f"v_add_u32 v{vOD+h}, s{sB1}, v{vXT[1 + 2*h]}")
                    k_reset()
                a(f"s_add_u32 s{sB1}, s{sXo}, {O3_OFF}")
                a(f"s_add_u32 m0, s{sW1K}, {OIMG + 8192*i + 4096*h}")
                a(f"buffer_load_dwordx4 v{vOD+h}, {S4(SWS)}, s{sB1} offen{LSC} lds"); vm.issue(("o", h))
                a(f"s_add_u32 s{sXo}, s{sXo}, 128")
                a(f"s_and_b32 s{sXo}, s{sXo}, 1023")
            return g
        return [mk(i) for i in range(8)]
    a.bg_start([async_poll(MB_S6A)], 60)
    def fetch_o0():
        async_check(8, MB_S6A, "o3a")
        for g in oh_groups(H1): g()
    attn_core("a1B", TB, [1, 2], fetch_o0, qn=[1])
    o_store(H2)
    prof("a1B_done")

    PS1 = HC
    def publish_half(h):
        a(f"v_and_b32 v{vT2}, 31, v{vLANE}")
        a(f"v_lshlrev_b32 v{vT2}, 3, v{vT2}")
        a(f"v_lshrrev_b32 v{vT1}, 5, v{vLANE}")
        a(f"v_lshl_add_u32 v{vT0}, v{vT1}, 12, v{vT2}")
        a(f"v_add_u32 v{vT0}, {PS1 + 256*h}, v{vT0}")
        for i in range(8): a(f"ds_read_b64 {V(vW+2*i,2)}, v{vT0} offset:{512*i}")
        peer_base(sT0, MB_ST + 512*h, 10)
        a(f"v_lshlrev_b32 v{vT2}, 1, v{vT2}")
        a(f"v_lshl_add_u32 v{vT2}, v{vT1}, {MB_SH}, v{vT2}")
        a("s_waitcnt lgkmcnt(0)")
        tree(vW, 8)
        a(f"v_mov_b32 v{vW+2}, v{vW}")
        a(f"v_mov_b32 v{vW+3}, v{vW+1}")
        a(f"v_permlane32_swap_b32 v{vW}, v{vW+2}")
        a(f"v_permlane32_swap_b32 v{vW+1}, v{vW+3}")
        a(f"v_pk_add_f32 {V(vW,2)}, {V(vW,2)}, {V(vW+2,2)}")
        a(f"v_mov_b32 v{vW+2}, s{sN}")
        a(f"v_mov_b32 v{vW+3}, s{sN+1}")
        st2([f"buffer_store_dwordx4 {V(vW,4)}, v{vT2}, {S4(SWS)}, s{sT0} offen"], sLOC)
    def poll_half(h):
        a(f"v_and_b32 v{vT2}, 31, v{vLANE}")
        a(f"v_lshlrev_b32 v{vT2}, 4, v{vT2}")
        a(f"v_lshrrev_b32 v{vT1}, 5, v{vLANE}")
        a(f"v_lshl_add_u32 v{vT1}, v{vT1}, 10, v{vT2}")
        a(f"s_lshl_b32 s{sT1}, s{sW}, 11")
        a(f"s_add_u32 s{sT0}, s{sMB}, s{sT1}")
        a(f"s_add_u32 s{sT0}, s{sT0}, {MB_ST + 512*h}")
        L0, L1 = a.newlabel("L_ph"), a.newlabel("L_ph")
        a.flush()
        a(f"s_branch {L1}")
        a.label(L0)
        a("s_sleep 1")
        a.label(L1)
        a(f"buffer_load_dwordx4 {V(vW,4)}, v{vT1}, {S4(SWS)}, s{sT0} offen sc1")
        a("s_waitcnt vmcnt(0)")
        a(f"v_cmp_ne_u64 vcc, {S2(sN)}, {V(vW+2,2)}")
        a(f"s_cbranch_vccnz {L0}")
        vm.reset()
        a(f"v_mov_b32 v{vW+2}, v{vW}")
        a(f"v_mov_b32 v{vW+3}, v{vW+1}")
        a(f"v_permlane32_swap_b32 v{vW}, v{vW+2}")
        a(f"v_permlane32_swap_b32 v{vW+1}, v{vW+3}")
        a(f"v_pk_add_f32 {V(vW,2)}, {V(vW,2)}, {V(vW+2,2)}")
        a(f"s_lshl_b32 s{sT1}, s{sW}, 8")
        a(f"s_add_u32 s{sT1}, s{sT1}, {CB + 1024*h}")
        a(f"v_lshrrev_b32 v{vT2}, 1, v{vT2}")
        a(f"v_add_u32 v{vT2}, s{sT1}, v{vT2}")
        a(f"ds_write_b64 v{vT2}, {V(vW,2)}")
        a("s_waitcnt lgkmcnt(0)")
        barrier()
    def finish_half(h):
        T = [2*h, 2*h + 1]
        a(f"v_lshlrev_b32 v{vT1}, 3, v{vL15}")
        a(f"v_add_u32 v{vT1}, {CB + 1024*h}, v{vT1}")
        for u in range(2):
            for i in range(4): a(f"ds_read_b64 {V(vW+8*u+2*i,2)}, v{vT1} offset:{256*i + 128*u}")
        a("s_waitcnt lgkmcnt(0)")
        for u in range(2): tree(vW + 8*u, 4)
        ln_math([(vW+8*u, vW+8*u+1, vW+8*u+2, vW+8*u+3, vW+8*u+4, vW+8*u+5) for u in range(2)])
        gate(T, lambda t: vW + 8*(t - 2*h) + 2)
        b = vX2 + 4*h
        a(f"v_permlane16_swap_b32 v{b}, v{b+2}")
        a(f"v_permlane16_swap_b32 v{b+1}, v{b+3}")
        a(f"v_and_b32 v{vT0}, 1, v{vQ}")
        a(f"v_lshl_add_u32 v{vT0}, v{vT0}, 4, v{vL15}")
        a(f"v_lshlrev_b32 v{vT0}, 10, v{vT0}")
        a(f"v_lshrrev_b32 v{vT1}, 1, v{vQ}")
        a(f"v_lshl_add_u32 v{vT0}, v{vT1}, 4, v{vT0}")
        a(f"s_lshl_b32 s{sT1}, s{sW}, 5")
        a(f"s_add_u32 s{sT1}, s{sT1}, s{sTILE}")
        if h: a(f"s_add_u32 s{sT1}, s{sT1}, 32768")
        a(f"buffer_store_dwordx4 {V(b,4)}, v{vT0}, {S4(SOUT)}, s{sT1} offen")

    lg.reset()
    a(f"v_add_u32 v{vOB}, {OIMG}, v{vF2}")
    a(f"v_xor_b32 v{vOB+1}, 64, v{vOB}")
    def pre40():
        vm.wait(("o", H1), ("ost", H2)); barrier(); signal(8, group_sig(MB_S6B), True)
    TH = lambda h: [2*h, 2*h + 1]
    op_gemm(TH(H1), {0: pre40})
    prof("p4_gemm0")
    x1_stats(TH(H1), PS1)
    a("s_waitcnt lgkmcnt(0)")
    barrier()
    publish_half(H1)
    prof("p4_pub0")
    poll(8, MB_S6B, "o3b")
    prof("p4_owait")
    for g in oh_groups(H2): g()
    poll_half(H1)
    prof("p4_st0")
    lg.reset()
    op_gemm(TH(H2), {})
    x1_stats(TH(H2), PS1)
    a("s_waitcnt lgkmcnt(0)")
    barrier()
    publish_half(H2)
    prof("p4_pub1")
    finish_half(H1)
    prof("p4_fin0")
    poll_half(H2)
    prof("p4_st1")
    finish_half(H2)
    prof("final")
a.label("L_end")
a("s_endpgm")
a.raw('.section .rodata,"a"')
a.raw(kernel_desc(NAME, 512, 102, 256))
out = sys.argv[1] if len(sys.argv) > 1 else "interleave_layers__sliding_local_dilated__ssm_conv_h3__prompt.s"
open(out, "w").write(a.text())
print("wrote", out, "lines", len(a.lines), "pad states", a.npad)
```
